```python
import torch

def _softmax(x, axis=-1):
    return torch.softmax(x, dim=axis)
def _gelu(x):
    return torch.nn.functional.gelu(x, approximate="tanh")
def _silu(x):
    return torch.nn.functional.silu(x)
def _sigmoid(x):
    return torch.sigmoid(x)
def _layernorm(x, axis=-1, eps=1e-5):
    m = x.mean(dim=axis, keepdim=True)
    v = x.var(dim=axis, keepdim=True, unbiased=False)
    return (x - m) / torch.sqrt(v + eps)
def _scatter_add(tgt, idx, src, axis=0):
    return tgt.clone().index_add_(axis, idx, src)
def _segment_sum(src, seg, n):
    out = torch.zeros((n,) + src.shape[1:], dtype=src.dtype)
    return out.index_add_(0, seg, src)
def _pad(x, pw):
    flat = tuple(v for pair in reversed(pw) for v in pair)
    return torch.nn.functional.pad(x, flat)

kernel_name = 'parallel_sum__mha_block__glu_gated_reglu__prompt'

def setup_inputs():

    _w = (lambda a: (lambda t: t.to(torch.bfloat16) if t.is_floating_point() else t)(torch.as_tensor(a)))
    def _A_setup():
        B, S, D, H = 1, 2048, 640, 32
        return {
            "x": _w((lambda *s: torch.randn(*s, dtype=torch.bfloat16) * 0.05)(B, S, D)),
            "wqkv": _w((lambda *s: torch.randn(*s, dtype=torch.bfloat16) * 0.05)(D, 3 * D)),
            "wo": _w((lambda *s: torch.randn(*s, dtype=torch.bfloat16) * 0.05)(D, D)),
        }
    _A_in = _A_setup()

    def _B_setup():
        B, S, D, F = 1, 2048, 640, 1536
        return {
            "x": _w((lambda *s: torch.randn(*s, dtype=torch.bfloat16) * 0.05)(B, S, D)),
            "W_gate": _w((lambda *s: torch.randn(*s, dtype=torch.bfloat16) * 0.4)(D, F) * (2.0 / D) ** 0.5),
            "W_up": _w((lambda *s: torch.randn(*s, dtype=torch.bfloat16) * 0.4)(D, F) * (2.0 / D) ** 0.5),
            "W_down": _w((lambda *s: torch.randn(*s, dtype=torch.bfloat16) * 0.4)(F, D) * (1.0 / F) ** 0.5),
        }
    _B_in = _B_setup()

    return {
        "A_x": _A_in["x"],
        "A_wqkv": _A_in["wqkv"],
        "A_wo": _A_in["wo"],
        "B_x": _B_in["x"],
        "B_W_gate": _B_in["W_gate"],
        "B_W_up": _B_in["W_up"],
        "B_W_down": _B_in["W_down"],
    }

def reference(A_x, A_wqkv, A_wo, B_x, B_W_gate, B_W_up, B_W_down):
    def _A_ref(x, wqkv, wo):
        B, S, D = x.shape
        H = 32
        Dh = D // H
        qkv = (lambda x, *d: x.permute(*d))((x @ wqkv).reshape(B, S, 3, H, Dh), 2, 0, 3, 1, 4)
        q, k, v = qkv[0], qkv[1], qkv[2]
        scores = torch.einsum("bhqd,bhkd->bhqk", q, k) * (Dh ** -0.5)
        p = _softmax(scores, axis=-1)
        o = torch.einsum("bhqk,bhkd->bhqd", p, v)
        return (lambda x, *d: x.permute(*d))(o, 0, 2, 1, 3).reshape(B, S, D) @ wo

    def _B_ref(x, W_gate, W_up, W_down):
        gate = torch.einsum("bsd,df->bsf", x, W_gate)
        up = torch.einsum("bsd,df->bsf", x, W_up)
        gate = gate * (lambda x, dt: x.to(dt))(gate > 0, gate.dtype)
        h = gate * up
        return torch.einsum("bsf,fd->bsd", h, W_down)

    x = A_x
    xn = _layernorm(x, axis=-1)
    return x + _A_ref(xn, A_wqkv, A_wo) + _B_ref(xn, B_W_gate, B_W_up, B_W_down)
```

```python
class Asm:
    def __init__(self):
        self.lines = []
    def __call__(self, s):
        for l in s.strip("\n").split("\n"):
            l = l.strip()
            if not l: continue
            if l.endswith(":") or l.startswith("."):
                self.lines.append(l)
            else:
                self.lines.append("    " + l)
    def text(self):
        return "\n".join(self.lines) + "\n"

def vr(a, n=1):
    return f"v{a}" if n == 1 else f"v[{a}:{a+n-1}]"
def sr(a, n=1):
    return f"s{a}" if n == 1 else f"s[{a}:{a+n-1}]"

QF = 0x0
KF = 0x280000
VF = 0x500000
AF = 0x780000
BF = 0x1000000
MBO = 0x1300000
RIO = 0x1302000
CSO = 0x1304000
YY = 0x1400000
WS_BYTES = 0x10000000

def kernel_header(a, name):
    a(f"""
.globl {name}
.p2align 8
.type {name},@function
{name}:
""")

def kernel_desc(name, vgpr, sgpr=102, accum=None):
    if accum is None:
        accum = (vgpr + 3) // 4 * 4
    return f""".p2align 6
.amdhsa_kernel {name}
  .amdhsa_next_free_vgpr {vgpr}
  .amdhsa_next_free_sgpr {sgpr}
  .amdhsa_accum_offset {accum}
  .amdhsa_group_segment_fixed_size 0
  .amdhsa_kernarg_size 80
  .amdhsa_user_sgpr_count 2
  .amdhsa_user_sgpr_kernarg_segment_ptr 1
  .amdhsa_system_sgpr_workgroup_id_x 1
.end_amdhsa_kernel
"""

def srd(a, d, lo, hi, size):
    a(f"""
s_mov_b32 s{d}, s{lo}
s_mov_b32 s{d+1}, s{hi}
s_mov_b32 s{d+2}, {size}
s_mov_b32 s{d+3}, 0x00020000
""")
```

```python
from asmlib import *

QA, QAT, QB, QBT = 8, 12, 16, 20
SA, SB = 24, 40
PA, PB = 56, 64
OA, OB = 72, 88
KB = 104
VB = 136
NB = 4
MA, MB = 168, 169
T0 = 170
NVGPR = 184

MFMA = "v_mfma_f32_32x32x16_bf16"

def attn_kernel(a, name, prof=False, var=''):
    kernel_header(a, name)
    if prof:
        a('s_memtime s[40:41]\ns_memrealtime s[48:49]')
    a(f"""
s_cmp_ge_u32 s2, 256
s_cbranch_scc1 LA_end
s_load_dwordx2 s[4:5], s[0:1], 72
v_and_b32 v1, 63, v0
v_lshrrev_b32 v2, 6, v0
s_nop 0
v_readfirstlane_b32 s20, v2
s_and_b32 s21, s2, 7
s_lshl_b32 s21, s21, 2
s_lshr_b32 s22, s2, 3
s_and_b32 s23, s22, 3
s_add_u32 s21, s21, s23              ; head
s_lshr_b32 s22, s2, 5                ; qblock (0..7)
s_and_b32 s23, s20, 3                ; qsub
s_lshr_b32 s24, s20, 2               ; khalf
s_waitcnt lgkmcnt(0)
s_mov_b32 s8, s4
s_mov_b32 s9, s5
s_mov_b32 s10, {WS_BYTES}
s_mov_b32 s11, 0x00020000
s_mul_i32 s25, s21, {64*1280}
s_lshl_b32 s26, s22, 3
s_lshl_b32 s27, s23, 1
s_add_u32 s26, s26, s27              ; qtile a
s_mul_i32 s27, s26, 1280
s_add_u32 s27, s27, s25
s_mul_i32 s28, s24, {32*1280}
s_add_u32 s28, s28, s25
s_add_u32 s29, s28, {VF}
s_add_u32 s28, s28, {KF}
v_lshlrev_b32 v3, 4, v1
v_and_b32 v4, 31, v1
v_lshrrev_b32 v5, 5, v1              ; h
v_lshlrev_b32 v6, 3, v4
v_lshl_add_u32 v6, v5, 2, v6
v_add_u32 v6, 1024, v6
v_mul_u32_u24 v7, 320, v5
v_lshl_add_u32 v7, v4, 4, v7         ; V: h*320 + d*16
; load Q
buffer_load_dwordx4 {vr(QA,4)}, v3, s[8:11], s27 offen
buffer_load_dword {vr(QAT)}, v6, s[8:11], s27 offen
buffer_load_dwordx4 {vr(QB,4)}, v3, s[8:11], s27 offen offset:1280
buffer_load_dword {vr(QBT)}, v6, s[8:11], s27 offen offset:1280
s_mov_b32 s30, 0
s_mov_b32 s12, 0x000FFFFF
s_mov_b32 s13, 0x000FFFFF
s_mov_b32 s14, 0xFFFFFFFF
s_mov_b32 s15, 0
v_mov_b32 {vr(T0)}, 0x3f803f80
v_cmp_eq_u32 vcc, 20, v4
s_nop 1
v_cndmask_b32 {vr(T0+1)}, 0, {vr(T0)}, vcc
""")
    for i in range(NB):
        a(f"v_mov_b32 {vr(KB+8*i+5)}, {vr(T0)}")
        a(f"v_mov_b32 {vr(KB+8*i+6)}, {vr(T0)}")
        a(f"v_mov_b32 {vr(KB+8*i+7)}, 0")
    if 'x' in var:
        for j in range(184, 216): a(f"v_mov_b32 v{j}, 0")
    a("LA_restart:")
    for q in (QAT, QBT):
        for j in (1, 2, 3):
            a(f"v_mov_b32 {vr(q+j)}, 0")
    def rowmax(S, M, init):
        if init:
            a(f"v_max3_f32 {vr(M)}, {vr(S)}, {vr(S+1)}, {vr(S+2)}")
            a(f"v_max_f32 {vr(M)}, {vr(M)}, {vr(S+3)}")
            st = 4
        else:
            st = 0
        for j in range(st, 16, 2):
            a(f"v_max3_f32 {vr(M)}, {vr(M)}, {vr(S+j)}, {vr(S+j+1)}")
    def qk(S, Qm, Qt, kb):
        a(f"{MFMA} {vr(S,16)}, {vr(KB+8*kb,4)}, {vr(Qm,4)}, 0")
        a(f"{MFMA} {vr(S,16)}, {vr(KB+8*kb+4,4)}, {vr(Qt,4)}, {vr(S,16)}")
    def loadK(kb, soff, imm=0):
        a(f"buffer_load_dwordx4 {vr(KB+8*kb,4)}, v3, s[8:11], {soff} offen offset:{imm}")
        a(f"buffer_load_dword {vr(KB+8*kb+4)}, v6, s[8:11], {soff} offen offset:{imm}")
    def loadV(vb, soff, imm=0):
        a("s_mov_b64 exec, s[12:13]")
        a(f"buffer_load_dwordx4 {vr(VB+8*vb,4)}, v7, s[8:11], {soff} offen offset:{imm}")
        a(f"buffer_load_dwordx4 {vr(VB+8*vb+4,4)}, v7, s[8:11], {soff} offen offset:{imm+640}")
        a("s_mov_b64 exec, -1")
    a(f"""
s_cmp_eq_u32 s30, 0
s_cbranch_scc1 LA_pro
v_mov_b32 {vr(MA)}, 0xff800000
v_mov_b32 {vr(MB)}, 0xff800000
s_mov_b32 s31, s28
s_mov_b32 s32, 32
LA_maxloop:
""")
    loadK(0, "s31")
    a("s_waitcnt vmcnt(0)")
    qk(SA, QA, QAT, 0)
    qk(SB, QB, QBT, 0)
    a("s_nop 15")
    a("s_nop 3")
    rowmax(SA, MA, False)
    rowmax(SB, MB, False)
    a(f"""
s_add_u32 s31, s31, 1280
s_sub_u32 s32, s32, 1
s_cmp_lg_u32 s32, 0
s_cbranch_scc1 LA_maxloop
LA_pro:
""")
    for i in range(NB):
        for j in range(8):
            a(f"v_mov_b32 {vr(VB+8*i+j)}, {vr(T0+1)}")
    loadK(0, "s28", 0)
    loadK(1, "s28", 1280)
    loadV(0, "s29", 0)
    loadK(2, "s28", 2560)
    loadV(1, "s29", 1280)
    a(f"s_add_u32 s31, s28, {3*1280}")
    loadK(3, "s31", 0)
    loadV(2, "s29", 2560)
    for j in range(16):
        a(f"v_mov_b32 {vr(OA+j)}, 0")
        a(f"v_mov_b32 {vr(OB+j)}, 0")
    for j in range(8):
        a(f"v_mov_b32 {vr(PB+j)}, 0")
    a(f"""
s_cmp_lg_u32 s30, 0
s_waitcnt vmcnt(12)
s_cbranch_scc1 LA_setm
""")
    qk(SA, QA, QAT, 0)
    qk(SB, QB, QBT, 0)
    a("s_nop 15")
    a("s_nop 3")
    rowmax(SA, MA, True)
    rowmax(SB, MB, True)
    a("LA_setm:")
    for (M, QT) in ((MA, QAT), (MB, QBT)):
        t, u, w = T0+2, T0+3, T0+4
        a(f"""
v_mov_b32 {vr(t)}, {vr(M)}
v_mov_b32 {vr(u)}, {vr(M)}
s_nop 1
v_permlane32_swap_b32 {vr(t)}, {vr(u)}
s_nop 1
v_max_f32 {vr(M)}, {vr(t)}, {vr(u)}
v_sub_f32 {vr(t)}, 0, {vr(M)}                 ; -M
v_and_b32 {vr(u)}, 0xffff0000, {vr(t)}        ; hi
v_sub_f32 {vr(t)}, {vr(t)}, {vr(u)}           ; r
v_and_b32 {vr(w)}, 0xffff0000, {vr(t)}        ; mid
v_sub_f32 {vr(t)}, {vr(t)}, {vr(w)}           ; lo
v_lshrrev_b32 {vr(u)}, 16, {vr(u)}
v_or_b32 {vr(u)}, {vr(u)}, {vr(w)}
v_lshrrev_b32 {vr(t)}, 16, {vr(t)}
v_cndmask_b32 {vr(QT+1)}, 0, {vr(u)}, s[14:15]
v_cndmask_b32 {vr(QT+2)}, 0, {vr(t)}, s[14:15]
""")
    a("s_nop 1")
    qk(SA, QA, QAT, 0)
    a(f"""
s_add_u32 s31, s28, {4*1280}
s_add_u32 s33, s29, {3*1280}
s_mov_b32 s32, 8
s_nop 7
""")
    if prof:
        a("s_memtime s[42:43]\ns_waitcnt lgkmcnt(0)")
    a(".p2align 6\nLA_loop:")
    def phase(Sx, Px, Sy, Py, Oy, Qy, Qyt, kb, vb, mid=None, post=None, pre=None):
        e = lambda j: a(f"v_exp_f32 {vr(Sx+j)}, {vr(Sx+j)}")
        c = lambda j: a(f"v_cvt_pk_bf16_f32 {vr(Px+j)}, {vr(Sx+2*j)}, {vr(Sx+2*j+1)}")
        if pre: pre()
        a(f"{MFMA} {vr(Sy,16)}, {vr(KB+8*kb,4)}, {vr(Qy,4)}, 0")
        e(0); e(1); e(2); e(3)
        if 'noqk1' not in var: a(f"{MFMA} {vr(Sy,16)}, {vr(KB+8*kb+4,4)}, {vr(Qyt,4)}, {vr(Sy,16)}")
        if mid: mid()
        c(0); c(1); e(4); e(5); e(6); e(7)
        if 'nopv' not in var: a(f"{MFMA} {vr(Oy,16)}, {vr(VB+8*vb,4)}, {vr(Py,4)}, {vr(Oy,16)}")
        c(2); c(3); e(8); e(9); e(10); e(11)
        if 'nopv' not in var: a(f"{MFMA} {vr(Oy,16)}, {vr(VB+8*vb+4,4)}, {vr(Py+4,4)}, {vr(Oy,16)}")
        if post: post()
        c(4); c(5); e(12); e(13)
        if 'x1' in var or 'x2' in var: a(f"{MFMA} v[184:199], {vr(KB+8*kb,4)}, {vr(KB+8*((kb+1)%4),4)}, v[184:199]")
        e(14); e(15); c(6); c(7)
        if 'x2' in var: a(f"{MFMA} v[200:215], {vr(KB+8*((kb+2)%4),4)}, {vr(KB+8*((kb+3)%4),4)}, v[200:215]")
    for u in range(NB):
        def mid(u=u):
            if 'noload' in var: return
            loadK(u, "s31")
            a("s_add_u32 s31, s31, 1280")
        def post(u=u):
            if 'noload' in var: return
            if 'noexec' in var:
                vb = (u+3) % NB
                a(f"buffer_load_dwordx4 {vr(VB+8*vb,4)}, v7, s[8:11], s33 offen offset:0")
                a(f"buffer_load_dwordx4 {vr(VB+8*vb+4,4)}, v7, s[8:11], s33 offen offset:640")
            else:
                loadV((u+3) % NB, "s33")
            a("s_add_u32 s33, s33, 1280")
        phase(SA, PA, SB, PB, OB, QB, QBT, u, (u+3) % NB, mid, post)
        phase(SB, PB, SA, PA, OA, QA, QAT, (u+1) % NB, u, pre=lambda: a("s_waitcnt vmcnt(12)"))
    a(f"""
s_sub_u32 s32, s32, 1
s_cmp_lg_u32 s32, 0
s_cbranch_scc1 LA_loop
{MFMA} {vr(OB,16)}, {vr(VB+8*3,4)}, {vr(PB,4)}, {vr(OB,16)}
{MFMA} {vr(OB,16)}, {vr(VB+8*3+4,4)}, {vr(PB+4,4)}, {vr(OB,16)}
s_waitcnt vmcnt(0)
s_nop 15
""")
    if prof:
        a("s_memtime s[44:45]\ns_waitcnt lgkmcnt(0)")
    t = T0+2
    a(f"v_add_f32 {vr(t)}, abs({vr(OA)}), abs({vr(OB)})")
    for j in range(1, 12):
        a(f"v_add_f32 {vr(t)}, {vr(t)}, abs({vr(OA+j)})")
        a(f"v_add_f32 {vr(t)}, {vr(t)}, abs({vr(OB+j)})")
    a(f"""
lv_placeholder
""".replace("lv_placeholder", f"v_mov_b32 {vr(t+1)}, 0x71800000"))
    a(f"""
v_cmp_nlt_f32 vcc, {vr(t)}, {vr(t+1)}
s_cmp_lg_u32 s30, 0
s_cbranch_scc1 LA_comb
s_nop 2
s_cmp_eq_u64 vcc, 0
s_cbranch_scc1 LA_comb
s_mov_b32 s30, 1
s_branch LA_restart
LA_comb:
""")
    a(f"""
v_lshlrev_b32 {vr(t)}, 2, v1
s_lshl_b32 s34, s20, 12
v_add_u32 {vr(t)}, s34, {vr(t)}
s_xor_b32 s35, s20, 4
s_lshl_b32 s35, s35, 12
v_lshlrev_b32 {vr(t+1)}, 2, v1
v_add_u32 {vr(t+1)}, s35, {vr(t+1)}
s_cmp_eq_u32 s24, 0
s_cbranch_scc1 LA_c0
""")
    for j in range(12):
        a(f"ds_write_b32 {vr(t)}, {vr(OA+j)} offset:{j*256}")
    a(f"ds_write_b32 {vr(t)}, {vr(MA)} offset:{12*256}")
    for j in range(12):
        a(f"v_mov_b32 {vr(OA+j)}, {vr(OB+j)}")
    a(f"v_mov_b32 {vr(MA)}, {vr(MB)}")
    a("s_add_u32 s26, s26, 1")
    a("s_branch LA_c1")
    a("LA_c0:")
    for j in range(12):
        a(f"ds_write_b32 {vr(t)}, {vr(OB+j)} offset:{j*256}")
    a(f"ds_write_b32 {vr(t)}, {vr(MB)} offset:{12*256}")
    a("LA_c1:")
    a("s_waitcnt lgkmcnt(0)")
    a("s_barrier")
    for j in range(12):
        a(f"ds_read_b32 {vr(OB+j)}, {vr(t+1)} offset:{j*256}")
    a(f"ds_read_b32 {vr(MB)}, {vr(t+1)} offset:{12*256}")
    m, f1, f2, l, l2 = T0+4, T0+5, T0+6, T0+7, T0+8
    a(f"""
s_waitcnt lgkmcnt(0)
v_max_f32 {vr(m)}, {vr(MA)}, {vr(MB)}
v_sub_f32 {vr(f1)}, {vr(MA)}, {vr(m)}
v_sub_f32 {vr(f2)}, {vr(MB)}, {vr(m)}
v_exp_f32 {vr(f1)}, {vr(f1)}
v_exp_f32 {vr(f2)}, {vr(f2)}
s_nop 0
""")
    for j in range(12):
        a(f"v_mul_f32 {vr(OA+j)}, {vr(OA+j)}, {vr(f1)}")
        a(f"v_fmac_f32 {vr(OA+j)}, {vr(OB+j)}, {vr(f2)}")
    a(f"""
v_mov_b32 {vr(l)}, {vr(OA+8)}
v_mov_b32 {vr(l2)}, {vr(OA+8)}
s_nop 1
v_permlane32_swap_b32 {vr(l)}, {vr(l2)}
s_nop 1
v_rcp_f32 {vr(l2)}, {vr(l2)}
s_nop 0
""")
    for j in range(12):
        a(f"v_mul_f32 {vr(OA+j)}, {vr(OA+j)}, {vr(l2)}")
    for j in range(6):
        a(f"v_cvt_pk_bf16_f32 {vr(OB+j)}, {vr(OA+2*j)}, {vr(OA+2*j+1)}")
    g_, kbv, g8, ad = T0+9, T0+10, T0+11, T0+12
    a(f"""
s_lshl_b32 s34, s26, 1
s_mul_i32 s34, s34, {68*1024}
s_add_u32 s34, s34, {AF}
v_bfe_u32 {vr(t)}, v1, 4, 1
v_mul_u32_u24 {vr(t)}, {68*1024}, {vr(t)}
v_and_b32 {vr(t+1)}, 15, v1
v_lshl_add_u32 {vr(t)}, {vr(t+1)}, 4, {vr(t)}
s_mul_i32 s35, s21, 5
v_add_u32 {vr(g_)}, s35, v5            ; G for i=0
""")
    for i in range(3):
        a(f"""
v_lshrrev_b32 {vr(kbv)}, 3, {vr(g_)}
v_lshl_add_u32 {vr(ad)}, {vr(kbv)}, 10, {vr(t)}
v_bfe_u32 {vr(g8)}, {vr(g_)}, 2, 1
v_lshl_add_u32 {vr(ad)}, {vr(g8)}, 9, {vr(ad)}
v_and_b32 {vr(g8)}, 1, {vr(g_)}
v_lshl_add_u32 {vr(ad)}, {vr(g8)}, 8, {vr(ad)}
v_bfe_u32 {vr(g8)}, {vr(g_)}, 1, 1
v_lshl_add_u32 {vr(ad)}, {vr(g8)}, 3, {vr(ad)}
""")
        if i == 2: a("s_mov_b64 exec, s[14:15]")
        a(f"buffer_store_dwordx2 {vr(OB+2*i,2)}, {vr(ad)}, s[8:11], s34 offen")
        if i < 2: a(f"v_add_u32 {vr(g_)}, 2, {vr(g_)}")
    if prof:
        a(f"""
s_waitcnt vmcnt(0)
s_memtime s[46:47]
s_memrealtime s[50:51]
s_waitcnt lgkmcnt(0)
s_sub_u32 s42, s42, s40
s_sub_u32 s44, s44, s40
s_sub_u32 s46, s46, s40
v_mov_b32 v8, s42
v_mov_b32 v9, s44
v_mov_b32 v10, s46
v_mov_b32 v11, s48
v_mov_b32 v12, s50
v_mov_b32 v13, s49
v_mov_b32 v14, s40
v_mov_b32 v15, s41
s_lshl_b32 s34, s2, 3
s_add_u32 s34, s34, s20
s_lshl_b32 s34, s34, 5
s_add_u32 s34, s34, 0x2000000
v_mov_b32 v16, 0
s_mov_b64 exec, 1
buffer_store_dwordx4 v[8:11], v16, s[8:11], s34 offen
buffer_store_dwordx4 v[12:15], v16, s[8:11], s34 offen offset:16
""")
    a("""
LA_end:
s_endpgm
""")

if __name__ == "__main__":
    a = Asm()
    hdr = "; @launch kernel=attn_kernel grid=(256,1,1) block=(512,1,1) lds=32768\n"
    a('.amdgcn_target "amdgcn-amd-amdhsa--gfx950"\n.text')
    import sys
    attn_kernel(a, "attn_kernel", prof=len(sys.argv) > 1, var=sys.argv[1] if len(sys.argv) > 1 else '')
    txt = hdr + a.text() + '.section .rodata,"a"\n' + kernel_desc("attn_kernel", NVGPR, 60)
    open("attn_only.s", "w").write(txt)
```

```python
from asmlib import *
MFMA = "v_mfma_f32_32x32x16_bf16"
A_RING, A_STAGE = 0, 32768
B_RING, B_SLOT = 98304, 12288
K1_LDS = 159744
ACC = 64
FR = 160
K1_VGPR = 224
QSCALE = (20 ** -0.5) * 1.4426950408889634
import struct
def f32bits(x): return struct.unpack("<I", struct.pack("<f", x))[0]

def gemm(a, kind):
    L = f"LG{kind}"
    NT = 6 if kind == "GU" else 5
    RS = 192 if kind == "GU" else 320
    CPR = 12 if kind == "GU" else 20
    CW = 96 if kind == "GU" else 80
    ldw = 3072 if kind == "GU" else 3840
    FA = [FR, FR + 28]
    FB = [[FR + 4 + 4 * j for j in range(6)], [FR + 28 + 4 + 4 * j for j in range(6)]]
    a(f"{L}:")
    if kind == "GU":
        a(f"""
s_cmp_ge_u32 s24, 4
s_cselect_b32 s12, s46, s44
s_cselect_b32 s13, s47, s45
s_mov_b32 s14, {640*1536*2}
s_mov_b32 s15, 0x00020000
s_and_b32 s57, s24, 3                 ; wv
s_mul_i32 s58, s28, 192
s_lshr_b32 s59, s24, 2
s_mul_i32 s59, s59, 6144
""")
    else:
        a(f"""
s_mov_b32 s12, s38
s_mov_b32 s13, s39
s_mov_b32 s14, {640*1920*2}
s_mov_b32 s15, 0x00020000
s_mov_b32 s57, s24
s_mul_i32 s58, s28, 320
s_mov_b32 s59, 0
""")
    magic, sh = (43691, 19) if CPR == 12 else (52429, 20)
    a(f"""
s_mul_i32 s60, s57, {CW}
s_mul_i32 s61, s57, {CW*16}
s_add_u32 s59, s59, s61
s_add_u32 s59, s59, {B_RING}
s_mov_b32 s62, {ldw}
""")
    for i, (vd, add) in enumerate(((14, 0), (15, 64))):
        a(f"""
v_add_u32 v20, s60, v1
v_add_u32 v20, {add}, v20             ; c
v_mul_u32_u24 v21, {magic}, v20
v_lshrrev_b32 v21, {sh}, v21          ; row
v_mul_u32_u24 v22, {CPR}, v21
v_sub_u32 v22, v20, v22               ; cc
v_mul_lo_u32 v21, v21, s62
v_lshl_add_u32 v21, v22, 4, v21
v_add_u32 v{vd}, s58, v21
""")
        if add: a(f"v_subrev_u32 v{vd}, 1024, v{vd}")
    a(f"""
v_lshrrev_b32 v20, 5, v1              ; h
v_and_b32 v21, 15, v1                 ; i
v_lshrrev_b32 v22, 2, v21
v_lshl_add_u32 v22, v20, 3, v22       ; 8h + (i>>2)
v_mul_u32_u24 v22, {RS}, v22
v_bfe_u32 v23, v1, 4, 1               ; nhalf
v_lshl_add_u32 v22, v23, 5, v22
v_and_b32 v21, 3, v21
v_lshl_add_u32 v22, v21, 3, v22
v_add_u32 v16, {B_RING}, v22
s_mov_b32 s64, {hex((1 << (CW - 64)) - 1)}
s_mov_b32 s65, 0
""")
    a("""
s_mov_b32 s30, 0
s_mov_b32 s31, 0
s_mov_b32 s32, 0
s_mov_b32 s33, 0
s_mov_b32 s66, 0
s_mov_b32 s67, 0
""")
    def dmaA():
        a(f"""
s_add_u32 m0, s63, s32
s_add_u32 s32, s32, {A_STAGE}
buffer_load_dwordx4 v10, s[8:11], s30 offen lds
buffer_load_dwordx4 v11, s[8:11], s30 offen offset:1024 lds
buffer_load_dwordx4 v12, s[8:11], s30 offen offset:2048 lds
buffer_load_dwordx4 v13, s[8:11], s30 offen offset:3072 lds
s_cmp_eq_u32 s32, {3*A_STAGE}
s_cselect_b32 s32, 0, s32
s_add_u32 s30, s30, 128
""")
    def dmaB():
        a(f"""
s_add_u32 m0, s59, s33
s_add_u32 s33, s33, {B_SLOT}
buffer_load_dwordx4 v14, s[12:15], s31 offen lds
s_mov_b64 exec, s[64:65]
buffer_load_dwordx4 v15, s[12:15], s31 offen offset:1024 lds
s_mov_b64 exec, -1
s_cmp_eq_u32 s33, {5*B_SLOT}
s_cselect_b32 s33, 0, s33
s_add_u32 s31, s31, {32*ldw}
""")
    def boff(j, ks, r):
        if kind == "GU":
            return (j // 3) * 6144 + (j % 3) * 64 + (16 * ks + 4 * r) * RS
        return j * 64 + (16 * ks + 4 * r) * RS
    def reads(nbuf, ja, ks):
        r = [f"ds_read_b128 {vr(FA[nbuf],4)}, v{6+ja}"]
        for j in range(NT):
            for rr in range(2):
                r.append(f"ds_read_b64_tr_b16 {vr(FB[nbuf][j]+2*rr,2)}, v16 offset:{boff(j,ks,rr)}")
        return r
    def advA_pre():
        a(f"""
s_add_u32 s69, s66, {A_STAGE}
s_cmp_eq_u32 s69, {3*A_STAGE}
s_cselect_b32 s69, 0, s69
s_sub_u32 s68, s69, s66
s_mov_b32 s66, s69
""")
    def advB():
        a(f"""
s_add_u32 s69, s67, {B_SLOT}
s_cmp_eq_u32 s69, {5*B_SLOT}
s_cselect_b32 s69, 0, s69
s_sub_u32 s70, s69, s67
s_mov_b32 s67, s69
v_add_u32 v16, s70, v16
""")
    def mfma(buf, j, first=False):
        c = "0" if first else vr(ACC + 16 * j, 16)
        if kind == "V":
            return f"{MFMA} {vr(ACC+16*j,16)}, {vr(FA[buf],4)}, {vr(FB[buf][j],4)}, {c}"
        return f"{MFMA} {vr(ACC+16*j,16)}, {vr(FB[buf][j],4)}, {vr(FA[buf],4)}, {c}"
    dmaA(); dmaB(); dmaB(); dmaA(); dmaB(); dmaB()
    for j in range(NT * 16):
        a(f"v_mov_b32 v{ACC+j}, 0")
    a("s_waitcnt vmcnt(8)\ns_barrier")
    for r in reads(0, 0, 0): a(r)
    advA_pre()
    a("v_add_u32 v6, s68, v6")
    def step(jj, dma=True, bar=True, vm=8, nxt=True, extra=None, skipbar0=False):
        buf = jj & 1; nbuf = buf ^ 1
        if jj % 2 == 0:
            if bar and not skipbar0:
                a(f"s_waitcnt vmcnt({vm})\ns_barrier")
            if dma:
                dmaB()
                if jj == 0: dmaA()
        if extra: extra()
        a("s_waitcnt lgkmcnt(0)")
        if nxt:
            if jj % 2 == 1: advB()
            rd = reads(nbuf, (jj + 1) % 4, (jj + 1) % 2)
        else:
            rd = []
        per = [3, 3, 3, 4, 0, 0] if NT == 6 else [3, 3, 3, 2, 0]
        p = 0
        for j in range(NT):
            a(mfma(buf, j))
            for r in rd[p:p + per[j]]: a(r)
            if j == 0 and nxt:
                ja = (jj + 1) % 4
                if ja == 0: advA_pre()
                a(f"v_add_u32 v{6+ja}, s68, v{6+ja}")
            p += per[j]
        assert p >= len(rd)
    a("s_mov_b32 s34, 8")
    a(f"s_branch {L}_in")
    a(".p2align 6")
    a(f"{L}_loop:")
    a("s_waitcnt vmcnt(8)\ns_barrier")
    a(f"{L}_in:")
    step(0, skipbar0=True); step(1); step(2); step(3)
    a(f"""
s_sub_u32 s34, s34, 1
s_cmp_lg_u32 s34, 0
s_cbranch_scc1 {L}_loop
""")
    step(0, dma=False, vm=8); step(1, dma=False); step(2, dma=False, vm=2); step(3, dma=False)
    def poll_issue():
        a("buffer_load_dword v20, v5, s[20:23], 0 offen sc1")
    def poll_check():
        a(f"""
{L}_poll:
s_waitcnt vmcnt(0)
v_cmp_eq_u32 vcc, 0, v20
s_nop 4
s_cmp_eq_u64 vcc, 0
s_cbranch_scc1 {L}_pollok
s_sleep 2
buffer_load_dword v20, v5, s[20:23], 0 offen sc1
s_branch {L}_poll
{L}_pollok:
""")
        a(f"""
v_and_b32 v21, 31, v1
v_add_u32 v22, s29, v21
v_lshlrev_b32 v22, 2, v22
s_mov_b32 s69, {MBO}
s_mov_b32 s70, {RIO}
buffer_load_dword v24, v22, s[16:19], s69 offen sc1
""")
        if kind == "V":
            a(f"""
v_lshrrev_b32 v23, 5, v1
v_lshlrev_b32 v23, 2, v23
v_add_u32 v23, s29, v23
v_lshlrev_b32 v23, 2, v23
""")
            for i in range(4):
                a(f"buffer_load_dwordx4 {vr(32+4*i,4)}, v23, s[16:19], s70 offen offset:{32*i} sc1")
        else:
            a("buffer_load_dword v25, v22, s[16:19], s70 offen sc1")
        a("v_lshlrev_b32 v21, 2, v21")
        if kind == "GU":
            a(f"""
s_mul_i32 s69, s28, {96*4}
s_add_u32 s69, s69, {CSO + 1920*4}
s_add_u32 s70, s69, {1536*4}
""")
            for j in range(6):
                a(f"buffer_load_dword v{26+j}, v21, s[16:19], {'s69' if j < 3 else 's70'} offen offset:{(j%3)*128} sc1")
        else:
            a(f"""
s_mul_i32 s69, s28, {160*4}
s_add_u32 s69, s69, {CSO}
""")
            for j in range(5):
                a(f"buffer_load_dword v{26+j}, v21, s[16:19], s69 offen offset:{j*128} sc1")
    step(0, dma=False, vm=0, extra=poll_issue); step(1, dma=False, extra=poll_check)
    step(2, dma=False, bar=False); step(3, dma=False, nxt=False)
    XC = FR
    WC = FR + 4
    a(f"""
s_waitcnt vmcnt(0)
s_mov_b32 s64, -1
s_mov_b32 s65, 0
v_xor_b32 v20, 0x80000000, v24
v_lshrrev_b32 v21, 16, v20
v_or_b32 v22, v21, v20                  ; pack(-mb,-mb)
v_cndmask_b32 v{XC}, 0, v22, s[64:65]
v_cndmask_b32 v{XC+1}, 0, v21, s[64:65]
v_mov_b32 v{XC+2}, 0
v_mov_b32 v{XC+3}, 0
""")
    for j in range(NT):
        w = WC + 4 * j
        c = 26 + j
        a(f"""
v_and_b32 v20, 0xffff0000, v{c}
v_sub_f32 v21, v{c}, v20
v_and_b32 v22, 0xffff0000, v21
v_sub_f32 v21, v21, v22
v_lshrrev_b32 v20, 16, v20
v_or_b32 v{w}, v20, v22
v_lshrrev_b32 v{w+1}, 16, v21
v_mov_b32 v{w+2}, 0
v_mov_b32 v{w+3}, 0
""")
    a("s_nop 1")
    for j in range(NT):
        w = WC + 4 * j
        if kind == "V":
            a(f"{MFMA} {vr(ACC+16*j,16)}, {vr(XC,4)}, {vr(w,4)}, {vr(ACC+16*j,16)}")
        else:
            a(f"{MFMA} {vr(ACC+16*j,16)}, {vr(w,4)}, {vr(XC,4)}, {vr(ACC+16*j,16)}")
    PK = FR
    PK = 4 * 44
    a("s_nop 15")
    a("s_lshr_b32 s69, s29, 5")
    if kind == "QK":
        a(f"""
s_cmp_lt_u32 s28, 4
s_cselect_b32 s70, {hex(f32bits(QSCALE))}, 1.0
v_mul_f32 v25, s70, v25
s_cselect_b32 s71, {QF}, {KF}
s_and_b32 s72, s28, 3
s_mul_i32 s72, s72, {8*81920}
s_add_u32 s71, s71, s72
s_mul_i32 s72, s69, 1280
s_add_u32 s71, s71, s72
v_lshlrev_b32 v20, 4, v1
v_and_b32 v21, 31, v1
v_lshlrev_b32 v21, 3, v21
v_lshrrev_b32 v22, 5, v1
s_mov_b32 s72, 81920
v_mul_lo_u32 v22, v22, s72
v_add3_u32 v21, v21, v22, 0
v_add_u32 v21, 1024, v21                ; tail
""")
        PK = FR
        for P in range(4):
            for i in range(20):
                r = ACC + 20 * P + i
                a(f"v_mul_f32 v{r}, v{r}, v25")
            for i in range(10):
                r = ACC + 20 * P + 2 * i
                a(f"v_cvt_pk_bf16_f32 v{PK+10*P+i}, v{r}, v{r+1}")
            a(f"buffer_store_dwordx4 {vr(PK+10*P,4)}, v20, s[16:19], s71 offen")
            a(f"buffer_store_dwordx2 {vr(PK+10*P+4,2)}, v21, s[16:19], s71 offen")
            a(f"s_add_u32 s71, s71, 81920")
            a(f"buffer_store_dwordx4 {vr(PK+10*P+6,4)}, v20, s[16:19], s71 offen")
            a(f"s_add_u32 s71, s71, 81920")
    elif kind == "V":
        a(f"""
s_sub_u32 s72, s28, 8
s_mul_i32 s72, s72, {8*81920}
s_mul_i32 s71, s69, 1280
s_add_u32 s71, s71, s72
s_add_u32 s71, s71, {VF}
s_mov_b32 s72, 81920
v_and_b32 v20, 31, v1
v_lshrrev_b32 v22, 5, v1
v_mul_u32_u24 v22, 320, v22
""")
        PK = FR
        for j in range(5):
            a(f"""
v_add_u32 v21, {32*j}, v20              ; col
v_mul_u32_u24 v23, 52429, v21
v_lshrrev_b32 v23, 20, v23              ; head_l
v_mul_u32_u24 v24, 20, v23
v_sub_u32 v24, v21, v24                 ; d
v_mul_lo_u32 v23, v23, s72
v_lshl_add_u32 v23, v24, 4, v23
v_add_u32 v{26+j}, v23, v22
""")
            for i in range(16):
                r = ACC + 16 * j + i
                a(f"v_mul_f32 v{r}, v{r}, v{32+i}")
            for i in range(8):
                r = ACC + 16 * j + 2 * i
                a(f"v_cvt_pk_bf16_f32 v{PK+8*j+i}, v{r}, v{r+1}")
            a(f"buffer_store_dwordx4 {vr(PK+8*j,4)}, v{26+j}, s[16:19], s71 offen")
            a(f"buffer_store_dwordx4 {vr(PK+8*j+4,4)}, v{26+j}, s[16:19], s71 offen offset:640")
    else:
        a(f"""
v_mul_f32 v25, v25, v25
s_lshl_b32 s71, s69, 1
s_mul_i32 s71, s71, {68*1024}
s_mul_i32 s72, s28, {3*1024}
s_add_u32 s71, s71, s72
s_add_u32 s71, s71, {AF + 20*1024}
v_bfe_u32 v20, v1, 4, 1
v_mul_u32_u24 v20, {68*1024}, v20
v_and_b32 v21, 15, v1
v_lshl_add_u32 v20, v21, 4, v20
v_lshrrev_b32 v21, 5, v1
v_lshl_add_u32 v20, v21, 8, v20
""")
        PK = FR
        for j in range(3):
            for i in range(16):
                g = ACC + 16 * j + i; u = ACC + 16 * (j + 3) + i
                a(f"v_max_f32 v{g}, 0, v{g}")
                a(f"v_mul_f32 v{u}, v{u}, v25")
                a(f"v_mul_f32 v{g}, v{g}, v{u}")
            for i in range(8):
                r = ACC + 16 * j + 2 * i
                a(f"v_cvt_pk_bf16_f32 v{PK+8*j+i}, v{r}, v{r+1}")
            a(f"buffer_store_dwordx4 {vr(PK+8*j,4)}, v20, s[16:19], s71 offen offset:{j*1024}")
            a(f"buffer_store_dwordx4 {vr(PK+8*j+4,4)}, v20, s[16:19], s71 offen offset:{j*1024+512}")
    a("s_endpgm")

def prep(a):
    a("LP:")
    a(f"""
s_lshl_b32 s27, s25, 2
s_add_u32 s27, s27, s26               ; p
s_lshl_b32 s28, s27, 6
s_lshl_b32 s29, s24, 3
s_add_u32 s28, s28, s29
v_lshrrev_b32 v2, 3, v1
v_add_u32 v2, s28, v2                 ; row
v_mul_u32_u24 v3, 1280, v2
v_and_b32 v4, 7, v1
v_lshl_add_u32 v3, v4, 4, v3
""")
    X = 64
    for t in range(10):
        a(f"buffer_load_dwordx4 {vr(X+4*t,4)}, v3, s[8:11], 0 offen offset:{128*t}")
    a(f"""
s_and_b32 s30, s25, 1
s_lshl_b32 s30, s30, 2
s_add_u32 s30, s30, s26               ; pi
s_lshr_b32 s31, s25, 1                ; q
v_lshlrev_b32 v5, 2, v0
v_mov_b32 v6, 0
ds_write_b32 v5, v6
""")
    U = 112
    a("s_waitcnt vmcnt(0)")
    for i in range(40):
        a(f"v_lshlrev_b32 v{U+2*i}, 16, v{X+i}")
        a(f"v_and_b32 v{U+2*i+1}, 0xffff0000, v{X+i}")
    a(f"v_add_f32 v8, v{U}, v{U+1}")
    a(f"v_add_f32 v9, v{U+2}, v{U+3}")
    for i in range(4, 80, 2):
        a(f"v_add_f32 v8, v8, v{U+i}")
        a(f"v_add_f32 v9, v9, v{U+i+1}")
    a("v_add_f32 v8, v8, v9")
    def red8(v):
        for m in (0x041F, 0x081F, 0x101F):
            a(f"""
ds_swizzle_b32 v9, v{v} offset:{m}
s_waitcnt lgkmcnt(0)
v_add_f32 v{v}, v{v}, v9
""")
    red8(8)
    a(f"v_mul_f32 v8, {hex(f32bits(1/640))}, v8      ; mean")
    a("v_mov_b32 v10, 0\nv_mov_b32 v11, 0")
    for i in range(0, 80, 2):
        a(f"v_sub_f32 v{U+i}, v{U+i}, v8")
        a(f"v_sub_f32 v{U+i+1}, v{U+i+1}, v8")
        a(f"v_fmac_f32 v10, v{U+i}, v{U+i}")
        a(f"v_fmac_f32 v11, v{U+i+1}, v{U+i+1}")
    a("v_add_f32 v10, v10, v11")
    red8(10)
    a(f"""
v_mul_f32 v10, {hex(f32bits(1/640))}, v10     ; var
v_cvt_pk_bf16_f32 v11, v8, v10
v_lshlrev_b32 v8, 16, v11              ; mb
v_and_b32 v10, 0xffff0000, v11         ; vb
v_add_f32 v10, {hex(f32bits(1e-5))}, v10
v_cvt_pk_bf16_f32 v11, v10, v10
v_and_b32 v10, 0xffff0000, v11
v_sqrt_f32 v10, v10
s_nop 0
v_cvt_pk_bf16_f32 v11, v10, v10
v_and_b32 v10, 0xffff0000, v11
v_rcp_f32 v10, v10
v_lshlrev_b32 v2, 2, v2
v_cmp_eq_u32 vcc, 0, v4
s_mov_b32 s32, {MBO}
s_mov_b32 s33, {RIO}
s_and_saveexec_b64 s[34:35], vcc
buffer_store_dword v8, v2, s[16:19], s32 offen sc1
buffer_store_dword v10, v2, s[16:19], s33 offen sc1
s_mov_b64 exec, -1
""")
    a(f"""
s_barrier
s_cmp_eq_u32 s30, 7
s_cbranch_scc1 LP_flag
s_cmp_lt_u32 s30, 3
s_cbranch_scc0 LP_gu
s_mov_b32 s12, s38
s_mov_b32 s13, s39
s_mov_b32 s14, {640*1920*2}
s_mov_b32 s15, 0x00020000
s_mul_i32 s56, s31, 3
s_add_u32 s56, s56, s30
s_mul_i32 s57, s56, 320
s_mul_i32 s58, s56, 160
s_mov_b32 s59, 20
s_mov_b32 s60, 3840                   ; ldw
s_branch LP_cs
LP_gu:
s_cmp_lt_u32 s30, 5
s_cselect_b32 s12, s44, s46
s_cselect_b32 s13, s45, s47
s_mov_b32 s58, 3456
s_cselect_b32 s58, 1920, s58
s_mov_b32 s14, {640*1536*2}
s_mov_b32 s15, 0x00020000
s_add_u32 s56, s30, 1
s_and_b32 s56, s56, 1                 ; (pi-3)&1
s_lshl_b32 s57, s31, 1
s_add_u32 s56, s56, s57               ; block
s_mul_i32 s57, s56, 384
s_mul_i32 s56, s56, 192
s_add_u32 s58, s58, s56
s_mov_b32 s59, 24
s_mov_b32 s60, 3072
LP_cs:
v_cmp_le_u32 vcc, s59, v1
v_mov_b32 v6, s59
s_nop 0
v_cndmask_b32 v7, 0, v6, vcc
v_sub_u32 v7, v1, v7                  ; cc
v_cndmask_b32 v6, 0, 1, vcc           ; r
s_mul_i32 s61, s24, 80
v_add_u32 v6, s61, v6                 ; row
v_mul_lo_u32 v6, v6, s60
v_lshl_add_u32 v6, v7, 4, v6
v_add_u32 v6, s57, v6                 ; voffset
s_lshl_b32 s61, s59, 1
v_cmp_gt_u32 vcc, s61, v1
s_lshl_b32 s62, s60, 1
s_mov_b32 s63, 0
s_and_saveexec_b64 s[34:35], vcc
""")
    for i in range(8): a(f"v_mov_b32 v{16+i}, 0")
    a("s_mov_b32 s64, 4")
    a("LP_csloop:")
    for t in range(10):
        a(f"buffer_load_dwordx4 {vr(X+4*t,4)}, v6, s[12:15], s63 offen")
        a("s_add_u32 s63, s63, s62")
    for t in range(10):
        a(f"s_waitcnt vmcnt({9-t})")
        for i in range(4):
            a(f"v_lshlrev_b32 v8, 16, v{X+4*t+i}")
            a(f"v_and_b32 v9, 0xffff0000, v{X+4*t+i}")
            a(f"v_add_f32 v{16+2*i}, v{16+2*i}, v8")
            a(f"v_add_f32 v{17+2*i}, v{17+2*i}, v9")
    a(f"""
s_sub_u32 s64, s64, 1
s_cmp_lg_u32 s64, 0
s_cbranch_scc1 LP_csloop
v_lshlrev_b32 v7, 5, v7
""")
    for i in range(8): a(f"ds_add_f32 v7, v{16+i} offset:{4*i}")
    a(f"""
s_mov_b64 exec, -1
s_waitcnt lgkmcnt(0)
s_barrier
s_lshl_b32 s61, s59, 3                ; ncols
v_cmp_gt_u32 vcc, s61, v0
s_lshl_b32 s58, s58, 2
s_add_u32 s58, s58, {CSO}
s_and_saveexec_b64 s[34:35], vcc
s_cbranch_execz LP_csdone
ds_read_b32 v6, v5
s_waitcnt lgkmcnt(0)
buffer_store_dword v6, v5, s[16:19], s58 offen sc1
LP_csdone:
s_mov_b64 exec, -1
LP_flag:
s_waitcnt vmcnt(0)
s_barrier
s_cmp_lg_u32 s24, 0
s_cbranch_scc1 LP_tr
v_mov_b32 v6, 1
v_mov_b32 v7, s27
v_lshlrev_b32 v7, 2, v7
s_mov_b64 exec, 1
buffer_store_dword v6, v7, s[20:23], 0 offen sc1
s_mov_b64 exec, -1
LP_tr:
""")
    a(f"""
s_lshl_b32 s56, s27, 3
s_add_u32 s56, s56, s24               ; u
s_lshl_b32 s57, s24, 12
s_add_u32 s57, s57, 4096
v_lshrrev_b32 v6, 3, v1
v_mul_u32_u24 v6, 1280, v6
v_and_b32 v7, 7, v1
v_lshl_add_u32 v6, v7, 4, v6          ; voffset q=0
v_add_u32 v7, {8*1280-1024}, v6
v_add_u32 v8, {16*1280-2048}, v6
v_add_u32 v9, {24*1280-3072}, v6
v_lshrrev_b32 v10, 5, v1
v_lshlrev_b32 v10, 4, v10
v_bfe_u32 v11, v1, 4, 1
v_lshl_add_u32 v10, v11, 2, v10
v_bfe_u32 v11, v1, 2, 2
v_add_u32 v10, v10, v11
v_lshlrev_b32 v10, 7, v10
v_and_b32 v11, 3, v1
v_lshl_add_u32 v10, v11, 3, v10
v_add_u32 v10, s57, v10
v_lshlrev_b32 v11, 4, v1
LP_trloop:
s_cmp_ge_u32 s56, 680
s_cbranch_scc1 LP_end
s_mul_i32 s58, s56, 52429
s_lshr_b32 s58, s58, 19               ; kblock = u/10
s_mul_i32 s59, s58, 10
s_sub_u32 s59, s56, s59               ; nb64
s_cmp_lt_u32 s58, 20
s_cselect_b32 s12, s40, s48
s_cselect_b32 s13, s41, s49
s_mov_b32 s14, {1536*640*2}
s_cselect_b32 s14, {640*640*2}, s14
s_mov_b32 s15, 0x00020000
s_cselect_b32 s60, 0, 20
s_sub_u32 s60, s58, s60
s_mul_i32 s60, s60, {32*1280}
s_lshl_b32 s61, s59, 7
s_add_u32 s60, s60, s61               ; soffset
s_mov_b32 m0, s57
s_nop 0
buffer_load_dwordx4 v6, s[12:15], s60 offen lds
buffer_load_dwordx4 v7, s[12:15], s60 offen offset:1024 lds
buffer_load_dwordx4 v8, s[12:15], s60 offen offset:2048 lds
buffer_load_dwordx4 v9, s[12:15], s60 offen offset:3072 lds
s_mul_i32 s60, s58, {40*1024}
s_lshl_b32 s61, s59, 12
s_add_u32 s60, s60, s61
s_add_u32 s60, s60, {BF}
s_waitcnt vmcnt(0)
""")
    for jt in range(4):
        for r in range(2):
            a(f"ds_read_b64_tr_b16 {vr(X+4*jt+2*r,2)}, v10 offset:{jt*32 + r*8*128}")
    a("s_waitcnt lgkmcnt(0)")
    for jt in range(4):
        a(f"buffer_store_dwordx4 {vr(X+4*jt,4)}, v11, s[16:19], s60 offen offset:{jt*1024}")
    a(f"""
s_add_u32 s56, s56, 256
s_branch LP_trloop
LP_end:
s_endpgm
""")

def k1_kernel(a, name):
    kernel_header(a, name)
    a(f"""
s_cmp_ge_u32 s2, 256
s_cbranch_scc1 LK1_end
s_load_dwordx16 s[36:51], s[0:1], 0
s_load_dwordx4 s[52:55], s[0:1], 64
v_and_b32 v1, 63, v0
v_lshrrev_b32 v2, 6, v0
s_and_b32 s25, s2, 7
v_readfirstlane_b32 s24, v2
s_lshr_b32 s26, s2, 3
s_waitcnt lgkmcnt(0)
""")
    srd(a, 8, 36, 37, 2048 * 640 * 2)
    srd(a, 16, 54, 55, WS_BYTES)
    srd(a, 20, 52, 53, 256)
    a(f"""
s_cmp_lt_u32 s26, 4
s_cbranch_scc1 LP
s_sub_u32 s26, s26, 4                 ; t
s_and_b32 s27, s25, 1
s_lshl_b32 s27, s27, 2
s_and_b32 s28, s26, 3
s_add_u32 s27, s27, s28               ; mblock
s_lshl_b32 s29, s27, 8
s_lshl_b32 s28, s24, 5
s_add_u32 s29, s29, s28               ; row0
s_lshl_b32 s63, s24, 12
v_and_b32 v5, 31, v1
v_lshlrev_b32 v5, 2, v5
v_lshrrev_b32 v20, 3, v1
v_add_u32 v20, s29, v20
v_mul_u32_u24 v20, 1280, v20
v_lshrrev_b32 v21, 4, v1              ; lane>>4
v_and_b32 v22, 7, v1
v_xor_b32 v23, v22, v21
v_lshl_add_u32 v10, v23, 4, v20
v_xor_b32 v23, 4, v23
v_lshl_add_u32 v11, v23, 4, v20
v_add_u32 v12, {16*1280-2048}, v10
v_add_u32 v13, {24*1280-3072}, v11
v_add_u32 v11, {8*1280-1024}, v11
v_and_b32 v20, 31, v1                 ; m
v_lshrrev_b32 v21, 5, v1              ; h
v_bfe_u32 v22, v20, 1, 3              ; f
v_xor_b32 v22, v22, v21
v_lshlrev_b32 v20, 7, v20
v_add_u32 v20, s63, v20
""")
    for j in range(4):
        a(f"v_xor_b32 v23, {2*j}, v22")
        a(f"v_lshl_add_u32 v{6+j}, v23, 4, v20")
    a(f"""
s_lshr_b32 s26, s26, 2                ; nq
s_lshr_b32 s56, s25, 1                ; q
s_cmp_lt_u32 s26, 3
s_cbranch_scc0 LK1_gu
s_mul_i32 s28, s56, 3
s_add_u32 s28, s28, s26               ; nb
s_cmp_lt_u32 s28, 8
s_cbranch_scc1 LGQK
s_branch LGV
LK1_gu:
s_lshl_b32 s28, s56, 2
s_add_u32 s28, s28, s26
s_sub_u32 s28, s28, 3                 ; gb
s_branch LGGU
LK1_end:
s_endpgm
""")
    gemm(a, "QK"); gemm(a, "V"); gemm(a, "GU")
    prep(a)

if __name__ == "__main__":
    a = Asm()
    hdr = f"; @launch kernel=k1_kernel grid=(256,1,1) block=(512,1,1) lds={K1_LDS}\n"
    a('.amdgcn_target "amdgcn-amd-amdhsa--gfx950"\n.text')
    k1_kernel(a, "k1_kernel")
    txt = hdr + a.text() + '.section .rodata,"a"\n' + kernel_desc("k1_kernel", K1_VGPR, 80)
    open("k1_only.s", "w").write(txt)
```

```python
from asmlib import *
MF16 = "v_mfma_f32_16x16x32_bf16"
K3_LDS = 61440
K3_DEPTH = 6
def k3_kernel(a, name, nkb=17, use_y=False):
    ST = 24
    D = min(K3_DEPTH, nkb)
    kernel_header(a, name)
    a(f"""
s_cmp_ge_u32 s2, 256
s_cbranch_scc1 LK3_end
s_load_dwordx2 s[4:5], s[0:1], 0
s_load_dwordx2 s[6:7], s[0:1], 56
s_load_dwordx2 s[24:25], s[0:1], 72
v_and_b32 v1, 63, v0
v_lshrrev_b32 v2, 6, v0
s_and_b32 s27, s2, 7
v_readfirstlane_b32 s26, v2           ; wave
s_lshr_b32 s28, s2, 3                 ; li
s_lshr_b32 s29, s27, 1
s_lshl_b32 s29, s29, 3
s_lshr_b32 s30, s28, 2
s_add_u32 s29, s29, s30               ; mb
s_and_b32 s30, s27, 1
s_lshl_b32 s30, s30, 2
s_and_b32 s31, s28, 3
s_add_u32 s30, s30, s31               ; nb
v_lshlrev_b32 v3, 4, v1               ; lane*16
v_add_u32 v4, {1*69632}, v3
v_add_u32 v5, {2*69632}, v3
v_add_u32 v6, {3*69632}, v3
v_add_u32 v7, 4096, v3
s_mul_i32 s32, s26, {nkb}             ; kb0
s_mul_i32 s33, s29, {4*69632}
s_lshl_b32 s34, s32, 10
s_add_u32 s33, s33, s34
s_add_u32 s33, s33, {AF}              ; A soffset
s_mul_i32 s34, s32, 40960
s_mul_i32 s35, s30, 5120
s_add_u32 s34, s34, s35
s_add_u32 s34, s34, {BF}              ; B soffset
s_waitcnt lgkmcnt(0)
""")
    srd(a, 8, 4, 5, 2048 * 640 * 2)
    srd(a, 12, 6, 7, 2048 * 640 * 2)
    srd(a, 16, 24, 25, WS_BYTES)
    def loads(kb):
        b = ST + 36 * (kb % D)
        for i in range(4):
            a(f"buffer_load_dwordx4 {vr(b+4*i,4)}, v{3+i}, s[16:19], s33 offen")
        for j in range(4):
            a(f"buffer_load_dwordx4 {vr(b+16+4*j,4)}, v3, s[16:19], s34 offen offset:{j*1024}")
        a(f"buffer_load_dwordx4 {vr(b+32,4)}, v7, s[16:19], s34 offen")
        a("s_add_u32 s33, s33, 1024")
        a("s_add_u32 s34, s34, 40960")
    for kb in range(D): loads(kb)
    a(f"""
s_lshl_b32 s36, s29, 6
s_lshl_b32 s37, s26, 4
s_add_u32 s36, s36, s37
v_and_b32 v8, 15, v1
v_add_u32 v8, s36, v8
v_mul_u32_u24 v8, 1280, v8
v_lshrrev_b32 v9, 4, v1
v_lshl_add_u32 v8, v9, 3, v8
s_mul_i32 s36, s30, 160
""")
    for kb in range(nkb):
        b = ST + 36 * (kb % D)
        rem = min(D - 1, nkb - 1 - kb)
        extra = 5 if kb >= nkb - D and kb > nkb - D else 0
        a(f"s_waitcnt vmcnt({9*rem + (5 if kb > nkb - D else 0)})")
        for i in range(4):
            for j in range(5):
                t = 4 * (5 * i + j)
                c = "0" if kb == 0 else f"a[{t}:{t+3}]"
                a(f"{MF16} a[{t}:{t+3}], {vr(b+16+4*j,4)}, {vr(b+4*i,4)}, {c}")
        if kb + D < nkb: loads(kb + D)
        if kb == nkb - D:
            for j in range(5):
                a(f"buffer_load_dwordx2 {vr(10+2*j,2)}, v8, s[8:11], s36 offen offset:{32*j}")
    a("s_nop 7")
    a(f"""
s_cmp_eq_u32 s26, 0
s_cbranch_scc1 LK3_w0
s_cmp_eq_u32 s26, 1
s_cbranch_scc1 LK3_w1
s_cmp_eq_u32 s26, 2
s_cbranch_scc1 LK3_w2
""")
    for w in (3, 0, 1, 2):
        if w != 3: a(f"LK3_w{w}:")
        for i in range(4):
            if i == w: continue
            slot = w if w < i else w - 1
            for j in range(5):
                t = 4 * (5 * i + j)
                a(f"ds_write_b128 v3, a[{t}:{t+3}] offset:{(i*3+slot)*5120 + j*1024}")
        for j in range(5):
            for r in range(4):
                a(f"v_accvgpr_read_b32 v{ST+4*j+r}, a{4*(5*w+j)+r}")
        if w != 2: a("s_branch LK3_red")
    a(f"""
LK3_red:
s_mul_i32 s37, s26, 15360
v_add_u32 v9, s37, v3
s_waitcnt lgkmcnt(0)
s_barrier
""")
    R = ST + 20
    for s in range(3):
        for j in range(5):
            a(f"ds_read_b128 {vr(R+20*s+4*j,4)}, v9 offset:{s*5120+j*1024}")
    a("s_waitcnt vmcnt(0)")
    for j in range(5):
        for hh in range(2):
            a(f"v_lshlrev_b32 v20, 16, v{10+2*j+hh}")
            a(f"v_and_b32 v21, 0xffff0000, v{10+2*j+hh}")
            a(f"v_add_f32 v{ST+4*j+2*hh}, v{ST+4*j+2*hh}, v20")
            a(f"v_add_f32 v{ST+4*j+2*hh+1}, v{ST+4*j+2*hh+1}, v21")
    for s in range(3):
        a(f"s_waitcnt lgkmcnt({10-5*s})")
        for q in range(20):
            a(f"v_add_f32 v{ST+q}, v{ST+q}, v{R+20*s+q}")
    for j in range(5):
        a(f"v_cvt_pk_bf16_f32 v{10+2*j}, v{ST+4*j}, v{ST+4*j+1}")
        a(f"v_cvt_pk_bf16_f32 v{11+2*j}, v{ST+4*j+2}, v{ST+4*j+3}")
        a(f"buffer_store_dwordx2 {vr(10+2*j,2)}, v8, s[12:15], s36 offen offset:{32*j}")
    a("LK3_end:\ns_endpgm")
K3_VGPR = 24 + 36 * K3_DEPTH
```

```python
import sys
from asmlib import *
import gen_k1, gen_attn, gen_k3
HEAD = open("parallel_sum__mha_block__glu_gated_reglu__prompt.s.ref").read().split("; Override launch")[0] if len(sys.argv) < 3 else ""
a = Asm()
hdr = HEAD + f"""; @launch kernel=k1_kernel grid=(256,1,1) block=(512,1,1) lds={gen_k1.K1_LDS}
; @launch kernel=attn_kernel grid=(256,1,1) block=(512,1,1) lds=32768
; @launch kernel=k3_kernel grid=(256,1,1) block=(256,1,1) lds={gen_k3.K3_LDS}
"""
a('.amdgcn_target "amdgcn-amd-amdhsa--gfx950"\n.text')
gen_k1.k1_kernel(a, "k1_kernel")
gen_attn.attn_kernel(a, "attn_kernel")
gen_k3.k3_kernel(a, "k3_kernel")
txt = hdr + a.text() + '.section .rodata,"a"\n' + kernel_desc("k1_kernel", gen_k1.K1_VGPR, 80) + kernel_desc("attn_kernel", gen_attn.NVGPR, 60) + kernel_desc("k3_kernel", gen_k3.K3_VGPR + 80, 48, accum=gen_k3.K3_VGPR)
open(sys.argv[1], "w").write(txt)
```

```python
from asmlib import *
MFMA = "v_mfma_f32_32x32x16_bf16"
A_RING, A_STAGE = 0, 32768
B_RING, B_SLOT = 98304, 12288
K1_LDS = 159744
ACC = 64
FR = 160
K1_VGPR = 224
QSCALE = (20 ** -0.5) * 1.4426950408889634
import struct
def f32bits(x): return struct.unpack("<I", struct.pack("<f", x))[0]

PROF = False
DMAPOS = (1, 3)
def stamp(a, k):
    if PROF:
        a(f"s_memrealtime s[{82+2*k}:{83+2*k}]")
        if k in (1, 2): a(f"s_memtime s[{92+2*k}:{93+2*k}]")
def stamp_out(a, n):
    if PROF:
        a("s_waitcnt vmcnt(0) lgkmcnt(0)")
        a(f"s_memrealtime s[{82+2*n}:{83+2*n}]")
        a("s_waitcnt lgkmcnt(0)")
        for k in range(8):
            a(f"v_mov_b32 v{8+k}, s{82+2*min(k, n)}" if k < 6 else f"v_mov_b32 v{8+k}, s{94+2*(k-6)}")
        a(f"""
s_lshl_b32 s34, s2, 3
s_add_u32 s34, s34, s24
s_lshl_b32 s34, s34, 5
s_add_u32 s34, s34, 0x2000000
v_mov_b32 v16, 0
s_mov_b64 exec, 1
buffer_store_dwordx4 v[8:11], v16, s[16:19], s34 offen
buffer_store_dwordx4 v[12:15], v16, s[16:19], s34 offen offset:16
""")

def gemm(a, kind):
    L = f"LG{kind}"
    NT = 6 if kind == "GU" else 5
    RS = 192 if kind == "GU" else 320
    CPR = 12 if kind == "GU" else 20
    CW = 96 if kind == "GU" else 80
    ldw = 3072 if kind == "GU" else 3840
    FA = [FR, FR + 28]
    FB = [[FR + 4 + 4 * j for j in range(6)], [FR + 28 + 4 + 4 * j for j in range(6)]]
    a(f"{L}:")
    if kind == "GU":
        a(f"""
s_cmp_ge_u32 s24, 4
s_cselect_b32 s12, s46, s44
s_cselect_b32 s13, s47, s45
s_mov_b32 s14, {640*1536*2}
s_mov_b32 s15, 0x00020000
s_and_b32 s57, s24, 3                 ; wv
s_mul_i32 s58, s28, 192
s_lshr_b32 s59, s24, 2
s_mul_i32 s59, s59, 6144
""")
    else:
        a(f"""
s_mov_b32 s12, s38
s_mov_b32 s13, s39
s_mov_b32 s14, {640*1920*2}
s_mov_b32 s15, 0x00020000
s_mov_b32 s57, s24
s_mul_i32 s58, s28, 320
s_mov_b32 s59, 0
""")
    magic, sh = (43691, 19) if CPR == 12 else (52429, 20)
    a(f"""
s_mul_i32 s60, s57, {CW}
s_mul_i32 s61, s57, {CW*16}
s_add_u32 s59, s59, s61
s_add_u32 s59, s59, {B_RING}
s_mov_b32 s62, {ldw}
""")
    for i, (vd, add) in enumerate(((14, 0), (15, 64))):
        a(f"""
v_add_u32 v20, s60, v1
v_add_u32 v20, {add}, v20             ; c
v_mul_u32_u24 v21, {magic}, v20
v_lshrrev_b32 v21, {sh}, v21          ; row
v_mul_u32_u24 v22, {CPR}, v21
v_sub_u32 v22, v20, v22               ; cc
v_mul_lo_u32 v21, v21, s62
v_lshl_add_u32 v21, v22, 4, v21
v_add_u32 v{vd}, s58, v21
""")
        if add: a(f"v_subrev_u32 v{vd}, 1024, v{vd}")
    a(f"""
v_lshrrev_b32 v20, 5, v1              ; h
v_and_b32 v21, 15, v1                 ; i
v_lshrrev_b32 v22, 2, v21
v_lshl_add_u32 v22, v20, 3, v22       ; 8h + (i>>2)
v_mul_u32_u24 v22, {RS}, v22
v_bfe_u32 v23, v1, 4, 1               ; nhalf
v_lshl_add_u32 v22, v23, 5, v22
v_and_b32 v21, 3, v21
v_lshl_add_u32 v22, v21, 3, v22
v_add_u32 v16, {B_RING}, v22
s_mov_b32 s64, {hex((1 << (CW - 64)) - 1)}
s_mov_b32 s65, 0
""")
    a("""
s_mov_b32 s30, 0
s_mov_b32 s31, 0
s_mov_b32 s32, 0
s_mov_b32 s33, 0
s_mov_b32 s66, 0
s_mov_b32 s67, 0
""")
    def dmaA(q):
        a(f"""
s_add_u32 m0, s63, s32
s_nop 0
buffer_load_dwordx4 v{10+q}, s[8:11], s30 offen offset:{1024*q} lds
""")
        if q == 3:
            a(f"""
s_add_u32 s32, s32, {A_STAGE}
s_cmp_eq_u32 s32, {3*A_STAGE}
s_cselect_b32 s32, 0, s32
s_add_u32 s30, s30, 128
""")
    def dmaB(q):
        if q == 0:
            a(f"""
s_add_u32 m0, s59, s33
s_nop 0
buffer_load_dwordx4 v14, s[12:15], s31 offen lds
""")
        else:
            a(f"""
s_add_u32 m0, s59, s33
s_mov_b64 exec, s[64:65]
buffer_load_dwordx4 v15, s[12:15], s31 offen offset:1024 lds
s_mov_b64 exec, -1
s_add_u32 s33, s33, {B_SLOT}
s_cmp_eq_u32 s33, {5*B_SLOT}
s_cselect_b32 s33, 0, s33
s_add_u32 s31, s31, {32*ldw}
""")
    def boff(j, ks, r):
        if kind == "GU":
            return (j // 3) * 6144 + (j % 3) * 64 + (16 * ks + 4 * r) * RS
        return j * 64 + (16 * ks + 4 * r) * RS
    def reads(nbuf, ja, ks):
        r = [f"ds_read_b128 {vr(FA[nbuf],4)}, v{6+ja}"]
        for j in range(NT):
            for rr in range(2):
                r.append(f"ds_read_b64_tr_b16 {vr(FB[nbuf][j]+2*rr,2)}, v16 offset:{boff(j,ks,rr)}")
        return r
    def advA_pre():
        a(f"""
s_add_u32 s69, s66, {A_STAGE}
s_cmp_eq_u32 s69, {3*A_STAGE}
s_cselect_b32 s69, 0, s69
s_sub_u32 s68, s69, s66
s_mov_b32 s66, s69
""")
    def advB():
        a(f"""
s_add_u32 s69, s67, {B_SLOT}
s_cmp_eq_u32 s69, {5*B_SLOT}
s_cselect_b32 s69, 0, s69
s_sub_u32 s70, s69, s67
s_mov_b32 s67, s69
v_add_u32 v16, s70, v16
""")
    def mfma(buf, j, first=False):
        c = "0" if first else vr(ACC + 16 * j, 16)
        if kind == "V":
            return f"{MFMA} {vr(ACC+16*j,16)}, {vr(FA[buf],4)}, {vr(FB[buf][j],4)}, {c}"
        return f"{MFMA} {vr(ACC+16*j,16)}, {vr(FB[buf][j],4)}, {vr(FA[buf],4)}, {c}"
    for _ in range(2):
        for q in range(4):
            dmaB(q & 1); dmaA(q)
    for j in range(NT * 16):
        a(f"v_mov_b32 v{ACC+j}, 0")
    a("s_waitcnt vmcnt(8)\ns_barrier")
    stamp(a, 1)
    for r in reads(0, 0, 0): a(r)
    advA_pre()
    a("v_add_u32 v6, s68, v6")
    def step(jj, dma=True, bar=True, vm=9, nxt=True, extra=None, skipbar0=False, vm3=6):
        buf = jj & 1; nbuf = buf ^ 1
        if jj % 2 == 0:
            if bar and not skipbar0:
                a(f"s_waitcnt vmcnt({vm})\ns_barrier")
        if extra: extra()
        if jj == 3 and nxt and vm3 is not None:
            a(f"s_waitcnt vmcnt({vm3}) lgkmcnt(0)")
        else:
            a("s_waitcnt lgkmcnt(0)")
        if nxt:
            if jj % 2 == 1: advB()
            rd = reads(nbuf, (jj + 1) % 4, (jj + 1) % 2)
        else:
            rd = []
        per = [3, 3, 3, 4, 0, 0] if NT == 6 else [3, 3, 3, 2, 0]
        p = 0
        for j in range(NT):
            a(mfma(buf, j))
            for r in rd[p:p + per[j]]: a(r)
            if j == 0 and nxt:
                ja = (jj + 1) % 4
                if ja == 0: advA_pre()
                a(f"v_add_u32 v{6+ja}, s68, v{6+ja}")
            if dma and j == DMAPOS[0]: dmaB(jj & 1)
            if dma and j == DMAPOS[1]: dmaA(jj)
            p += per[j]
        assert p >= len(rd)
    a("s_mov_b32 s34, 8")
    a(f"s_branch {L}_in")
    a(".p2align 6")
    a(f"{L}_loop:")
    a("s_waitcnt vmcnt(9)\ns_barrier")
    a(f"{L}_in:")
    step(0, skipbar0=True); step(1); step(2); step(3)
    a(f"""
s_sub_u32 s34, s34, 1
s_cmp_lg_u32 s34, 0
s_cbranch_scc1 {L}_loop
""")
    stamp(a, 2)
    step(0, dma=False, vm=9); step(1, dma=False); step(2, dma=False, vm=5); step(3, dma=False, vm3=0)
    def poll_issue():
        a("buffer_load_dword v20, v5, s[20:23], 0 offen sc1")
    def poll_check():
        a(f"""
{L}_poll:
s_waitcnt vmcnt(0)
v_cmp_eq_u32 vcc, 0, v20
s_nop 4
s_cmp_eq_u64 vcc, 0
s_cbranch_scc1 {L}_pollok
s_sleep 2
buffer_load_dword v20, v5, s[20:23], 0 offen sc1
s_branch {L}_poll
{L}_pollok:
""")
        stamp(a, 3)
        a(f"""
v_and_b32 v21, 31, v1
v_add_u32 v22, s29, v21
v_lshlrev_b32 v22, 2, v22
s_mov_b32 s69, {MBO}
s_mov_b32 s70, {RIO}
buffer_load_dword v24, v22, s[16:19], s69 offen sc1
""")
        if kind == "V":
            a(f"""
v_lshrrev_b32 v23, 5, v1
v_lshlrev_b32 v23, 2, v23
v_add_u32 v23, s29, v23
v_lshlrev_b32 v23, 2, v23
""")
            for i in range(4):
                a(f"buffer_load_dwordx4 {vr(32+4*i,4)}, v23, s[16:19], s70 offen offset:{32*i} sc1")
        else:
            a("buffer_load_dword v25, v22, s[16:19], s70 offen sc1")
        a("v_lshlrev_b32 v21, 2, v21")
        if kind == "GU":
            a(f"""
s_mul_i32 s69, s28, {96*4}
s_add_u32 s69, s69, {CSO + 1920*4}
s_add_u32 s70, s69, {1536*4}
""")
            for j in range(6):
                a(f"buffer_load_dword v{26+j}, v21, s[16:19], {'s69' if j < 3 else 's70'} offen offset:{(j%3)*128} sc1")
        else:
            a(f"""
s_mul_i32 s69, s28, {160*4}
s_add_u32 s69, s69, {CSO}
""")
            for j in range(5):
                a(f"buffer_load_dword v{26+j}, v21, s[16:19], s69 offen offset:{j*128} sc1")
    step(0, dma=False, vm=0, extra=poll_issue); step(1, dma=False, extra=poll_check)
    step(2, dma=False, bar=False); step(3, dma=False, nxt=False)
    stamp(a, 4)
    XC = FR
    WC = FR + 4
    a(f"""
s_waitcnt vmcnt(0)
s_mov_b32 s64, -1
s_mov_b32 s65, 0
v_xor_b32 v20, 0x80000000, v24
v_lshrrev_b32 v21, 16, v20
v_or_b32 v22, v21, v20                  ; pack(-mb,-mb)
v_cndmask_b32 v{XC}, 0, v22, s[64:65]
v_cndmask_b32 v{XC+1}, 0, v21, s[64:65]
v_mov_b32 v{XC+2}, 0
v_mov_b32 v{XC+3}, 0
""")
    for j in range(NT):
        w = WC + 4 * j
        c = 26 + j
        a(f"""
v_and_b32 v20, 0xffff0000, v{c}
v_sub_f32 v21, v{c}, v20
v_and_b32 v22, 0xffff0000, v21
v_sub_f32 v21, v21, v22
v_lshrrev_b32 v20, 16, v20
v_or_b32 v{w}, v20, v22
v_lshrrev_b32 v{w+1}, 16, v21
v_mov_b32 v{w+2}, 0
v_mov_b32 v{w+3}, 0
""")
    a("s_nop 1")
    for j in range(NT):
        w = WC + 4 * j
        if kind == "V":
            a(f"{MFMA} {vr(ACC+16*j,16)}, {vr(XC,4)}, {vr(w,4)}, {vr(ACC+16*j,16)}")
        else:
            a(f"{MFMA} {vr(ACC+16*j,16)}, {vr(w,4)}, {vr(XC,4)}, {vr(ACC+16*j,16)}")
    PK = FR
    PK = 4 * 44
    a("s_nop 15")
    a("s_lshr_b32 s69, s29, 5")
    if kind == "QK":
        a(f"""
s_cmp_lt_u32 s28, 4
s_cselect_b32 s70, {hex(f32bits(QSCALE))}, 1.0
v_mul_f32 v25, s70, v25
s_cselect_b32 s71, {QF}, {KF}
s_and_b32 s72, s28, 3
s_mul_i32 s72, s72, {8*81920}
s_add_u32 s71, s71, s72
s_mul_i32 s72, s69, 1280
s_add_u32 s71, s71, s72
v_lshlrev_b32 v20, 4, v1
v_and_b32 v21, 31, v1
v_lshlrev_b32 v21, 3, v21
v_lshrrev_b32 v22, 5, v1
s_mov_b32 s72, 81920
v_mul_lo_u32 v22, v22, s72
v_add3_u32 v21, v21, v22, 0
v_add_u32 v21, 1024, v21                ; tail
""")
        PK = FR
        for P in range(4):
            for i in range(20):
                r = ACC + 20 * P + i
                a(f"v_mul_f32 v{r}, v{r}, v25")
            for i in range(10):
                r = ACC + 20 * P + 2 * i
                a(f"v_cvt_pk_bf16_f32 v{PK+10*P+i}, v{r}, v{r+1}")
            a(f"buffer_store_dwordx4 {vr(PK+10*P,4)}, v20, s[16:19], s71 offen")
            a(f"buffer_store_dwordx2 {vr(PK+10*P+4,2)}, v21, s[16:19], s71 offen")
            a(f"s_add_u32 s71, s71, 81920")
            a(f"buffer_store_dwordx4 {vr(PK+10*P+6,4)}, v20, s[16:19], s71 offen")
            a(f"s_add_u32 s71, s71, 81920")
    elif kind == "V":
        a(f"""
s_sub_u32 s72, s28, 8
s_mul_i32 s72, s72, {8*81920}
s_mul_i32 s71, s69, 1280
s_add_u32 s71, s71, s72
s_add_u32 s71, s71, {VF}
s_mov_b32 s72, 81920
v_and_b32 v20, 31, v1
v_lshrrev_b32 v22, 5, v1
v_mul_u32_u24 v22, 320, v22
""")
        PK = FR
        for j in range(5):
            a(f"""
v_add_u32 v21, {32*j}, v20              ; col
v_mul_u32_u24 v23, 52429, v21
v_lshrrev_b32 v23, 20, v23              ; head_l
v_mul_u32_u24 v24, 20, v23
v_sub_u32 v24, v21, v24                 ; d
v_mul_lo_u32 v23, v23, s72
v_lshl_add_u32 v23, v24, 4, v23
v_add_u32 v{26+j}, v23, v22
""")
            for i in range(16):
                r = ACC + 16 * j + i
                a(f"v_mul_f32 v{r}, v{r}, v{32+i}")
            for i in range(8):
                r = ACC + 16 * j + 2 * i
                a(f"v_cvt_pk_bf16_f32 v{PK+8*j+i}, v{r}, v{r+1}")
            a(f"buffer_store_dwordx4 {vr(PK+8*j,4)}, v{26+j}, s[16:19], s71 offen")
            a(f"buffer_store_dwordx4 {vr(PK+8*j+4,4)}, v{26+j}, s[16:19], s71 offen offset:640")
    else:
        a(f"""
v_mul_f32 v25, v25, v25
s_lshl_b32 s71, s69, 1
s_mul_i32 s71, s71, {68*1024}
s_mul_i32 s72, s28, {3*1024}
s_add_u32 s71, s71, s72
s_add_u32 s71, s71, {AF + 20*1024}
v_bfe_u32 v20, v1, 4, 1
v_mul_u32_u24 v20, {68*1024}, v20
v_and_b32 v21, 15, v1
v_lshl_add_u32 v20, v21, 4, v20
v_lshrrev_b32 v21, 5, v1
v_lshl_add_u32 v20, v21, 8, v20
""")
        PK = FR
        for j in range(3):
            for i in range(16):
                g = ACC + 16 * j + i; u = ACC + 16 * (j + 3) + i
                a(f"v_max_f32 v{g}, 0, v{g}")
                a(f"v_mul_f32 v{u}, v{u}, v25")
                a(f"v_mul_f32 v{g}, v{g}, v{u}")
            for i in range(8):
                r = ACC + 16 * j + 2 * i
                a(f"v_cvt_pk_bf16_f32 v{PK+8*j+i}, v{r}, v{r+1}")
            a(f"buffer_store_dwordx4 {vr(PK+8*j,4)}, v20, s[16:19], s71 offen offset:{j*1024}")
            a(f"buffer_store_dwordx4 {vr(PK+8*j+4,4)}, v20, s[16:19], s71 offen offset:{j*1024+512}")
    stamp_out(a, 5)
    a("s_endpgm")

def prep(a):
    a("LP:")
    a(f"""
s_lshl_b32 s27, s25, 2
s_add_u32 s27, s27, s26               ; p
s_lshl_b32 s28, s27, 6
s_lshl_b32 s29, s24, 3
s_add_u32 s28, s28, s29
v_lshrrev_b32 v2, 3, v1
v_add_u32 v2, s28, v2                 ; row
v_mul_u32_u24 v3, 1280, v2
v_and_b32 v4, 7, v1
v_lshl_add_u32 v3, v4, 4, v3
""")
    X = 64
    for t in range(10):
        a(f"buffer_load_dwordx4 {vr(X+4*t,4)}, v3, s[8:11], 0 offen offset:{128*t}")
    a(f"""
s_and_b32 s30, s25, 1
s_lshl_b32 s30, s30, 2
s_add_u32 s30, s30, s26               ; pi
s_lshr_b32 s31, s25, 1                ; q
v_lshlrev_b32 v5, 2, v0
v_mov_b32 v6, 0
ds_write_b32 v5, v6
""")
    U = 112
    a("s_waitcnt vmcnt(0)")
    for i in range(40):
        a(f"v_lshlrev_b32 v{U+2*i}, 16, v{X+i}")
        a(f"v_and_b32 v{U+2*i+1}, 0xffff0000, v{X+i}")
    a(f"v_add_f32 v8, v{U}, v{U+1}")
    a(f"v_add_f32 v9, v{U+2}, v{U+3}")
    for i in range(4, 80, 2):
        a(f"v_add_f32 v8, v8, v{U+i}")
        a(f"v_add_f32 v9, v9, v{U+i+1}")
    a("v_add_f32 v8, v8, v9")
    def red8(v):
        for m in (0x041F, 0x081F, 0x101F):
            a(f"""
ds_swizzle_b32 v9, v{v} offset:{m}
s_waitcnt lgkmcnt(0)
v_add_f32 v{v}, v{v}, v9
""")
    red8(8)
    a(f"v_mul_f32 v8, {hex(f32bits(1/640))}, v8      ; mean")
    a("v_mov_b32 v10, 0\nv_mov_b32 v11, 0")
    for i in range(0, 80, 2):
        a(f"v_sub_f32 v{U+i}, v{U+i}, v8")
        a(f"v_sub_f32 v{U+i+1}, v{U+i+1}, v8")
        a(f"v_fmac_f32 v10, v{U+i}, v{U+i}")
        a(f"v_fmac_f32 v11, v{U+i+1}, v{U+i+1}")
    a("v_add_f32 v10, v10, v11")
    red8(10)
    a(f"""
v_mul_f32 v10, {hex(f32bits(1/640))}, v10     ; var
v_cvt_pk_bf16_f32 v11, v8, v10
v_lshlrev_b32 v8, 16, v11              ; mb
v_and_b32 v10, 0xffff0000, v11         ; vb
v_add_f32 v10, {hex(f32bits(1e-5))}, v10
v_cvt_pk_bf16_f32 v11, v10, v10
v_and_b32 v10, 0xffff0000, v11
v_sqrt_f32 v10, v10
s_nop 0
v_cvt_pk_bf16_f32 v11, v10, v10
v_and_b32 v10, 0xffff0000, v11
v_rcp_f32 v10, v10
v_lshlrev_b32 v2, 2, v2
v_cmp_eq_u32 vcc, 0, v4
s_mov_b32 s32, {MBO}
s_mov_b32 s33, {RIO}
s_and_saveexec_b64 s[34:35], vcc
buffer_store_dword v8, v2, s[16:19], s32 offen sc1
buffer_store_dword v10, v2, s[16:19], s33 offen sc1
s_mov_b64 exec, -1
""")
    stamp(a, 1)
    a(f"""
s_barrier
s_cmp_eq_u32 s30, 7
s_cbranch_scc1 LP_flag
s_cmp_lt_u32 s30, 3
s_cbranch_scc0 LP_gu
s_mov_b32 s12, s38
s_mov_b32 s13, s39
s_mov_b32 s14, {640*1920*2}
s_mov_b32 s15, 0x00020000
s_mul_i32 s56, s31, 3
s_add_u32 s56, s56, s30
s_mul_i32 s57, s56, 320
s_mul_i32 s58, s56, 160
s_mov_b32 s59, 20
s_mov_b32 s60, 3840                   ; ldw
s_branch LP_cs
LP_gu:
s_cmp_lt_u32 s30, 5
s_cselect_b32 s12, s44, s46
s_cselect_b32 s13, s45, s47
s_mov_b32 s58, 3456
s_cselect_b32 s58, 1920, s58
s_mov_b32 s14, {640*1536*2}
s_mov_b32 s15, 0x00020000
s_add_u32 s56, s30, 1
s_and_b32 s56, s56, 1                 ; (pi-3)&1
s_lshl_b32 s57, s31, 1
s_add_u32 s56, s56, s57               ; block
s_mul_i32 s57, s56, 384
s_mul_i32 s56, s56, 192
s_add_u32 s58, s58, s56
s_mov_b32 s59, 24
s_mov_b32 s60, 3072
LP_cs:
v_cmp_le_u32 vcc, s59, v1
v_mov_b32 v6, s59
s_nop 0
v_cndmask_b32 v7, 0, v6, vcc
v_sub_u32 v7, v1, v7                  ; cc
v_cndmask_b32 v6, 0, 1, vcc           ; r
s_mul_i32 s61, s24, 80
v_add_u32 v6, s61, v6                 ; row
v_mul_lo_u32 v6, v6, s60
v_lshl_add_u32 v6, v7, 4, v6
v_add_u32 v6, s57, v6                 ; voffset
s_lshl_b32 s61, s59, 1
v_cmp_gt_u32 vcc, s61, v1
s_lshl_b32 s62, s60, 1
s_mov_b32 s63, 0
s_and_saveexec_b64 s[34:35], vcc
""")
    for i in range(8): a(f"v_mov_b32 v{16+i}, 0")
    CX = 48
    for t in range(40):
        a(f"buffer_load_dwordx4 {vr(CX+4*t,4)}, v6, s[12:15], s63 offen")
        a("s_add_u32 s63, s63, s62")
    for t in range(40):
        a(f"s_waitcnt vmcnt({39-t})")
        for i in range(4):
            a(f"v_lshlrev_b32 v8, 16, v{CX+4*t+i}")
            a(f"v_and_b32 v9, 0xffff0000, v{CX+4*t+i}")
            a(f"v_add_f32 v{16+2*i}, v{16+2*i}, v8")
            a(f"v_add_f32 v{17+2*i}, v{17+2*i}, v9")
    a(f"""
v_lshlrev_b32 v7, 5, v7
""")
    stamp(a, 4)
    for i in range(8): a(f"ds_add_f32 v7, v{16+i} offset:{4*i}")
    a(f"""
s_mov_b64 exec, -1
s_waitcnt lgkmcnt(0)
s_barrier
s_lshl_b32 s61, s59, 3                ; ncols
v_cmp_gt_u32 vcc, s61, v0
s_lshl_b32 s58, s58, 2
s_add_u32 s58, s58, {CSO}
s_and_saveexec_b64 s[34:35], vcc
s_cbranch_execz LP_csdone
ds_read_b32 v6, v5
s_waitcnt lgkmcnt(0)
buffer_store_dword v6, v5, s[16:19], s58 offen sc1
LP_csdone:
s_mov_b64 exec, -1
LP_flag:
s_waitcnt vmcnt(0)
s_barrier
s_cmp_lg_u32 s24, 0
s_cbranch_scc1 LP_tr
v_mov_b32 v6, 1
v_mov_b32 v7, s27
v_lshlrev_b32 v7, 2, v7
s_mov_b64 exec, 1
buffer_store_dword v6, v7, s[20:23], 0 offen sc1
s_mov_b64 exec, -1
LP_tr:
""")
    stamp(a, 2)
    a(f"""
s_lshl_b32 s56, s27, 3
s_add_u32 s56, s56, s24               ; u
s_lshl_b32 s57, s24, 12
s_add_u32 s57, s57, 4096
v_lshrrev_b32 v6, 3, v1
v_mul_u32_u24 v6, 1280, v6
v_and_b32 v7, 7, v1
v_lshl_add_u32 v6, v7, 4, v6          ; voffset q=0
v_add_u32 v7, {8*1280-1024}, v6
v_add_u32 v8, {16*1280-2048}, v6
v_add_u32 v9, {24*1280-3072}, v6
v_lshrrev_b32 v10, 5, v1
v_lshlrev_b32 v10, 4, v10
v_bfe_u32 v11, v1, 4, 1
v_lshl_add_u32 v10, v11, 2, v10
v_bfe_u32 v11, v1, 2, 2
v_add_u32 v10, v10, v11
v_lshlrev_b32 v10, 7, v10
v_and_b32 v11, 3, v1
v_lshl_add_u32 v10, v11, 3, v10
v_add_u32 v10, s57, v10
v_lshlrev_b32 v11, 4, v1
LP_trloop:
s_cmp_ge_u32 s56, 680
s_cbranch_scc1 LP_end
s_mul_i32 s58, s56, 52429
s_lshr_b32 s58, s58, 19               ; kblock = u/10
s_mul_i32 s59, s58, 10
s_sub_u32 s59, s56, s59               ; nb64
s_cmp_lt_u32 s58, 20
s_cselect_b32 s12, s40, s48
s_cselect_b32 s13, s41, s49
s_mov_b32 s14, {1536*640*2}
s_cselect_b32 s14, {640*640*2}, s14
s_mov_b32 s15, 0x00020000
s_cselect_b32 s60, 0, 20
s_sub_u32 s60, s58, s60
s_mul_i32 s60, s60, {32*1280}
s_lshl_b32 s61, s59, 7
s_add_u32 s60, s60, s61               ; soffset
s_mov_b32 m0, s57
s_nop 0
buffer_load_dwordx4 v6, s[12:15], s60 offen lds
buffer_load_dwordx4 v7, s[12:15], s60 offen offset:1024 lds
buffer_load_dwordx4 v8, s[12:15], s60 offen offset:2048 lds
buffer_load_dwordx4 v9, s[12:15], s60 offen offset:3072 lds
s_mul_i32 s60, s58, {40*1024}
s_lshl_b32 s61, s59, 12
s_add_u32 s60, s60, s61
s_add_u32 s60, s60, {BF}
s_waitcnt vmcnt(0)
""")
    for jt in range(4):
        for r in range(2):
            a(f"ds_read_b64_tr_b16 {vr(X+4*jt+2*r,2)}, v10 offset:{jt*32 + r*8*128}")
    a("s_waitcnt lgkmcnt(0)")
    for jt in range(4):
        a(f"buffer_store_dwordx4 {vr(X+4*jt,4)}, v11, s[16:19], s60 offen offset:{jt*1024}")
    a(f"""
s_add_u32 s56, s56, 256
s_branch LP_trloop
LP_end:
""")
    if PROF: a('s_waitcnt vmcnt(0)')
    stamp(a, 3)
    stamp_out(a, 5)
    a("s_endpgm")

def k1_kernel(a, name):
    kernel_header(a, name)
    a(f"""
s_cmp_ge_u32 s2, 256
s_cbranch_scc1 LK1_end
""")
    stamp(a, 0)
    a(f"""
s_load_dwordx16 s[36:51], s[0:1], 0
s_load_dwordx4 s[52:55], s[0:1], 64
v_and_b32 v1, 63, v0
v_lshrrev_b32 v2, 6, v0
s_and_b32 s25, s2, 7
v_readfirstlane_b32 s24, v2
s_lshr_b32 s26, s2, 3
s_waitcnt lgkmcnt(0)
""")
    srd(a, 8, 36, 37, 2048 * 640 * 2)
    srd(a, 16, 54, 55, WS_BYTES)
    srd(a, 20, 52, 53, 256)
    a(f"""
s_cmp_lt_u32 s26, 4
s_cbranch_scc1 LP
s_sub_u32 s26, s26, 4                 ; t
s_and_b32 s27, s25, 1
s_lshl_b32 s27, s27, 2
s_and_b32 s28, s26, 3
s_add_u32 s27, s27, s28               ; mblock
s_lshl_b32 s29, s27, 8
s_lshl_b32 s28, s24, 5
s_add_u32 s29, s29, s28               ; row0
s_lshl_b32 s63, s24, 12
v_and_b32 v5, 31, v1
v_lshlrev_b32 v5, 2, v5
v_lshrrev_b32 v20, 3, v1
v_add_u32 v20, s29, v20
v_mul_u32_u24 v20, 1280, v20
v_lshrrev_b32 v21, 4, v1              ; lane>>4
v_and_b32 v22, 7, v1
v_xor_b32 v23, v22, v21
v_lshl_add_u32 v10, v23, 4, v20
v_xor_b32 v23, 4, v23
v_lshl_add_u32 v11, v23, 4, v20
v_add_u32 v12, {16*1280-2048}, v10
v_add_u32 v13, {24*1280-3072}, v11
v_add_u32 v11, {8*1280-1024}, v11
v_and_b32 v20, 31, v1                 ; m
v_lshrrev_b32 v21, 5, v1              ; h
v_bfe_u32 v22, v20, 1, 3              ; f
v_xor_b32 v22, v22, v21
v_lshlrev_b32 v20, 7, v20
v_add_u32 v20, s63, v20
""")
    for j in range(4):
        a(f"v_xor_b32 v23, {2*j}, v22")
        a(f"v_lshl_add_u32 v{6+j}, v23, 4, v20")
    a(f"""
s_lshr_b32 s26, s26, 2                ; nq
s_lshr_b32 s56, s25, 1                ; q
s_cmp_lt_u32 s26, 3
s_cbranch_scc0 LK1_gu
s_mul_i32 s28, s56, 3
s_add_u32 s28, s28, s26               ; nb
s_cmp_lt_u32 s28, 8
s_cbranch_scc1 LGQK
s_branch LGV
LK1_gu:
s_lshl_b32 s28, s56, 2
s_add_u32 s28, s28, s26
s_sub_u32 s28, s28, 3                 ; gb
s_branch LGGU
LK1_end:
s_endpgm
""")
    gemm(a, "QK"); gemm(a, "V"); gemm(a, "GU")
    prep(a)

if __name__ == "__main__":
    import sys
    PROF = len(sys.argv) > 1
    a = Asm()
    hdr = f"; @launch kernel=k1_kernel grid=(256,1,1) block=(512,1,1) lds={K1_LDS}\n"
    a('.amdgcn_target "amdgcn-amd-amdhsa--gfx950"\n.text')
    k1_kernel(a, "k1_kernel")
    txt = hdr + a.text() + '.section .rodata,"a"\n' + kernel_desc("k1_kernel", K1_VGPR, 100)
    open("k1_only.s", "w").write(txt)
```

```python
class Asm:
    def __init__(self):
        self.lines = []
    def __call__(self, s):
        for l in s.strip("\n").split("\n"):
            l = l.strip()
            if not l: continue
            if l.endswith(":") or l.startswith("."):
                self.lines.append(l)
            else:
                self.lines.append("    " + l)
    def text(self):
        return "\n".join(self.lines) + "\n"

def vr(a, n=1):
    return f"v{a}" if n == 1 else f"v[{a}:{a+n-1}]"
def sr(a, n=1):
    return f"s{a}" if n == 1 else f"s[{a}:{a+n-1}]"

QF = 0x0
KF = 0x280000
VF = 0x500000
AF = 0x780000
BF = 0x1000000
MBO = 0x1300000
RIO = 0x1302000
CSO = 0x1304000
YY = 0x1400000
WS_BYTES = 0x10000000

def kernel_header(a, name):
    a(f"""
.globl {name}
.p2align 8
.type {name},@function
{name}:
""")

def kernel_desc(name, vgpr, sgpr=102, accum=None):
    if accum is None:
        accum = (vgpr + 3) // 4 * 4
    return f""".p2align 6
.amdhsa_kernel {name}
  .amdhsa_next_free_vgpr {vgpr}
  .amdhsa_next_free_sgpr {sgpr}
  .amdhsa_accum_offset {accum}
  .amdhsa_group_segment_fixed_size 0
  .amdhsa_kernarg_size 80
  .amdhsa_user_sgpr_count 2
  .amdhsa_user_sgpr_kernarg_segment_ptr 1
  .amdhsa_system_sgpr_workgroup_id_x 1
.end_amdhsa_kernel
"""

def srd(a, d, lo, hi, size):
    a(f"""
s_mov_b32 s{d}, s{lo}
s_mov_b32 s{d+1}, s{hi}
s_mov_b32 s{d+2}, {size}
s_mov_b32 s{d+3}, 0x00020000
""")

XF = 0x1A00000
GF = 0x1D00000
import struct
def f32bits(x): return struct.unpack("<I", struct.pack("<f", x))[0]
def rinv_calc(a, s, q, mb, ri, t):
    a(f"""
v_mul_f32 v{s}, {hex(f32bits(1/640))}, v{s}
v_mul_f32 v{q}, {hex(f32bits(1/640))}, v{q}
v_fma_f32 v{q}, -v{s}, v{s}, v{q}
v_max_f32 v{q}, 0, v{q}
v_cvt_pk_bf16_f32 v{t}, v{s}, v{q}
v_lshlrev_b32 v{mb}, 16, v{t}
v_and_b32 v{q}, 0xffff0000, v{t}
v_add_f32 v{q}, {hex(f32bits(1e-5))}, v{q}
v_cvt_pk_bf16_f32 v{t}, v{q}, v{q}
v_and_b32 v{q}, 0xffff0000, v{t}
v_sqrt_f32 v{q}, v{q}
s_nop 0
v_cvt_pk_bf16_f32 v{t}, v{q}, v{q}
v_and_b32 v{q}, 0xffff0000, v{t}
v_rcp_f32 v{ri}, v{q}
""")

CNTW = 0x1340000
```

```python
from asmlib import *
MFMA = "v_mfma_f32_32x32x16_bf16"
MF16 = "v_mfma_f32_16x16x32_bf16"
A_STAGE = 32768
B_RING, B_SLOT = 98304, 12576
CS_OFF = 161184
K1_LDS = 161952
ACC = 64
CSA = 160
FR = 168
FX = 216
K1_VGPR = 228
QSCALE = (20 ** -0.5) * 1.4426950408889634
PROF = False
VAR = ""
def stamp(a, k):
    if PROF:
        a(f"s_memrealtime s[{82+2*k}:{83+2*k}]")
        if k in (1, 2): a(f"s_memtime s[{92+2*k}:{93+2*k}]")
def stamp_out(a, n):
    if PROF:
        a("s_waitcnt vmcnt(0) lgkmcnt(0)")
        a(f"s_memrealtime s[{82+2*n}:{83+2*n}]")
        a("s_waitcnt lgkmcnt(0)")
        for k in range(8):
            a(f"v_mov_b32 v{8+k}, s{82+2*min(k, n)}" if k < 6 else f"v_mov_b32 v{8+k}, s{94+2*(k-6)}")
        a(f"""
s_lshl_b32 s34, s2, 3
s_add_u32 s34, s34, s24
s_lshl_b32 s34, s34, 5
s_add_u32 s34, s34, 0x3000000
v_mov_b32 v16, 0
s_mov_b64 exec, 1
buffer_store_dwordx4 v[8:11], v16, s[16:19], s34 offen
buffer_store_dwordx4 v[12:15], v16, s[16:19], s34 offen offset:16
""")

def gemm(a, kind):
    L = f"LG{kind}"
    GU = kind == "GU"
    RS = 192 if GU else 320
    GS = 8 * RS + 32
    UP = 4 * GS + 32
    CPR = 12 if GU else 20
    CW = 96 if GU else 80
    ldw = 3072 if GU else 3840
    NA = 2 if GU else 1
    NBF = 3 if GU else 5
    FA = [[FR + 24 * b + 4 * i for i in range(NA)] for b in range(2)]
    FB = [[FR + 24 * b + 4 * NA + 4 * j for j in range(NBF)] for b in range(2)]
    acc = lambda i, j: ACC + 16 * (NBF * i + j)
    a(f"{L}:")
    if GU:
        a(f"""
s_cmp_ge_u32 s24, 4
s_cselect_b32 s12, s46, s44
s_cselect_b32 s13, s47, s45
s_mov_b32 s14, {640*1536*2}
s_mov_b32 s15, 0x00020000
s_mul_i32 s58, s28, 192
s_and_b32 s57, s24, 3
s_mul_i32 s59, s57, {GS}
s_mul_i32 s60, s81, {UP}
s_add_u32 s59, s59, s60
s_mul_i32 s60, s57, {CW}
s_lshl_b32 s56, s80, 13
""")
    else:
        a(f"""
s_mov_b32 s12, s38
s_mov_b32 s13, s39
s_mov_b32 s14, {640*1920*2}
s_mov_b32 s15, 0x00020000
s_mul_i32 s58, s28, 320
s_lshr_b32 s59, s24, 1
s_mul_i32 s59, s59, {GS}
s_and_b32 s57, s24, 1
s_mul_i32 s57, s57, 1280
s_add_u32 s59, s59, s57
s_mul_i32 s60, s24, {CW}
s_lshl_b32 s56, s24, 12               ; 32*w*128
""")
    magic, sh = (43691, 19) if CPR == 12 else (52429, 20)
    a(f"""
s_add_u32 s59, s59, {B_RING}
s_mov_b32 s62, {ldw}
v_add_u32 v6, s56, v6
v_add_u32 v7, s56, v7
v_add_u32 v8, s56, v8
v_add_u32 v9, s56, v9
""")
    for (vd, add) in ((14, 0), (15, 64)):
        a(f"""
v_add_u32 v24, s60, v1
v_add_u32 v24, {add}, v24
v_mul_u32_u24 v25, {magic}, v24
v_lshrrev_b32 v25, {sh}, v25
v_mul_u32_u24 v26, {CPR}, v25
v_sub_u32 v26, v24, v26
v_mul_lo_u32 v25, v25, s62
v_lshl_add_u32 v25, v26, 4, v25
v_add_u32 v{vd}, s58, v25
""")
        if add: a(f"v_subrev_u32 v{vd}, 1024, v{vd}")
    NH = UP if GU else 32
    a(f"""
v_bfe_u32 v26, v1, 2, 2
v_mul_u32_u24 v26, {RS}, v26
v_and_b32 v27, 3, v1
v_lshl_add_u32 v26, v27, 3, v26       ; (i>>2)*RS + 8*(i&3)
v_lshrrev_b32 v24, 5, v1
v_mul_u32_u24 v24, {GS}, v24
v_bfe_u32 v27, v1, 4, 1
v_mul_u32_u24 v27, {NH}, v27
v_add3_u32 v16, v24, v26, v27
""")
    if GU: a(f"s_mul_i32 s61, s81, 96\ns_add_u32 s61, s61, {B_RING}")
    else: a(f"s_mov_b32 s61, {B_RING}")
    a("v_add_u32 v16, s61, v16")
    a(f"""
v_lshrrev_b32 v24, 4, v1
v_mul_u32_u24 v24, {GS}, v24
v_add_u32 v24, v24, v26
""")
    if GU:
        a(f"""
s_lshl_b32 s61, s24, 5
s_cmp_ge_u32 s24, 6
s_cselect_b32 s56, {UP - 192}, 0
s_add_u32 s61, s61, s56
s_add_u32 s61, s61, {B_RING}
v_add_u32 v17, s61, v24
s_and_b32 s73, s24, 3                 ; jf2 = 8 + (w&3)
s_lshl_b32 s61, s73, 5
s_add_u32 s61, s61, {B_RING + UP + 64}
v_add_u32 v18, s61, v24
s_lshr_b32 s72, s24, 2                ; parity
""")
    else:
        a(f"""
s_lshl_b32 s61, s24, 5
s_add_u32 s61, s61, {B_RING}
v_add_u32 v17, s61, v24
s_and_b32 s73, s24, 1
s_lshl_b32 s61, s73, 5
s_add_u32 s61, s61, {B_RING + 256}
v_add_u32 v18, s61, v24
s_bfe_u32 s72, s24, 0x10001
""")
    a(f"""
s_mov_b32 s64, {hex((1 << (CW - 64)) - 1)}
s_mov_b32 s65, 0
s_mov_b32 s30, 0
s_mov_b32 s31, 0
s_mov_b32 s32, 0
s_mov_b32 s33, 0
s_mov_b32 s66, 0
s_mov_b32 s67, 0
""")
    def dmaA(q):
        a(f"""
s_add_u32 m0, s63, s32
s_nop 0
buffer_load_dwordx4 v{10+q}, s[8:11], s30 offen offset:{1024*q} lds
""")
        if q == 3:
            a(f"""
s_add_u32 s32, s32, {A_STAGE}
s_cmp_eq_u32 s32, {3*A_STAGE}
s_cselect_b32 s32, 0, s32
s_add_u32 s30, s30, 128
""")
    def dmaB(q):
        if q == 0:
            a(f"""
s_add_u32 m0, s59, s33
s_nop 0
buffer_load_dwordx4 v14, s[12:15], s31 offen lds
""")
        else:
            a(f"""
s_add_u32 m0, s59, s33
s_mov_b64 exec, s[64:65]
buffer_load_dwordx4 v15, s[12:15], s31 offen offset:1024 lds
s_mov_b64 exec, -1
s_add_u32 s33, s33, {B_SLOT}
s_cmp_eq_u32 s33, {5*B_SLOT}
s_cselect_b32 s33, 0, s33
s_add_u32 s31, s31, {32*ldw}
""")
    JO = 32 if GU else 64
    def reads(nb, ja, ks):
        r = [f"ds_read_b128 {vr(FA[nb][i],4)}, v{6+ja} offset:{4096*i}" for i in range(NA)]
        for j in range(NBF):
            for rr in range(2):
                r.append(f"ds_read_b64_tr_b16 {vr(FB[nb][j]+2*rr,2)}, v16 offset:{2*ks*GS + 4*rr*RS + j*JO}")
        return r
    def xsetup():
        a(f"""
s_add_u32 s69, s67, {B_SLOT}
s_cmp_eq_u32 s69, {5*B_SLOT}
s_cselect_b32 s69, 0, s69
s_cmp_eq_u32 s72, 0
s_cselect_b32 s71, s67, s69
v_add_u32 v19, s67, v17
v_add_u32 v2, s69, v17
v_add_u32 v3, s71, v18
""")
    def xreads():
        r = []
        for e, v in enumerate((19, 2, 3)):
            for rr in range(2):
                r.append(f"ds_read_b64_tr_b16 {vr(FX+4*e+2*rr,2)}, v{v} offset:{4*rr*RS}")
        return r
    def advA_pre():
        a(f"""
s_add_u32 s69, s66, {A_STAGE}
s_cmp_eq_u32 s69, {3*A_STAGE}
s_cselect_b32 s69, 0, s69
s_sub_u32 s68, s69, s66
s_mov_b32 s66, s69
""")
    def advB():
        a(f"""
s_add_u32 s69, s67, {B_SLOT}
s_cmp_eq_u32 s69, {5*B_SLOT}
s_cselect_b32 s69, 0, s69
s_sub_u32 s70, s69, s67
s_mov_b32 s67, s69
v_add_u32 v16, s70, v16
""")
    def mfma(b, i, j):
        d = vr(acc(i, j), 16)
        if kind == "V": return f"{MFMA} {d}, {vr(FA[b][i],4)}, {vr(FB[b][j],4)}, {d}"
        return f"{MFMA} {d}, {vr(FB[b][j],4)}, {vr(FA[b][i],4)}, {d}"
    for _ in range(2):
        dmaB(0); dmaB(1)
        for q in range(4): dmaA(q)
        dmaB(0); dmaB(1)
    for j in range(ACC, ACC + 16 * NA * NBF): a(f"v_mov_b32 v{j}, 0")
    for j in range(CSA, CSA + 8): a(f"v_mov_b32 v{j}, 0")
    a("s_waitcnt vmcnt(8) lgkmcnt(0)\ns_barrier")
    stamp(a, 1)
    for r in reads(0, 0, 0): a(r)
    advA_pre()
    a("v_add_u32 v6, s68, v6")
    def step(jj, dma=True, bar=True, vm=8, nxt=True, extra=None, xm_early=False):
        b = jj & 1; nb = b ^ 1
        if jj % 2 == 0 and bar: a(f"s_waitcnt vmcnt({vm})\ns_barrier")
        if extra: extra()
        a("s_waitcnt lgkmcnt(0)")
        if jj == 0: xsetup()
        rd = []
        if nxt:
            if jj % 2 == 1: advB()
            rd = reads(nb, (jj + 1) % 4, (jj + 1) % 2)
        if jj == 0: rd = rd + xreads()
        dm = []
        if dma:
            dm = {0: [lambda: dmaB(0), lambda: dmaB(1), lambda: dmaA(0)], 1: [lambda: dmaA(1), lambda: dmaA(2), lambda: dmaA(3)],
                  2: [lambda: dmaB(0)], 3: [lambda: dmaB(1)]}[jj]
        ms = [mfma(b, i, j) for j in range(NBF) for i in range(NA)]
        xm = [f"{MF16} {vr(CSA,4)}, {vr(FX,4)}, v[20:23], {vr(CSA,4)}",
              f"{MF16} {vr(CSA+4,4)}, {vr(FX+8,4)}, v[20:23], {vr(CSA+4,4)}",
              f"{MF16} {vr(CSA,4)}, {vr(FX+4,4)}, v[20:23], {vr(CSA,4)}"]
        if xm_early:
            if jj == 1:
                ms = [ms[0], xm[0], ms[1], xm[1], ms[2], xm[2]] + ms[3:]
        elif jj >= 1:
            ms.insert(2, xm[jj - 1])
        n = len(ms)
        nr = max(1, n - 2)
        pr = pd = 0
        for k, m in enumerate(ms):
            a(m)
            tr = min(len(rd), -(-len(rd) * (k + 1) // nr))
            while pr < tr:
                a(rd[pr]); pr += 1
                if pr == NA and nxt:
                    ja = (jj + 1) % 4
                    if ja == 0: advA_pre()
                    a(f"v_add_u32 v{6+ja}, s68, v{6+ja}")
            td = min(len(dm), (len(dm) * (k + 2)) // n)
            while pd < td: dm[pd](); pd += 1
    a("s_mov_b32 s34, 8")
    a(f"s_branch {L}_in")
    a(".p2align 6")
    a(f"{L}_loop:")
    a("s_waitcnt vmcnt(8)\ns_barrier")
    a(f"{L}_in:")
    step(0, bar=False); step(1); step(2); step(3)
    a(f"""
s_sub_u32 s34, s34, 1
s_cmp_lg_u32 s34, 0
s_cbranch_scc1 {L}_loop
""")
    stamp(a, 2)
    step(0, dma=False, vm=8); step(1, dma=False); step(2, dma=False, vm=2); step(3, dma=False)
    def poll_issue():
        a("buffer_load_dword v24, v5, s[20:23], 0 offen sc1")
    def poll_check():
        a(f"""
{L}_poll:
s_waitcnt vmcnt(0)
v_cmp_eq_u32 vcc, 0, v24
s_nop 4
s_cmp_eq_u64 vcc, 0
s_cbranch_scc1 {L}_pollok
s_sleep 2
buffer_load_dword v24, v5, s[20:23], 0 offen sc1
s_branch {L}_poll
{L}_pollok:
""")
        stamp(a, 3)
        if GU: a("s_lshl_b32 s76, s27, 8\ns_lshl_b32 s77, s80, 6\ns_add_u32 s76, s76, s77")
        else: a("s_mov_b32 s76, s29")
        a(f"""
v_and_b32 v25, 31, v1
v_add_u32 v26, s76, v25
v_lshlrev_b32 v26, 2, v26
s_mov_b32 s69, {MBO}
s_mov_b32 s70, {RIO}
""")
        for i in range(NA):
            a(f"buffer_load_dword v{28+i}, v26, s[16:19], s69 offen offset:{128*i} sc1")
        if kind == "V":
            a(f"""
v_lshrrev_b32 v27, 5, v1
v_lshlrev_b32 v27, 2, v27
v_add_u32 v27, s76, v27
v_lshlrev_b32 v27, 2, v27
""")
            for i in range(4):
                a(f"buffer_load_dwordx4 {vr(40+4*i,4)}, v27, s[16:19], s70 offen offset:{32*i} sc1")
        else:
            for i in range(NA):
                a(f"buffer_load_dword v{30+i}, v26, s[16:19], s70 offen offset:{128*i} sc1")
    def cs_publish():
        a(f"""
v_and_b32 v27, 15, v1
v_cmp_eq_u32 vcc, 0, v27
v_and_b32 v27, 48, v1
s_lshl_b32 s70, s24, 6
s_add_u32 s70, s70, {CS_OFF}
v_add_u32 v32, s70, v27
s_lshl_b32 s70, s73, 6
s_add_u32 s70, s70, {CS_OFF + 512}
v_add_u32 v33, s70, v27
s_and_saveexec_b64 s[74:75], vcc
ds_write_b128 v32, {vr(CSA,4)}
""")
        if not GU: a(f"s_cmp_ge_u32 s24, 4\ns_cbranch_scc1 {L}_nox")
        for r in range(4): a(f"ds_add_f32 v33, v{CSA+4+r} offset:{4*r}")
        if not GU: a(f"{L}_nox:")
        a("s_mov_b64 exec, -1\ns_waitcnt lgkmcnt(0)\ns_barrier")
        if GU:
            a(f"""
v_and_b32 v27, 15, v1
v_bfe_u32 v32, v1, 4, 1
v_mul_u32_u24 v32, 96, v32
v_add_u32 v27, v27, v32
s_mul_i32 s70, s81, 48
v_add_u32 v27, s70, v27
v_lshlrev_b32 v27, 2, v27
v_add_u32 v27, {CS_OFF}, v27
""")
            for j in range(3): a(f"ds_read_b32 v{34+j}, v27 offset:{64*j}")
        else:
            a(f"v_lshlrev_b32 v27, 2, v25\nv_add_u32 v27, {CS_OFF}, v27")
            for j in range(5): a(f"ds_read_b32 v{34+j}, v27 offset:{128*j}")
    step(0, dma=False, vm=0, extra=poll_issue, xm_early=True); step(1, dma=False, extra=poll_check, xm_early=True)
    step(2, dma=False, bar=False, extra=cs_publish, xm_early=True); step(3, dma=False, nxt=False, xm_early=True)
    stamp(a, 4)
    XC = FR
    WC = FR + 8
    a(f"""
s_waitcnt vmcnt(0)
s_mov_b32 s64, -1
s_mov_b32 s65, 0
""")
    for i in range(NA):
        a(f"""
v_xor_b32 v24, 0x80000000, v{28+i}
v_lshrrev_b32 v25, 16, v24
v_or_b32 v26, v25, v24
v_cndmask_b32 v{XC+4*i}, 0, v26, s[64:65]
v_cndmask_b32 v{XC+4*i+1}, 0, v25, s[64:65]
v_mov_b32 v{XC+4*i+2}, 0
v_mov_b32 v{XC+4*i+3}, 0
""")
    WCr = [FX, FX + 4, FX + 8, WC, WC + 4]
    for j in range(NBF):
        w = WCr[j]; c = 34 + j
        a(f"""
v_and_b32 v24, 0xffff0000, v{c}
v_sub_f32 v25, v{c}, v24
v_and_b32 v26, 0xffff0000, v25
v_sub_f32 v25, v25, v26
v_lshrrev_b32 v24, 16, v24
v_or_b32 v{w}, v24, v26
v_lshrrev_b32 v{w+1}, 16, v25
v_mov_b32 v{w+2}, 0
v_mov_b32 v{w+3}, 0
""")
        if j == NBF - 1: a("s_nop 1")
        if j >= 1:
            for i in range(NA):
                d = vr(acc(i, j - 1), 16)
                if kind == "V": a(f"{MFMA} {d}, {vr(XC+4*i,4)}, {vr(WCr[j-1],4)}, {d}")
                else: a(f"{MFMA} {d}, {vr(WCr[j-1],4)}, {vr(XC+4*i,4)}, {d}")
    for i in range(NA):
        d = vr(acc(i, NBF - 1), 16)
        if kind == "V": a(f"{MFMA} {d}, {vr(XC+4*i,4)}, {vr(WCr[NBF-1],4)}, {d}")
        else: a(f"{MFMA} {d}, {vr(WCr[NBF-1],4)}, {vr(XC+4*i,4)}, {d}")
    a("s_lshr_b32 s69, s76, 5")
    PK = FR + 16 if False else 24
    if kind == "QK":
        a(f"""
s_cmp_lt_u32 s28, 4
s_cselect_b32 s70, {hex(f32bits(QSCALE))}, 1.0
v_mul_f32 v4, s70, v30
s_cselect_b32 s71, {QF}, {KF}
s_and_b32 s72, s28, 3
s_mul_i32 s72, s72, {8*81920}
s_add_u32 s71, s71, s72
s_mul_i32 s72, s69, 1280
s_add_u32 s71, s71, s72
v_lshlrev_b32 v2, 4, v1
v_and_b32 v3, 31, v1
v_lshlrev_b32 v3, 3, v3
v_lshrrev_b32 v5, 5, v1
s_mov_b32 s72, 81920
v_mul_lo_u32 v5, v5, s72
v_add3_u32 v3, v3, v5, 0
v_add_u32 v3, 1024, v3
""")
        for P in range(4):
            for i in range(20):
                r = ACC + 20 * P + i
                a(f"v_mul_f32 v{r}, v{r}, v4")
            for i in range(10):
                r = ACC + 20 * P + 2 * i
                a(f"v_cvt_pk_bf16_f32 v{PK+10*P+i}, v{r}, v{r+1}")
            a(f"buffer_store_dwordx4 {vr(PK+10*P,4)}, v2, s[16:19], s71 offen")
            a(f"buffer_store_dwordx2 {vr(PK+10*P+4,2)}, v3, s[16:19], s71 offen")
            a(f"s_add_u32 s71, s71, 81920")
            a(f"buffer_store_dwordx4 {vr(PK+10*P+6,4)}, v2, s[16:19], s71 offen")
            a(f"s_add_u32 s71, s71, 81920")
    elif kind == "V":
        PK = FR
        a(f"""
s_sub_u32 s72, s28, 8
s_mul_i32 s72, s72, {8*81920}
s_mul_i32 s71, s69, 1280
s_add_u32 s71, s71, s72
s_add_u32 s71, s71, {VF}
s_mov_b32 s72, 81920
v_and_b32 v2, 31, v1
v_lshrrev_b32 v3, 5, v1
v_mul_u32_u24 v3, 320, v3
""")
        for j in range(5):
            a(f"""
v_add_u32 v24, {32*j}, v2
v_mul_u32_u24 v25, 52429, v24
v_lshrrev_b32 v25, 20, v25
v_mul_u32_u24 v26, 20, v25
v_sub_u32 v26, v24, v26
v_mul_lo_u32 v25, v25, s72
v_lshl_add_u32 v25, v26, 4, v25
v_add_u32 v{28+j}, v25, v3
""")
        for j in range(5):
            for i in range(16):
                r = ACC + 16 * j + i
                a(f"v_mul_f32 v{r}, v{r}, v{40+i}")
            for i in range(8):
                r = ACC + 16 * j + 2 * i
                a(f"v_cvt_pk_bf16_f32 v{PK+8*j+i}, v{r}, v{r+1}")
            a(f"buffer_store_dwordx4 {vr(PK+8*j,4)}, v{28+j}, s[16:19], s71 offen")
            a(f"buffer_store_dwordx4 {vr(PK+8*j+4,4)}, v{28+j}, s[16:19], s71 offen offset:640")
    else:
        PK = 32
        a(f"""
v_mul_f32 v4, v30, v30
v_mul_f32 v5, v31, v31
s_lshl_b32 s71, s69, 1                  ; rowtile16
s_mul_i32 s71, s71, {68*1024}
s_mul_i32 s72, s28, {3*1024}
s_add_u32 s71, s71, s72
s_mul_i32 s72, s81, {3*512}
s_add_u32 s71, s71, s72
s_add_u32 s71, s71, {AF + 20*1024}
s_add_u32 s72, s71, {2*68*1024}
v_bfe_u32 v2, v1, 4, 1
v_mul_u32_u24 v2, {68*1024}, v2
v_and_b32 v3, 15, v1
v_lshl_add_u32 v2, v3, 4, v2
v_lshrrev_b32 v3, 5, v1
v_lshl_add_u32 v2, v3, 8, v2
s_nop 3
""")
        for j in range(3):
            for i in range(2):
                for r in range(8):
                    g = acc(i, j) + r; u = g + 8
                    a(f"v_max_f32 v{g}, 0, v{g}")
                    a(f"v_mul_f32 v{u}, v{u}, v{4+i}")
                    a(f"v_mul_f32 v{g}, v{g}, v{u}")
                for r in range(4):
                    a(f"v_cvt_pk_bf16_f32 v{PK+8*j+4*i+r}, v{acc(i,j)+2*r}, v{acc(i,j)+2*r+1}")
                a(f"buffer_store_dwordx4 {vr(PK+8*j+4*i,4)}, v2, s[16:19], s{71+i} offen offset:{j*512}")
    stamp_out(a, 5)
    a("s_endpgm")

def prep(a):
    X = 64; U = 112
    a(f"""
LP:
s_lshl_b32 s27, s25, 2
s_add_u32 s27, s27, s26               ; p
s_lshl_b32 s28, s27, 6
s_lshl_b32 s29, s24, 3
s_add_u32 s28, s28, s29
v_lshrrev_b32 v2, 3, v1
v_add_u32 v2, s28, v2
v_mul_u32_u24 v3, 1280, v2
v_and_b32 v4, 7, v1
v_lshl_add_u32 v3, v4, 4, v3
""")
    for t in range(10):
        a(f"buffer_load_dwordx4 {vr(X+4*t,4)}, v3, s[8:11], 0 offen offset:{128*t}")
    a("s_waitcnt vmcnt(0)")
    for i in range(40):
        a(f"v_lshlrev_b32 v{U+2*i}, 16, v{X+i}\nv_and_b32 v{U+2*i+1}, 0xffff0000, v{X+i}")
    a(f"v_add_f32 v8, v{U}, v{U+1}\nv_add_f32 v9, v{U+2}, v{U+3}")
    for i in range(4, 80, 2):
        a(f"v_add_f32 v8, v8, v{U+i}\nv_add_f32 v9, v9, v{U+i+1}")
    a("v_add_f32 v8, v8, v9")
    def red8(v):
        for m in (0x041F, 0x081F, 0x101F):
            a(f"ds_swizzle_b32 v9, v{v} offset:{m}\ns_waitcnt lgkmcnt(0)\nv_add_f32 v{v}, v{v}, v9")
    red8(8)
    a(f"v_mul_f32 v8, {hex(f32bits(1/640))}, v8\nv_mov_b32 v10, 0\nv_mov_b32 v11, 0")
    for i in range(0, 80, 2):
        a(f"v_sub_f32 v{U+i}, v{U+i}, v8\nv_sub_f32 v{U+i+1}, v{U+i+1}, v8\nv_fmac_f32 v10, v{U+i}, v{U+i}\nv_fmac_f32 v11, v{U+i+1}, v{U+i+1}")
    a("v_add_f32 v10, v10, v11")
    red8(10)
    a(f"""
v_mul_f32 v10, {hex(f32bits(1/640))}, v10
v_cvt_pk_bf16_f32 v11, v8, v10
v_lshlrev_b32 v8, 16, v11
v_and_b32 v10, 0xffff0000, v11
v_add_f32 v10, {hex(f32bits(1e-5))}, v10
v_cvt_pk_bf16_f32 v11, v10, v10
v_and_b32 v10, 0xffff0000, v11
v_sqrt_f32 v10, v10
s_nop 0
v_cvt_pk_bf16_f32 v11, v10, v10
v_and_b32 v10, 0xffff0000, v11
v_rcp_f32 v10, v10
v_lshlrev_b32 v2, 2, v2
v_cmp_eq_u32 vcc, 0, v4
s_mov_b32 s32, {MBO}
s_mov_b32 s33, {RIO}
s_and_saveexec_b64 s[34:35], vcc
buffer_store_dword v8, v2, s[16:19], s32 offen sc1
buffer_store_dword v10, v2, s[16:19], s33 offen sc1
s_mov_b64 exec, -1
""")
    stamp(a, 1)
    a(f"""
s_waitcnt vmcnt(0)
s_barrier
s_cmp_lg_u32 s24, 0
s_cbranch_scc1 LP_tr
v_mov_b32 v6, 1
v_mov_b32 v7, s27
v_lshlrev_b32 v7, 2, v7
s_mov_b64 exec, 1
buffer_store_dword v6, v7, s[20:23], 0 offen sc1
s_mov_b64 exec, -1
s_waitcnt vmcnt(0)
LP_tr:
""")
    stamp(a, 2)
    a(f"""
s_lshl_b32 s56, s27, 3
s_add_u32 s56, s56, s24
s_mul_i32 s57, s24, 12288
v_lshrrev_b32 v6, 3, v1
v_mul_u32_u24 v6, 1280, v6
v_and_b32 v7, 7, v1
v_lshl_add_u32 v6, v7, 4, v6
v_add_u32 v7, {8*1280-1024}, v6
v_add_u32 v8, {16*1280-2048}, v6
v_add_u32 v9, {24*1280-3072}, v6
v_lshrrev_b32 v10, 5, v1
v_lshlrev_b32 v10, 4, v10
v_bfe_u32 v11, v1, 4, 1
v_lshl_add_u32 v10, v11, 2, v10
v_bfe_u32 v11, v1, 2, 2
v_add_u32 v10, v10, v11
v_lshlrev_b32 v10, 7, v10
v_and_b32 v11, 3, v1
v_lshl_add_u32 v10, v11, 3, v10
v_add_u32 v10, s57, v10
v_lshlrev_b32 v11, 4, v1
""")
    for t in range(3):
        a(f"""
s_min_u32 s60, s56, 679
s_mul_i32 s58, s60, 52429
s_lshr_b32 s58, s58, 19
s_mul_i32 s59, s58, 10
s_sub_u32 s59, s60, s59
s_cmp_lt_u32 s58, 20
s_cselect_b32 s12, s40, s48
s_cselect_b32 s13, s41, s49
s_mov_b32 s14, {1536*640*2}
s_cselect_b32 s14, {640*640*2}, s14
s_mov_b32 s15, 0x00020000
s_cselect_b32 s60, 0, 20
s_sub_u32 s60, s58, s60
s_mul_i32 s60, s60, {32*1280}
s_lshl_b32 s61, s59, 7
s_add_u32 s60, s60, s61
s_add_u32 m0, s57, {4096*t}
s_nop 0
buffer_load_dwordx4 v6, s[12:15], s60 offen lds
buffer_load_dwordx4 v7, s[12:15], s60 offen offset:1024 lds
buffer_load_dwordx4 v8, s[12:15], s60 offen offset:2048 lds
buffer_load_dwordx4 v9, s[12:15], s60 offen offset:3072 lds
s_mul_i32 s60, s58, {40*1024}
s_lshl_b32 s61, s59, 12
s_add_u32 s60, s60, s61
s_add_u32 s{64+t}, s60, {BF}
s_add_u32 s56, s56, 256
""")
    for t in range(3):
        a("s_waitcnt vmcnt(8)")
        for jt in range(4):
            for r in range(2):
                a(f"ds_read_b64_tr_b16 {vr(X+16*t+4*jt+2*r,2)}, v10 offset:{4096*t + jt*32 + r*8*128}")
        a("s_waitcnt lgkmcnt(0)")
        for jt in range(4):
            a(f"buffer_store_dwordx4 {vr(X+16*t+4*jt,4)}, v11, s[16:19], s{64+t} offen offset:{jt*1024} sc1")
    stamp_out(a, 5)
    a("s_endpgm")

def k1_kernel(a, name):
    kernel_header(a, name)
    a(f"""
s_cmp_ge_u32 s2, 256
s_cbranch_scc1 LK1_end
""")
    stamp(a, 0)
    a(f"""
s_load_dwordx16 s[36:51], s[0:1], 0
s_load_dwordx4 s[52:55], s[0:1], 64
v_and_b32 v1, 63, v0
v_lshrrev_b32 v2, 6, v0
s_and_b32 s25, s2, 7
v_readfirstlane_b32 s24, v2
s_lshr_b32 s26, s2, 3
s_and_b32 s80, s24, 3
s_lshr_b32 s81, s24, 2
s_waitcnt lgkmcnt(0)
""")
    srd(a, 8, 36, 37, 2048 * 640 * 2)
    srd(a, 16, 54, 55, WS_BYTES)
    srd(a, 20, 52, 53, 256)
    a(f"""
s_cmp_lt_u32 s26, 4
s_cbranch_scc1 LP
v_min_u32 v3, 191, v0
v_lshlrev_b32 v3, 2, v3
v_add_u32 v3, {CS_OFF}, v3
v_mov_b32 v4, 0
ds_write_b32 v3, v4
s_sub_u32 s26, s26, 4
s_and_b32 s27, s25, 1
s_lshl_b32 s27, s27, 2
s_and_b32 s28, s26, 3
s_add_u32 s27, s27, s28               ; mblock
s_lshl_b32 s29, s27, 8
s_lshl_b32 s28, s24, 5
s_add_u32 s29, s29, s28
s_lshl_b32 s63, s24, 12
v_and_b32 v5, 3, v1
s_lshl_b32 s56, s27, 2
v_add_u32 v5, s56, v5
v_lshlrev_b32 v5, 2, v5
v_lshrrev_b32 v24, 3, v1
v_add_u32 v24, s29, v24
v_mul_u32_u24 v24, 1280, v24
v_lshrrev_b32 v25, 4, v1
v_and_b32 v26, 7, v1
v_xor_b32 v27, v26, v25
v_lshl_add_u32 v10, v27, 4, v24
v_xor_b32 v27, 4, v27
v_lshl_add_u32 v11, v27, 4, v24
v_add_u32 v12, {16*1280-2048}, v10
v_add_u32 v13, {24*1280-3072}, v11
v_add_u32 v11, {8*1280-1024}, v11
v_and_b32 v24, 31, v1
v_lshrrev_b32 v25, 5, v1
v_bfe_u32 v26, v24, 1, 3
v_xor_b32 v26, v26, v25
v_lshlrev_b32 v24, 7, v24
""")
    for j in range(4):
        a(f"v_xor_b32 v27, {2*j}, v26\nv_lshl_add_u32 v{6+j}, v27, 4, v24")
    a(f"""
v_and_b32 v24, 15, v1
v_cmp_eq_u32 vcc, 0, v24
v_mov_b32 v25, 0x3f803f80
s_lshr_b32 s26, s26, 2
v_cndmask_b32 v20, 0, v25, vcc
v_cndmask_b32 v21, 0, v25, vcc
v_cndmask_b32 v22, 0, v25, vcc
v_cndmask_b32 v23, 0, v25, vcc
s_lshr_b32 s56, s25, 1
s_cmp_lt_u32 s26, 3
s_cbranch_scc0 LK1_gu
s_mul_i32 s28, s56, 3
s_add_u32 s28, s28, s26
s_cmp_lt_u32 s28, 8
s_cbranch_scc1 LGQK
s_branch LGV
LK1_gu:
s_lshl_b32 s28, s56, 2
s_add_u32 s28, s28, s26
s_sub_u32 s28, s28, 3
s_branch LGGU
LK1_end:
s_endpgm
""")
    gemm(a, "QK"); gemm(a, "V"); gemm(a, "GU")
    prep(a)

if __name__ == "__main__":
    import sys
    PROF = len(sys.argv) > 1
    VAR = sys.argv[1] if PROF else ""
    a = Asm()
    hdr = f"; @launch kernel=k1_kernel grid=(256,1,1) block=(512,1,1) lds={K1_LDS}\n"
    a('.amdgcn_target "amdgcn-amd-amdhsa--gfx950"\n.text')
    k1_kernel(a, "k1_kernel")
    txt = hdr + a.text() + '.section .rodata,"a"\n' + kernel_desc("k1_kernel", K1_VGPR, 100)
    open("k1_only.s", "w").write(txt)
```

```python
from asmlib import *
MFMA = "v_mfma_f32_32x32x16_bf16"
MF16 = "v_mfma_f32_16x16x32_bf16"
QA, QAT, QB, QBT = 8, 12, 16, 20
SA, SB = 24, 40
PA, PB = 56, 64
OA, OB = 72, 88
KB, VB, NB = 104, 136, 4
MA, MB = 0, 2
K2_VGPR = 168
K2_LDS = 53248
PROF = False
KPERM = "v2"

def prof_out(a, base, srd, wave_s, regs):
    a("s_waitcnt vmcnt(0) lgkmcnt(0)")
    a(f"s_memrealtime s[{regs[-1]}:{regs[-1]+1}]")
    a("s_waitcnt lgkmcnt(0)")
    for k in range(4):
        a(f"v_mov_b32 v{8+k}, s{regs[min(k, len(regs)-1)]}")
    a(f"""
s_lshl_b32 s34, s2, 2
s_add_u32 s34, s34, s{wave_s}
s_lshl_b32 s34, s34, 4
s_add_u32 s34, s34, {base}
v_mov_b32 v16, 0
s_mov_b64 exec, 1
buffer_store_dwordx4 v[8:11], v16, s[{srd}:{srd+3}], s34 offen
""")

def attn(a):
    T = PA
    a(f"""
LA:
s_and_b32 s21, s3, 7
s_lshl_b32 s21, s21, 2
s_lshr_b32 s22, s3, 3
s_and_b32 s23, s22, 3
s_add_u32 s21, s21, s23              ; head
s_lshr_b32 s22, s3, 5                ; qblock
s_and_b32 s23, s20, 1
s_lshl_b32 s24, s16, 1
s_add_u32 s23, s23, s24              ; qsub
s_lshr_b32 s24, s20, 1               ; khalf
s_mul_i32 s25, s21, {64*1280}
s_lshl_b32 s26, s22, 3
s_lshl_b32 s27, s23, 1
s_add_u32 s26, s26, s27              ; qtile a
s_mul_i32 s27, s26, 1280
s_add_u32 s27, s27, s25
s_mul_i32 s28, s24, {32*1280}
s_add_u32 s28, s28, s25
s_add_u32 s29, s28, {VF}
s_add_u32 s28, s28, {KF}
v_lshlrev_b32 v3, 4, v1
v_and_b32 v4, 31, v1
v_lshrrev_b32 v5, 5, v1
v_lshlrev_b32 v6, 3, v4
v_lshl_add_u32 v6, v5, 2, v6
v_add_u32 v6, 1024, v6
v_mul_u32_u24 v7, 320, v5
v_lshl_add_u32 v7, v4, 4, v7
buffer_load_dwordx4 {vr(QA,4)}, v3, s[8:11], s27 offen
buffer_load_dword {vr(QAT)}, v6, s[8:11], s27 offen
buffer_load_dwordx4 {vr(QB,4)}, v3, s[8:11], s27 offen offset:1280
buffer_load_dword {vr(QBT)}, v6, s[8:11], s27 offen offset:1280
s_mov_b32 s30, 0
s_mov_b32 s12, 0x000FFFFF
s_mov_b32 s13, 0x000FFFFF
s_mov_b32 s14, 0xFFFFFFFF
s_mov_b32 s15, 0
""")
    def rowmax(S, M, init):
        if init:
            a(f"v_max3_f32 {vr(M)}, {vr(S)}, {vr(S+1)}, {vr(S+2)}")
            a(f"v_max_f32 {vr(M)}, {vr(M)}, {vr(S+3)}")
            st = 4
        else: st = 0
        for j in range(st, 16, 2):
            a(f"v_max3_f32 {vr(M)}, {vr(M)}, {vr(S+j)}, {vr(S+j+1)}")
    def qk(S, Qm, Qt, kb):
        a(f"{MFMA} {vr(S,16)}, {vr(KB+8*kb,4)}, {vr(Qm,4)}, 0")
        a(f"{MFMA} {vr(S,16)}, {vr(KB+8*kb+4,4)}, {vr(Qt,4)}, {vr(S,16)}")
    def loadK(kb, soff, imm=0):
        a(f"buffer_load_dwordx4 {vr(KB+8*kb,4)}, v3, s[8:11], {soff} offen offset:{imm}")
        a(f"buffer_load_dword {vr(KB+8*kb+4)}, v6, s[8:11], {soff} offen offset:{imm}")
    def loadV(vb, soff, imm=0):
        a("s_mov_b64 exec, s[12:13]")
        a(f"buffer_load_dwordx4 {vr(VB+8*vb,4)}, v7, s[8:11], {soff} offen offset:{imm}")
        a(f"buffer_load_dwordx4 {vr(VB+8*vb+4,4)}, v7, s[8:11], {soff} offen offset:{imm+640}")
        a("s_mov_b64 exec, -1")
    a("s_branch LA_pro")
    a("LA_restart:")
    for q in (QAT, QBT):
        for j in (1, 2): a(f"v_mov_b32 {vr(q+j)}, 0")
    a(f"""
v_mov_b32 {vr(MA)}, 0xff800000
v_mov_b32 {vr(MB)}, 0xff800000
s_mov_b32 s31, s28
s_mov_b32 s32, 32
LA_maxloop:
""")
    loadK(0, "s31")
    a("s_waitcnt vmcnt(0)")
    qk(SA, QA, QAT, 0); qk(SB, QB, QBT, 0)
    a("s_nop 15\ns_nop 3")
    rowmax(SA, MA, False); rowmax(SB, MB, False)
    a(f"""
s_add_u32 s31, s31, 1280
s_sub_u32 s32, s32, 1
s_cmp_lg_u32 s32, 0
s_cbranch_scc1 LA_maxloop
LA_pro:
""")
    loadK(0, "s28", 0)
    loadK(1, "s28", 1280)
    a(f"""
v_mov_b32 {vr(T)}, 0x3f803f80
v_cmp_eq_u32 vcc, 20, v4
v_cndmask_b32 {vr(T+2)}, 0, {vr(T)}, s[14:15]
s_nop 0
v_cndmask_b32 {vr(T+1)}, 0, {vr(T)}, vcc
""")
    for j in range(8): a(f"v_mov_b32 {vr(VB+j)}, {vr(T+1)}")
    loadV(0, "s29", 0)
    loadK(2, "s28", 2560)
    for j in range(8): a(f"v_mov_b32 {vr(VB+8+j)}, {vr(T+1)}")
    loadV(1, "s29", 1280)
    a(f"s_add_u32 s31, s28, {3*1280}")
    loadK(3, "s31", 0)
    for j in range(8): a(f"v_mov_b32 {vr(VB+16+j)}, {vr(T+1)}")
    loadV(2, "s29", 2560)
    for j in range(8): a(f"v_mov_b32 {vr(VB+24+j)}, {vr(T+1)}")
    for i in range(NB):
        a(f"v_mov_b32 {vr(KB+8*i+5)}, {vr(T+2)}")
        a(f"v_mov_b32 {vr(KB+8*i+6)}, {vr(T+2)}")
        a(f"v_mov_b32 {vr(KB+8*i+7)}, 0")
    for j in range(16):
        a(f"v_mov_b32 {vr(OA+j)}, 0")
        a(f"v_mov_b32 {vr(OB+j)}, 0")
    for j in range(8): a(f"v_mov_b32 {vr(PB+j)}, 0")
    a(f"""
s_cmp_lg_u32 s30, 0
s_cbranch_scc1 LA_setm0
""")
    for q in (QAT, QBT):
        for j in (1, 2, 3): a(f"v_mov_b32 {vr(q+j)}, 0")
    a("s_waitcnt vmcnt(12)")
    qk(SA, QA, QAT, 0); qk(SB, QB, QBT, 0)
    a("s_nop 11")
    rowmax(SA, MA, True); rowmax(SB, MB, True)
    a("LA_setm0:\ns_waitcnt vmcnt(12)")
    for (M, QT) in ((MA, QAT), (MB, QBT)):
        t, u, w = T, T+1, T+2
        a(f"""
v_mov_b32 {vr(t)}, {vr(M)}
v_mov_b32 {vr(u)}, {vr(M)}
s_nop 1
v_permlane32_swap_b32 {vr(t)}, {vr(u)}
s_nop 1
v_max_f32 {vr(M)}, {vr(t)}, {vr(u)}
v_sub_f32 {vr(t)}, 0, {vr(M)}
v_and_b32 {vr(u)}, 0xffff0000, {vr(t)}
v_sub_f32 {vr(t)}, {vr(t)}, {vr(u)}
v_and_b32 {vr(w)}, 0xffff0000, {vr(t)}
v_sub_f32 {vr(t)}, {vr(t)}, {vr(w)}
v_lshrrev_b32 {vr(u)}, 16, {vr(u)}
v_or_b32 {vr(u)}, {vr(u)}, {vr(w)}
v_lshrrev_b32 {vr(t)}, 16, {vr(t)}
v_cndmask_b32 {vr(QT+1)}, 0, {vr(u)}, s[14:15]
v_cndmask_b32 {vr(QT+2)}, 0, {vr(t)}, s[14:15]
""")
        if M == MA:
            a("s_nop 1")
            qk(SA, QA, QAT, 0)
    a(f"""
s_add_u32 s31, s28, {4*1280}
s_add_u32 s33, s29, {3*1280}
s_mov_b32 s32, 8
""")
    if PROF: a("s_memrealtime s[42:43]")
    a(".p2align 6\nLA_loop:")
    def phase(Sx, Px, Sy, Py, Oy, Qy, Qyt, kb, vb, mid=None, post=None, pre=None):
        e = lambda j: a(f"v_exp_f32 {vr(Sx+j)}, {vr(Sx+j)}")
        c = lambda j: a(f"v_cvt_pk_bf16_f32 {vr(Px+j)}, {vr(Sx+2*j)}, {vr(Sx+2*j+1)}")
        if pre: pre()
        a(f"{MFMA} {vr(Sy,16)}, {vr(KB+8*kb,4)}, {vr(Qy,4)}, 0")
        e(0); e(1); e(2); e(3)
        a(f"{MFMA} {vr(Sy,16)}, {vr(KB+8*kb+4,4)}, {vr(Qyt,4)}, {vr(Sy,16)}")
        if mid: mid()
        c(0); c(1); e(4); e(5); e(6); e(7)
        a(f"{MFMA} {vr(Oy,16)}, {vr(VB+8*vb,4)}, {vr(Py,4)}, {vr(Oy,16)}")
        c(2); c(3); e(8); e(9); e(10); e(11)
        a(f"{MFMA} {vr(Oy,16)}, {vr(VB+8*vb+4,4)}, {vr(Py+4,4)}, {vr(Oy,16)}")
        if post: post()
        c(4); c(5); e(12); e(13); e(14); e(15); c(6); c(7)
    for u in range(NB):
        def mid(u=u):
            loadK(u, "s31"); a("s_add_u32 s31, s31, 1280")
        def post(u=u):
            loadV((u+3) % NB, "s33"); a("s_add_u32 s33, s33, 1280")
        phase(SA, PA, SB, PB, OB, QB, QBT, u, (u+3) % NB, mid, post)
        phase(SB, PB, SA, PA, OA, QA, QAT, (u+1) % NB, u, pre=lambda: a("s_waitcnt vmcnt(12)"))
    a(f"""
s_sub_u32 s32, s32, 1
s_cmp_lg_u32 s32, 0
s_cbranch_scc1 LA_loop
{MFMA} {vr(OB,16)}, {vr(VB+8*3,4)}, {vr(PB,4)}, {vr(OB,16)}
{MFMA} {vr(OB,16)}, {vr(VB+8*3+4,4)}, {vr(PB+4,4)}, {vr(OB,16)}
""")
    if PROF: a("s_memrealtime s[44:45]")
    t, t1 = PA, PA + 1
    a(f"""
v_lshlrev_b32 {vr(PA+2)}, 4, v1
s_lshl_b32 s34, s20, 12
v_add_u32 {vr(PA+3)}, s34, {vr(PA+2)}
s_xor_b32 s35, s20, 2
s_lshl_b32 s35, s35, 12
v_add_u32 {vr(PA+4)}, s35, {vr(PA+2)}
v_mov_b32 {vr(t1)}, 0x71800000
v_add_f32 {vr(t)}, abs({vr(OA)}), abs({vr(OA+1)})
""")
    for j in range(2, 12): a(f"v_add_f32 {vr(t)}, {vr(t)}, abs({vr(OA+j)})")
    for j in range(12): a(f"v_add_f32 {vr(t)}, {vr(t)}, abs({vr(OB+j)})")
    a(f"""
v_cmp_nlt_f32 vcc, {vr(t)}, {vr(t1)}
s_cmp_lg_u32 s30, 0
s_cbranch_scc1 LA_comb
s_nop 2
s_cmp_eq_u64 vcc, 0
s_cbranch_scc1 LA_comb
s_mov_b32 s30, 1
s_waitcnt vmcnt(0)
s_branch LA_restart
LA_comb:
s_cmp_eq_u32 s24, 0
s_cbranch_scc1 LA_c0
""")
    w_, r_ = PA + 3, PA + 4
    for j in range(3): a(f"ds_write_b128 {vr(w_)}, {vr(OA+4*j,4)} offset:{j*1024}")
    a(f"ds_write_b32 {vr(w_)}, {vr(MA)} offset:3072")
    for j in range(12): a(f"v_mov_b32 {vr(OA+j)}, {vr(OB+j)}")
    a(f"v_mov_b32 {vr(MA)}, {vr(MB)}")
    a("s_add_u32 s26, s26, 1\ns_branch LA_c1\nLA_c0:")
    for j in range(3): a(f"ds_write_b128 {vr(w_)}, {vr(OB+4*j,4)} offset:{j*1024}")
    a(f"ds_write_b32 {vr(w_)}, {vr(MB)} offset:3072")
    a("LA_c1:\ns_waitcnt lgkmcnt(0)\ns_barrier")
    X = SB
    for j in range(3): a(f"ds_read_b128 {vr(X+4*j,4)}, {vr(r_)} offset:{j*1024}")
    a(f"ds_read_b32 {vr(MB)}, {vr(r_)} offset:3072")
    g_, kbv, g8 = PB, PB + 1, PB + 2
    ad = [PB + 3, PB + 4, PB + 5]
    a(f"""
s_lshl_b32 s34, s26, 1
s_mul_i32 s34, s34, {68*1024}
s_add_u32 s34, s34, {AF}
v_bfe_u32 {vr(t)}, v1, 4, 1
v_mul_u32_u24 {vr(t)}, {68*1024}, {vr(t)}
v_and_b32 {vr(t1)}, 15, v1
v_lshl_add_u32 {vr(t)}, {vr(t1)}, 4, {vr(t)}
s_mul_i32 s35, s21, 5
v_add_u32 {vr(g_)}, s35, v5
""")
    for i in range(3):
        a(f"""
v_lshrrev_b32 {vr(kbv)}, 3, {vr(g_)}
v_lshl_add_u32 {vr(ad[i])}, {vr(kbv)}, 10, {vr(t)}
""")
        if KPERM == "v2":
            a(f"""
v_and_b32 {vr(g8)}, 3, {vr(g_)}
v_lshl_add_u32 {vr(ad[i])}, {vr(g8)}, 8, {vr(ad[i])}
v_bfe_u32 {vr(g8)}, {vr(g_)}, 2, 1
v_lshl_add_u32 {vr(ad[i])}, {vr(g8)}, 3, {vr(ad[i])}
""")
        else:
            a(f"""
v_bfe_u32 {vr(g8)}, {vr(g_)}, 2, 1
v_lshl_add_u32 {vr(ad[i])}, {vr(g8)}, 9, {vr(ad[i])}
v_and_b32 {vr(g8)}, 1, {vr(g_)}
v_lshl_add_u32 {vr(ad[i])}, {vr(g8)}, 8, {vr(ad[i])}
v_bfe_u32 {vr(g8)}, {vr(g_)}, 1, 1
v_lshl_add_u32 {vr(ad[i])}, {vr(g8)}, 3, {vr(ad[i])}
""")
        if i < 2: a(f"v_add_u32 {vr(g_)}, 2, {vr(g_)}")
    m, f1, f2, l, l2 = PA + 2, PA + 3, PA + 5, PA + 6, PA + 7
    a(f"""
s_waitcnt lgkmcnt(0)
v_max_f32 {vr(m)}, {vr(MA)}, {vr(MB)}
v_sub_f32 {vr(f1)}, {vr(MA)}, {vr(m)}
v_sub_f32 {vr(f2)}, {vr(MB)}, {vr(m)}
v_exp_f32 {vr(f1)}, {vr(f1)}
v_exp_f32 {vr(f2)}, {vr(f2)}
s_nop 0
v_mul_f32 {vr(l)}, {vr(OA+8)}, {vr(f1)}
v_fmac_f32 {vr(l)}, {vr(X+8)}, {vr(f2)}
v_mov_b32 {vr(l2)}, {vr(l)}
s_nop 1
v_permlane32_swap_b32 {vr(l)}, {vr(l2)}
s_nop 1
v_rcp_f32 {vr(l2)}, {vr(l2)}
s_nop 0
v_mul_f32 {vr(f1)}, {vr(f1)}, {vr(l2)}
v_mul_f32 {vr(f2)}, {vr(f2)}, {vr(l2)}
""")
    for i in range(3):
        for j in range(4 * i, 4 * i + 4):
            a(f"v_mul_f32 {vr(OA+j)}, {vr(OA+j)}, {vr(f1)}")
            a(f"v_fmac_f32 {vr(OA+j)}, {vr(X+j)}, {vr(f2)}")
        for j in range(2):
            a(f"v_cvt_pk_bf16_f32 {vr(OB+2*i+j)}, {vr(OA+4*i+2*j)}, {vr(OA+4*i+2*j+1)}")
        if i == 2: a("s_mov_b64 exec, s[14:15]")
        a(f"buffer_store_dwordx2 {vr(OB+2*i,2)}, {vr(ad[i])}, s[8:11], s34 offen")
    if PROF:
        a("s_mov_b64 exec, -1")
        prof_out(a, 0x3100000, 8, 20, [40, 42, 44, 46])
    a("s_endpgm")

def splitk(a, L, nkb, kb_base, D, mode, ST, ACCV, prio=None):
    a(f"""
{L}:
s_and_b32 s27, s3, 7
s_lshr_b32 s28, s3, 3
s_lshr_b32 s29, s27, 1
s_lshl_b32 s29, s29, 3
s_lshr_b32 s30, s28, 2
s_add_u32 s29, s29, s30               ; mb
s_and_b32 s30, s27, 1
s_lshl_b32 s30, s30, 2
s_and_b32 s31, s28, 3
s_add_u32 s30, s30, s31               ; nb
v_lshlrev_b32 v3, 4, v1
v_add_u32 v4, {1*69632}, v3
v_add_u32 v5, {2*69632}, v3
v_add_u32 v6, {3*69632}, v3
v_add_u32 v7, 4096, v3
s_mul_i32 s32, s20, {nkb}
s_add_u32 s32, s32, {kb_base}
s_mul_i32 s33, s29, {4*69632}
s_lshl_b32 s34, s32, 10
s_add_u32 s33, s33, s34
s_add_u32 s33, s33, {AF}
s_mul_i32 s34, s32, 40960
s_mul_i32 s35, s30, 5120
s_add_u32 s34, s34, s35
s_add_u32 s34, s34, {BF}
""")
    def loads(kb):
        b = ST + 36 * (kb % D)
        for j in range(4):
            a(f"buffer_load_dwordx4 {vr(b+16+4*j,4)}, v3, s[8:11], s34 offen offset:{j*1024}")
        a(f"buffer_load_dwordx4 {vr(b+32,4)}, v7, s[8:11], s34 offen")
        for i in range(4):
            a(f"buffer_load_dwordx4 {vr(b+4*i,4)}, v{3+i}, s[8:11], s33 offen")
        a("s_add_u32 s33, s33, 1024")
        a("s_add_u32 s34, s34, 40960")
    for kb in range(min(D, nkb)): loads(kb)
    a(f"""
s_lshl_b32 s36, s29, 6
s_lshl_b32 s37, s20, 4
s_add_u32 s36, s36, s37
v_and_b32 v8, 15, v1
v_add_u32 v8, s36, v8
v_mul_u32_u24 v8, 1280, v8
v_lshrrev_b32 v9, 4, v1
v_lshl_add_u32 v8, v9, 3, v8
s_mul_i32 s36, s30, 160
s_lshl_b32 s38, s29, 3
s_add_u32 s38, s38, s30
s_mul_i32 s38, s38, 20480
s_mul_i32 s39, s20, 5120
s_add_u32 s38, s38, s39
s_add_u32 s38, s38, {YY}
""")
    for kb in range(nkb):
        b = ST + 36 * (kb % D)
        rem = min(D - 1, nkb - 1 - kb)
        a(f"s_waitcnt vmcnt({9*rem})")
        if prio: a(f"s_setprio {prio[1]}")
        for i in range(4):
            for j in range(5):
                t = 5 * i + j
                c = "0" if kb == 0 else ACCV(t)
                a(f"{MF16} {ACCV(t)}, {vr(b+16+4*j,4)}, {vr(b+4*i,4)}, {c}")
        if prio and kb + D < nkb: a(f"s_setprio {prio[0]}")
        if kb + D < nkb: loads(kb + D)
    if PROF: a("s_memrealtime s[44:45]")
    RES = ST
    if mode == "final":
        for j in range(4): a(f"buffer_load_dwordx4 {vr(RES+4*j,4)}, v3, s[8:11], s38 offen offset:{j*1024}")
        a(f"buffer_load_dwordx4 {vr(RES+16,4)}, v7, s[8:11], s38 offen")
    else:
        for j in range(5): a(f"buffer_load_dwordx2 {vr(RES+2*j,2)}, v8, s[12:15], s36 offen offset:{32*j}")
    OWN = ST + 20
    R = ST + 40
    a("s_nop 3")
    a(f"""
s_mul_i32 s37, s20, 9216
v_add_u32 v9, s37, v3
""")
    for rnd, js in enumerate(((0, 1, 2), (3, 4))):
        for w in range(4):
            if w < 3:
                a(f"s_cmp_eq_u32 s20, {w}\ns_cbranch_scc0 {L}_r{rnd}n{w}")
            for i in range(4):
                if i == w: continue
                slot = w if w < i else w - 1
                for jj, j in enumerate(js):
                    a(f"ds_write_b128 v3, {ACCV(5*i+j)} offset:{(i*3+slot)*3072 + jj*1024}")
            for j in js:
                src = ACCV(5 * w + j)
                base = int(src[2:src.index(":")])
                for r in range(4):
                    if src[0] == "a": a(f"v_accvgpr_read_b32 v{OWN+4*j+r}, a{base+r}")
                    else: a(f"v_mov_b32 v{OWN+4*j+r}, v{base+r}")
            if w < 3:
                a(f"s_branch {L}_r{rnd}d\n{L}_r{rnd}n{w}:")
        a(f"{L}_r{rnd}d:\ns_waitcnt lgkmcnt(0)\ns_barrier")
        for s in range(3):
            for jj, j in enumerate(js):
                a(f"ds_read_b128 {vr(R+4*jj+12*(s%2),4)}, v9 offset:{s*3072+jj*1024}")
            if s >= 1:
                a(f"s_waitcnt lgkmcnt({len(js)})")
                for jj, j in enumerate(js):
                    for r in range(4): a(f"v_add_f32 v{OWN+4*j+r}, v{OWN+4*j+r}, v{R+4*jj+12*((s-1)%2)+r}")
        a("s_waitcnt lgkmcnt(0)")
        for jj, j in enumerate(js):
            for r in range(4): a(f"v_add_f32 v{OWN+4*j+r}, v{OWN+4*j+r}, v{R+4*jj+r}")
        if rnd == 0: a("s_barrier")
    a("s_waitcnt vmcnt(0)")
    if mode == "final":
        for q in range(20): a(f"v_add_f32 v{OWN+q}, v{OWN+q}, v{RES+q}")
    else:
        for j in range(5):
            for hh in range(2):
                a(f"v_lshlrev_b32 v{R}, 16, v{RES+2*j+hh}")
                a(f"v_and_b32 v{R+1}, 0xffff0000, v{RES+2*j+hh}")
                a(f"v_add_f32 v{OWN+4*j+2*hh}, v{OWN+4*j+2*hh}, v{R}")
                a(f"v_add_f32 v{OWN+4*j+2*hh+1}, v{OWN+4*j+2*hh+1}, v{R+1}")
    if mode == "down":
        for j in range(4): a(f"buffer_store_dwordx4 {vr(OWN+4*j,4)}, v3, s[8:11], s38 offen offset:{j*1024} sc1")
        a(f"buffer_store_dwordx4 {vr(OWN+16,4)}, v7, s[8:11], s38 offen sc1")
    else:
        for j in range(5):
            a(f"v_cvt_pk_bf16_f32 v{R+2*j}, v{OWN+4*j}, v{OWN+4*j+1}")
            a(f"v_cvt_pk_bf16_f32 v{R+2*j+1}, v{OWN+4*j+2}, v{OWN+4*j+3}")
            a(f"buffer_store_dwordx2 {vr(R+2*j,2)}, v8, s[16:19], s36 offen offset:{32*j}")

def k2_kernel(a, name, ffn=True, prio=(0, 2), aprio=1):
    kernel_header(a, name)
    a(f"""
s_cmp_ge_u32 s2, 768
s_cbranch_scc1 LK2_end
""")
    if PROF: a("s_memrealtime s[40:41]")
    a(f"""
s_load_dwordx2 s[4:5], s[0:1], 72
s_load_dwordx2 s[6:7], s[0:1], 0
v_and_b32 v1, 63, v0
v_lshrrev_b32 v2, 6, v0
s_and_b32 s3, s2, 255
v_readfirstlane_b32 s20, v2
s_lshr_b32 s16, s2, 8                 ; type
s_waitcnt lgkmcnt(0)
""")
    srd(a, 8, 4, 5, WS_BYTES)
    a(f"""
s_cmp_eq_u32 s16, 0
s_cbranch_scc1 LK2_ffn
s_sub_u32 s16, s16, 1
s_setprio {aprio}
""")
    attn(a)
    a("LK2_ffn:")
    if ffn:
        srd(a, 12, 6, 7, 2048 * 640 * 2)
        if PROF: a("s_memrealtime s[42:43]")
        splitk(a, "LD", 12, 20, 2, "down", 12, lambda t: f"v[{88+4*t}:{91+4*t}]", prio=prio)
        if PROF: prof_out(a, 0x3100000, 8, 20, [40, 42, 44, 46])
    a("LK2_end:\ns_endpgm")

K3_LDS = 36864
def k3_kernel(a, name, mode="final"):
    kernel_header(a, name)
    a(f"""
s_cmp_ge_u32 s2, 256
s_cbranch_scc1 LK3_end
""")
    if PROF: a("s_memrealtime s[40:41]\ns_memrealtime s[42:43]")
    a(f"""
s_load_dwordx2 s[4:5], s[0:1], 72
s_load_dwordx2 s[6:7], s[0:1], 0
s_load_dwordx2 s[22:23], s[0:1], 56
v_and_b32 v1, 63, v0
v_lshrrev_b32 v2, 6, v0
s_mov_b32 s3, s2
v_readfirstlane_b32 s20, v2
s_waitcnt lgkmcnt(0)
""")
    srd(a, 8, 4, 5, WS_BYTES)
    srd(a, 12, 6, 7, 2048 * 640 * 2)
    srd(a, 16, 22, 23, 2048 * 640 * 2)
    if mode == "final": splitk(a, "LF", 5, 0, 5, "final", 12, lambda t: f"a[{4*t}:{4*t+3}]")
    else: splitk(a, "LF", 17, 0, 6, "full", 12, lambda t: f"a[{4*t}:{4*t+3}]")
    if PROF: prof_out(a, 0x3200000, 8, 20, [40, 42, 44, 46])
    a("LK3_end:\ns_endpgm")
K3_ARCH = 12 + 36 * 6
```

```python
import sys
from asmlib import *
import gen_k1e, gen_k1f, gen_k2
gen_k1 = gen_k1e if 'k1e' in sys.argv else gen_k1f
gen_k2.KPERM = 'v1'
HEAD = open("parallel_sum__mha_block__glu_gated_reglu__prompt.s.ref").read().split("; Override launch")[0]
opts = sys.argv[2:]
PROF = "prof" in opts
gen_k1.PROF = PROF; gen_k2.PROF = PROF; gen_k2.DBGOUT = 'dbg' in opts
arch = "A" if "A" in opts else "C"
gen_k1.VAR = "_".join(opts) + "_qsc1"; gen_k2.VAR = "_".join(opts)
a = Asm()
hdr = HEAD + f"""; @launch kernel=k1_kernel grid=(256,1,1) block=(512,1,1) lds={gen_k1.K1_LDS}
; @launch kernel=k2_kernel grid=(768,1,1) block=(256,1,1) lds={gen_k2.K2_LDS}
; @launch kernel=k3_kernel grid=(256,1,1) block=(256,1,1) lds={gen_k2.K3_LDS}
"""
a('.amdgcn_target "amdgcn-amd-amdhsa--gfx950"\n.text')
gen_k1.k1_kernel(a, "k1_kernel")
prio = (0, 2) if "p2" in opts else (0, 0)
gen_k2.k2_kernel(a, "k2_kernel", ffn=(arch == "C"), prio=prio)
gen_k2.k3_kernel(a, "k3_kernel", mode="final" if arch == "C" else "full")
a('LCODE_END:')
txt = hdr + a.text() + '.section .rodata,"a"\n' + kernel_desc("k1_kernel", gen_k1.K1_VGPR, 100) + kernel_desc("k2_kernel", gen_k2.K2_VGPR, 60) + kernel_desc("k3_kernel", gen_k2.K3_ARCH + 80, 60, accum=gen_k2.K3_ARCH)
open(sys.argv[1], "w").write(txt)
```

```python
from asmlib import *
MFMA = "v_mfma_f32_32x32x16_bf16"
MF16 = "v_mfma_f32_16x16x32_bf16"
A_STAGE = 32768
B_RING, B_SLOT = 98304, 12576
CS_OFF = 161184
K1_LDS = 161952
ACC = 64
CSA = 160
FR = 168
FX = 216
K1_VGPR = 228
QSCALE = (20 ** -0.5) * 1.4426950408889634
PROF = False
VAR = ""
def stamp(a, k):
    if PROF:
        a(f"s_memrealtime s[{82+2*k}:{83+2*k}]")
        if k in (1, 2): a(f"s_memtime s[{92+2*k}:{93+2*k}]")
def stamp_out(a, n):
    if PROF:
        a("s_waitcnt vmcnt(0) lgkmcnt(0)")
        a(f"s_memrealtime s[{82+2*n}:{83+2*n}]")
        a("s_waitcnt lgkmcnt(0)")
        for k in range(8):
            a(f"v_mov_b32 v{8+k}, s{82+2*min(k, n)}" if k < 6 else f"v_mov_b32 v{8+k}, s{94+2*(k-6)}")
        a(f"""
s_lshl_b32 s34, s2, 3
s_add_u32 s34, s34, s24
s_lshl_b32 s34, s34, 5
s_add_u32 s34, s34, 0x3000000
v_mov_b32 v16, 0
s_mov_b64 exec, 1
buffer_store_dwordx4 v[8:11], v16, s[16:19], s34 offen
buffer_store_dwordx4 v[12:15], v16, s[16:19], s34 offen offset:16
""")

def gemm(a, kind):
    L = f"LG{kind}"
    GU = kind == "GU"
    RS = 192 if GU else 320
    GS = 8 * RS + 32
    UP = 4 * GS + 32
    CPR = 12 if GU else 20
    CW = 96 if GU else 80
    ldw = 3072 if GU else 3840
    NA = 2 if GU else 1
    NBF = 3 if GU else 5
    FA = [[FR + 24 * b + 4 * i for i in range(NA)] for b in range(2)]
    FB = [[FR + 24 * b + 4 * NA + 4 * j for j in range(NBF)] for b in range(2)]
    acc = lambda i, j: ACC + 16 * (NBF * i + j)
    a(f"{L}:")
    if GU:
        a(f"""
s_cmp_ge_u32 s24, 4
s_cselect_b32 s12, s46, s44
s_cselect_b32 s13, s47, s45
s_mov_b32 s14, {640*1536*2}
s_mov_b32 s15, 0x00020000
s_mul_i32 s58, s28, 192
s_and_b32 s57, s24, 3
s_mul_i32 s59, s57, {GS}
s_mul_i32 s60, s81, {UP}
s_add_u32 s59, s59, s60
s_mul_i32 s60, s57, {CW}
s_lshl_b32 s56, s80, 13
""")
    else:
        a(f"""
s_mov_b32 s12, s38
s_mov_b32 s13, s39
s_mov_b32 s14, {640*1920*2}
s_mov_b32 s15, 0x00020000
s_mul_i32 s58, s28, 320
s_lshr_b32 s59, s24, 1
s_mul_i32 s59, s59, {GS}
s_and_b32 s57, s24, 1
s_mul_i32 s57, s57, 1280
s_add_u32 s59, s59, s57
s_mul_i32 s60, s24, {CW}
s_lshl_b32 s56, s24, 12               ; 32*w*128
""")
    magic, sh = (43691, 19) if CPR == 12 else (52429, 20)
    a(f"""
s_add_u32 s59, s59, {B_RING}
s_mov_b32 s62, {ldw}
v_add_u32 v6, s56, v6
v_add_u32 v7, s56, v7
v_add_u32 v8, s56, v8
v_add_u32 v9, s56, v9
""")
    for (vd, add) in ((14, 0), (15, 64)):
        a(f"""
v_add_u32 v24, s60, v1
v_add_u32 v24, {add}, v24
v_mul_u32_u24 v25, {magic}, v24
v_lshrrev_b32 v25, {sh}, v25
v_mul_u32_u24 v26, {CPR}, v25
v_sub_u32 v26, v24, v26
v_mul_lo_u32 v25, v25, s62
v_lshl_add_u32 v25, v26, 4, v25
v_add_u32 v{vd}, s58, v25
""")
        if add: a(f"v_subrev_u32 v{vd}, 1024, v{vd}")
    NH = UP if GU else 32
    a(f"""
v_bfe_u32 v26, v1, 2, 2
v_mul_u32_u24 v26, {RS}, v26
v_and_b32 v27, 3, v1
v_lshl_add_u32 v26, v27, 3, v26       ; (i>>2)*RS + 8*(i&3)
v_lshrrev_b32 v24, 5, v1
v_mul_u32_u24 v24, {GS}, v24
v_bfe_u32 v27, v1, 4, 1
v_mul_u32_u24 v27, {NH}, v27
v_add3_u32 v16, v24, v26, v27
""")
    if GU: a(f"s_mul_i32 s61, s81, 96\ns_add_u32 s61, s61, {B_RING}")
    else: a(f"s_mov_b32 s61, {B_RING}")
    a("v_add_u32 v16, s61, v16")
    a(f"""
v_lshrrev_b32 v24, 4, v1
v_mul_u32_u24 v24, {GS}, v24
v_add_u32 v24, v24, v26
""")
    if GU:
        a(f"""
s_lshl_b32 s61, s24, 5
s_cmp_ge_u32 s24, 6
s_cselect_b32 s56, {UP - 192}, 0
s_add_u32 s61, s61, s56
s_add_u32 s61, s61, {B_RING}
v_add_u32 v17, s61, v24
s_and_b32 s73, s24, 3                 ; jf2 = 8 + (w&3)
s_lshl_b32 s61, s73, 5
s_add_u32 s61, s61, {B_RING + UP + 64}
v_add_u32 v18, s61, v24
s_lshr_b32 s72, s24, 2                ; parity
""")
    else:
        a(f"""
s_lshl_b32 s61, s24, 5
s_add_u32 s61, s61, {B_RING}
v_add_u32 v17, s61, v24
s_and_b32 s73, s24, 1
s_lshl_b32 s61, s73, 5
s_add_u32 s61, s61, {B_RING + 256}
v_add_u32 v18, s61, v24
s_bfe_u32 s72, s24, 0x10001
""")
    a(f"""
s_mov_b32 s64, {hex((1 << (CW - 64)) - 1)}
s_mov_b32 s65, 0
s_mov_b32 s30, 0
s_mov_b32 s31, 0
s_mov_b32 s32, 0
s_mov_b32 s33, 0
s_mov_b32 s66, 0
s_mov_b32 s67, 0
""")
    def dmaA(q):
        a(f"""
s_add_u32 m0, s63, s32
s_nop 0
buffer_load_dwordx4 v{10+q}, s[8:11], s30 offen offset:{1024*q} lds
""")
        if q == 3:
            a(f"""
s_add_u32 s32, s32, {A_STAGE}
s_cmp_eq_u32 s32, {3*A_STAGE}
s_cselect_b32 s32, 0, s32
s_add_u32 s30, s30, 128
""")
    def dmaB(q):
        if q == 0:
            a(f"""
s_add_u32 m0, s59, s33
s_nop 0
buffer_load_dwordx4 v14, s[12:15], s31 offen lds
""")
        else:
            a(f"""
s_add_u32 m0, s59, s33
s_mov_b64 exec, s[64:65]
buffer_load_dwordx4 v15, s[12:15], s31 offen offset:1024 lds
s_mov_b64 exec, -1
s_add_u32 s33, s33, {B_SLOT}
s_cmp_eq_u32 s33, {5*B_SLOT}
s_cselect_b32 s33, 0, s33
s_add_u32 s31, s31, {32*ldw}
""")
    JO = 32 if GU else 64
    def reads(nb, ja, ks):
        r = [f"ds_read_b128 {vr(FA[nb][i],4)}, v{6+ja} offset:{4096*i}" for i in range(NA)]
        for j in range(NBF):
            for rr in range(2):
                r.append(f"ds_read_b64_tr_b16 {vr(FB[nb][j]+2*rr,2)}, v16 offset:{2*ks*GS + 4*rr*RS + j*JO}")
        return r
    def xsetup():
        a(f"""
s_add_u32 s69, s67, {B_SLOT}
s_cmp_eq_u32 s69, {5*B_SLOT}
s_cselect_b32 s69, 0, s69
s_cmp_eq_u32 s72, 0
s_cselect_b32 s71, s67, s69
v_add_u32 v19, s67, v17
v_add_u32 v2, s69, v17
v_add_u32 v3, s71, v18
""")
    def xreads():
        r = []
        for e, v in enumerate((19, 2, 3)):
            for rr in range(2):
                r.append(f"ds_read_b64_tr_b16 {vr(FX+4*e+2*rr,2)}, v{v} offset:{4*rr*RS}")
        return r
    def advA_pre():
        a(f"""
s_add_u32 s69, s66, {A_STAGE}
s_cmp_eq_u32 s69, {3*A_STAGE}
s_cselect_b32 s69, 0, s69
s_sub_u32 s68, s69, s66
s_mov_b32 s66, s69
""")
    def advB():
        a(f"""
s_add_u32 s69, s67, {B_SLOT}
s_cmp_eq_u32 s69, {5*B_SLOT}
s_cselect_b32 s69, 0, s69
s_sub_u32 s70, s69, s67
s_mov_b32 s67, s69
v_add_u32 v16, s70, v16
""")
    def mfma(b, i, j):
        d = vr(acc(i, j), 16)
        if kind == "V": return f"{MFMA} {d}, {vr(FA[b][i],4)}, {vr(FB[b][j],4)}, {d}"
        return f"{MFMA} {d}, {vr(FB[b][j],4)}, {vr(FA[b][i],4)}, {d}"
    for _ in range(2):
        dmaB(0); dmaB(1)
        for q in range(4): dmaA(q)
        dmaB(0); dmaB(1)
    for j in range(ACC, ACC + 16 * NA * NBF): a(f"v_mov_b32 v{j}, 0")
    for j in range(CSA, CSA + 8): a(f"v_mov_b32 v{j}, 0")
    a("s_waitcnt vmcnt(8) lgkmcnt(0)\ns_barrier")
    stamp(a, 1)
    for r in reads(0, 0, 0): a(r)
    advA_pre()
    a("v_add_u32 v6, s68, v6")
    def step(jj, dma=True, bar=True, vm=8, nxt=True, extra=None, xm_early=False):
        b = jj & 1; nb = b ^ 1
        if jj % 2 == 0 and bar: a(f"s_waitcnt vmcnt({vm})\ns_barrier")
        if extra: extra()
        a("s_waitcnt lgkmcnt(0)")
        if jj == 0: xsetup()
        rd = []
        if nxt:
            if jj % 2 == 1: advB()
            rd = reads(nb, (jj + 1) % 4, (jj + 1) % 2)
        if jj == 0: rd = rd + xreads()
        dm = []
        if dma:
            dm = {0: [lambda: dmaB(0), lambda: dmaB(1), lambda: dmaA(0)], 1: [lambda: dmaA(1), lambda: dmaA(2), lambda: dmaA(3)],
                  2: [lambda: dmaB(0)], 3: [lambda: dmaB(1)]}[jj]
        ms = [mfma(b, i, j) for j in range(NBF) for i in range(NA)]
        xm = [f"{MF16} {vr(CSA,4)}, {vr(FX,4)}, v[20:23], {vr(CSA,4)}",
              f"{MF16} {vr(CSA+4,4)}, {vr(FX+8,4)}, v[20:23], {vr(CSA+4,4)}",
              f"{MF16} {vr(CSA,4)}, {vr(FX+4,4)}, v[20:23], {vr(CSA,4)}"]
        if xm_early:
            if jj == 1:
                ms = [ms[0], xm[0], ms[1], xm[1], ms[2], xm[2]] + ms[3:]
        elif jj >= 1:
            ms.insert(2, xm[jj - 1])
        n = len(ms)
        nr = max(1, n - 2)
        pr = pd = 0
        for k, m in enumerate(ms):
            a(m)
            tr = min(len(rd), -(-len(rd) * (k + 1) // nr))
            while pr < tr:
                a(rd[pr]); pr += 1
                if pr == NA and nxt:
                    ja = (jj + 1) % 4
                    if ja == 0: advA_pre()
                    a(f"v_add_u32 v{6+ja}, s68, v{6+ja}")
            td = min(len(dm), (len(dm) * (k + 2)) // n)
            while pd < td: dm[pd](); pd += 1
    a("s_mov_b32 s34, 8")
    a(f"s_branch {L}_in")
    a(".p2align 6")
    a(f"{L}_loop:")
    a("s_waitcnt vmcnt(8)\ns_barrier")
    a(f"{L}_in:")
    step(0, bar=False); step(1); step(2); step(3)
    a(f"""
s_sub_u32 s34, s34, 1
s_cmp_lg_u32 s34, 0
s_cbranch_scc1 {L}_loop
""")
    stamp(a, 2)
    step(0, dma=False, vm=8); step(1, dma=False); step(2, dma=False, vm=2); step(3, dma=False)
    def poll_issue():
        a("buffer_load_dword v24, v5, s[20:23], 0 offen sc1")
    def poll_check():
        a(f"""
{L}_poll:
s_waitcnt vmcnt(0)
v_cmp_eq_u32 vcc, 0, v24
s_nop 4
s_cmp_eq_u64 vcc, 0
s_cbranch_scc1 {L}_pollok
s_sleep 2
buffer_load_dword v24, v5, s[20:23], 0 offen sc1
s_branch {L}_poll
{L}_pollok:
""")
        stamp(a, 3)
        if GU: a("s_lshl_b32 s76, s27, 8\ns_lshl_b32 s77, s80, 6\ns_add_u32 s76, s76, s77")
        else: a("s_mov_b32 s76, s29")
        a(f"""
v_and_b32 v25, 31, v1
v_add_u32 v26, s76, v25
v_lshlrev_b32 v26, 2, v26
s_mov_b32 s69, {MBO}
s_mov_b32 s70, {RIO}
""")
        for i in range(NA):
            a(f"buffer_load_dword v{28+i}, v26, s[16:19], s69 offen offset:{128*i} sc1")
        if kind == "V":
            a(f"""
v_lshrrev_b32 v27, 5, v1
v_lshlrev_b32 v27, 2, v27
v_add_u32 v27, s76, v27
v_lshlrev_b32 v27, 2, v27
""")
            for i in range(4):
                a(f"buffer_load_dwordx4 {vr(40+4*i,4)}, v27, s[16:19], s70 offen offset:{32*i} sc1")
        else:
            for i in range(NA):
                a(f"buffer_load_dword v{30+i}, v26, s[16:19], s70 offen offset:{128*i} sc1")
    def cs_publish():
        a(f"""
v_and_b32 v27, 15, v1
v_cmp_eq_u32 vcc, 0, v27
v_and_b32 v27, 48, v1
s_lshl_b32 s70, s24, 6
s_add_u32 s70, s70, {CS_OFF}
v_add_u32 v32, s70, v27
s_lshl_b32 s70, s73, 6
s_add_u32 s70, s70, {CS_OFF + 512}
v_add_u32 v33, s70, v27
s_and_saveexec_b64 s[74:75], vcc
ds_write_b128 v32, {vr(CSA,4)}
""")
        if not GU: a(f"s_cmp_ge_u32 s24, 4\ns_cbranch_scc1 {L}_nox")
        for r in range(4): a(f"ds_add_f32 v33, v{CSA+4+r} offset:{4*r}")
        if not GU: a(f"{L}_nox:")
        a("s_mov_b64 exec, -1\ns_waitcnt lgkmcnt(0)\ns_barrier")
        if GU:
            a(f"""
v_and_b32 v27, 15, v1
v_bfe_u32 v32, v1, 4, 1
v_mul_u32_u24 v32, 96, v32
v_add_u32 v27, v27, v32
s_mul_i32 s70, s81, 48
v_add_u32 v27, s70, v27
v_lshlrev_b32 v27, 2, v27
v_add_u32 v27, {CS_OFF}, v27
""")
            for j in range(3): a(f"ds_read_b32 v{34+j}, v27 offset:{64*j}")
        else:
            a(f"v_lshlrev_b32 v27, 2, v25\nv_add_u32 v27, {CS_OFF}, v27")
            for j in range(5): a(f"ds_read_b32 v{34+j}, v27 offset:{128*j}")
    step(0, dma=False, vm=0, extra=poll_issue, xm_early=True); step(1, dma=False, extra=poll_check, xm_early=True)
    step(2, dma=False, bar=False, extra=cs_publish, xm_early=True); step(3, dma=False, nxt=False, xm_early=True)
    stamp(a, 4)
    XC = FR
    WC = FR + 8
    a(f"""
s_waitcnt vmcnt(0)
s_mov_b32 s64, -1
s_mov_b32 s65, 0
""")
    for i in range(NA):
        a(f"""
v_xor_b32 v24, 0x80000000, v{28+i}
v_lshrrev_b32 v25, 16, v24
v_or_b32 v26, v25, v24
v_cndmask_b32 v{XC+4*i}, 0, v26, s[64:65]
v_cndmask_b32 v{XC+4*i+1}, 0, v25, s[64:65]
v_mov_b32 v{XC+4*i+2}, 0
v_mov_b32 v{XC+4*i+3}, 0
""")
    WCr = [FX, FX + 4, FX + 8, WC, WC + 4]
    for j in range(NBF):
        w = WCr[j]; c = 34 + j
        a(f"""
v_and_b32 v24, 0xffff0000, v{c}
v_sub_f32 v25, v{c}, v24
v_and_b32 v26, 0xffff0000, v25
v_sub_f32 v25, v25, v26
v_lshrrev_b32 v24, 16, v24
v_or_b32 v{w}, v24, v26
v_lshrrev_b32 v{w+1}, 16, v25
v_mov_b32 v{w+2}, 0
v_mov_b32 v{w+3}, 0
""")
        if j == NBF - 1: a("s_nop 1")
        if j >= 1:
            for i in range(NA):
                d = vr(acc(i, j - 1), 16)
                if kind == "V": a(f"{MFMA} {d}, {vr(XC+4*i,4)}, {vr(WCr[j-1],4)}, {d}")
                else: a(f"{MFMA} {d}, {vr(WCr[j-1],4)}, {vr(XC+4*i,4)}, {d}")
    for i in range(NA):
        d = vr(acc(i, NBF - 1), 16)
        if kind == "V": a(f"{MFMA} {d}, {vr(XC+4*i,4)}, {vr(WCr[NBF-1],4)}, {d}")
        else: a(f"{MFMA} {d}, {vr(WCr[NBF-1],4)}, {vr(XC+4*i,4)}, {d}")
    a("s_lshr_b32 s69, s76, 5")
    PK = FR + 16 if False else 24
    if kind == "QK":
        a(f"""
s_cmp_lt_u32 s28, 4
s_cselect_b32 s70, {hex(f32bits(QSCALE))}, 1.0
v_mul_f32 v4, s70, v30
s_cselect_b32 s71, {QF}, {KF}
s_and_b32 s72, s28, 3
s_mul_i32 s72, s72, {8*81920}
s_add_u32 s71, s71, s72
s_mul_i32 s72, s69, 1280
s_add_u32 s71, s71, s72
v_lshlrev_b32 v2, 4, v1
v_and_b32 v3, 31, v1
v_lshlrev_b32 v3, 3, v3
v_lshrrev_b32 v5, 5, v1
s_mov_b32 s72, 81920
v_mul_lo_u32 v5, v5, s72
v_add3_u32 v3, v3, v5, 0
v_add_u32 v3, 1024, v3
""")
        for P in range(4):
            for i in range(20):
                r = ACC + 20 * P + i
                a(f"v_mul_f32 v{r}, v{r}, v4")
            for i in range(10):
                r = ACC + 20 * P + 2 * i
                a(f"v_cvt_pk_bf16_f32 v{PK+10*P+i}, v{r}, v{r+1}")
            a(f"buffer_store_dwordx4 {vr(PK+10*P,4)}, v2, s[16:19], s71 offen")
            a(f"buffer_store_dwordx2 {vr(PK+10*P+4,2)}, v3, s[16:19], s71 offen")
            a(f"s_add_u32 s71, s71, 81920")
            a(f"buffer_store_dwordx4 {vr(PK+10*P+6,4)}, v2, s[16:19], s71 offen")
            a(f"s_add_u32 s71, s71, 81920")
    elif kind == "V":
        PK = FR
        a(f"""
s_sub_u32 s72, s28, 8
s_mul_i32 s72, s72, {8*81920}
s_mul_i32 s71, s69, 1280
s_add_u32 s71, s71, s72
s_add_u32 s71, s71, {VF}
s_mov_b32 s72, 81920
v_and_b32 v2, 31, v1
v_lshrrev_b32 v3, 5, v1
v_mul_u32_u24 v3, 320, v3
""")
        for j in range(5):
            a(f"""
v_add_u32 v24, {32*j}, v2
v_mul_u32_u24 v25, 52429, v24
v_lshrrev_b32 v25, 20, v25
v_mul_u32_u24 v26, 20, v25
v_sub_u32 v26, v24, v26
v_mul_lo_u32 v25, v25, s72
v_lshl_add_u32 v25, v26, 4, v25
v_add_u32 v{28+j}, v25, v3
""")
        for j in range(5):
            for i in range(16):
                r = ACC + 16 * j + i
                a(f"v_mul_f32 v{r}, v{r}, v{40+i}")
            for i in range(8):
                r = ACC + 16 * j + 2 * i
                a(f"v_cvt_pk_bf16_f32 v{PK+8*j+i}, v{r}, v{r+1}")
            a(f"buffer_store_dwordx4 {vr(PK+8*j,4)}, v{28+j}, s[16:19], s71 offen")
            a(f"buffer_store_dwordx4 {vr(PK+8*j+4,4)}, v{28+j}, s[16:19], s71 offen offset:640")
    else:
        PK = 32
        a(f"""
v_mul_f32 v4, v30, v30
v_mul_f32 v5, v31, v31
s_lshl_b32 s71, s69, 1                  ; rowtile16
s_mul_i32 s71, s71, {68*1024}
s_mul_i32 s72, s28, {3*1024}
s_add_u32 s71, s71, s72
s_mul_i32 s72, s81, {3*512}
s_add_u32 s71, s71, s72
s_add_u32 s71, s71, {AF + 20*1024}
s_add_u32 s72, s71, {2*68*1024}
v_bfe_u32 v2, v1, 4, 1
v_mul_u32_u24 v2, {68*1024}, v2
v_and_b32 v3, 15, v1
v_lshl_add_u32 v2, v3, 4, v2
v_lshrrev_b32 v3, 5, v1
v_lshl_add_u32 v2, v3, 8, v2
s_nop 3
""")
        for j in range(3):
            for i in range(2):
                for r in range(8):
                    g = acc(i, j) + r; u = g + 8
                    a(f"v_max_f32 v{g}, 0, v{g}")
                    a(f"v_mul_f32 v{u}, v{u}, v{4+i}")
                    a(f"v_mul_f32 v{g}, v{g}, v{u}")
                for r in range(4):
                    a(f"v_cvt_pk_bf16_f32 v{PK+8*j+4*i+r}, v{acc(i,j)+2*r}, v{acc(i,j)+2*r+1}")
                a(f"buffer_store_dwordx4 {vr(PK+8*j+4*i,4)}, v2, s[16:19], s{71+i} offen offset:{j*512}")
    stamp_out(a, 5)
    a("s_endpgm")

def prep(a):
    X = 64; U = 112
    a(f"""
LP:
s_lshl_b32 s27, s25, 2
s_add_u32 s27, s27, s26               ; p
s_lshl_b32 s28, s27, 6
s_lshl_b32 s29, s24, 3
s_add_u32 s28, s28, s29
v_lshrrev_b32 v2, 3, v1
v_add_u32 v2, s28, v2
v_mul_u32_u24 v3, 1280, v2
v_and_b32 v4, 7, v1
v_lshl_add_u32 v3, v4, 4, v3
""")
    for t in range(10):
        a(f"buffer_load_dwordx4 {vr(X+4*t,4)}, v3, s[8:11], 0 offen offset:{128*t}")
    a("s_waitcnt vmcnt(0)")
    for i in range(40):
        a(f"v_lshlrev_b32 v{U+2*i}, 16, v{X+i}\nv_and_b32 v{U+2*i+1}, 0xffff0000, v{X+i}")
    a(f"v_add_f32 v8, v{U}, v{U+1}\nv_add_f32 v9, v{U+2}, v{U+3}")
    for i in range(4, 80, 2):
        a(f"v_add_f32 v8, v8, v{U+i}\nv_add_f32 v9, v9, v{U+i+1}")
    a("v_add_f32 v8, v8, v9")
    def red8(v):
        for m in (0x041F, 0x081F, 0x101F):
            a(f"ds_swizzle_b32 v9, v{v} offset:{m}\ns_waitcnt lgkmcnt(0)\nv_add_f32 v{v}, v{v}, v9")
    red8(8)
    a(f"v_mul_f32 v8, {hex(f32bits(1/640))}, v8\nv_mov_b32 v10, 0\nv_mov_b32 v11, 0")
    for i in range(0, 80, 2):
        a(f"v_sub_f32 v{U+i}, v{U+i}, v8\nv_sub_f32 v{U+i+1}, v{U+i+1}, v8\nv_fmac_f32 v10, v{U+i}, v{U+i}\nv_fmac_f32 v11, v{U+i+1}, v{U+i+1}")
    a("v_add_f32 v10, v10, v11")
    red8(10)
    a(f"""
v_mul_f32 v10, {hex(f32bits(1/640))}, v10
v_cvt_pk_bf16_f32 v11, v8, v10
v_lshlrev_b32 v8, 16, v11
v_and_b32 v10, 0xffff0000, v11
v_add_f32 v10, {hex(f32bits(1e-5))}, v10
v_cvt_pk_bf16_f32 v11, v10, v10
v_and_b32 v10, 0xffff0000, v11
v_sqrt_f32 v10, v10
s_nop 0
v_cvt_pk_bf16_f32 v11, v10, v10
v_and_b32 v10, 0xffff0000, v11
v_rcp_f32 v10, v10
v_lshlrev_b32 v2, 2, v2
v_cmp_eq_u32 vcc, 0, v4
s_mov_b32 s32, {MBO}
s_mov_b32 s33, {RIO}
s_and_saveexec_b64 s[34:35], vcc
buffer_store_dword v8, v2, s[16:19], s32 offen sc1
buffer_store_dword v10, v2, s[16:19], s33 offen sc1
s_mov_b64 exec, -1
""")
    stamp(a, 1)
    a(f"""
s_waitcnt vmcnt(0)
s_barrier
s_cmp_lg_u32 s24, 0
s_cbranch_scc1 LP_tr
v_mov_b32 v6, 1
v_mov_b32 v7, s27
v_lshlrev_b32 v7, 2, v7
s_mov_b64 exec, 1
buffer_store_dword v6, v7, s[20:23], 0 offen sc1
s_mov_b64 exec, -1
s_waitcnt vmcnt(0)
LP_tr:
""")
    stamp(a, 2)
    a(f"""
s_lshl_b32 s56, s27, 3
s_add_u32 s56, s56, s24
s_mul_i32 s57, s24, 12288
v_lshrrev_b32 v6, 3, v1
v_mul_u32_u24 v6, 1280, v6
v_and_b32 v7, 7, v1
v_lshl_add_u32 v6, v7, 4, v6
v_add_u32 v7, {8*1280-1024}, v6
v_add_u32 v8, {16*1280-2048}, v6
v_add_u32 v9, {24*1280-3072}, v6
v_lshrrev_b32 v10, 5, v1
v_lshlrev_b32 v10, 4, v10
v_bfe_u32 v11, v1, 4, 1
v_lshl_add_u32 v10, v11, 2, v10
v_bfe_u32 v11, v1, 2, 2
v_add_u32 v10, v10, v11
v_lshlrev_b32 v10, 7, v10
v_and_b32 v11, 3, v1
v_lshl_add_u32 v10, v11, 3, v10
v_add_u32 v10, s57, v10
v_lshlrev_b32 v11, 4, v1
""")
    for t in range(3):
        a(f"""
s_min_u32 s60, s56, 679
s_mul_i32 s58, s60, 52429
s_lshr_b32 s58, s58, 19
s_mul_i32 s59, s58, 10
s_sub_u32 s59, s60, s59
s_cmp_lt_u32 s58, 20
s_cselect_b32 s12, s40, s48
s_cselect_b32 s13, s41, s49
s_mov_b32 s14, {1536*640*2}
s_cselect_b32 s14, {640*640*2}, s14
s_mov_b32 s15, 0x00020000
s_cselect_b32 s60, 0, 20
s_sub_u32 s60, s58, s60
s_mul_i32 s60, s60, {32*1280}
s_lshl_b32 s61, s59, 7
s_add_u32 s60, s60, s61
s_add_u32 m0, s57, {4096*t}
s_nop 0
buffer_load_dwordx4 v6, s[12:15], s60 offen lds
buffer_load_dwordx4 v7, s[12:15], s60 offen offset:1024 lds
buffer_load_dwordx4 v8, s[12:15], s60 offen offset:2048 lds
buffer_load_dwordx4 v9, s[12:15], s60 offen offset:3072 lds
s_mul_i32 s60, s58, {40*1024}
s_lshl_b32 s61, s59, 12
s_add_u32 s60, s60, s61
s_add_u32 s{64+t}, s60, {BF}
s_add_u32 s56, s56, 256
""")
    for t in range(3):
        a("s_waitcnt vmcnt(8)")
        for jt in range(4):
            for r in range(2):
                a(f"ds_read_b64_tr_b16 {vr(X+16*t+4*jt+2*r,2)}, v10 offset:{4096*t + jt*32 + r*8*128}")
        a("s_waitcnt lgkmcnt(0)")
        for jt in range(4):
            a(f"buffer_store_dwordx4 {vr(X+16*t+4*jt,4)}, v11, s[16:19], s{64+t} offen offset:{jt*1024} sc1")
    if 'pf' in VAR:
        a(f"""
s_getpc_b64 s[56:57]
LPC_ref:
s_sub_u32 s12, s56, LPC_ref-k1_kernel
s_subb_u32 s13, s57, 0
s_mov_b32 s14, LCODE_END-k1_kernel
s_mov_b32 s15, 0x00020000
s_lshl_b32 s58, s26, 3
s_add_u32 s58, s58, s24
s_lshl_b32 s58, s58, 10
v_lshlrev_b32 v5, 4, v1
buffer_load_dwordx4 v[200:203], v5, s[12:15], s58 offen
""")
        if 'pft' in VAR:
            a(f"""
s_memrealtime s[70:71]
s_waitcnt vmcnt(0) lgkmcnt(0)
s_memrealtime s[72:73]
s_waitcnt lgkmcnt(0)
s_sub_u32 s72, s72, s70
v_mov_b32 v6, s72
s_lshl_b32 s58, s27, 3
s_add_u32 s58, s58, s24
s_lshl_b32 s58, s58, 2
s_add_u32 s58, s58, 0x3300000
v_mov_b32 v7, 0
s_mov_b64 exec, 1
buffer_store_dword v6, v7, s[16:19], s58 offen
""")
    stamp_out(a, 5)
    a("s_endpgm")

def k1_kernel(a, name):
    kernel_header(a, name)
    a(f"""
s_cmp_ge_u32 s2, 256
s_cbranch_scc1 LK1_end
""")
    stamp(a, 0)
    a(f"""
s_load_dwordx16 s[36:51], s[0:1], 0
s_load_dwordx4 s[52:55], s[0:1], 64
v_and_b32 v1, 63, v0
v_lshrrev_b32 v2, 6, v0
s_and_b32 s25, s2, 7
v_readfirstlane_b32 s24, v2
s_lshr_b32 s26, s2, 3
s_and_b32 s80, s24, 3
s_lshr_b32 s81, s24, 2
s_waitcnt lgkmcnt(0)
""")
    srd(a, 8, 36, 37, 2048 * 640 * 2)
    srd(a, 16, 54, 55, WS_BYTES)
    srd(a, 20, 52, 53, 256)
    a(f"""
s_cmp_lt_u32 s26, 4
s_cbranch_scc1 LP
v_min_u32 v3, 191, v0
v_lshlrev_b32 v3, 2, v3
v_add_u32 v3, {CS_OFF}, v3
v_mov_b32 v4, 0
ds_write_b32 v3, v4
s_sub_u32 s26, s26, 4
s_and_b32 s27, s25, 1
s_lshl_b32 s27, s27, 2
s_and_b32 s28, s26, 3
s_add_u32 s27, s27, s28               ; mblock
s_lshl_b32 s29, s27, 8
s_lshl_b32 s28, s24, 5
s_add_u32 s29, s29, s28
s_lshl_b32 s63, s24, 12
v_and_b32 v5, 3, v1
s_lshl_b32 s56, s27, 2
v_add_u32 v5, s56, v5
v_lshlrev_b32 v5, 2, v5
v_lshrrev_b32 v24, 3, v1
v_add_u32 v24, s29, v24
v_mul_u32_u24 v24, 1280, v24
v_lshrrev_b32 v25, 4, v1
v_and_b32 v26, 7, v1
v_xor_b32 v27, v26, v25
v_lshl_add_u32 v10, v27, 4, v24
v_xor_b32 v27, 4, v27
v_lshl_add_u32 v11, v27, 4, v24
v_add_u32 v12, {16*1280-2048}, v10
v_add_u32 v13, {24*1280-3072}, v11
v_add_u32 v11, {8*1280-1024}, v11
v_and_b32 v24, 31, v1
v_lshrrev_b32 v25, 5, v1
v_bfe_u32 v26, v24, 1, 3
v_xor_b32 v26, v26, v25
v_lshlrev_b32 v24, 7, v24
""")
    for j in range(4):
        a(f"v_xor_b32 v27, {2*j}, v26\nv_lshl_add_u32 v{6+j}, v27, 4, v24")
    a(f"""
v_and_b32 v24, 15, v1
v_cmp_eq_u32 vcc, 0, v24
v_mov_b32 v25, 0x3f803f80
s_lshr_b32 s26, s26, 2
v_cndmask_b32 v20, 0, v25, vcc
v_cndmask_b32 v21, 0, v25, vcc
v_cndmask_b32 v22, 0, v25, vcc
v_cndmask_b32 v23, 0, v25, vcc
s_lshr_b32 s56, s25, 1
s_cmp_lt_u32 s26, 3
s_cbranch_scc0 LK1_gu
s_mul_i32 s28, s56, 3
s_add_u32 s28, s28, s26
s_cmp_lt_u32 s28, 8
s_cbranch_scc1 LGQK
s_branch LGV
LK1_gu:
s_lshl_b32 s28, s56, 2
s_add_u32 s28, s28, s26
s_sub_u32 s28, s28, 3
s_branch LGGU
LK1_end:
s_endpgm
""")
    gemm(a, "QK"); gemm(a, "V"); gemm(a, "GU")
    prep(a)

if __name__ == "__main__":
    import sys
    PROF = len(sys.argv) > 1
    VAR = sys.argv[1] if PROF else ""
    a = Asm()
    hdr = f"; @launch kernel=k1_kernel grid=(256,1,1) block=(512,1,1) lds={K1_LDS}\n"
    a('.amdgcn_target "amdgcn-amd-amdhsa--gfx950"\n.text')
    k1_kernel(a, "k1_kernel")
    txt = hdr + a.text() + '.section .rodata,"a"\n' + kernel_desc("k1_kernel", K1_VGPR, 100)
    open("k1_only.s", "w").write(txt)
```

```python
from asmlib import *
MFMA = "v_mfma_f32_32x32x16_bf16"
MF16 = "v_mfma_f32_16x16x32_bf16"
QA, QAT, QB, QBT = 8, 12, 16, 20
SA, SB = 24, 40
PA, PB = 56, 64
OA, OB = 72, 88
KB, VB, NB = 104, 136, 4
MA, MB = 0, 2
K2_VGPR = 168
K2_LDS = 53248
PROF = False
DBGOUT = False
KPERM = "v2"

def prof_out(a, base, srd, wave_s, regs):
    a("s_waitcnt vmcnt(0) lgkmcnt(0)")
    a(f"s_memrealtime s[{regs[-1]}:{regs[-1]+1}]")
    a("s_waitcnt lgkmcnt(0)")
    for k in range(4):
        a(f"v_mov_b32 v{8+k}, s{regs[min(k, len(regs)-1)]}")
    a(f"""
s_lshl_b32 s34, s2, 2
s_add_u32 s34, s34, s{wave_s}
s_lshl_b32 s34, s34, 4
s_add_u32 s34, s34, {base}
v_mov_b32 v16, 0
s_mov_b64 exec, 1
buffer_store_dwordx4 v[8:11], v16, s[{srd}:{srd+3}], s34 offen
""")

def attn(a):
    T = PA
    a(f"""
LA:
s_and_b32 s21, s3, 7
s_lshl_b32 s21, s21, 2
s_lshr_b32 s22, s3, 3
s_and_b32 s23, s22, 3
s_add_u32 s21, s21, s23              ; head
s_lshr_b32 s22, s3, 5                ; qblock
s_and_b32 s23, s20, 1
s_lshl_b32 s24, s16, 1
s_add_u32 s23, s23, s24              ; qsub
s_lshr_b32 s24, s20, 1               ; khalf
s_mul_i32 s25, s21, {64*1280}
s_lshl_b32 s26, s22, 3
s_lshl_b32 s27, s23, 1
s_add_u32 s26, s26, s27              ; qtile a
s_mul_i32 s27, s26, 1280
s_add_u32 s27, s27, s25
s_mul_i32 s28, s24, {32*1280}
s_add_u32 s28, s28, s25
s_add_u32 s29, s28, {VF}
s_add_u32 s28, s28, {KF}
v_lshlrev_b32 v3, 4, v1
v_and_b32 v4, 31, v1
v_lshrrev_b32 v5, 5, v1
v_lshlrev_b32 v6, 3, v4
v_lshl_add_u32 v6, v5, 2, v6
v_add_u32 v6, 1024, v6
v_mul_u32_u24 v7, 320, v5
v_lshl_add_u32 v7, v4, 4, v7
buffer_load_dwordx4 {vr(QA,4)}, v3, s[8:11], s27 offen
buffer_load_dword {vr(QAT)}, v6, s[8:11], s27 offen
buffer_load_dwordx4 {vr(QB,4)}, v3, s[8:11], s27 offen offset:1280
buffer_load_dword {vr(QBT)}, v6, s[8:11], s27 offen offset:1280
s_mov_b32 s30, 0
s_mov_b32 s12, 0x000FFFFF
s_mov_b32 s13, 0x000FFFFF
s_mov_b32 s14, 0xFFFFFFFF
s_mov_b32 s15, 0
""")
    def rowmax(S, M, init):
        if init:
            a(f"v_max3_f32 {vr(M)}, {vr(S)}, {vr(S+1)}, {vr(S+2)}")
            a(f"v_max_f32 {vr(M)}, {vr(M)}, {vr(S+3)}")
            st = 4
        else: st = 0
        for j in range(st, 16, 2):
            a(f"v_max3_f32 {vr(M)}, {vr(M)}, {vr(S+j)}, {vr(S+j+1)}")
    def qk(S, Qm, Qt, kb):
        a(f"{MFMA} {vr(S,16)}, {vr(KB+8*kb,4)}, {vr(Qm,4)}, 0")
        a(f"{MFMA} {vr(S,16)}, {vr(KB+8*kb+4,4)}, {vr(Qt,4)}, {vr(S,16)}")
    def loadK(kb, soff, imm=0):
        a(f"buffer_load_dwordx4 {vr(KB+8*kb,4)}, v3, s[8:11], {soff} offen offset:{imm}")
        a(f"buffer_load_dword {vr(KB+8*kb+4)}, v6, s[8:11], {soff} offen offset:{imm}")
    def loadV(vb, soff, imm=0):
        a("s_mov_b64 exec, s[12:13]")
        a(f"buffer_load_dwordx4 {vr(VB+8*vb,4)}, v7, s[8:11], {soff} offen offset:{imm}")
        a(f"buffer_load_dwordx4 {vr(VB+8*vb+4,4)}, v7, s[8:11], {soff} offen offset:{imm+640}")
        a("s_mov_b64 exec, -1")
    a("s_branch LA_pro")
    a("LA_restart:")
    for q in (QAT, QBT):
        for j in (1, 2): a(f"v_mov_b32 {vr(q+j)}, 0")
    a(f"""
v_mov_b32 {vr(MA)}, 0xff800000
v_mov_b32 {vr(MB)}, 0xff800000
s_mov_b32 s31, s28
s_mov_b32 s32, 32
LA_maxloop:
""")
    loadK(0, "s31")
    a("s_waitcnt vmcnt(0)")
    qk(SA, QA, QAT, 0); qk(SB, QB, QBT, 0)
    a("s_nop 15\ns_nop 3")
    rowmax(SA, MA, False); rowmax(SB, MB, False)
    a(f"""
s_add_u32 s31, s31, 1280
s_sub_u32 s32, s32, 1
s_cmp_lg_u32 s32, 0
s_cbranch_scc1 LA_maxloop
LA_pro:
""")
    loadK(0, "s28", 0)
    loadK(1, "s28", 1280)
    a(f"""
v_mov_b32 {vr(T)}, 0x3f803f80
v_cmp_eq_u32 vcc, 20, v4
v_cndmask_b32 {vr(T+2)}, 0, {vr(T)}, s[14:15]
s_nop 0
v_cndmask_b32 {vr(T+1)}, 0, {vr(T)}, vcc
""")
    for j in range(8): a(f"v_mov_b32 {vr(VB+j)}, {vr(T+1)}")
    loadV(0, "s29", 0)
    loadK(2, "s28", 2560)
    for j in range(8): a(f"v_mov_b32 {vr(VB+8+j)}, {vr(T+1)}")
    loadV(1, "s29", 1280)
    a(f"s_add_u32 s31, s28, {3*1280}")
    loadK(3, "s31", 0)
    for j in range(8): a(f"v_mov_b32 {vr(VB+16+j)}, {vr(T+1)}")
    loadV(2, "s29", 2560)
    for j in range(8): a(f"v_mov_b32 {vr(VB+24+j)}, {vr(T+1)}")
    for i in range(NB):
        a(f"v_mov_b32 {vr(KB+8*i+5)}, {vr(T+2)}")
        a(f"v_mov_b32 {vr(KB+8*i+6)}, {vr(T+2)}")
        a(f"v_mov_b32 {vr(KB+8*i+7)}, 0")
    for j in range(16):
        a(f"v_mov_b32 {vr(OA+j)}, 0")
        a(f"v_mov_b32 {vr(OB+j)}, 0")
    for j in range(8): a(f"v_mov_b32 {vr(PB+j)}, 0")
    a(f"""
s_cmp_lg_u32 s30, 0
s_cbranch_scc1 LA_setm0
""")
    for q in (QAT, QBT):
        for j in (1, 2, 3): a(f"v_mov_b32 {vr(q+j)}, 0")
    a("s_waitcnt vmcnt(12)")
    qk(SA, QA, QAT, 0); qk(SB, QB, QBT, 0)
    a("s_nop 11")
    rowmax(SA, MA, True); rowmax(SB, MB, True)
    a("LA_setm0:\ns_waitcnt vmcnt(12)")
    for (M, QT) in ((MA, QAT), (MB, QBT)):
        t, u, w = T, T+1, T+2
        a(f"""
v_mov_b32 {vr(t)}, {vr(M)}
v_mov_b32 {vr(u)}, {vr(M)}
s_nop 1
v_permlane32_swap_b32 {vr(t)}, {vr(u)}
s_nop 1
v_max_f32 {vr(M)}, {vr(t)}, {vr(u)}
v_sub_f32 {vr(t)}, 0, {vr(M)}
v_and_b32 {vr(u)}, 0xffff0000, {vr(t)}
v_sub_f32 {vr(t)}, {vr(t)}, {vr(u)}
v_and_b32 {vr(w)}, 0xffff0000, {vr(t)}
v_sub_f32 {vr(t)}, {vr(t)}, {vr(w)}
v_lshrrev_b32 {vr(u)}, 16, {vr(u)}
v_or_b32 {vr(u)}, {vr(u)}, {vr(w)}
v_lshrrev_b32 {vr(t)}, 16, {vr(t)}
v_cndmask_b32 {vr(QT+1)}, 0, {vr(u)}, s[14:15]
v_cndmask_b32 {vr(QT+2)}, 0, {vr(t)}, s[14:15]
""")
        if M == MA:
            a("s_nop 1")
            qk(SA, QA, QAT, 0)
    a(f"""
s_add_u32 s31, s28, {4*1280}
s_add_u32 s33, s29, {3*1280}
s_mov_b32 s32, 8
""")
    if PROF: a("s_memrealtime s[42:43]")
    a(".p2align 6\nLA_loop:")
    def phase(Sx, Px, Sy, Py, Oy, Qy, Qyt, kb, vb, mid=None, post=None, pre=None):
        e = lambda j: a(f"v_exp_f32 {vr(Sx+j)}, {vr(Sx+j)}")
        c = lambda j: a(f"v_cvt_pk_bf16_f32 {vr(Px+j)}, {vr(Sx+2*j)}, {vr(Sx+2*j+1)}")
        if pre: pre()
        a(f"{MFMA} {vr(Sy,16)}, {vr(KB+8*kb,4)}, {vr(Qy,4)}, 0")
        e(0); e(1); e(2); e(3)
        a(f"{MFMA} {vr(Sy,16)}, {vr(KB+8*kb+4,4)}, {vr(Qyt,4)}, {vr(Sy,16)}")
        if mid: mid()
        c(0); c(1); e(4); e(5); e(6); e(7)
        a(f"{MFMA} {vr(Oy,16)}, {vr(VB+8*vb,4)}, {vr(Py,4)}, {vr(Oy,16)}")
        c(2); c(3); e(8); e(9); e(10); e(11)
        a(f"{MFMA} {vr(Oy,16)}, {vr(VB+8*vb+4,4)}, {vr(Py+4,4)}, {vr(Oy,16)}")
        if post: post()
        c(4); c(5); e(12); e(13); e(14); e(15); c(6); c(7)
    for u in range(NB):
        def mid(u=u):
            loadK(u, "s31"); a("s_add_u32 s31, s31, 1280")
        def post(u=u):
            loadV((u+3) % NB, "s33"); a("s_add_u32 s33, s33, 1280")
        phase(SA, PA, SB, PB, OB, QB, QBT, u, (u+3) % NB, mid, post)
        phase(SB, PB, SA, PA, OA, QA, QAT, (u+1) % NB, u, pre=lambda: a("s_waitcnt vmcnt(12)"))
    a(f"""
s_sub_u32 s32, s32, 1
s_cmp_lg_u32 s32, 0
s_cbranch_scc1 LA_loop
{MFMA} {vr(OB,16)}, {vr(VB+8*3,4)}, {vr(PB,4)}, {vr(OB,16)}
{MFMA} {vr(OB,16)}, {vr(VB+8*3+4,4)}, {vr(PB+4,4)}, {vr(OB,16)}
""")
    if PROF: a("s_memrealtime s[44:45]")
    t, t1 = PA, PA + 1
    a(f"""
v_lshlrev_b32 {vr(PA+2)}, 4, v1
s_lshl_b32 s34, s20, 12
v_add_u32 {vr(PA+3)}, s34, {vr(PA+2)}
s_xor_b32 s35, s20, 2
s_lshl_b32 s35, s35, 12
v_add_u32 {vr(PA+4)}, s35, {vr(PA+2)}
v_mov_b32 {vr(t1)}, 0x71800000
v_add_f32 {vr(t)}, abs({vr(OA)}), abs({vr(OA+1)})
""")
    for j in range(2, 12): a(f"v_add_f32 {vr(t)}, {vr(t)}, abs({vr(OA+j)})")
    for j in range(12): a(f"v_add_f32 {vr(t)}, {vr(t)}, abs({vr(OB+j)})")
    a(f"""
v_cmp_nlt_f32 vcc, {vr(t)}, {vr(t1)}
s_cmp_lg_u32 s30, 0
s_cbranch_scc1 LA_comb
s_nop 2
s_cmp_eq_u64 vcc, 0
s_cbranch_scc1 LA_comb
s_mov_b32 s30, 1
s_waitcnt vmcnt(0)
s_branch LA_restart
LA_comb:
s_cmp_eq_u32 s24, 0
s_cbranch_scc1 LA_c0
""")
    w_, r_ = PA + 3, PA + 4
    for j in range(3): a(f"ds_write_b128 {vr(w_)}, {vr(OA+4*j,4)} offset:{j*1024}")
    a(f"ds_write_b32 {vr(w_)}, {vr(MA)} offset:3072")
    for j in range(12): a(f"v_mov_b32 {vr(OA+j)}, {vr(OB+j)}")
    a(f"v_mov_b32 {vr(MA)}, {vr(MB)}")
    a("s_add_u32 s26, s26, 1\ns_branch LA_c1\nLA_c0:")
    for j in range(3): a(f"ds_write_b128 {vr(w_)}, {vr(OB+4*j,4)} offset:{j*1024}")
    a(f"ds_write_b32 {vr(w_)}, {vr(MB)} offset:3072")
    a("LA_c1:\ns_waitcnt lgkmcnt(0)\ns_barrier")
    X = SB
    for j in range(3): a(f"ds_read_b128 {vr(X+4*j,4)}, {vr(r_)} offset:{j*1024}")
    a(f"ds_read_b32 {vr(MB)}, {vr(r_)} offset:3072")
    g_, kbv, g8 = PB, PB + 1, PB + 2
    ad = [PB + 3, PB + 4, PB + 5]
    a(f"""
s_lshl_b32 s34, s26, 1
s_mul_i32 s34, s34, {68*1024}
s_add_u32 s34, s34, {AF}
v_bfe_u32 {vr(t)}, v1, 4, 1
v_mul_u32_u24 {vr(t)}, {68*1024}, {vr(t)}
v_and_b32 {vr(t1)}, 15, v1
v_lshl_add_u32 {vr(t)}, {vr(t1)}, 4, {vr(t)}
s_mul_i32 s35, s21, 5
v_add_u32 {vr(g_)}, s35, v5
""")
    for i in range(3):
        a(f"""
v_lshrrev_b32 {vr(kbv)}, 3, {vr(g_)}
v_lshl_add_u32 {vr(ad[i])}, {vr(kbv)}, 10, {vr(t)}
""")
        if KPERM == "v2":
            a(f"""
v_and_b32 {vr(g8)}, 3, {vr(g_)}
v_lshl_add_u32 {vr(ad[i])}, {vr(g8)}, 8, {vr(ad[i])}
v_bfe_u32 {vr(g8)}, {vr(g_)}, 2, 1
v_lshl_add_u32 {vr(ad[i])}, {vr(g8)}, 3, {vr(ad[i])}
""")
        else:
            a(f"""
v_bfe_u32 {vr(g8)}, {vr(g_)}, 2, 1
v_lshl_add_u32 {vr(ad[i])}, {vr(g8)}, 9, {vr(ad[i])}
v_and_b32 {vr(g8)}, 1, {vr(g_)}
v_lshl_add_u32 {vr(ad[i])}, {vr(g8)}, 8, {vr(ad[i])}
v_bfe_u32 {vr(g8)}, {vr(g_)}, 1, 1
v_lshl_add_u32 {vr(ad[i])}, {vr(g8)}, 3, {vr(ad[i])}
""")
        if i < 2: a(f"v_add_u32 {vr(g_)}, 2, {vr(g_)}")
    m, f1, f2, l, l2 = PA + 2, PA + 3, PA + 5, PA + 6, PA + 7
    a(f"""
s_waitcnt lgkmcnt(0)
v_max_f32 {vr(m)}, {vr(MA)}, {vr(MB)}
v_sub_f32 {vr(f1)}, {vr(MA)}, {vr(m)}
v_sub_f32 {vr(f2)}, {vr(MB)}, {vr(m)}
v_exp_f32 {vr(f1)}, {vr(f1)}
v_exp_f32 {vr(f2)}, {vr(f2)}
s_nop 0
v_mul_f32 {vr(l)}, {vr(OA+8)}, {vr(f1)}
v_fmac_f32 {vr(l)}, {vr(X+8)}, {vr(f2)}
v_mov_b32 {vr(l2)}, {vr(l)}
s_nop 1
v_permlane32_swap_b32 {vr(l)}, {vr(l2)}
s_nop 1
v_rcp_f32 {vr(l2)}, {vr(l2)}
s_nop 0
v_mul_f32 {vr(f1)}, {vr(f1)}, {vr(l2)}
v_mul_f32 {vr(f2)}, {vr(f2)}, {vr(l2)}
""")
    for i in range(3):
        for j in range(4 * i, 4 * i + 4):
            a(f"v_mul_f32 {vr(OA+j)}, {vr(OA+j)}, {vr(f1)}")
            a(f"v_fmac_f32 {vr(OA+j)}, {vr(X+j)}, {vr(f2)}")
        for j in range(2):
            a(f"v_cvt_pk_bf16_f32 {vr(OB+2*i+j)}, {vr(OA+4*i+2*j)}, {vr(OA+4*i+2*j+1)}")
        if i == 2: a("s_mov_b64 exec, s[14:15]")
        a(f"buffer_store_dwordx2 {vr(OB+2*i,2)}, {vr(ad[i])}, s[8:11], s34 offen")
    if PROF:
        a("s_mov_b64 exec, -1")
        prof_out(a, 0x3100000, 8, 20, [40, 42, 44, 46])
    a("s_endpgm")

def splitk(a, L, nkb, kb_base, D, mode, ST, ACCV, prio=None):
    a(f"""
{L}:
s_and_b32 s27, s3, 7
s_lshr_b32 s28, s3, 3
s_lshr_b32 s29, s27, 1
s_lshl_b32 s29, s29, 3
s_lshr_b32 s30, s28, 2
s_add_u32 s29, s29, s30               ; mb
s_and_b32 s30, s27, 1
s_lshl_b32 s30, s30, 2
s_and_b32 s31, s28, 3
s_add_u32 s30, s30, s31               ; nb
v_lshlrev_b32 v3, 4, v1
v_add_u32 v4, {1*69632}, v3
v_add_u32 v5, {2*69632}, v3
v_add_u32 v6, {3*69632}, v3
v_add_u32 v7, 4096, v3
s_mul_i32 s32, s20, {nkb}
s_add_u32 s32, s32, {kb_base}
s_mul_i32 s33, s29, {4*69632}
s_lshl_b32 s34, s32, 10
s_add_u32 s33, s33, s34
s_add_u32 s33, s33, {AF}
s_mul_i32 s34, s32, 40960
s_mul_i32 s35, s30, 5120
s_add_u32 s34, s34, s35
s_add_u32 s34, s34, {BF}
""")
    def loads(kb):
        b = ST + 36 * (kb % D)
        for j in range(4):
            a(f"buffer_load_dwordx4 {vr(b+16+4*j,4)}, v3, s[8:11], s34 offen offset:{j*1024}")
        a(f"buffer_load_dwordx4 {vr(b+32,4)}, v7, s[8:11], s34 offen")
        for i in range(4):
            a(f"buffer_load_dwordx4 {vr(b+4*i,4)}, v{3+i}, s[8:11], s33 offen")
        a("s_add_u32 s33, s33, 1024")
        a("s_add_u32 s34, s34, 40960")
    for kb in range(min(D, nkb)): loads(kb)
    a(f"""
s_lshl_b32 s36, s29, 6
s_lshl_b32 s37, s20, 4
s_add_u32 s36, s36, s37
v_and_b32 v8, 15, v1
v_add_u32 v8, s36, v8
v_mul_u32_u24 v8, 1280, v8
v_lshrrev_b32 v9, 4, v1
v_lshl_add_u32 v8, v9, 3, v8
s_mul_i32 s36, s30, 160
s_lshl_b32 s38, s29, 3
s_add_u32 s38, s38, s30
s_mul_i32 s38, s38, 20480
s_mul_i32 s39, s20, 5120
s_add_u32 s38, s38, s39
s_add_u32 s38, s38, {YY}
""")
    for kb in range(nkb):
        b = ST + 36 * (kb % D)
        rem = min(D - 1, nkb - 1 - kb)
        a(f"s_waitcnt vmcnt({9*rem})")
        if prio: a(f"s_setprio {prio[1]}")
        for i in range(4):
            for j in range(5):
                t = 5 * i + j
                c = "0" if kb == 0 else ACCV(t)
                a(f"{MF16} {ACCV(t)}, {vr(b+16+4*j,4)}, {vr(b+4*i,4)}, {c}")
        if prio and kb + D < nkb: a(f"s_setprio {prio[0]}")
        if kb + D < nkb: loads(kb + D)
    if PROF: a("s_memrealtime s[44:45]")
    RES = ST
    if mode == "final":
        for j in range(4): a(f"buffer_load_dwordx4 {vr(RES+4*j,4)}, v3, s[8:11], s38 offen offset:{j*1024}")
        a(f"buffer_load_dwordx4 {vr(RES+16,4)}, v7, s[8:11], s38 offen")
    else:
        for j in range(5): a(f"buffer_load_dwordx2 {vr(RES+2*j,2)}, v8, s[12:15], s36 offen offset:{32*j}")
    OWN = ST + 20
    R = ST + 40
    a("s_nop 3")
    a(f"""
s_mul_i32 s37, s20, 9216
v_add_u32 v9, s37, v3
""")
    for rnd, js in enumerate(((0, 1, 2), (3, 4))):
        for w in range(4):
            if w < 3:
                a(f"s_cmp_eq_u32 s20, {w}\ns_cbranch_scc0 {L}_r{rnd}n{w}")
            for i in range(4):
                if i == w: continue
                slot = w if w < i else w - 1
                for jj, j in enumerate(js):
                    a(f"ds_write_b128 v3, {ACCV(5*i+j)} offset:{(i*3+slot)*3072 + jj*1024}")
            for j in js:
                src = ACCV(5 * w + j)
                base = int(src[2:src.index(":")])
                for r in range(4):
                    if src[0] == "a": a(f"v_accvgpr_read_b32 v{OWN+4*j+r}, a{base+r}")
                    else: a(f"v_mov_b32 v{OWN+4*j+r}, v{base+r}")
            if w < 3:
                a(f"s_branch {L}_r{rnd}d\n{L}_r{rnd}n{w}:")
        a(f"{L}_r{rnd}d:\ns_waitcnt lgkmcnt(0)\ns_barrier")
        for s in range(3):
            for jj, j in enumerate(js):
                a(f"ds_read_b128 {vr(R+4*jj+12*(s%2),4)}, v9 offset:{s*3072+jj*1024}")
            if s >= 1:
                a(f"s_waitcnt lgkmcnt({len(js)})")
                for jj, j in enumerate(js):
                    for r in range(4): a(f"v_add_f32 v{OWN+4*j+r}, v{OWN+4*j+r}, v{R+4*jj+12*((s-1)%2)+r}")
        a("s_waitcnt lgkmcnt(0)")
        for jj, j in enumerate(js):
            for r in range(4): a(f"v_add_f32 v{OWN+4*j+r}, v{OWN+4*j+r}, v{R+4*jj+r}")
        if rnd == 0: a("s_barrier")
    a("s_waitcnt vmcnt(0)")
    if mode == "final":
        for q in range(20): a(f"v_add_f32 v{OWN+q}, v{OWN+q}, v{RES+q}")
    else:
        for j in range(5):
            for hh in range(2):
                a(f"v_lshlrev_b32 v{R}, 16, v{RES+2*j+hh}")
                a(f"v_and_b32 v{R+1}, 0xffff0000, v{RES+2*j+hh}")
                a(f"v_add_f32 v{OWN+4*j+2*hh}, v{OWN+4*j+2*hh}, v{R}")
                a(f"v_add_f32 v{OWN+4*j+2*hh+1}, v{OWN+4*j+2*hh+1}, v{R+1}")
    if mode == "down":
        for j in range(4): a(f"buffer_store_dwordx4 {vr(OWN+4*j,4)}, v3, s[8:11], s38 offen offset:{j*1024} sc1")
        a(f"buffer_store_dwordx4 {vr(OWN+16,4)}, v7, s[8:11], s38 offen sc1")
    else:
        for j in range(5):
            a(f"v_cvt_pk_bf16_f32 v{R+2*j}, v{OWN+4*j}, v{OWN+4*j+1}")
            a(f"v_cvt_pk_bf16_f32 v{R+2*j+1}, v{OWN+4*j+2}, v{OWN+4*j+3}")
            a(f"buffer_store_dwordx2 {vr(R+2*j,2)}, v8, s[16:19], s36 offen offset:{32*j}")

def k2_kernel(a, name, ffn=True, prio=(0, 2), aprio=1):
    kernel_header(a, name)
    a(f"""
s_cmp_ge_u32 s2, 768
s_cbranch_scc1 LK2_end
""")
    if PROF: a("s_memrealtime s[40:41]")
    a(f"""
s_load_dwordx2 s[4:5], s[0:1], 72
s_load_dwordx2 s[6:7], s[0:1], 0
v_and_b32 v1, 63, v0
v_lshrrev_b32 v2, 6, v0
s_and_b32 s3, s2, 255
v_readfirstlane_b32 s20, v2
s_lshr_b32 s16, s2, 8                 ; type
s_waitcnt lgkmcnt(0)
""")
    srd(a, 8, 4, 5, WS_BYTES)
    a(f"""
s_cmp_eq_u32 s16, 0
s_cbranch_scc1 LK2_ffn
s_sub_u32 s16, s16, 1
s_setprio {aprio}
""")
    attn(a)
    a("LK2_ffn:")
    if ffn:
        srd(a, 12, 6, 7, 2048 * 640 * 2)
        if PROF: a("s_memrealtime s[42:43]")
        splitk(a, "LD", 12, 20, 2, "down", 12, lambda t: f"v[{88+4*t}:{91+4*t}]", prio=prio)
        if PROF: prof_out(a, 0x3100000, 8, 20, [40, 42, 44, 46])
    a("LK2_end:\ns_endpgm")

K3_LDS = 36864
def k3_kernel(a, name, mode="final"):
    kernel_header(a, name)
    a(f"""
s_cmp_ge_u32 s2, 256
s_cbranch_scc1 LK3_end
""")
    if PROF: a("s_memrealtime s[40:41]\ns_memrealtime s[42:43]")
    a(f"""
s_load_dwordx2 s[4:5], s[0:1], 72
s_load_dwordx2 s[6:7], s[0:1], 0
s_load_dwordx2 s[22:23], s[0:1], 56
v_and_b32 v1, 63, v0
v_lshrrev_b32 v2, 6, v0
s_mov_b32 s3, s2
v_readfirstlane_b32 s20, v2
s_waitcnt lgkmcnt(0)
""")
    srd(a, 8, 4, 5, WS_BYTES)
    srd(a, 12, 6, 7, 2048 * 640 * 2)
    srd(a, 16, 22, 23, 2048 * 640 * 2)
    if mode == "final": splitk(a, "LF", 5, 0, 5, "final", 12, lambda t: f"a[{4*t}:{4*t+3}]")
    else: splitk(a, "LF", 17, 0, 6, "full", 12, lambda t: f"a[{4*t}:{4*t+3}]")
    if PROF: prof_out(a, 0x3200000, 8, 20, [40, 42, 44, 46])
    if PROF and DBGOUT:
        a(f"""
s_mov_b64 exec, -1
s_or_b32 s50, s2, s20
s_cmp_lg_u32 s50, 0
s_cbranch_scc1 LK3_end
s_load_dwordx2 s[52:53], s[0:1], 64
s_waitcnt lgkmcnt(0)
s_mov_b32 s54, 256
s_mov_b32 s55, 0x00020000
v_lshlrev_b32 v20, 2, v1
s_mov_b32 s56, {0x3000000 + 200*8*32}
buffer_load_dword v21, v20, s[8:11], s56 offen
s_mov_b32 s56, {0x3000000 - 20}
buffer_load_dword v22, v20, s[8:11], s56 offen
s_mov_b32 s56, {0x3100000 + 600*4*16 - 32}
buffer_load_dword v23, v20, s[8:11], s56 offen
s_waitcnt vmcnt(0)
v_cmp_gt_u32 vcc, 6, v1
s_nop 1
v_cndmask_b32 v22, v22, v21, vcc
v_cmp_gt_u32 vcc, 8, v1
s_nop 1
v_cndmask_b32 v23, v23, v22, vcc
v_mov_b32 v24, s40
v_cmp_eq_u32 vcc, 12, v1
s_nop 1
v_cndmask_b32 v23, v23, v24, vcc
v_mov_b32 v24, s44
v_cmp_eq_u32 vcc, 13, v1
s_nop 1
v_cndmask_b32 v23, v23, v24, vcc
v_mov_b32 v24, s46
v_cmp_eq_u32 vcc, 14, v1
s_nop 1
v_cndmask_b32 v23, v23, v24, vcc
s_nop 1
v_readfirstlane_b32 s57, v23
s_nop 3
v_subrev_u32 v23, s57, v23
s_mov_b64 exec, 0xffff
buffer_store_dword v23, v20, s[52:55], 0 offen
""")
    a("LK3_end:\ns_endpgm")
K3_ARCH = 12 + 36 * 6
```

```python
from asmlib import *
MFMA = "v_mfma_f32_32x32x16_bf16"
MF16 = "v_mfma_f32_16x16x32_bf16"
A_STAGE = 32768
B_RING, B_SLOT = 98304, 12576
CS_OFF = 161184
K1_LDS = 161952
ACC = 64
CSA = 160
FR = 168
FX = 216
K1_VGPR = 228
QSCALE = (20 ** -0.5) * 1.4426950408889634
PROF = False
VAR = ""
def stamp(a, k):
    if PROF:
        a(f"s_memrealtime s[{82+2*k}:{83+2*k}]")
        if k in (1, 2): a(f"s_memtime s[{92+2*k}:{93+2*k}]")
def stamp_out(a, n):
    if PROF:
        a("s_waitcnt vmcnt(0) lgkmcnt(0)")
        a(f"s_memrealtime s[{82+2*n}:{83+2*n}]")
        a("s_waitcnt lgkmcnt(0)")
        for k in range(8):
            a(f"v_mov_b32 v{8+k}, s{82+2*min(k, n)}" if k < 6 else f"v_mov_b32 v{8+k}, s{94+2*(k-6)}")
        a(f"""
s_lshl_b32 s34, s2, 3
s_add_u32 s34, s34, s24
s_lshl_b32 s34, s34, 5
s_add_u32 s34, s34, 0x3000000
v_mov_b32 v16, 0
s_mov_b64 exec, 1
buffer_store_dwordx4 v[8:11], v16, s[16:19], s34 offen
buffer_store_dwordx4 v[12:15], v16, s[16:19], s34 offen offset:16
""")

def gemm(a, kind):
    L = f"LG{kind}"
    GU = kind == "GU"
    RS = 192 if GU else 320
    GS = 8 * RS + 32
    UP = 4 * GS + 32
    CPR = 12 if GU else 20
    CW = 96 if GU else 80
    ldw = 3072 if GU else 3840
    NA = 2 if GU else 1
    NBF = 3 if GU else 5
    FA = [[FR + 24 * b + 4 * i for i in range(NA)] for b in range(2)]
    FB = [[FR + 24 * b + 4 * NA + 4 * j for j in range(NBF)] for b in range(2)]
    acc = lambda i, j: ACC + 16 * (NBF * i + j)
    a(f"{L}:")
    if GU:
        a(f"""
s_cmp_ge_u32 s24, 4
s_cselect_b32 s12, s46, s44
s_cselect_b32 s13, s47, s45
s_mov_b32 s14, {640*1536*2}
s_mov_b32 s15, 0x00020000
s_mul_i32 s58, s28, 192
s_and_b32 s57, s24, 3
s_mul_i32 s59, s57, {GS}
s_mul_i32 s60, s81, {UP}
s_add_u32 s59, s59, s60
s_mul_i32 s60, s57, {CW}
s_lshl_b32 s56, s80, 13
""")
    else:
        a(f"""
s_mov_b32 s12, s38
s_mov_b32 s13, s39
s_mov_b32 s14, {640*1920*2}
s_mov_b32 s15, 0x00020000
s_mul_i32 s58, s28, 320
s_lshr_b32 s59, s24, 1
s_mul_i32 s59, s59, {GS}
s_and_b32 s57, s24, 1
s_mul_i32 s57, s57, 1280
s_add_u32 s59, s59, s57
s_mul_i32 s60, s24, {CW}
s_lshl_b32 s56, s24, 12               ; 32*w*128
""")
    magic, sh = (43691, 19) if CPR == 12 else (52429, 20)
    a(f"""
s_add_u32 s59, s59, {B_RING}
s_mov_b32 s62, {ldw}
v_add_u32 v6, s56, v6
v_add_u32 v7, s56, v7
v_add_u32 v8, s56, v8
v_add_u32 v9, s56, v9
""")
    for (vd, add) in ((14, 0), (15, 64)):
        a(f"""
v_add_u32 v24, s60, v1
v_add_u32 v24, {add}, v24
v_mul_u32_u24 v25, {magic}, v24
v_lshrrev_b32 v25, {sh}, v25
v_mul_u32_u24 v26, {CPR}, v25
v_sub_u32 v26, v24, v26
v_mul_lo_u32 v25, v25, s62
v_lshl_add_u32 v25, v26, 4, v25
v_add_u32 v{vd}, s58, v25
""")
        if add: a(f"v_subrev_u32 v{vd}, 1024, v{vd}")
    NH = UP if GU else 32
    a(f"""
v_bfe_u32 v26, v1, 2, 2
v_mul_u32_u24 v26, {RS}, v26
v_and_b32 v27, 3, v1
v_lshl_add_u32 v26, v27, 3, v26       ; (i>>2)*RS + 8*(i&3)
v_lshrrev_b32 v24, 5, v1
v_mul_u32_u24 v24, {GS}, v24
v_bfe_u32 v27, v1, 4, 1
v_mul_u32_u24 v27, {NH}, v27
v_add3_u32 v16, v24, v26, v27
""")
    if GU: a(f"s_mul_i32 s61, s81, 96\ns_add_u32 s61, s61, {B_RING}")
    else: a(f"s_mov_b32 s61, {B_RING}")
    a("v_add_u32 v16, s61, v16")
    a(f"""
v_lshrrev_b32 v24, 4, v1
v_mul_u32_u24 v24, {GS}, v24
v_add_u32 v24, v24, v26
""")
    if GU:
        a(f"""
s_lshl_b32 s61, s24, 5
s_cmp_ge_u32 s24, 6
s_cselect_b32 s56, {UP - 192}, 0
s_add_u32 s61, s61, s56
s_add_u32 s61, s61, {B_RING}
v_add_u32 v17, s61, v24
s_and_b32 s73, s24, 3                 ; jf2 = 8 + (w&3)
s_lshl_b32 s61, s73, 5
s_add_u32 s61, s61, {B_RING + UP + 64}
v_add_u32 v18, s61, v24
s_lshr_b32 s72, s24, 2                ; parity
""")
    else:
        a(f"""
s_lshl_b32 s61, s24, 5
s_add_u32 s61, s61, {B_RING}
v_add_u32 v17, s61, v24
s_and_b32 s73, s24, 1
s_lshl_b32 s61, s73, 5
s_add_u32 s61, s61, {B_RING + 256}
v_add_u32 v18, s61, v24
s_bfe_u32 s72, s24, 0x10001
""")
    a(f"""
s_mov_b32 s64, {hex((1 << (CW - 64)) - 1)}
s_mov_b32 s65, 0
s_mov_b32 s30, 0
s_mov_b32 s31, 0
s_mov_b32 s32, 0
s_mov_b32 s33, 0
s_mov_b32 s66, 0
s_mov_b32 s67, 0
""")
    def dmaA(q):
        a(f"""
s_add_u32 m0, s63, s32
s_nop 0
buffer_load_dwordx4 v{10+q}, s[8:11], s30 offen offset:{1024*q} lds
""")
        if q == 3:
            a(f"""
s_add_u32 s32, s32, {A_STAGE}
s_cmp_eq_u32 s32, {3*A_STAGE}
s_cselect_b32 s32, 0, s32
s_add_u32 s30, s30, 128
""")
    def dmaB(q):
        if q == 0:
            a(f"""
s_add_u32 m0, s59, s33
s_nop 0
buffer_load_dwordx4 v14, s[12:15], s31 offen lds
""")
        else:
            a(f"""
s_add_u32 m0, s59, s33
s_mov_b64 exec, s[64:65]
buffer_load_dwordx4 v15, s[12:15], s31 offen offset:1024 lds
s_mov_b64 exec, -1
s_add_u32 s33, s33, {B_SLOT}
s_cmp_eq_u32 s33, {5*B_SLOT}
s_cselect_b32 s33, 0, s33
s_add_u32 s31, s31, {32*ldw}
""")
    JO = 32 if GU else 64
    def reads(nb, ja, ks):
        r = [f"ds_read_b128 {vr(FA[nb][i],4)}, v{6+ja} offset:{4096*i}" for i in range(NA)]
        for j in range(NBF):
            for rr in range(2):
                r.append(f"ds_read_b64_tr_b16 {vr(FB[nb][j]+2*rr,2)}, v16 offset:{2*ks*GS + 4*rr*RS + j*JO}")
        return r
    def xsetup():
        a(f"""
s_add_u32 s69, s67, {B_SLOT}
s_cmp_eq_u32 s69, {5*B_SLOT}
s_cselect_b32 s69, 0, s69
s_cmp_eq_u32 s72, 0
s_cselect_b32 s71, s67, s69
v_add_u32 v19, s67, v17
v_add_u32 v2, s69, v17
v_add_u32 v3, s71, v18
""")
    def xreads():
        r = []
        for e, v in enumerate((19, 2, 3)):
            for rr in range(2):
                r.append(f"ds_read_b64_tr_b16 {vr(FX+4*e+2*rr,2)}, v{v} offset:{4*rr*RS}")
        return r
    def advA_pre():
        a(f"""
s_add_u32 s69, s66, {A_STAGE}
s_cmp_eq_u32 s69, {3*A_STAGE}
s_cselect_b32 s69, 0, s69
s_sub_u32 s68, s69, s66
s_mov_b32 s66, s69
""")
    def advB():
        a(f"""
s_add_u32 s69, s67, {B_SLOT}
s_cmp_eq_u32 s69, {5*B_SLOT}
s_cselect_b32 s69, 0, s69
s_sub_u32 s70, s69, s67
s_mov_b32 s67, s69
v_add_u32 v16, s70, v16
""")
    def mfma(b, i, j):
        d = vr(acc(i, j), 16)
        if kind == "V": return f"{MFMA} {d}, {vr(FA[b][i],4)}, {vr(FB[b][j],4)}, {d}"
        return f"{MFMA} {d}, {vr(FB[b][j],4)}, {vr(FA[b][i],4)}, {d}"
    for _ in range(2):
        dmaB(0); dmaB(1)
        for q in range(4): dmaA(q)
        dmaB(0); dmaB(1)
    for j in range(ACC, ACC + 16 * NA * NBF): a(f"v_mov_b32 v{j}, 0")
    for j in range(CSA, CSA + 8): a(f"v_mov_b32 v{j}, 0")
    a("s_waitcnt vmcnt(8) lgkmcnt(0)\ns_barrier")
    stamp(a, 1)
    for r in reads(0, 0, 0): a(r)
    advA_pre()
    a("v_add_u32 v6, s68, v6")
    def step(jj, dma=True, bar=True, vm=8, nxt=True, extra=None, xm_early=False):
        b = jj & 1; nb = b ^ 1
        if jj % 2 == 0 and bar: a(f"s_waitcnt vmcnt({vm})\ns_barrier")
        if extra: extra()
        a("s_waitcnt lgkmcnt(0)")
        if jj == 0: xsetup()
        rd = []
        if nxt:
            if jj % 2 == 1: advB()
            rd = reads(nb, (jj + 1) % 4, (jj + 1) % 2)
        if jj == 0: rd = rd + xreads()
        dm = []
        if dma:
            dm = {0: [lambda: dmaB(0), lambda: dmaB(1), lambda: dmaA(0)], 1: [lambda: dmaA(1), lambda: dmaA(2), lambda: dmaA(3)],
                  2: [lambda: dmaB(0)], 3: [lambda: dmaB(1)]}[jj]
        ms = [mfma(b, i, j) for j in range(NBF) for i in range(NA)]
        xm = [f"{MF16} {vr(CSA,4)}, {vr(FX,4)}, v[20:23], {vr(CSA,4)}",
              f"{MF16} {vr(CSA+4,4)}, {vr(FX+8,4)}, v[20:23], {vr(CSA+4,4)}",
              f"{MF16} {vr(CSA,4)}, {vr(FX+4,4)}, v[20:23], {vr(CSA,4)}"]
        if xm_early:
            if jj == 1:
                ms = [ms[0], xm[0], ms[1], xm[1], ms[2], xm[2]] + ms[3:]
        elif jj >= 1:
            ms.insert(2, xm[jj - 1])
        n = len(ms)
        nr = max(1, n - 2)
        pr = pd = 0
        for k, m in enumerate(ms):
            a(m)
            tr = min(len(rd), -(-len(rd) * (k + 1) // nr))
            while pr < tr:
                a(rd[pr]); pr += 1
                if pr == NA and nxt:
                    ja = (jj + 1) % 4
                    if ja == 0: advA_pre()
                    a(f"v_add_u32 v{6+ja}, s68, v{6+ja}")
            td = min(len(dm), (len(dm) * (k + 2)) // n)
            while pd < td: dm[pd](); pd += 1
    a("s_mov_b32 s34, 8")
    a(f"s_branch {L}_in")
    a(".p2align 6")
    a(f"{L}_loop:")
    a("s_waitcnt vmcnt(8)\ns_barrier")
    a(f"{L}_in:")
    step(0, bar=False); step(1); step(2); step(3)
    a(f"""
s_sub_u32 s34, s34, 1
s_cmp_lg_u32 s34, 0
s_cbranch_scc1 {L}_loop
""")
    stamp(a, 2)
    step(0, dma=False, vm=8); step(1, dma=False); step(2, dma=False, vm=2); step(3, dma=False)
    def poll_issue():
        a("buffer_load_dword v24, v5, s[20:23], 0 offen sc1")
    def poll_check():
        a(f"""
{L}_poll:
s_waitcnt vmcnt(0)
v_cmp_eq_u32 vcc, 0, v24
s_nop 4
s_cmp_eq_u64 vcc, 0
s_cbranch_scc1 {L}_pollok
s_sleep 2
buffer_load_dword v24, v5, s[20:23], 0 offen sc1
s_branch {L}_poll
{L}_pollok:
""")
        stamp(a, 3)
        if GU: a("s_lshl_b32 s76, s27, 8\ns_lshl_b32 s77, s80, 6\ns_add_u32 s76, s76, s77")
        else: a("s_mov_b32 s76, s29")
        a(f"""
v_and_b32 v25, 31, v1
v_add_u32 v26, s76, v25
v_lshlrev_b32 v26, 2, v26
s_mov_b32 s69, {MBO}
s_mov_b32 s70, {RIO}
""")
        for i in range(NA):
            a(f"buffer_load_dword v{28+i}, v26, s[16:19], s69 offen offset:{128*i} sc1")
        if kind == "V":
            a(f"""
v_lshrrev_b32 v27, 5, v1
v_lshlrev_b32 v27, 2, v27
v_add_u32 v27, s76, v27
v_lshlrev_b32 v27, 2, v27
""")
            for i in range(4):
                a(f"buffer_load_dwordx4 {vr(40+4*i,4)}, v27, s[16:19], s70 offen offset:{32*i} sc1")
        else:
            for i in range(NA):
                a(f"buffer_load_dword v{30+i}, v26, s[16:19], s70 offen offset:{128*i} sc1")
    def cs_publish():
        a(f"""
v_and_b32 v27, 15, v1
v_cmp_eq_u32 vcc, 0, v27
v_and_b32 v27, 48, v1
s_lshl_b32 s70, s24, 6
s_add_u32 s70, s70, {CS_OFF}
v_add_u32 v32, s70, v27
s_lshl_b32 s70, s73, 6
s_add_u32 s70, s70, {CS_OFF + 512}
v_add_u32 v33, s70, v27
s_and_saveexec_b64 s[74:75], vcc
ds_write_b128 v32, {vr(CSA,4)}
""")
        if not GU: a(f"s_cmp_ge_u32 s24, 4\ns_cbranch_scc1 {L}_nox")
        for r in range(4): a(f"ds_add_f32 v33, v{CSA+4+r} offset:{4*r}")
        if not GU: a(f"{L}_nox:")
        a("s_mov_b64 exec, -1\ns_waitcnt lgkmcnt(0)\ns_barrier")
        if GU:
            a(f"""
v_and_b32 v27, 15, v1
v_bfe_u32 v32, v1, 4, 1
v_mul_u32_u24 v32, 96, v32
v_add_u32 v27, v27, v32
s_mul_i32 s70, s81, 48
v_add_u32 v27, s70, v27
v_lshlrev_b32 v27, 2, v27
v_add_u32 v27, {CS_OFF}, v27
""")
            for j in range(3): a(f"ds_read_b32 v{34+j}, v27 offset:{64*j}")
        else:
            a(f"v_lshlrev_b32 v27, 2, v25\nv_add_u32 v27, {CS_OFF}, v27")
            for j in range(5): a(f"ds_read_b32 v{34+j}, v27 offset:{128*j}")
    step(0, dma=False, vm=0, extra=poll_issue, xm_early=True); step(1, dma=False, extra=poll_check, xm_early=True)
    step(2, dma=False, bar=False, extra=cs_publish, xm_early=True); step(3, dma=False, nxt=False, xm_early=True)
    stamp(a, 4)
    XC = FR
    WC = FR + 8
    a(f"""
s_waitcnt vmcnt(0)
s_mov_b32 s64, -1
s_mov_b32 s65, 0
""")
    for i in range(NA):
        a(f"""
v_xor_b32 v24, 0x80000000, v{28+i}
v_lshrrev_b32 v25, 16, v24
v_or_b32 v26, v25, v24
v_cndmask_b32 v{XC+4*i}, 0, v26, s[64:65]
v_cndmask_b32 v{XC+4*i+1}, 0, v25, s[64:65]
v_mov_b32 v{XC+4*i+2}, 0
v_mov_b32 v{XC+4*i+3}, 0
""")
    WCr = [FX, FX + 4, FX + 8, WC, WC + 4]
    for j in range(NBF):
        w = WCr[j]; c = 34 + j
        a(f"""
v_and_b32 v24, 0xffff0000, v{c}
v_sub_f32 v25, v{c}, v24
v_and_b32 v26, 0xffff0000, v25
v_sub_f32 v25, v25, v26
v_lshrrev_b32 v24, 16, v24
v_or_b32 v{w}, v24, v26
v_lshrrev_b32 v{w+1}, 16, v25
v_mov_b32 v{w+2}, 0
v_mov_b32 v{w+3}, 0
""")
        if j == NBF - 1: a("s_nop 1")
        if j >= 1:
            for i in range(NA):
                d = vr(acc(i, j - 1), 16)
                if kind == "V": a(f"{MFMA} {d}, {vr(XC+4*i,4)}, {vr(WCr[j-1],4)}, {d}")
                else: a(f"{MFMA} {d}, {vr(WCr[j-1],4)}, {vr(XC+4*i,4)}, {d}")
    for i in range(NA):
        d = vr(acc(i, NBF - 1), 16)
        if kind == "V": a(f"{MFMA} {d}, {vr(XC+4*i,4)}, {vr(WCr[NBF-1],4)}, {d}")
        else: a(f"{MFMA} {d}, {vr(WCr[NBF-1],4)}, {vr(XC+4*i,4)}, {d}")
    a("s_lshr_b32 s69, s76, 5")
    PK = FR + 16 if False else 24
    if kind == "QK":
        a(f"""
s_cmp_lt_u32 s28, 4
s_cselect_b32 s70, {hex(f32bits(QSCALE))}, 1.0
v_mul_f32 v4, s70, v30
s_cselect_b32 s71, {QF}, {KF}
s_and_b32 s72, s28, 3
s_mul_i32 s72, s72, {8*81920}
s_add_u32 s71, s71, s72
s_mul_i32 s72, s69, 1280
s_add_u32 s71, s71, s72
v_lshlrev_b32 v2, 4, v1
v_and_b32 v3, 31, v1
v_lshlrev_b32 v3, 3, v3
v_lshrrev_b32 v5, 5, v1
s_mov_b32 s72, 81920
v_mul_lo_u32 v5, v5, s72
v_add3_u32 v3, v3, v5, 0
v_add_u32 v3, 1024, v3
""")
        for P in range(4):
            for i in range(20):
                r = ACC + 20 * P + i
                a(f"v_mul_f32 v{r}, v{r}, v4")
            for i in range(10):
                r = ACC + 20 * P + 2 * i
                a(f"v_cvt_pk_bf16_f32 v{PK+10*P+i}, v{r}, v{r+1}")
            a(f"buffer_store_dwordx4 {vr(PK+10*P,4)}, v2, s[16:19], s71 offen")
            a(f"buffer_store_dwordx2 {vr(PK+10*P+4,2)}, v3, s[16:19], s71 offen")
            a(f"s_add_u32 s71, s71, 81920")
            a(f"buffer_store_dwordx4 {vr(PK+10*P+6,4)}, v2, s[16:19], s71 offen")
            a(f"s_add_u32 s71, s71, 81920")
    elif kind == "V":
        PK = FR
        a(f"""
s_sub_u32 s72, s28, 8
s_mul_i32 s72, s72, {8*81920}
s_mul_i32 s71, s69, 1280
s_add_u32 s71, s71, s72
s_add_u32 s71, s71, {VF}
s_mov_b32 s72, 81920
v_and_b32 v2, 31, v1
v_lshrrev_b32 v3, 5, v1
v_mul_u32_u24 v3, 320, v3
""")
        for j in range(5):
            a(f"""
v_add_u32 v24, {32*j}, v2
v_mul_u32_u24 v25, 52429, v24
v_lshrrev_b32 v25, 20, v25
v_mul_u32_u24 v26, 20, v25
v_sub_u32 v26, v24, v26
v_mul_lo_u32 v25, v25, s72
v_lshl_add_u32 v25, v26, 4, v25
v_add_u32 v{28+j}, v25, v3
""")
        for j in range(5):
            for i in range(16):
                r = ACC + 16 * j + i
                a(f"v_mul_f32 v{r}, v{r}, v{40+i}")
            for i in range(8):
                r = ACC + 16 * j + 2 * i
                a(f"v_cvt_pk_bf16_f32 v{PK+8*j+i}, v{r}, v{r+1}")
            a(f"buffer_store_dwordx4 {vr(PK+8*j,4)}, v{28+j}, s[16:19], s71 offen")
            a(f"buffer_store_dwordx4 {vr(PK+8*j+4,4)}, v{28+j}, s[16:19], s71 offen offset:640")
    else:
        PK = 32
        a(f"""
v_mul_f32 v4, v30, v30
v_mul_f32 v5, v31, v31
s_lshl_b32 s71, s69, 1                  ; rowtile16
s_mul_i32 s71, s71, {68*1024}
s_mul_i32 s72, s28, {3*1024}
s_add_u32 s71, s71, s72
s_mul_i32 s72, s81, {3*512}
s_add_u32 s71, s71, s72
s_add_u32 s71, s71, {AF + 20*1024}
s_add_u32 s72, s71, {2*68*1024}
v_bfe_u32 v2, v1, 4, 1
v_mul_u32_u24 v2, {68*1024}, v2
v_and_b32 v3, 15, v1
v_lshl_add_u32 v2, v3, 4, v2
v_lshrrev_b32 v3, 5, v1
v_lshl_add_u32 v2, v3, 8, v2
s_nop 3
""")
        for j in range(3):
            for i in range(2):
                for r in range(8):
                    g = acc(i, j) + r; u = g + 8
                    a(f"v_max_f32 v{g}, 0, v{g}")
                    a(f"v_mul_f32 v{u}, v{u}, v{4+i}")
                    a(f"v_mul_f32 v{g}, v{g}, v{u}")
                for r in range(4):
                    a(f"v_cvt_pk_bf16_f32 v{PK+8*j+4*i+r}, v{acc(i,j)+2*r}, v{acc(i,j)+2*r+1}")
                a(f"buffer_store_dwordx4 {vr(PK+8*j+4*i,4)}, v2, s[16:19], s{71+i} offen offset:{j*512}")
    stamp_out(a, 5)
    a("s_endpgm")

def prep(a):
    X = 64; U = 112
    a(f"""
LP:
s_lshl_b32 s27, s25, 2
s_add_u32 s27, s27, s26               ; p
s_lshl_b32 s28, s27, 6
s_lshl_b32 s29, s24, 3
s_add_u32 s28, s28, s29
v_lshrrev_b32 v2, 3, v1
v_add_u32 v2, s28, v2
v_mul_u32_u24 v3, 1280, v2
v_and_b32 v4, 7, v1
v_lshl_add_u32 v3, v4, 4, v3
""")
    for t in range(10):
        a(f"buffer_load_dwordx4 {vr(X+4*t,4)}, v3, s[8:11], 0 offen offset:{128*t}")
    a("s_waitcnt vmcnt(0)")
    for i in range(40):
        a(f"v_lshlrev_b32 v{U+2*i}, 16, v{X+i}\nv_and_b32 v{U+2*i+1}, 0xffff0000, v{X+i}")
    a(f"v_add_f32 v8, v{U}, v{U+1}\nv_add_f32 v9, v{U+2}, v{U+3}")
    for i in range(4, 80, 2):
        a(f"v_add_f32 v8, v8, v{U+i}\nv_add_f32 v9, v9, v{U+i+1}")
    a("v_add_f32 v8, v8, v9")
    def red8(v):
        for m in (0x041F, 0x081F, 0x101F):
            a(f"ds_swizzle_b32 v9, v{v} offset:{m}\ns_waitcnt lgkmcnt(0)\nv_add_f32 v{v}, v{v}, v9")
    red8(8)
    a(f"v_mul_f32 v8, {hex(f32bits(1/640))}, v8\nv_mov_b32 v10, 0\nv_mov_b32 v11, 0")
    for i in range(0, 80, 2):
        a(f"v_sub_f32 v{U+i}, v{U+i}, v8\nv_sub_f32 v{U+i+1}, v{U+i+1}, v8\nv_fmac_f32 v10, v{U+i}, v{U+i}\nv_fmac_f32 v11, v{U+i+1}, v{U+i+1}")
    a("v_add_f32 v10, v10, v11")
    red8(10)
    a(f"""
v_mul_f32 v10, {hex(f32bits(1/640))}, v10
v_cvt_pk_bf16_f32 v11, v8, v10
v_lshlrev_b32 v8, 16, v11
v_and_b32 v10, 0xffff0000, v11
v_add_f32 v10, {hex(f32bits(1e-5))}, v10
v_cvt_pk_bf16_f32 v11, v10, v10
v_and_b32 v10, 0xffff0000, v11
v_sqrt_f32 v10, v10
s_nop 0
v_cvt_pk_bf16_f32 v11, v10, v10
v_and_b32 v10, 0xffff0000, v11
v_rcp_f32 v10, v10
v_lshlrev_b32 v2, 2, v2
v_cmp_eq_u32 vcc, 0, v4
s_mov_b32 s32, {MBO}
s_mov_b32 s33, {RIO}
s_and_saveexec_b64 s[34:35], vcc
buffer_store_dword v8, v2, s[16:19], s32 offen sc1
buffer_store_dword v10, v2, s[16:19], s33 offen sc1
s_mov_b64 exec, -1
""")
    stamp(a, 1)
    a(f"""
s_waitcnt vmcnt(0)
s_barrier
s_cmp_lg_u32 s24, 0
s_cbranch_scc1 LP_tr
v_mov_b32 v6, 1
v_mov_b32 v7, s27
v_lshlrev_b32 v7, 2, v7
s_mov_b64 exec, 1
buffer_store_dword v6, v7, s[20:23], 0 offen sc1
s_mov_b64 exec, -1
LP_tr:
""")
    stamp(a, 2)
    if 'pf' in VAR:
        a(f"""
s_getpc_b64 s[56:57]
LPC_ref:
s_sub_u32 s12, s56, LPC_ref-k1_kernel
s_subb_u32 s13, s57, 0
s_mov_b32 s14, LCODE_END-k1_kernel
s_mov_b32 s15, 0x00020000
s_lshl_b32 s58, s26, 3
s_add_u32 s58, s58, s24
s_lshl_b32 s58, s58, 10
v_lshlrev_b32 v5, 4, v1
buffer_load_dwordx4 v[200:203], v5, s[12:15], s58 offen
""")
    a(f"""
s_lshl_b32 s56, s27, 3
s_add_u32 s56, s56, s24
s_mul_i32 s57, s24, 12288
v_lshrrev_b32 v6, 3, v1
v_mul_u32_u24 v6, 1280, v6
v_and_b32 v7, 7, v1
v_lshl_add_u32 v6, v7, 4, v6
v_add_u32 v7, {8*1280-1024}, v6
v_add_u32 v8, {16*1280-2048}, v6
v_add_u32 v9, {24*1280-3072}, v6
v_lshrrev_b32 v10, 5, v1
v_lshlrev_b32 v10, 4, v10
v_bfe_u32 v11, v1, 4, 1
v_lshl_add_u32 v10, v11, 2, v10
v_bfe_u32 v11, v1, 2, 2
v_add_u32 v10, v10, v11
v_lshlrev_b32 v10, 7, v10
v_and_b32 v11, 3, v1
v_lshl_add_u32 v10, v11, 3, v10
v_add_u32 v10, s57, v10
v_lshlrev_b32 v11, 4, v1
""")
    for t in range(3):
        a(f"""
s_min_u32 s60, s56, 679
s_mul_i32 s58, s60, 52429
s_lshr_b32 s58, s58, 19
s_mul_i32 s59, s58, 10
s_sub_u32 s59, s60, s59
s_cmp_lt_u32 s58, 20
s_cselect_b32 s12, s40, s48
s_cselect_b32 s13, s41, s49
s_mov_b32 s14, {1536*640*2}
s_cselect_b32 s14, {640*640*2}, s14
s_mov_b32 s15, 0x00020000
s_cselect_b32 s60, 0, 20
s_sub_u32 s60, s58, s60
s_mul_i32 s60, s60, {32*1280}
s_lshl_b32 s61, s59, 7
s_add_u32 s60, s60, s61
s_add_u32 m0, s57, {4096*t}
s_nop 0
buffer_load_dwordx4 v6, s[12:15], s60 offen lds
buffer_load_dwordx4 v7, s[12:15], s60 offen offset:1024 lds
buffer_load_dwordx4 v8, s[12:15], s60 offen offset:2048 lds
buffer_load_dwordx4 v9, s[12:15], s60 offen offset:3072 lds
s_mul_i32 s60, s58, {40*1024}
s_lshl_b32 s61, s59, 12
s_add_u32 s60, s60, s61
s_add_u32 s{64+t}, s60, {BF}
s_add_u32 s56, s56, 256
""")
    for t in range(3):
        a("s_waitcnt vmcnt(8)")
        for jt in range(4):
            for r in range(2):
                a(f"ds_read_b64_tr_b16 {vr(X+16*t+4*jt+2*r,2)}, v10 offset:{4096*t + jt*32 + r*8*128}")
        a("s_waitcnt lgkmcnt(0)")
        for jt in range(4):
            a(f"buffer_store_dwordx4 {vr(X+16*t+4*jt,4)}, v11, s[16:19], s{64+t} offen offset:{jt*1024} sc1")
    stamp_out(a, 5)
    a("s_endpgm")

def k1_kernel(a, name):
    kernel_header(a, name)
    a(f"""
s_cmp_ge_u32 s2, 256
s_cbranch_scc1 LK1_end
""")
    stamp(a, 0)
    a(f"""
s_load_dwordx16 s[36:51], s[0:1], 0
s_load_dwordx4 s[52:55], s[0:1], 64
v_and_b32 v1, 63, v0
v_lshrrev_b32 v2, 6, v0
s_and_b32 s25, s2, 7
v_readfirstlane_b32 s24, v2
s_lshr_b32 s26, s2, 3
s_and_b32 s80, s24, 3
s_lshr_b32 s81, s24, 2
s_waitcnt lgkmcnt(0)
""")
    srd(a, 8, 36, 37, 2048 * 640 * 2)
    srd(a, 16, 54, 55, WS_BYTES)
    srd(a, 20, 52, 53, 256)
    a(f"""
s_cmp_lt_u32 s26, 4
s_cbranch_scc1 LP
v_min_u32 v3, 191, v0
v_lshlrev_b32 v3, 2, v3
v_add_u32 v3, {CS_OFF}, v3
v_mov_b32 v4, 0
ds_write_b32 v3, v4
s_sub_u32 s26, s26, 4
s_and_b32 s27, s25, 1
s_lshl_b32 s27, s27, 2
s_and_b32 s28, s26, 3
s_add_u32 s27, s27, s28               ; mblock
s_lshl_b32 s29, s27, 8
s_lshl_b32 s28, s24, 5
s_add_u32 s29, s29, s28
s_lshl_b32 s63, s24, 12
v_and_b32 v5, 3, v1
s_lshl_b32 s56, s27, 2
v_add_u32 v5, s56, v5
v_lshlrev_b32 v5, 2, v5
v_lshrrev_b32 v24, 3, v1
v_add_u32 v24, s29, v24
v_mul_u32_u24 v24, 1280, v24
v_lshrrev_b32 v25, 4, v1
v_and_b32 v26, 7, v1
v_xor_b32 v27, v26, v25
v_lshl_add_u32 v10, v27, 4, v24
v_xor_b32 v27, 4, v27
v_lshl_add_u32 v11, v27, 4, v24
v_add_u32 v12, {16*1280-2048}, v10
v_add_u32 v13, {24*1280-3072}, v11
v_add_u32 v11, {8*1280-1024}, v11
v_and_b32 v24, 31, v1
v_lshrrev_b32 v25, 5, v1
v_bfe_u32 v26, v24, 1, 3
v_xor_b32 v26, v26, v25
v_lshlrev_b32 v24, 7, v24
""")
    for j in range(4):
        a(f"v_xor_b32 v27, {2*j}, v26\nv_lshl_add_u32 v{6+j}, v27, 4, v24")
    a(f"""
v_and_b32 v24, 15, v1
v_cmp_eq_u32 vcc, 0, v24
v_mov_b32 v25, 0x3f803f80
s_lshr_b32 s26, s26, 2
v_cndmask_b32 v20, 0, v25, vcc
v_cndmask_b32 v21, 0, v25, vcc
v_cndmask_b32 v22, 0, v25, vcc
v_cndmask_b32 v23, 0, v25, vcc
s_lshr_b32 s56, s25, 1
s_cmp_lt_u32 s26, 3
s_cbranch_scc0 LK1_gu
s_mul_i32 s28, s56, 3
s_add_u32 s28, s28, s26
s_cmp_lt_u32 s28, 8
s_cbranch_scc1 LGQK
s_branch LGV
LK1_gu:
s_lshl_b32 s28, s56, 2
s_add_u32 s28, s28, s26
s_sub_u32 s28, s28, 3
s_branch LGGU
LK1_end:
s_endpgm
""")
    gemm(a, "QK"); gemm(a, "V"); gemm(a, "GU")
    prep(a)

if __name__ == "__main__":
    import sys
    PROF = len(sys.argv) > 1
    VAR = sys.argv[1] if PROF else ""
    a = Asm()
    hdr = f"; @launch kernel=k1_kernel grid=(256,1,1) block=(512,1,1) lds={K1_LDS}\n"
    a('.amdgcn_target "amdgcn-amd-amdhsa--gfx950"\n.text')
    k1_kernel(a, "k1_kernel")
    txt = hdr + a.text() + '.section .rodata,"a"\n' + kernel_desc("k1_kernel", K1_VGPR, 100)
    open("k1_only.s", "w").write(txt)
```

```python
from asmlib import *
MFMA = "v_mfma_f32_32x32x16_bf16"
MF16 = "v_mfma_f32_16x16x32_bf16"
A_STAGE = 32768
B_RING, B_SLOT = 98304, 12576
CS_OFF = 161184
K1_LDS = 161952
ACC = 64
CSA = 160
FR = 168
FX = 216
K1_VGPR = 256
CP = 228
QSCALE = (20 ** -0.5) * 1.4426950408889634
PROF = False
VAR = ""
def stamp(a, k):
    if PROF:
        a(f"s_memrealtime s[{82+2*k}:{83+2*k}]")
        if k in (1, 2): a(f"s_memtime s[{92+2*k}:{93+2*k}]")
def stamp_out(a, n):
    if PROF:
        a("s_waitcnt vmcnt(0) lgkmcnt(0)")
        a(f"s_memrealtime s[{82+2*n}:{83+2*n}]")
        a("s_waitcnt lgkmcnt(0)")
        for k in range(8):
            a(f"v_mov_b32 v{8+k}, s{82+2*min(k, n)}" if k < 6 else f"v_mov_b32 v{8+k}, s{94+2*(k-6)}")
        a(f"""
s_lshl_b32 s34, s2, 3
s_add_u32 s34, s34, s24
s_lshl_b32 s34, s34, 5
s_add_u32 s34, s34, 0x3000000
v_mov_b32 v16, 0
s_mov_b64 exec, 1
buffer_store_dwordx4 v[8:11], v16, s[16:19], s34 offen
buffer_store_dwordx4 v[12:15], v16, s[16:19], s34 offen offset:16
""")

def gemm(a, kind):
    L = f"LG{kind}"
    GU = kind == "GU"
    RS = 192 if GU else 320
    GS = 8 * RS + 32
    UP = 4 * GS + 32
    CPR = 12 if GU else 20
    CW = 96 if GU else 80
    ldw = 3072 if GU else 3840
    NA = 2 if GU else 1
    NBF = 3 if GU else 5
    FA = [[FR + 24 * b + 4 * i for i in range(NA)] for b in range(2)]
    FB = [[FR + 24 * b + 4 * NA + 4 * j for j in range(NBF)] for b in range(2)]
    acc = lambda i, j: ACC + 16 * (NBF * i + j)
    a(f"{L}:")
    if GU:
        a(f"""
s_cmp_ge_u32 s24, 4
s_cselect_b32 s12, s46, s44
s_cselect_b32 s13, s47, s45
s_mov_b32 s14, {640*1536*2}
s_mov_b32 s15, 0x00020000
s_mul_i32 s58, s28, 192
s_and_b32 s57, s24, 3
s_mul_i32 s59, s57, {GS}
s_mul_i32 s60, s81, {UP}
s_add_u32 s59, s59, s60
s_mul_i32 s60, s57, {CW}
s_lshl_b32 s56, s80, 13
""")
    else:
        a(f"""
s_mov_b32 s12, s38
s_mov_b32 s13, s39
s_mov_b32 s14, {640*1920*2}
s_mov_b32 s15, 0x00020000
s_mul_i32 s58, s28, 320
s_lshr_b32 s59, s24, 1
s_mul_i32 s59, s59, {GS}
s_and_b32 s57, s24, 1
s_mul_i32 s57, s57, 1280
s_add_u32 s59, s59, s57
s_mul_i32 s60, s24, {CW}
s_lshl_b32 s56, s24, 12               ; 32*w*128
""")
    magic, sh = (43691, 19) if CPR == 12 else (52429, 20)
    a(f"""
s_add_u32 s59, s59, {B_RING}
s_mov_b32 s62, {ldw}
v_add_u32 v6, s56, v6
v_add_u32 v7, s56, v7
v_add_u32 v8, s56, v8
v_add_u32 v9, s56, v9
""")
    for (vd, add) in ((14, 0), (15, 64)):
        a(f"""
v_add_u32 v24, s60, v1
v_add_u32 v24, {add}, v24
v_mul_u32_u24 v25, {magic}, v24
v_lshrrev_b32 v25, {sh}, v25
v_mul_u32_u24 v26, {CPR}, v25
v_sub_u32 v26, v24, v26
v_mul_lo_u32 v25, v25, s62
v_lshl_add_u32 v25, v26, 4, v25
v_add_u32 v{vd}, s58, v25
""")
        if add: a(f"v_subrev_u32 v{vd}, 1024, v{vd}")
    NH = UP if GU else 32
    a(f"""
v_bfe_u32 v26, v1, 2, 2
v_mul_u32_u24 v26, {RS}, v26
v_and_b32 v27, 3, v1
v_lshl_add_u32 v26, v27, 3, v26       ; (i>>2)*RS + 8*(i&3)
v_lshrrev_b32 v24, 5, v1
v_mul_u32_u24 v24, {GS}, v24
v_bfe_u32 v27, v1, 4, 1
v_mul_u32_u24 v27, {NH}, v27
v_add3_u32 v16, v24, v26, v27
""")
    if GU: a(f"s_mul_i32 s61, s81, 96\ns_add_u32 s61, s61, {B_RING}")
    else: a(f"s_mov_b32 s61, {B_RING}")
    a("v_add_u32 v16, s61, v16")
    a(f"""
s_mov_b32 s64, {hex((1 << (CW - 64)) - 1)}
s_mov_b32 s65, 0
s_mov_b32 s30, 0
s_mov_b32 s31, 0
s_mov_b32 s32, 0
s_mov_b32 s33, 0
s_mov_b32 s66, 0
s_mov_b32 s67, 0
""")
    def dmaA(q):
        a(f"""
s_add_u32 m0, s63, s32
s_nop 0
buffer_load_dwordx4 v{10+q}, s[8:11], s30 offen offset:{1024*q} lds
""")
        if q == 3:
            a(f"""
s_add_u32 s32, s32, {A_STAGE}
s_cmp_eq_u32 s32, {3*A_STAGE}
s_cselect_b32 s32, 0, s32
s_add_u32 s30, s30, 128
""")
    def dmaB(q):
        if q == 0:
            a(f"""
s_add_u32 m0, s59, s33
s_nop 0
buffer_load_dwordx4 v14, s[12:15], s31 offen lds
""")
        else:
            a(f"""
s_add_u32 m0, s59, s33
s_mov_b64 exec, s[64:65]
buffer_load_dwordx4 v15, s[12:15], s31 offen offset:1024 lds
s_mov_b64 exec, -1
s_add_u32 s33, s33, {B_SLOT}
s_cmp_eq_u32 s33, {5*B_SLOT}
s_cselect_b32 s33, 0, s33
s_add_u32 s31, s31, {32*ldw}
""")
    JO = 32 if GU else 64
    def reads(nb, ja, ks):
        r = [f"ds_read_b128 {vr(FA[nb][i],4)}, v{6+ja} offset:{4096*i}" for i in range(NA)]
        for j in range(NBF):
            for rr in range(2):
                r.append(f"ds_read_b64_tr_b16 {vr(FB[nb][j]+2*rr,2)}, v16 offset:{2*ks*GS + 4*rr*RS + j*JO}")
        return r
    def xsetup():
        a(f"""
s_add_u32 s69, s67, {B_SLOT}
s_cmp_eq_u32 s69, {5*B_SLOT}
s_cselect_b32 s69, 0, s69
s_cmp_eq_u32 s72, 0
s_cselect_b32 s71, s67, s69
v_add_u32 v19, s67, v17
v_add_u32 v2, s69, v17
v_add_u32 v3, s71, v18
""")
    def xreads():
        r = []
        for e, v in enumerate((19, 2, 3)):
            for rr in range(2):
                r.append(f"ds_read_b64_tr_b16 {vr(FX+4*e+2*rr,2)}, v{v} offset:{4*rr*RS}")
        return r
    def advA_pre():
        a(f"""
s_add_u32 s69, s66, {A_STAGE}
s_cmp_eq_u32 s69, {3*A_STAGE}
s_cselect_b32 s69, 0, s69
s_sub_u32 s68, s69, s66
s_mov_b32 s66, s69
""")
    def advB():
        a(f"""
s_add_u32 s69, s67, {B_SLOT}
s_cmp_eq_u32 s69, {5*B_SLOT}
s_cselect_b32 s69, 0, s69
s_sub_u32 s70, s69, s67
s_mov_b32 s67, s69
v_add_u32 v16, s70, v16
""")
    def mfma(b, i, j):
        d = vr(acc(i, j), 16)
        if kind == "V": return f"{MFMA} {d}, {vr(FA[b][i],4)}, {vr(FB[b][j],4)}, {d}"
        return f"{MFMA} {d}, {vr(FB[b][j],4)}, {vr(FA[b][i],4)}, {d}"
    for _ in range(2):
        dmaB(0); dmaB(1)
        for q in range(4): dmaA(q)
        dmaB(0); dmaB(1)
    for j in range(ACC, ACC + 16 * NA * NBF): a(f"v_mov_b32 v{j}, 0")
    a("s_waitcnt vmcnt(8) lgkmcnt(0)\ns_barrier")
    stamp(a, 1)
    for r in reads(0, 0, 0): a(r)
    advA_pre()
    a("v_add_u32 v6, s68, v6")
    def step(jj, dma=True, bar=True, vm=8, nxt=True, extra=None, xm_early=False):
        b = jj & 1; nb = b ^ 1
        if jj % 2 == 0 and bar: a(f"s_waitcnt vmcnt({vm})\ns_barrier")
        if extra: extra()
        a("s_waitcnt lgkmcnt(0)")
        rd = []
        if nxt:
            if jj % 2 == 1: advB()
            rd = reads(nb, (jj + 1) % 4, (jj + 1) % 2)
        dm = []
        if dma:
            dm = {0: [lambda: dmaB(0), lambda: dmaB(1), lambda: dmaA(0)], 1: [lambda: dmaA(1), lambda: dmaA(2), lambda: dmaA(3)],
                  2: [lambda: dmaB(0)], 3: [lambda: dmaB(1)]}[jj]
        ms = [mfma(b, i, j) for j in range(NBF) for i in range(NA)]
        xm = [f"{MF16} {vr(CSA,4)}, {vr(FX,4)}, v[20:23], {vr(CSA,4)}",
              f"{MF16} {vr(CSA+4,4)}, {vr(FX+8,4)}, v[20:23], {vr(CSA+4,4)}",
              f"{MF16} {vr(CSA,4)}, {vr(FX+4,4)}, v[20:23], {vr(CSA,4)}"]
        n = len(ms)
        nr = max(1, n - 2)
        pr = pd = 0
        for k, m in enumerate(ms):
            a(m)
            tr = min(len(rd), -(-len(rd) * (k + 1) // nr))
            while pr < tr:
                a(rd[pr]); pr += 1
                if pr == NA and nxt:
                    ja = (jj + 1) % 4
                    if ja == 0: advA_pre()
                    a(f"v_add_u32 v{6+ja}, s68, v{6+ja}")
            td = min(len(dm), (len(dm) * (k + 2)) // n)
            while pd < td: dm[pd](); pd += 1
    a("s_mov_b32 s34, 8")
    a(f"s_branch {L}_in")
    a(".p2align 6")
    a(f"{L}_loop:")
    a("s_waitcnt vmcnt(8)\ns_barrier")
    a(f"{L}_in:")
    step(0, bar=False); step(1); step(2); step(3)
    a(f"""
s_sub_u32 s34, s34, 1
s_cmp_lg_u32 s34, 0
s_cbranch_scc1 {L}_loop
""")
    stamp(a, 2)
    step(0, dma=False, vm=8); step(1, dma=False); step(2, dma=False, vm=2); step(3, dma=False)
    def poll_issue():
        a("buffer_load_dword v24, v5, s[20:23], 0 offen sc1")
    def poll_check():
        a(f"""
{L}_poll:
s_waitcnt vmcnt(0)
v_cmp_eq_u32 vcc, 0, v24
s_nop 4
s_cmp_eq_u64 vcc, 0
s_cbranch_scc1 {L}_pollok
s_sleep 2
buffer_load_dword v24, v5, s[20:23], 0 offen sc1
s_branch {L}_poll
{L}_pollok:
""")
        stamp(a, 3)
        if GU: a("s_lshl_b32 s76, s27, 8\ns_lshl_b32 s77, s80, 6\ns_add_u32 s76, s76, s77")
        else: a("s_mov_b32 s76, s29")
        a(f"""
v_and_b32 v25, 31, v1
v_add_u32 v26, s76, v25
v_lshlrev_b32 v26, 2, v26
s_mov_b32 s69, {MBO}
s_mov_b32 s70, {RIO}
""")
        for i in range(NA):
            a(f"buffer_load_dword v{28+i}, v26, s[16:19], s69 offen offset:{128*i} sc1")
        if kind == "V":
            a(f"""
v_lshrrev_b32 v27, 5, v1
v_lshlrev_b32 v27, 2, v27
v_add_u32 v27, s76, v27
v_lshlrev_b32 v27, 2, v27
""")
            for i in range(4):
                a(f"buffer_load_dwordx4 {vr(40+4*i,4)}, v27, s[16:19], s70 offen offset:{32*i} sc1")
        else:
            for i in range(NA):
                a(f"buffer_load_dword v{30+i}, v26, s[16:19], s70 offen offset:{128*i} sc1")
        if GU:
            a(f"""
v_and_b32 v27, 15, v1
v_bfe_u32 v32, v1, 4, 1
v_mul_u32_u24 v32, 1536, v32
v_add_u32 v27, v27, v32
v_lshlrev_b32 v27, 2, v27
s_mul_i32 s69, s28, {96*4}
s_mul_i32 s70, s81, {48*4}
s_add_u32 s69, s69, s70
s_add_u32 s69, s69, {CSO + 1920*4}
""")
            for kq in range(4):
                for j in range(3): a(f"buffer_load_dword v{CP+5*kq+j}, v27, s[16:19], s69 offen offset:{64*j} sc1")
                if kq < 3: a(f"s_add_u32 s69, s69, {4992*4}")
        else:
            a(f"""
v_lshlrev_b32 v32, 2, v25
s_mul_i32 s69, s28, {160*4}
s_add_u32 s69, s69, {CSO}
""")
            for kq in range(4):
                for j in range(5): a(f"buffer_load_dword v{CP+5*kq+j}, v32, s[16:19], s69 offen offset:{128*j} sc1")
                if kq < 3: a(f"s_add_u32 s69, s69, {4992*4}")
    def cs_publish():
        a(f"""
v_and_b32 v27, 15, v1
v_cmp_eq_u32 vcc, 0, v27
v_and_b32 v27, 48, v1
s_lshl_b32 s70, s24, 6
s_add_u32 s70, s70, {CS_OFF}
v_add_u32 v32, s70, v27
s_lshl_b32 s70, s73, 6
s_add_u32 s70, s70, {CS_OFF + 512}
v_add_u32 v33, s70, v27
s_and_saveexec_b64 s[74:75], vcc
ds_write_b128 v32, {vr(CSA,4)}
""")
        if not GU: a(f"s_cmp_ge_u32 s24, 4\ns_cbranch_scc1 {L}_nox")
        for r in range(4): a(f"ds_add_f32 v33, v{CSA+4+r} offset:{4*r}")
        if not GU: a(f"{L}_nox:")
        a("s_mov_b64 exec, -1\ns_waitcnt lgkmcnt(0)\ns_barrier")
        if GU:
            a(f"""
v_and_b32 v27, 15, v1
v_bfe_u32 v32, v1, 4, 1
v_mul_u32_u24 v32, 96, v32
v_add_u32 v27, v27, v32
s_mul_i32 s70, s81, 48
v_add_u32 v27, s70, v27
v_lshlrev_b32 v27, 2, v27
v_add_u32 v27, {CS_OFF}, v27
""")
            for j in range(3): a(f"ds_read_b32 v{34+j}, v27 offset:{64*j}")
        else:
            a(f"v_lshlrev_b32 v27, 2, v25\nv_add_u32 v27, {CS_OFF}, v27")
            for j in range(5): a(f"ds_read_b32 v{34+j}, v27 offset:{128*j}")
    step(0, dma=False, vm=0, extra=poll_issue, xm_early=True); step(1, dma=False, extra=poll_check, xm_early=True)
    step(2, dma=False, bar=False); step(3, dma=False, nxt=False, xm_early=True)
    stamp(a, 4)
    XC = FR
    WC = FR + 8
    a(f"""
s_waitcnt vmcnt(0)
s_mov_b32 s64, -1
s_mov_b32 s65, 0
""")
    for j in range(NBF):
        a(f"v_add_f32 v{34+j}, v{CP+j}, v{CP+5+j}\nv_add_f32 v{CP+10+j}, v{CP+10+j}, v{CP+15+j}\nv_add_f32 v{34+j}, v{34+j}, v{CP+10+j}")
    for i in range(NA):
        a(f"""
v_xor_b32 v24, 0x80000000, v{28+i}
v_lshrrev_b32 v25, 16, v24
v_or_b32 v26, v25, v24
v_cndmask_b32 v{XC+4*i}, 0, v26, s[64:65]
v_cndmask_b32 v{XC+4*i+1}, 0, v25, s[64:65]
v_mov_b32 v{XC+4*i+2}, 0
v_mov_b32 v{XC+4*i+3}, 0
""")
    WCr = [FX, FX + 4, FX + 8, WC, WC + 4]
    for j in range(NBF):
        w = WCr[j]; c = 34 + j
        a(f"""
v_and_b32 v24, 0xffff0000, v{c}
v_sub_f32 v25, v{c}, v24
v_and_b32 v26, 0xffff0000, v25
v_sub_f32 v25, v25, v26
v_lshrrev_b32 v24, 16, v24
v_or_b32 v{w}, v24, v26
v_lshrrev_b32 v{w+1}, 16, v25
v_mov_b32 v{w+2}, 0
v_mov_b32 v{w+3}, 0
""")
        if j == NBF - 1: a("s_nop 1")
        if j >= 1:
            for i in range(NA):
                d = vr(acc(i, j - 1), 16)
                if kind == "V": a(f"{MFMA} {d}, {vr(XC+4*i,4)}, {vr(WCr[j-1],4)}, {d}")
                else: a(f"{MFMA} {d}, {vr(WCr[j-1],4)}, {vr(XC+4*i,4)}, {d}")
    for i in range(NA):
        d = vr(acc(i, NBF - 1), 16)
        if kind == "V": a(f"{MFMA} {d}, {vr(XC+4*i,4)}, {vr(WCr[NBF-1],4)}, {d}")
        else: a(f"{MFMA} {d}, {vr(WCr[NBF-1],4)}, {vr(XC+4*i,4)}, {d}")
    a("s_lshr_b32 s69, s76, 5")
    PK = FR + 16 if False else 24
    if kind == "QK":
        a(f"""
s_cmp_lt_u32 s28, 4
s_cselect_b32 s70, {hex(f32bits(QSCALE))}, 1.0
v_mul_f32 v4, s70, v30
s_cselect_b32 s71, {QF}, {KF}
s_and_b32 s72, s28, 3
s_mul_i32 s72, s72, {8*81920}
s_add_u32 s71, s71, s72
s_mul_i32 s72, s69, 1280
s_add_u32 s71, s71, s72
v_lshlrev_b32 v2, 4, v1
v_and_b32 v3, 31, v1
v_lshlrev_b32 v3, 3, v3
v_lshrrev_b32 v5, 5, v1
s_mov_b32 s72, 81920
v_mul_lo_u32 v5, v5, s72
v_add3_u32 v3, v3, v5, 0
v_add_u32 v3, 1024, v3
""")
        for P in range(4):
            for i in range(20):
                r = ACC + 20 * P + i
                a(f"v_mul_f32 v{r}, v{r}, v4")
            for i in range(10):
                r = ACC + 20 * P + 2 * i
                a(f"v_cvt_pk_bf16_f32 v{PK+10*P+i}, v{r}, v{r+1}")
            a(f"buffer_store_dwordx4 {vr(PK+10*P,4)}, v2, s[16:19], s71 offen")
            a(f"buffer_store_dwordx2 {vr(PK+10*P+4,2)}, v3, s[16:19], s71 offen")
            a(f"s_add_u32 s71, s71, 81920")
            a(f"buffer_store_dwordx4 {vr(PK+10*P+6,4)}, v2, s[16:19], s71 offen")
            a(f"s_add_u32 s71, s71, 81920")
    elif kind == "V":
        PK = FR
        a(f"""
s_sub_u32 s72, s28, 8
s_mul_i32 s72, s72, {8*81920}
s_mul_i32 s71, s69, 1280
s_add_u32 s71, s71, s72
s_add_u32 s71, s71, {VF}
s_mov_b32 s72, 81920
v_and_b32 v2, 31, v1
v_lshrrev_b32 v3, 5, v1
v_mul_u32_u24 v3, 320, v3
""")
        for j in range(5):
            a(f"""
v_add_u32 v24, {32*j}, v2
v_mul_u32_u24 v25, 52429, v24
v_lshrrev_b32 v25, 20, v25
v_mul_u32_u24 v26, 20, v25
v_sub_u32 v26, v24, v26
v_mul_lo_u32 v25, v25, s72
v_lshl_add_u32 v25, v26, 4, v25
v_add_u32 v{28+j}, v25, v3
""")
        for j in range(5):
            for i in range(16):
                r = ACC + 16 * j + i
                a(f"v_mul_f32 v{r}, v{r}, v{40+i}")
            for i in range(8):
                r = ACC + 16 * j + 2 * i
                a(f"v_cvt_pk_bf16_f32 v{PK+8*j+i}, v{r}, v{r+1}")
            a(f"buffer_store_dwordx4 {vr(PK+8*j,4)}, v{28+j}, s[16:19], s71 offen")
            a(f"buffer_store_dwordx4 {vr(PK+8*j+4,4)}, v{28+j}, s[16:19], s71 offen offset:640")
    else:
        PK = 32
        a(f"""
v_mul_f32 v4, v30, v30
v_mul_f32 v5, v31, v31
s_lshl_b32 s71, s69, 1                  ; rowtile16
s_mul_i32 s71, s71, {68*1024}
s_mul_i32 s72, s28, {3*1024}
s_add_u32 s71, s71, s72
s_mul_i32 s72, s81, {3*512}
s_add_u32 s71, s71, s72
s_add_u32 s71, s71, {AF + 20*1024}
s_add_u32 s72, s71, {2*68*1024}
v_bfe_u32 v2, v1, 4, 1
v_mul_u32_u24 v2, {68*1024}, v2
v_and_b32 v3, 15, v1
v_lshl_add_u32 v2, v3, 4, v2
v_lshrrev_b32 v3, 5, v1
v_lshl_add_u32 v2, v3, 8, v2
s_nop 3
""")
        for j in range(3):
            for i in range(2):
                for r in range(8):
                    g = acc(i, j) + r; u = g + 8
                    a(f"v_max_f32 v{g}, 0, v{g}")
                    a(f"v_mul_f32 v{u}, v{u}, v{4+i}")
                    a(f"v_mul_f32 v{g}, v{g}, v{u}")
                for r in range(4):
                    a(f"v_cvt_pk_bf16_f32 v{PK+8*j+4*i+r}, v{acc(i,j)+2*r}, v{acc(i,j)+2*r+1}")
                a(f"buffer_store_dwordx4 {vr(PK+8*j+4*i,4)}, v2, s[16:19], s{71+i} offen offset:{j*512}")
    stamp_out(a, 5)
    a("s_endpgm")

def prep(a):
    X = 64; CX = 48
    a(f"""
LP:
s_lshl_b32 s27, s25, 2
s_add_u32 s27, s27, s26               ; p
s_cmp_ge_u32 s24, 5
s_cbranch_scc1 LP_st
s_mul_i32 s30, s27, 5
s_add_u32 s30, s30, s24               ; u
s_cmp_ge_u32 s30, 156
s_cbranch_scc1 LP_flag
s_lshr_b32 s31, s30, 2                ; b
s_and_b32 s30, s30, 3                 ; kq
s_cmp_lt_u32 s31, 27
s_cselect_b32 s12, s44, s46
s_cselect_b32 s13, s45, s47
s_cselect_b32 s56, 15, 27
s_mov_b32 s14, {640*1536*2}
s_mov_b32 s60, 3072
s_cmp_lt_u32 s31, 15
s_cselect_b32 s12, s38, s12
s_cselect_b32 s13, s39, s13
s_cselect_b32 s56, 0, s56
s_cselect_b32 s14, {640*1920*2}, s14
s_cselect_b32 s60, 3840, s60
s_mov_b32 s15, 0x00020000
s_sub_u32 s56, s31, s56
s_lshl_b32 s57, s56, 8
s_mul_i32 s61, s30, 160
v_lshrrev_b32 v6, 4, v1
v_add_u32 v6, s61, v6
v_mul_lo_u32 v6, v6, s60
v_and_b32 v7, 15, v1
v_lshl_add_u32 v6, v7, 4, v6
s_lshl_b32 s62, s60, 2
""")
    for t in range(40):
        a(f"buffer_load_dwordx4 {vr(CX+4*t,4)}, v6, s[12:15], s57 offen")
        a("s_add_u32 s57, s57, s62")
    a("s_mov_b32 s58, 0x00003f80\ns_mov_b32 s59, 0x3f800000")
    for i in range(8): a(f"v_mov_b32 v{16+i}, 0")
    for t in range(40):
        a(f"s_waitcnt vmcnt({39-t})")
        for i in range(4):
            a(f"v_dot2c_f32_bf16 v{16+2*i}, s58, v{CX+4*t+i}\nv_dot2c_f32_bf16 v{17+2*i}, s59, v{CX+4*t+i}")
    a("s_nop 2")
    for i in range(8): a(f"ds_swizzle_b32 v{24+i}, v{16+i} offset:0x401F")
    a("s_waitcnt lgkmcnt(0)")
    for i in range(8): a(f"v_add_f32 v{16+i}, v{16+i}, v{24+i}\nv_mov_b32 v{24+i}, v{16+i}")
    a("s_nop 1")
    for i in range(8): a(f"v_permlane32_swap_b32 v{16+i}, v{24+i}")
    a("s_nop 1")
    for i in range(8): a(f"v_add_f32 v{16+i}, v{16+i}, v{24+i}")
    a(f"""
s_mul_i32 s58, s30, {4992*4}
s_lshl_b32 s59, s31, 9
s_add_u32 s58, s58, s59
s_add_u32 s58, s58, {CSO}
v_lshlrev_b32 v7, 5, v7
s_mov_b64 exec, 0xffff
buffer_store_dwordx4 v[16:19], v7, s[16:19], s58 offen sc1
buffer_store_dwordx4 v[20:23], v7, s[16:19], s58 offen offset:16 sc1
s_mov_b64 exec, -1
s_branch LP_flag
LP_st:
s_cmp_eq_u32 s24, 7
s_cbranch_scc0 LP_st2
s_getpc_b64 s[56:57]
LPC_ref:
s_sub_u32 s12, s56, LPC_ref-k1_kernel
s_subb_u32 s13, s57, 0
s_mov_b32 s14, LCODE_END-k1_kernel
s_mov_b32 s15, 0x00020000
s_lshl_b32 s58, s26, 13
v_lshlrev_b32 v5, 4, v1
buffer_load_dwordx4 v[200:203], v5, s[12:15], s58 offen
buffer_load_dwordx4 v[200:203], v5, s[12:15], s58 offen offset:1024
buffer_load_dwordx4 v[200:203], v5, s[12:15], s58 offen offset:2048
buffer_load_dwordx4 v[200:203], v5, s[12:15], s58 offen offset:3072
s_add_u32 s58, s58, 4096
buffer_load_dwordx4 v[200:203], v5, s[12:15], s58 offen
buffer_load_dwordx4 v[200:203], v5, s[12:15], s58 offen offset:1024
buffer_load_dwordx4 v[200:203], v5, s[12:15], s58 offen offset:2048
buffer_load_dwordx4 v[200:203], v5, s[12:15], s58 offen offset:3072
s_branch LP_flag
LP_st2:
s_lshl_b32 s28, s27, 6
s_sub_u32 s29, s24, 5
s_lshl_b32 s29, s29, 5
s_add_u32 s28, s28, s29
v_lshrrev_b32 v2, 3, v1
v_add_u32 v2, s28, v2
v_mul_u32_u24 v3, 1280, v2
v_and_b32 v4, 7, v1
v_lshl_add_u32 v3, v4, 4, v3
s_mov_b32 s57, 0
""")
    for ps in range(4):
        for t in range(10):
            a(f"buffer_load_dwordx4 {vr(CX+40*ps+4*t,4)}, v3, s[8:11], s57 offen offset:{128*t}")
        a(f"s_add_u32 s57, s57, {8*1280}")
    a(f"""
s_mov_b32 s58, 0x3f803f80
v_lshlrev_b32 v2, 2, v2
v_cmp_eq_u32 vcc, 0, v4
s_mov_b32 s32, {MBO}
s_mov_b32 s33, {RIO}
s_mov_b64 s[34:35], vcc
""")
    for i in range(8): a(f"v_mov_b32 v{16+i}, 0")
    for ps in range(4):
        for t in range(10):
            a(f"s_waitcnt vmcnt({39-10*ps-t})")
            for i in range(4):
                r = CX + 40 * ps + 4 * t + i
                a(f"v_dot2c_f32_bf16 v{16+2*ps}, s58, v{r}\nv_dot2c_f32_bf16 v{17+2*ps}, v{r}, v{r}")
    a("s_nop 2")
    for m in (0x041F, 0x081F, 0x101F):
        for i in range(8): a(f"ds_swizzle_b32 v{24+i}, v{16+i} offset:{m}")
        a("s_waitcnt lgkmcnt(0)")
        for i in range(8): a(f"v_add_f32 v{16+i}, v{16+i}, v{24+i}")
    for ps in range(4):
        rinv_calc(a, 16 + 2 * ps, 17 + 2 * ps, 24 + ps, 28 + ps, 32)
    a("s_mov_b64 exec, s[34:35]")
    for ps in range(4):
        a(f"buffer_store_dword v{24+ps}, v2, s[16:19], s32 offen offset:{32*ps} sc1")
        a(f"buffer_store_dword v{28+ps}, v2, s[16:19], s33 offen offset:{32*ps} sc1")
    a("s_mov_b64 exec, -1\nLP_flag:")
    stamp(a, 1)
    a(f"""
s_lshl_b32 s56, s27, 3
s_add_u32 s56, s56, s24
s_mul_i32 s57, s24, 12288
v_lshrrev_b32 v6, 3, v1
v_mul_u32_u24 v6, 1280, v6
v_and_b32 v7, 7, v1
v_lshl_add_u32 v6, v7, 4, v6
v_add_u32 v7, {8*1280-1024}, v6
v_add_u32 v8, {16*1280-2048}, v6
v_add_u32 v9, {24*1280-3072}, v6
v_lshrrev_b32 v10, 5, v1
v_lshlrev_b32 v10, 4, v10
v_bfe_u32 v11, v1, 4, 1
v_lshl_add_u32 v10, v11, 2, v10
v_bfe_u32 v11, v1, 2, 2
v_add_u32 v10, v10, v11
v_lshlrev_b32 v10, 7, v10
v_and_b32 v11, 3, v1
v_lshl_add_u32 v10, v11, 3, v10
v_add_u32 v10, s57, v10
v_lshlrev_b32 v11, 4, v1
""")
    for t in range(3):
        a(f"""
s_min_u32 s60, s56, 679
s_mul_i32 s58, s60, 52429
s_lshr_b32 s58, s58, 19
s_mul_i32 s59, s58, 10
s_sub_u32 s59, s60, s59
s_cmp_lt_u32 s58, 20
s_cselect_b32 s12, s40, s48
s_cselect_b32 s13, s41, s49
s_mov_b32 s14, {1536*640*2}
s_cselect_b32 s14, {640*640*2}, s14
s_mov_b32 s15, 0x00020000
s_cselect_b32 s60, 0, 20
s_sub_u32 s60, s58, s60
s_mul_i32 s60, s60, {32*1280}
s_lshl_b32 s61, s59, 7
s_add_u32 s60, s60, s61
s_add_u32 m0, s57, {4096*t}
s_nop 0
buffer_load_dwordx4 v6, s[12:15], s60 offen lds
buffer_load_dwordx4 v7, s[12:15], s60 offen offset:1024 lds
buffer_load_dwordx4 v8, s[12:15], s60 offen offset:2048 lds
buffer_load_dwordx4 v9, s[12:15], s60 offen offset:3072 lds
s_mul_i32 s60, s58, {40*1024}
s_lshl_b32 s61, s59, 12
s_add_u32 s60, s60, s61
s_add_u32 s{64+t}, s60, {BF}
s_add_u32 s56, s56, 256
""")
    a(f"""
s_cmp_eq_u32 s24, 7
s_cbranch_scc1 LP_nw
s_waitcnt vmcnt(12)
LP_nw:
s_barrier
s_cmp_lg_u32 s24, 0
s_cbranch_scc1 LP_tr
v_mov_b32 v12, 1
v_mov_b32 v13, s27
v_lshlrev_b32 v13, 2, v13
s_mov_b64 exec, 1
buffer_store_dword v12, v13, s[20:23], 0 offen sc1
s_mov_b64 exec, -1
s_waitcnt vmcnt(9)
LP_tr:
""")
    stamp(a, 2)
    for t in range(3):
        a("s_waitcnt vmcnt(8)")
        for jt in range(4):
            for r in range(2):
                a(f"ds_read_b64_tr_b16 {vr(X+16*t+4*jt+2*r,2)}, v10 offset:{4096*t + jt*32 + r*8*128}")
        a("s_waitcnt lgkmcnt(0)")
        for jt in range(4):
            a(f"buffer_store_dwordx4 {vr(X+16*t+4*jt,4)}, v11, s[16:19], s{64+t} offen offset:{jt*1024} sc1")
    stamp_out(a, 5)
    a("s_endpgm")

def k1_kernel(a, name):
    kernel_header(a, name)
    a(f"""
s_cmp_ge_u32 s2, 256
s_cbranch_scc1 LK1_end
""")
    stamp(a, 0)
    a(f"""
s_load_dwordx16 s[36:51], s[0:1], 0
s_load_dwordx4 s[52:55], s[0:1], 64
v_and_b32 v1, 63, v0
v_lshrrev_b32 v2, 6, v0
s_and_b32 s25, s2, 7
v_readfirstlane_b32 s24, v2
s_lshr_b32 s26, s2, 3
s_and_b32 s80, s24, 3
s_lshr_b32 s81, s24, 2
s_waitcnt lgkmcnt(0)
""")
    srd(a, 8, 36, 37, 2048 * 640 * 2)
    srd(a, 16, 54, 55, WS_BYTES)
    srd(a, 20, 52, 53, 256)
    a(f"""
s_cmp_lt_u32 s26, 4
s_cbranch_scc1 LP
s_sub_u32 s26, s26, 4
s_and_b32 s27, s25, 1
s_lshl_b32 s27, s27, 2
s_and_b32 s28, s26, 3
s_add_u32 s27, s27, s28               ; mblock
s_lshl_b32 s29, s27, 8
s_lshl_b32 s28, s24, 5
s_add_u32 s29, s29, s28
s_lshl_b32 s63, s24, 12
v_and_b32 v5, 31, v1
v_lshlrev_b32 v5, 2, v5
v_lshrrev_b32 v24, 3, v1
v_add_u32 v24, s29, v24
v_mul_u32_u24 v24, 1280, v24
v_lshrrev_b32 v25, 4, v1
v_and_b32 v26, 7, v1
v_xor_b32 v27, v26, v25
v_lshl_add_u32 v10, v27, 4, v24
v_xor_b32 v27, 4, v27
v_lshl_add_u32 v11, v27, 4, v24
v_add_u32 v12, {16*1280-2048}, v10
v_add_u32 v13, {24*1280-3072}, v11
v_add_u32 v11, {8*1280-1024}, v11
v_and_b32 v24, 31, v1
v_lshrrev_b32 v25, 5, v1
v_bfe_u32 v26, v24, 1, 3
v_xor_b32 v26, v26, v25
v_lshlrev_b32 v24, 7, v24
""")
    for j in range(4):
        a(f"v_xor_b32 v27, {2*j}, v26\nv_lshl_add_u32 v{6+j}, v27, 4, v24")
    a(f"""
s_lshr_b32 s26, s26, 2
s_lshr_b32 s56, s25, 1
s_cmp_lt_u32 s26, 3
s_cbranch_scc0 LK1_gu
s_mul_i32 s28, s56, 3
s_add_u32 s28, s28, s26
s_cmp_lt_u32 s28, 8
s_cbranch_scc1 LGQK
s_branch LGV
LK1_gu:
s_lshl_b32 s28, s56, 2
s_add_u32 s28, s28, s26
s_sub_u32 s28, s28, 3
s_branch LGGU
LK1_end:
s_endpgm
""")
    gemm(a, "QK"); gemm(a, "V"); gemm(a, "GU")
    prep(a)

if __name__ == "__main__":
    import sys
    PROF = len(sys.argv) > 1
    VAR = sys.argv[1] if PROF else ""
    a = Asm()
    hdr = f"; @launch kernel=k1_kernel grid=(256,1,1) block=(512,1,1) lds={K1_LDS}\n"
    a('.amdgcn_target "amdgcn-amd-amdhsa--gfx950"\n.text')
    k1_kernel(a, "k1_kernel")
    a("LCODE_END:")
    txt = hdr + a.text() + '.section .rodata,"a"\n' + kernel_desc("k1_kernel", K1_VGPR, 100)
    open("k1_only.s", "w").write(txt)
```

```python
from asmlib import *
MFMA = "v_mfma_f32_32x32x16_bf16"
MF16 = "v_mfma_f32_16x16x32_bf16"
A_STAGE = 32768
B_RING, B_SLOT = 98304, 12576
CS_OFF = 161184
K1_LDS = 161952
ACC = 64
CSA = 160
FR = 168
FX = 216
K1_VGPR = 256
CP = 228
QSCALE = (20 ** -0.5) * 1.4426950408889634
PROF = False
VAR = ""
def stamp(a, k):
    if PROF:
        a(f"s_memrealtime s[{82+2*k}:{83+2*k}]")
        if k in (1, 2): a(f"s_memtime s[{92+2*k}:{93+2*k}]")
def stamp_out(a, n):
    if PROF:
        a("s_waitcnt vmcnt(0) lgkmcnt(0)")
        a(f"s_memrealtime s[{82+2*n}:{83+2*n}]")
        a("s_waitcnt lgkmcnt(0)")
        for k in range(8):
            a(f"v_mov_b32 v{8+k}, s{82+2*min(k, n)}" if k < 6 else f"v_mov_b32 v{8+k}, s{94+2*(k-6)}")
        a(f"""
s_lshl_b32 s34, s2, 3
s_add_u32 s34, s34, s24
s_lshl_b32 s34, s34, 5
s_add_u32 s34, s34, 0x3000000
v_mov_b32 v16, 0
s_mov_b64 exec, 1
buffer_store_dwordx4 v[8:11], v16, s[16:19], s34 offen
buffer_store_dwordx4 v[12:15], v16, s[16:19], s34 offen offset:16
""")

def gemm(a, kind):
    L = f"LG{kind}"
    GU = kind == "GU"
    RS = 192 if GU else 320
    GS = 8 * RS + 32
    UP = 4 * GS + 32
    CPR = 12 if GU else 20
    CW = 96 if GU else 80
    ldw = 3072 if GU else 3840
    NA = 2 if GU else 1
    NBF = 3 if GU else 5
    FA = [[FR + 24 * b + 4 * i for i in range(NA)] for b in range(2)]
    FB = [[FR + 24 * b + 4 * NA + 4 * j for j in range(NBF)] for b in range(2)]
    acc = lambda i, j: ACC + 16 * (NBF * i + j)
    a(f"{L}:")
    if GU:
        a(f"""
s_cmp_ge_u32 s24, 4
s_cselect_b32 s12, s46, s44
s_cselect_b32 s13, s47, s45
s_mov_b32 s14, {640*1536*2}
s_mov_b32 s15, 0x00020000
s_mul_i32 s58, s28, 192
s_and_b32 s57, s24, 3
s_mul_i32 s59, s57, {GS}
s_mul_i32 s60, s81, {UP}
s_add_u32 s59, s59, s60
s_mul_i32 s60, s57, {CW}
s_lshl_b32 s56, s80, 13
""")
    else:
        a(f"""
s_mov_b32 s12, s38
s_mov_b32 s13, s39
s_mov_b32 s14, {640*1920*2}
s_mov_b32 s15, 0x00020000
s_mul_i32 s58, s28, 320
s_lshr_b32 s59, s24, 1
s_mul_i32 s59, s59, {GS}
s_and_b32 s57, s24, 1
s_mul_i32 s57, s57, 1280
s_add_u32 s59, s59, s57
s_mul_i32 s60, s24, {CW}
s_lshl_b32 s56, s24, 12               ; 32*w*128
""")
    magic, sh = (43691, 19) if CPR == 12 else (52429, 20)
    a(f"""
s_add_u32 s59, s59, {B_RING}
s_mov_b32 s62, {ldw}
v_add_u32 v6, s56, v6
v_add_u32 v7, s56, v7
v_add_u32 v8, s56, v8
v_add_u32 v9, s56, v9
""")
    for (vd, add) in ((14, 0), (15, 64)):
        a(f"""
v_add_u32 v24, s60, v1
v_add_u32 v24, {add}, v24
v_mul_u32_u24 v25, {magic}, v24
v_lshrrev_b32 v25, {sh}, v25
v_mul_u32_u24 v26, {CPR}, v25
v_sub_u32 v26, v24, v26
v_mul_lo_u32 v25, v25, s62
v_lshl_add_u32 v25, v26, 4, v25
v_add_u32 v{vd}, s58, v25
""")
        if add: a(f"v_subrev_u32 v{vd}, 1024, v{vd}")
    NH = UP if GU else 32
    a(f"""
v_bfe_u32 v26, v1, 2, 2
v_mul_u32_u24 v26, {RS}, v26
v_and_b32 v27, 3, v1
v_lshl_add_u32 v26, v27, 3, v26       ; (i>>2)*RS + 8*(i&3)
v_lshrrev_b32 v24, 5, v1
v_mul_u32_u24 v24, {GS}, v24
v_bfe_u32 v27, v1, 4, 1
v_mul_u32_u24 v27, {NH}, v27
v_add3_u32 v16, v24, v26, v27
""")
    if GU: a(f"s_mul_i32 s61, s81, 96\ns_add_u32 s61, s61, {B_RING}")
    else: a(f"s_mov_b32 s61, {B_RING}")
    a("v_add_u32 v16, s61, v16")
    a(f"""
s_mov_b32 s64, {hex((1 << (CW - 64)) - 1)}
s_mov_b32 s65, 0
s_mov_b32 s30, 0
s_mov_b32 s31, 0
s_mov_b32 s32, 0
s_mov_b32 s33, 0
s_mov_b32 s66, 0
s_mov_b32 s67, 0
""")
    def dmaA(q):
        a(f"""
s_add_u32 m0, s63, s32
s_nop 0
buffer_load_dwordx4 v{10+q}, s[8:11], s30 offen offset:{1024*q} lds
""")
        if q == 3:
            a(f"""
s_add_u32 s32, s32, {A_STAGE}
s_cmp_eq_u32 s32, {3*A_STAGE}
s_cselect_b32 s32, 0, s32
s_add_u32 s30, s30, 128
""")
    def dmaB(q):
        if q == 0:
            a(f"""
s_add_u32 m0, s59, s33
s_nop 0
buffer_load_dwordx4 v14, s[12:15], s31 offen lds
""")
        else:
            a(f"""
s_add_u32 m0, s59, s33
s_mov_b64 exec, s[64:65]
buffer_load_dwordx4 v15, s[12:15], s31 offen offset:1024 lds
s_mov_b64 exec, -1
s_add_u32 s33, s33, {B_SLOT}
s_cmp_eq_u32 s33, {5*B_SLOT}
s_cselect_b32 s33, 0, s33
s_add_u32 s31, s31, {32*ldw}
""")
    JO = 32 if GU else 64
    def reads(nb, ja, ks):
        r = [f"ds_read_b128 {vr(FA[nb][i],4)}, v{6+ja} offset:{4096*i}" for i in range(NA)]
        for j in range(NBF):
            for rr in range(2):
                r.append(f"ds_read_b64_tr_b16 {vr(FB[nb][j]+2*rr,2)}, v16 offset:{2*ks*GS + 4*rr*RS + j*JO}")
        return r
    def xsetup():
        a(f"""
s_add_u32 s69, s67, {B_SLOT}
s_cmp_eq_u32 s69, {5*B_SLOT}
s_cselect_b32 s69, 0, s69
s_cmp_eq_u32 s72, 0
s_cselect_b32 s71, s67, s69
v_add_u32 v19, s67, v17
v_add_u32 v2, s69, v17
v_add_u32 v3, s71, v18
""")
    def xreads():
        r = []
        for e, v in enumerate((19, 2, 3)):
            for rr in range(2):
                r.append(f"ds_read_b64_tr_b16 {vr(FX+4*e+2*rr,2)}, v{v} offset:{4*rr*RS}")
        return r
    def advA_pre():
        a(f"""
s_add_u32 s69, s66, {A_STAGE}
s_cmp_eq_u32 s69, {3*A_STAGE}
s_cselect_b32 s69, 0, s69
s_sub_u32 s68, s69, s66
s_mov_b32 s66, s69
""")
    def advB():
        a(f"""
s_add_u32 s69, s67, {B_SLOT}
s_cmp_eq_u32 s69, {5*B_SLOT}
s_cselect_b32 s69, 0, s69
s_sub_u32 s70, s69, s67
s_mov_b32 s67, s69
v_add_u32 v16, s70, v16
""")
    def mfma(b, i, j):
        d = vr(acc(i, j), 16)
        if kind == "V": return f"{MFMA} {d}, {vr(FA[b][i],4)}, {vr(FB[b][j],4)}, {d}"
        return f"{MFMA} {d}, {vr(FB[b][j],4)}, {vr(FA[b][i],4)}, {d}"
    for _ in range(2):
        dmaB(0); dmaB(1)
        for q in range(4): dmaA(q)
        dmaB(0); dmaB(1)
    for j in range(ACC, ACC + 16 * NA * NBF): a(f"v_mov_b32 v{j}, 0")
    a("s_waitcnt vmcnt(8) lgkmcnt(0)\ns_barrier")
    stamp(a, 1)
    for r in reads(0, 0, 0): a(r)
    advA_pre()
    a("v_add_u32 v6, s68, v6")
    def step(jj, dma=True, bar=True, vm=8, nxt=True, extra=None, xm_early=False):
        b = jj & 1; nb = b ^ 1
        if jj % 2 == 0 and bar: a(f"s_waitcnt vmcnt({vm})\ns_barrier")
        if extra: extra()
        a("s_waitcnt lgkmcnt(0)")
        rd = []
        if nxt:
            if jj % 2 == 1: advB()
            rd = reads(nb, (jj + 1) % 4, (jj + 1) % 2)
        dm = []
        if dma:
            dm = {0: [lambda: dmaB(0), lambda: dmaB(1), lambda: dmaA(0)], 1: [lambda: dmaA(1), lambda: dmaA(2), lambda: dmaA(3)],
                  2: [lambda: dmaB(0)], 3: [lambda: dmaB(1)]}[jj]
        ms = [mfma(b, i, j) for j in range(NBF) for i in range(NA)]
        xm = [f"{MF16} {vr(CSA,4)}, {vr(FX,4)}, v[20:23], {vr(CSA,4)}",
              f"{MF16} {vr(CSA+4,4)}, {vr(FX+8,4)}, v[20:23], {vr(CSA+4,4)}",
              f"{MF16} {vr(CSA,4)}, {vr(FX+4,4)}, v[20:23], {vr(CSA,4)}"]
        n = len(ms)
        nr = max(1, n - 2)
        pr = pd = 0
        for k, m in enumerate(ms):
            a(m)
            tr = min(len(rd), -(-len(rd) * (k + 1) // nr))
            while pr < tr:
                a(rd[pr]); pr += 1
                if pr == NA and nxt:
                    ja = (jj + 1) % 4
                    if ja == 0: advA_pre()
                    a(f"v_add_u32 v{6+ja}, s68, v{6+ja}")
            td = min(len(dm), (len(dm) * (k + 2)) // n)
            while pd < td: dm[pd](); pd += 1
    a("s_mov_b32 s34, 8")
    a(f"s_branch {L}_in")
    a(".p2align 6")
    a(f"{L}_loop:")
    a("s_waitcnt vmcnt(8)\ns_barrier")
    a(f"{L}_in:")
    step(0, bar=False); step(1); step(2); step(3)
    a(f"""
s_sub_u32 s34, s34, 1
s_cmp_lg_u32 s34, 0
s_cbranch_scc1 {L}_loop
""")
    stamp(a, 2)
    step(0, dma=False, vm=8); step(1, dma=False); step(2, dma=False, vm=2); step(3, dma=False)
    def poll_issue():
        a("buffer_load_dword v24, v5, s[20:23], 0 offen sc1")
    def poll_check():
        a(f"""
{L}_poll:
s_waitcnt vmcnt(0)
v_cmp_eq_u32 vcc, 0, v24
s_nop 4
s_cmp_eq_u64 vcc, 0
s_cbranch_scc1 {L}_pollok
s_sleep 2
buffer_load_dword v24, v5, s[20:23], 0 offen sc1
s_branch {L}_poll
{L}_pollok:
""")
        stamp(a, 3)
        if GU: a("s_lshl_b32 s76, s27, 8\ns_lshl_b32 s77, s80, 6\ns_add_u32 s76, s76, s77")
        else: a("s_mov_b32 s76, s29")
        a(f"""
v_and_b32 v25, 31, v1
v_add_u32 v26, s76, v25
v_lshlrev_b32 v26, 2, v26
s_mov_b32 s69, {MBO}
s_mov_b32 s70, {RIO}
""")
        for i in range(NA):
            a(f"buffer_load_dword v{28+i}, v26, s[16:19], s69 offen offset:{128*i} sc1")
        if kind == "V":
            a(f"""
v_lshrrev_b32 v27, 5, v1
v_lshlrev_b32 v27, 2, v27
v_add_u32 v27, s76, v27
v_lshlrev_b32 v27, 2, v27
""")
            for i in range(4):
                a(f"buffer_load_dwordx4 {vr(40+4*i,4)}, v27, s[16:19], s70 offen offset:{32*i} sc1")
        else:
            for i in range(NA):
                a(f"buffer_load_dword v{30+i}, v26, s[16:19], s70 offen offset:{128*i} sc1")
        if GU:
            a(f"""
v_and_b32 v27, 15, v1
v_bfe_u32 v32, v1, 4, 1
v_mul_u32_u24 v32, 1536, v32
v_add_u32 v27, v27, v32
v_lshlrev_b32 v27, 2, v27
s_mul_i32 s69, s28, {96*4}
s_mul_i32 s70, s81, {48*4}
s_add_u32 s69, s69, s70
s_add_u32 s69, s69, {CSO + 1920*4}
""")
            for kq in range(4):
                for j in range(3): a(f"buffer_load_dword v{CP+5*kq+j}, v27, s[16:19], s69 offen offset:{64*j} sc1")
                if kq < 3: a(f"s_add_u32 s69, s69, {4992*4}")
        else:
            a(f"""
v_lshlrev_b32 v32, 2, v25
s_mul_i32 s69, s28, {160*4}
s_add_u32 s69, s69, {CSO}
""")
            for kq in range(4):
                for j in range(5): a(f"buffer_load_dword v{CP+5*kq+j}, v32, s[16:19], s69 offen offset:{128*j} sc1")
                if kq < 3: a(f"s_add_u32 s69, s69, {4992*4}")
    def cs_publish():
        a(f"""
v_and_b32 v27, 15, v1
v_cmp_eq_u32 vcc, 0, v27
v_and_b32 v27, 48, v1
s_lshl_b32 s70, s24, 6
s_add_u32 s70, s70, {CS_OFF}
v_add_u32 v32, s70, v27
s_lshl_b32 s70, s73, 6
s_add_u32 s70, s70, {CS_OFF + 512}
v_add_u32 v33, s70, v27
s_and_saveexec_b64 s[74:75], vcc
ds_write_b128 v32, {vr(CSA,4)}
""")
        if not GU: a(f"s_cmp_ge_u32 s24, 4\ns_cbranch_scc1 {L}_nox")
        for r in range(4): a(f"ds_add_f32 v33, v{CSA+4+r} offset:{4*r}")
        if not GU: a(f"{L}_nox:")
        a("s_mov_b64 exec, -1\ns_waitcnt lgkmcnt(0)\ns_barrier")
        if GU:
            a(f"""
v_and_b32 v27, 15, v1
v_bfe_u32 v32, v1, 4, 1
v_mul_u32_u24 v32, 96, v32
v_add_u32 v27, v27, v32
s_mul_i32 s70, s81, 48
v_add_u32 v27, s70, v27
v_lshlrev_b32 v27, 2, v27
v_add_u32 v27, {CS_OFF}, v27
""")
            for j in range(3): a(f"ds_read_b32 v{34+j}, v27 offset:{64*j}")
        else:
            a(f"v_lshlrev_b32 v27, 2, v25\nv_add_u32 v27, {CS_OFF}, v27")
            for j in range(5): a(f"ds_read_b32 v{34+j}, v27 offset:{128*j}")
    step(0, dma=False, vm=0, extra=poll_issue, xm_early=True); step(1, dma=False, extra=poll_check, xm_early=True)
    step(2, dma=False, bar=False); step(3, dma=False, nxt=False, xm_early=True)
    stamp(a, 4)
    XC = FR
    WC = FR + 8
    a(f"""
s_waitcnt vmcnt(0)
s_mov_b32 s64, -1
s_mov_b32 s65, 0
""")
    for j in range(NBF):
        a(f"v_add_f32 v{34+j}, v{CP+j}, v{CP+5+j}\nv_add_f32 v{CP+10+j}, v{CP+10+j}, v{CP+15+j}\nv_add_f32 v{34+j}, v{34+j}, v{CP+10+j}")
    for i in range(NA):
        a(f"""
v_xor_b32 v24, 0x80000000, v{28+i}
v_lshrrev_b32 v25, 16, v24
v_or_b32 v26, v25, v24
v_cndmask_b32 v{XC+4*i}, 0, v26, s[64:65]
v_cndmask_b32 v{XC+4*i+1}, 0, v25, s[64:65]
v_mov_b32 v{XC+4*i+2}, 0
v_mov_b32 v{XC+4*i+3}, 0
""")
    WCr = [FX, FX + 4, FX + 8, WC, WC + 4]
    for j in range(NBF):
        w = WCr[j]; c = 34 + j
        a(f"""
v_and_b32 v24, 0xffff0000, v{c}
v_sub_f32 v25, v{c}, v24
v_and_b32 v26, 0xffff0000, v25
v_sub_f32 v25, v25, v26
v_lshrrev_b32 v24, 16, v24
v_or_b32 v{w}, v24, v26
v_lshrrev_b32 v{w+1}, 16, v25
v_mov_b32 v{w+2}, 0
v_mov_b32 v{w+3}, 0
""")
        if j == NBF - 1: a("s_nop 1")
        if j >= 1:
            for i in range(NA):
                d = vr(acc(i, j - 1), 16)
                if kind == "V": a(f"{MFMA} {d}, {vr(XC+4*i,4)}, {vr(WCr[j-1],4)}, {d}")
                else: a(f"{MFMA} {d}, {vr(WCr[j-1],4)}, {vr(XC+4*i,4)}, {d}")
    for i in range(NA):
        d = vr(acc(i, NBF - 1), 16)
        if kind == "V": a(f"{MFMA} {d}, {vr(XC+4*i,4)}, {vr(WCr[NBF-1],4)}, {d}")
        else: a(f"{MFMA} {d}, {vr(WCr[NBF-1],4)}, {vr(XC+4*i,4)}, {d}")
    a("s_lshr_b32 s69, s76, 5")
    PK = FR + 16 if False else 24
    if kind == "QK":
        a(f"""
s_cmp_lt_u32 s28, 4
s_cselect_b32 s70, {hex(f32bits(QSCALE))}, 1.0
v_mul_f32 v4, s70, v30
s_cselect_b32 s71, {QF}, {KF}
s_and_b32 s72, s28, 3
s_mul_i32 s72, s72, {8*81920}
s_add_u32 s71, s71, s72
s_mul_i32 s72, s69, 1280
s_add_u32 s71, s71, s72
v_lshlrev_b32 v2, 4, v1
v_and_b32 v3, 31, v1
v_lshlrev_b32 v3, 3, v3
v_lshrrev_b32 v5, 5, v1
s_mov_b32 s72, 81920
v_mul_lo_u32 v5, v5, s72
v_add3_u32 v3, v3, v5, 0
v_add_u32 v3, 1024, v3
""")
        for P in range(4):
            for i in range(20):
                r = ACC + 20 * P + i
                a(f"v_mul_f32 v{r}, v{r}, v4")
            for i in range(10):
                r = ACC + 20 * P + 2 * i
                a(f"v_cvt_pk_bf16_f32 v{PK+10*P+i}, v{r}, v{r+1}")
            a(f"buffer_store_dwordx4 {vr(PK+10*P,4)}, v2, s[16:19], s71 offen")
            a(f"buffer_store_dwordx2 {vr(PK+10*P+4,2)}, v3, s[16:19], s71 offen")
            a(f"s_add_u32 s71, s71, 81920")
            a(f"buffer_store_dwordx4 {vr(PK+10*P+6,4)}, v2, s[16:19], s71 offen")
            a(f"s_add_u32 s71, s71, 81920")
    elif kind == "V":
        PK = FR
        a(f"""
s_sub_u32 s72, s28, 8
s_mul_i32 s72, s72, {8*81920}
s_mul_i32 s71, s69, 1280
s_add_u32 s71, s71, s72
s_add_u32 s71, s71, {VF}
s_mov_b32 s72, 81920
v_and_b32 v2, 31, v1
v_lshrrev_b32 v3, 5, v1
v_mul_u32_u24 v3, 320, v3
""")
        for j in range(5):
            a(f"""
v_add_u32 v24, {32*j}, v2
v_mul_u32_u24 v25, 52429, v24
v_lshrrev_b32 v25, 20, v25
v_mul_u32_u24 v26, 20, v25
v_sub_u32 v26, v24, v26
v_mul_lo_u32 v25, v25, s72
v_lshl_add_u32 v25, v26, 4, v25
v_add_u32 v{28+j}, v25, v3
""")
        for j in range(5):
            for i in range(16):
                r = ACC + 16 * j + i
                a(f"v_mul_f32 v{r}, v{r}, v{40+i}")
            for i in range(8):
                r = ACC + 16 * j + 2 * i
                a(f"v_cvt_pk_bf16_f32 v{PK+8*j+i}, v{r}, v{r+1}")
            a(f"buffer_store_dwordx4 {vr(PK+8*j,4)}, v{28+j}, s[16:19], s71 offen")
            a(f"buffer_store_dwordx4 {vr(PK+8*j+4,4)}, v{28+j}, s[16:19], s71 offen offset:640")
    else:
        PK = 32
        a(f"""
v_mul_f32 v4, v30, v30
v_mul_f32 v5, v31, v31
s_lshl_b32 s71, s69, 1                  ; rowtile16
s_mul_i32 s71, s71, {68*1024}
s_mul_i32 s72, s28, {3*1024}
s_add_u32 s71, s71, s72
s_mul_i32 s72, s81, {3*512}
s_add_u32 s71, s71, s72
s_add_u32 s71, s71, {AF + 20*1024}
s_add_u32 s72, s71, {2*68*1024}
v_bfe_u32 v2, v1, 4, 1
v_mul_u32_u24 v2, {68*1024}, v2
v_and_b32 v3, 15, v1
v_lshl_add_u32 v2, v3, 4, v2
v_lshrrev_b32 v3, 5, v1
v_lshl_add_u32 v2, v3, 8, v2
s_nop 3
""")
        for j in range(3):
            for i in range(2):
                for r in range(8):
                    g = acc(i, j) + r; u = g + 8
                    a(f"v_max_f32 v{g}, 0, v{g}")
                    a(f"v_mul_f32 v{u}, v{u}, v{4+i}")
                    a(f"v_mul_f32 v{g}, v{g}, v{u}")
                for r in range(4):
                    a(f"v_cvt_pk_bf16_f32 v{PK+8*j+4*i+r}, v{acc(i,j)+2*r}, v{acc(i,j)+2*r+1}")
                a(f"buffer_store_dwordx4 {vr(PK+8*j+4*i,4)}, v2, s[16:19], s{71+i} offen offset:{j*512}")
    stamp_out(a, 5)
    a("s_endpgm")

def prep(a):
    X = 64; CX = 48
    a(f"""
LP:
s_lshl_b32 s27, s25, 2
s_add_u32 s27, s27, s26               ; p
s_cmp_ge_u32 s24, 5
s_cbranch_scc1 LP_st
s_mul_i32 s30, s27, 5
s_add_u32 s30, s30, s24               ; u
s_cmp_ge_u32 s30, 156
s_cbranch_scc1 LP_flag
s_lshr_b32 s31, s30, 2                ; b
s_and_b32 s30, s30, 3                 ; kq
s_cmp_lt_u32 s31, 27
s_cselect_b32 s12, s44, s46
s_cselect_b32 s13, s45, s47
s_cselect_b32 s56, 15, 27
s_mov_b32 s14, {640*1536*2}
s_mov_b32 s60, 3072
s_cmp_lt_u32 s31, 15
s_cselect_b32 s12, s38, s12
s_cselect_b32 s13, s39, s13
s_cselect_b32 s56, 0, s56
s_cselect_b32 s14, {640*1920*2}, s14
s_cselect_b32 s60, 3840, s60
s_mov_b32 s15, 0x00020000
s_sub_u32 s56, s31, s56
s_lshl_b32 s57, s56, 8
s_mul_i32 s61, s30, 160
v_lshrrev_b32 v6, 4, v1
v_add_u32 v6, s61, v6
v_mul_lo_u32 v6, v6, s60
v_and_b32 v7, 15, v1
v_lshl_add_u32 v6, v7, 4, v6
s_lshl_b32 s62, s60, 2
""")
    for t in range(40):
        a(f"buffer_load_dwordx4 {vr(CX+4*t,4)}, v6, s[12:15], s57 offen")
        a("s_add_u32 s57, s57, s62")
    a("s_mov_b32 s58, 0x00003f80\ns_mov_b32 s59, 0x3f800000")
    for i in range(8): a(f"v_mov_b32 v{16+i}, 0")
    for t in range(40):
        a(f"s_waitcnt vmcnt({39-t})")
        for i in range(4):
            a(f"v_dot2c_f32_bf16 v{16+2*i}, s58, v{CX+4*t+i}\nv_dot2c_f32_bf16 v{17+2*i}, s59, v{CX+4*t+i}")
    a("s_nop 2")
    for i in range(8): a(f"ds_swizzle_b32 v{24+i}, v{16+i} offset:0x401F")
    a("s_waitcnt lgkmcnt(0)")
    for i in range(8): a(f"v_add_f32 v{16+i}, v{16+i}, v{24+i}\nv_mov_b32 v{24+i}, v{16+i}")
    a("s_nop 1")
    for i in range(8): a(f"v_permlane32_swap_b32 v{16+i}, v{24+i}")
    a("s_nop 1")
    for i in range(8): a(f"v_add_f32 v{16+i}, v{16+i}, v{24+i}")
    a(f"""
s_mul_i32 s58, s30, {4992*4}
s_lshl_b32 s59, s31, 9
s_add_u32 s58, s58, s59
s_add_u32 s58, s58, {CSO}
v_lshlrev_b32 v7, 5, v7
s_mov_b64 exec, 0xffff
buffer_store_dwordx4 v[16:19], v7, s[16:19], s58 offen sc1
buffer_store_dwordx4 v[20:23], v7, s[16:19], s58 offen offset:16 sc1
s_mov_b64 exec, -1
s_branch LP_flag
LP_st:
s_cmp_eq_u32 s24, 7
s_cbranch_scc0 LP_st2
s_getpc_b64 s[56:57]
LPC_ref:
s_sub_u32 s12, s56, LPC_ref-k1_kernel
s_subb_u32 s13, s57, 0
s_mov_b32 s14, LCODE_END-k1_kernel
s_mov_b32 s15, 0x00020000
s_lshl_b32 s58, s26, 13
v_lshlrev_b32 v5, 4, v1
buffer_load_dwordx4 v[200:203], v5, s[12:15], s58 offen
buffer_load_dwordx4 v[200:203], v5, s[12:15], s58 offen offset:1024
buffer_load_dwordx4 v[200:203], v5, s[12:15], s58 offen offset:2048
buffer_load_dwordx4 v[200:203], v5, s[12:15], s58 offen offset:3072
s_add_u32 s58, s58, 4096
buffer_load_dwordx4 v[200:203], v5, s[12:15], s58 offen
buffer_load_dwordx4 v[200:203], v5, s[12:15], s58 offen offset:1024
buffer_load_dwordx4 v[200:203], v5, s[12:15], s58 offen offset:2048
buffer_load_dwordx4 v[200:203], v5, s[12:15], s58 offen offset:3072
s_branch LP_flag
LP_st2:
s_lshl_b32 s28, s27, 6
s_sub_u32 s29, s24, 5
s_lshl_b32 s29, s29, 5
s_add_u32 s28, s28, s29
v_lshrrev_b32 v2, 3, v1
v_add_u32 v2, s28, v2
v_mul_u32_u24 v3, 1280, v2
v_and_b32 v4, 7, v1
v_lshl_add_u32 v3, v4, 4, v3
s_mov_b32 s57, 0
""")
    for ps in range(4):
        for t in range(10):
            a(f"buffer_load_dwordx4 {vr(CX+40*ps+4*t,4)}, v3, s[8:11], s57 offen offset:{128*t}")
        a(f"s_add_u32 s57, s57, {8*1280}")
    a(f"""
s_mov_b32 s58, 0x3f803f80
v_lshlrev_b32 v2, 2, v2
v_cmp_eq_u32 vcc, 0, v4
s_mov_b32 s32, {MBO}
s_mov_b32 s33, {RIO}
s_mov_b64 s[34:35], vcc
""")
    for i in range(8): a(f"v_mov_b32 v{16+i}, 0")
    for ps in range(4):
        for t in range(10):
            a(f"s_waitcnt vmcnt({39-10*ps-t})")
            for i in range(4):
                r = CX + 40 * ps + 4 * t + i
                a(f"v_dot2c_f32_bf16 v{16+2*ps}, s58, v{r}\nv_dot2c_f32_bf16 v{17+2*ps}, v{r}, v{r}")
    a("s_nop 2")
    for m in (0x041F, 0x081F, 0x101F):
        for i in range(8): a(f"ds_swizzle_b32 v{24+i}, v{16+i} offset:{m}")
        a("s_waitcnt lgkmcnt(0)")
        for i in range(8): a(f"v_add_f32 v{16+i}, v{16+i}, v{24+i}")
    for ps in range(4):
        rinv_calc(a, 16 + 2 * ps, 17 + 2 * ps, 24 + ps, 28 + ps, 32)
    a("s_mov_b64 exec, s[34:35]")
    for ps in range(4):
        a(f"buffer_store_dword v{24+ps}, v2, s[16:19], s32 offen offset:{32*ps} sc1")
        a(f"buffer_store_dword v{28+ps}, v2, s[16:19], s33 offen offset:{32*ps} sc1")
    a("s_mov_b64 exec, -1\nLP_flag:")
    stamp(a, 1)
    a(f"""
s_cmp_eq_u32 s24, 7
s_cbranch_scc1 LP_nw
s_waitcnt vmcnt(0)
LP_nw:
s_barrier
s_cmp_lg_u32 s24, 0
s_cbranch_scc1 LP_tr
v_mov_b32 v12, 1
v_mov_b32 v13, s27
v_lshlrev_b32 v13, 2, v13
s_mov_b64 exec, 1
buffer_store_dword v12, v13, s[20:23], 0 offen sc1
s_mov_b64 exec, -1
LP_tr:
""")
    stamp(a, 2)
    a(f"""
s_lshl_b32 s56, s27, 3
s_add_u32 s56, s56, s24
s_mul_i32 s57, s24, 12288
v_lshrrev_b32 v6, 3, v1
v_mul_u32_u24 v6, 1280, v6
v_and_b32 v7, 7, v1
v_lshl_add_u32 v6, v7, 4, v6
v_add_u32 v7, {8*1280-1024}, v6
v_add_u32 v8, {16*1280-2048}, v6
v_add_u32 v9, {24*1280-3072}, v6
v_lshrrev_b32 v10, 5, v1
v_lshlrev_b32 v10, 4, v10
v_bfe_u32 v11, v1, 4, 1
v_lshl_add_u32 v10, v11, 2, v10
v_bfe_u32 v11, v1, 2, 2
v_add_u32 v10, v10, v11
v_lshlrev_b32 v10, 7, v10
v_and_b32 v11, 3, v1
v_lshl_add_u32 v10, v11, 3, v10
v_add_u32 v10, s57, v10
v_lshlrev_b32 v11, 4, v1
""")
    for t in range(3):
        a(f"""
s_min_u32 s60, s56, 679
s_mul_i32 s58, s60, 52429
s_lshr_b32 s58, s58, 19
s_mul_i32 s59, s58, 10
s_sub_u32 s59, s60, s59
s_cmp_lt_u32 s58, 20
s_cselect_b32 s12, s40, s48
s_cselect_b32 s13, s41, s49
s_mov_b32 s14, {1536*640*2}
s_cselect_b32 s14, {640*640*2}, s14
s_mov_b32 s15, 0x00020000
s_cselect_b32 s60, 0, 20
s_sub_u32 s60, s58, s60
s_mul_i32 s60, s60, {32*1280}
s_lshl_b32 s61, s59, 7
s_add_u32 s60, s60, s61
s_add_u32 m0, s57, {4096*t}
s_nop 0
buffer_load_dwordx4 v6, s[12:15], s60 offen lds
buffer_load_dwordx4 v7, s[12:15], s60 offen offset:1024 lds
buffer_load_dwordx4 v8, s[12:15], s60 offen offset:2048 lds
buffer_load_dwordx4 v9, s[12:15], s60 offen offset:3072 lds
s_mul_i32 s60, s58, {40*1024}
s_lshl_b32 s61, s59, 12
s_add_u32 s60, s60, s61
s_add_u32 s{64+t}, s60, {BF}
s_add_u32 s56, s56, 256
""")
    for t in range(3):
        a("s_waitcnt vmcnt(8)")
        for jt in range(4):
            for r in range(2):
                a(f"ds_read_b64_tr_b16 {vr(X+16*t+4*jt+2*r,2)}, v10 offset:{4096*t + jt*32 + r*8*128}")
        a("s_waitcnt lgkmcnt(0)")
        for jt in range(4):
            a(f"buffer_store_dwordx4 {vr(X+16*t+4*jt,4)}, v11, s[16:19], s{64+t} offen offset:{jt*1024} sc1")
    stamp_out(a, 5)
    a("s_endpgm")

def k1_kernel(a, name):
    kernel_header(a, name)
    a(f"""
s_cmp_ge_u32 s2, 256
s_cbranch_scc1 LK1_end
""")
    stamp(a, 0)
    a(f"""
s_load_dwordx16 s[36:51], s[0:1], 0
s_load_dwordx4 s[52:55], s[0:1], 64
v_and_b32 v1, 63, v0
v_lshrrev_b32 v2, 6, v0
s_and_b32 s25, s2, 7
v_readfirstlane_b32 s24, v2
s_lshr_b32 s26, s2, 3
s_and_b32 s80, s24, 3
s_lshr_b32 s81, s24, 2
s_waitcnt lgkmcnt(0)
""")
    srd(a, 8, 36, 37, 2048 * 640 * 2)
    srd(a, 16, 54, 55, WS_BYTES)
    srd(a, 20, 52, 53, 256)
    a(f"""
s_cmp_lt_u32 s26, 4
s_cbranch_scc1 LP
s_sub_u32 s26, s26, 4
s_and_b32 s27, s25, 1
s_lshl_b32 s27, s27, 2
s_and_b32 s28, s26, 3
s_add_u32 s27, s27, s28               ; mblock
s_lshl_b32 s29, s27, 8
s_lshl_b32 s28, s24, 5
s_add_u32 s29, s29, s28
s_lshl_b32 s63, s24, 12
v_and_b32 v5, 31, v1
v_lshlrev_b32 v5, 2, v5
v_lshrrev_b32 v24, 3, v1
v_add_u32 v24, s29, v24
v_mul_u32_u24 v24, 1280, v24
v_lshrrev_b32 v25, 4, v1
v_and_b32 v26, 7, v1
v_xor_b32 v27, v26, v25
v_lshl_add_u32 v10, v27, 4, v24
v_xor_b32 v27, 4, v27
v_lshl_add_u32 v11, v27, 4, v24
v_add_u32 v12, {16*1280-2048}, v10
v_add_u32 v13, {24*1280-3072}, v11
v_add_u32 v11, {8*1280-1024}, v11
v_and_b32 v24, 31, v1
v_lshrrev_b32 v25, 5, v1
v_bfe_u32 v26, v24, 1, 3
v_xor_b32 v26, v26, v25
v_lshlrev_b32 v24, 7, v24
""")
    for j in range(4):
        a(f"v_xor_b32 v27, {2*j}, v26\nv_lshl_add_u32 v{6+j}, v27, 4, v24")
    a(f"""
s_lshr_b32 s26, s26, 2
s_lshr_b32 s56, s25, 1
s_cmp_lt_u32 s26, 3
s_cbranch_scc0 LK1_gu
s_mul_i32 s28, s56, 3
s_add_u32 s28, s28, s26
s_cmp_lt_u32 s28, 8
s_cbranch_scc1 LGQK
s_branch LGV
LK1_gu:
s_lshl_b32 s28, s56, 2
s_add_u32 s28, s28, s26
s_sub_u32 s28, s28, 3
s_branch LGGU
LK1_end:
s_endpgm
""")
    gemm(a, "QK"); gemm(a, "V"); gemm(a, "GU")
    prep(a)

if __name__ == "__main__":
    import sys
    PROF = len(sys.argv) > 1
    VAR = sys.argv[1] if PROF else ""
    a = Asm()
    hdr = f"; @launch kernel=k1_kernel grid=(256,1,1) block=(512,1,1) lds={K1_LDS}\n"
    a('.amdgcn_target "amdgcn-amd-amdhsa--gfx950"\n.text')
    k1_kernel(a, "k1_kernel")
    a("LCODE_END:")
    txt = hdr + a.text() + '.section .rodata,"a"\n' + kernel_desc("k1_kernel", K1_VGPR, 100)
    open("k1_only.s", "w").write(txt)
```

```python
from asmlib import *
MFMA = "v_mfma_f32_32x32x16_bf16"
MF16 = "v_mfma_f32_16x16x32_bf16"
A_STAGE = 32768
B_RING, B_SLOT = 98304, 12576
CS_OFF = 161184
K1_LDS = 161952
ACC = 64
CSA = 160
FR = 168
FX = 216
K1_VGPR = 256
CP = 228
QSCALE = (20 ** -0.5) * 1.4426950408889634
PROF = False
VAR = ""
def stamp(a, k):
    if PROF:
        a(f"s_memrealtime s[{82+2*k}:{83+2*k}]")
        if k in (1, 2): a(f"s_memtime s[{92+2*k}:{93+2*k}]")
def stamp_out(a, n):
    if PROF:
        a("s_waitcnt vmcnt(0) lgkmcnt(0)")
        a(f"s_memrealtime s[{82+2*n}:{83+2*n}]")
        a("s_waitcnt lgkmcnt(0)")
        for k in range(8):
            a(f"v_mov_b32 v{8+k}, s{82+2*min(k, n)}" if k < 6 else f"v_mov_b32 v{8+k}, s{94+2*(k-6)}")
        a(f"""
s_lshl_b32 s34, s2, 3
s_add_u32 s34, s34, s24
s_lshl_b32 s34, s34, 5
s_add_u32 s34, s34, 0x3000000
v_mov_b32 v16, 0
s_mov_b64 exec, 1
buffer_store_dwordx4 v[8:11], v16, s[16:19], s34 offen
buffer_store_dwordx4 v[12:15], v16, s[16:19], s34 offen offset:16
""")

def gemm(a0, kind):
    def a(t):
        if 'qsc1' in VAR and kind != "GU":
            t = "\n".join((l + " sc1" if ("buffer_store" in l and "v16, s[" not in l) else l) for l in t.split("\n"))
        a0(t)
    L = f"LG{kind}"
    GU = kind == "GU"
    RS = 192 if GU else 320
    GS = 8 * RS + 32
    UP = 4 * GS + 32
    CPR = 12 if GU else 20
    CW = 96 if GU else 80
    ldw = 3072 if GU else 3840
    EVEN = (not GU) and ('noeven' not in VAR)
    VMB = 9 if EVEN else 8
    NA = 2 if GU else 1
    NBF = 3 if GU else 5
    FA = [[FR + 24 * b + 4 * i for i in range(NA)] for b in range(2)]
    FB = [[FR + 24 * b + 4 * NA + 4 * j for j in range(NBF)] for b in range(2)]
    acc = lambda i, j: ACC + 16 * (NBF * i + j)
    a(f"{L}:")
    if GU:
        a(f"""
s_mul_i32 s58, s28, 192
s_and_b32 s57, s24, 3
s_mul_i32 s59, s57, {GS}
s_mul_i32 s60, s81, {UP}
s_add_u32 s59, s59, s60
s_mul_i32 s60, s57, {CW}
s_lshl_b32 s56, s80, 13
""")
    else:
        a(f"""
s_mul_i32 s58, s28, 320
s_lshr_b32 s59, s24, 1
s_mul_i32 s59, s59, {GS}
s_and_b32 s57, s24, 1
s_mul_i32 s57, s57, 1280
s_add_u32 s59, s59, s57
s_mul_i32 s60, s24, {CW}
s_lshl_b32 s56, s24, 12               ; 32*w*128
""")
    magic, sh = (43691, 19) if CPR == 12 else (52429, 20)
    a(f"""
s_add_u32 s59, s59, {B_RING}
s_mov_b32 s62, {ldw}
v_add_u32 v6, s56, v6
v_add_u32 v7, s56, v7
v_add_u32 v8, s56, v8
v_add_u32 v9, s56, v9
""")
    for (vd, add) in ((14, 0), (15, 64)):
        a(f"""
v_add_u32 v24, s60, v1
v_add_u32 v24, {add}, v24
v_mul_u32_u24 v25, {magic}, v24
v_lshrrev_b32 v25, {sh}, v25
v_mul_u32_u24 v26, {CPR}, v25
v_sub_u32 v26, v24, v26
v_mul_lo_u32 v25, v25, s62
v_lshl_add_u32 v25, v26, 4, v25
v_add_u32 v{vd}, s58, v25
""")
        if add: a(f"v_subrev_u32 v{vd}, 1024, v{vd}")
    a(f"""
s_mov_b32 s64, {hex((1 << (CW - 64)) - 1)}
s_mov_b32 s65, 0
s_mov_b32 s30, 0
s_mov_b32 s31, 0
s_mov_b32 s32, 0
s_mov_b32 s33, 0
s_mov_b32 s66, 0
s_mov_b32 s67, 0
""")
    def dmaA(q):
        a(f"""
s_add_u32 m0, s63, s32
s_nop 0
buffer_load_dwordx4 v{10+q}, s[8:11], s30 offen offset:{1024*q} lds
""")
        if q == 3:
            a(f"""
s_add_u32 s32, s32, {A_STAGE}
s_cmp_eq_u32 s32, {3*A_STAGE}
s_cselect_b32 s32, 0, s32
s_add_u32 s30, s30, 128
""")
    def dmaB(q):
        if q == 0:
            a(f"""
s_add_u32 m0, s59, s33
s_nop 0
buffer_load_dwordx4 v14, s[12:15], s31 offen lds
""")
        else:
            a(f"""
s_add_u32 m0, s59, s33
s_mov_b64 exec, s[64:65]
buffer_load_dwordx4 v15, s[12:15], s31 offen offset:1024 lds
s_mov_b64 exec, -1
s_add_u32 s33, s33, {B_SLOT}
s_cmp_eq_u32 s33, {5*B_SLOT}
s_cselect_b32 s33, 0, s33
s_add_u32 s31, s31, {32*ldw}
""")
    JO = 32 if GU else 64
    def reads(nb, ja, ks):
        r = [f"ds_read_b128 {vr(FA[nb][i],4)}, v{6+ja} offset:{4096*i}" for i in range(NA)]
        for j in range(NBF):
            for rr in range(2):
                r.append(f"ds_read_b64_tr_b16 {vr(FB[nb][j]+2*rr,2)}, v16 offset:{2*ks*GS + 4*rr*RS + j*JO}")
        return r
    def xsetup():
        a(f"""
s_add_u32 s69, s67, {B_SLOT}
s_cmp_eq_u32 s69, {5*B_SLOT}
s_cselect_b32 s69, 0, s69
s_cmp_eq_u32 s72, 0
s_cselect_b32 s71, s67, s69
v_add_u32 v19, s67, v17
v_add_u32 v2, s69, v17
v_add_u32 v3, s71, v18
""")
    def xreads():
        r = []
        for e, v in enumerate((19, 2, 3)):
            for rr in range(2):
                r.append(f"ds_read_b64_tr_b16 {vr(FX+4*e+2*rr,2)}, v{v} offset:{4*rr*RS}")
        return r
    def advA_pre():
        a(f"""
s_add_u32 s69, s66, {A_STAGE}
s_cmp_eq_u32 s69, {3*A_STAGE}
s_cselect_b32 s69, 0, s69
s_sub_u32 s68, s69, s66
s_mov_b32 s66, s69
""")
    def advB():
        a(f"""
s_add_u32 s69, s67, {B_SLOT}
s_cmp_eq_u32 s69, {5*B_SLOT}
s_cselect_b32 s69, 0, s69
s_sub_u32 s70, s69, s67
s_mov_b32 s67, s69
v_add_u32 v16, s70, v16
""")
    def mfma(b, i, j):
        d = vr(acc(i, j), 16)
        if kind == "V": return f"{MFMA} {d}, {vr(FA[b][i],4)}, {vr(FB[b][j],4)}, {d}"
        return f"{MFMA} {d}, {vr(FB[b][j],4)}, {vr(FA[b][i],4)}, {d}"
    a("s_waitcnt lgkmcnt(0)")
    srd(a, 8, 36, 37, 2048 * 640 * 2)
    if GU:
        a(f"""
s_cmp_ge_u32 s24, 4
s_cselect_b32 s12, s46, s44
s_cselect_b32 s13, s47, s45
s_mov_b32 s14, {640*1536*2}
s_mov_b32 s15, 0x00020000
""")
    else:
        srd(a, 12, 38, 39, 640 * 1920 * 2)
    for _ in range(2):
        if EVEN:
            for q in range(4): dmaB(q & 1); dmaA(q)
        else:
            dmaB(0); dmaB(1)
            for q in range(4): dmaA(q)
            dmaB(0); dmaB(1)
    srd(a, 16, 54, 55, WS_BYTES)
    srd(a, 20, 52, 53, 256)
    NH = UP if GU else 32
    a(f"""
v_bfe_u32 v26, v1, 2, 2
v_mul_u32_u24 v26, {RS}, v26
v_and_b32 v27, 3, v1
v_lshl_add_u32 v26, v27, 3, v26       ; (i>>2)*RS + 8*(i&3)
v_lshrrev_b32 v24, 5, v1
v_mul_u32_u24 v24, {GS}, v24
v_bfe_u32 v27, v1, 4, 1
v_mul_u32_u24 v27, {NH}, v27
v_add3_u32 v16, v24, v26, v27
""")
    if GU: a(f"s_mul_i32 s61, s81, 96\ns_add_u32 s61, s61, {B_RING}")
    else: a(f"s_mov_b32 s61, {B_RING}")
    a("v_add_u32 v16, s61, v16")
    for j in range(ACC, ACC + 16 * NA * NBF): a(f"v_mov_b32 v{j}, 0")
    a("s_waitcnt vmcnt(8) lgkmcnt(0)\ns_barrier")
    stamp(a, 1)
    for r in reads(0, 0, 0): a(r)
    advA_pre()
    a("v_add_u32 v6, s68, v6")
    def step(jj, dma=True, bar=True, vm=None, nxt=True, extra=None, xm_early=False, vm3=6):
        if vm is None: vm = VMB
        b = jj & 1; nb = b ^ 1
        if jj % 2 == 0 and bar: a(f"s_waitcnt vmcnt({vm})\ns_barrier")
        if extra: extra()
        if EVEN and jj == 3 and nxt: a(f"s_waitcnt vmcnt({vm3}) lgkmcnt(0)")
        else: a("s_waitcnt lgkmcnt(0)")
        rd = []
        if nxt:
            if jj % 2 == 1: advB()
            rd = reads(nb, (jj + 1) % 4, (jj + 1) % 2)
        dm = []
        if dma:
            dm = {0: [lambda: dmaB(0), lambda: dmaB(1), lambda: dmaA(0)], 1: [lambda: dmaA(1), lambda: dmaA(2), lambda: dmaA(3)],
                  2: [lambda: dmaB(0)], 3: [lambda: dmaB(1)]}[jj]
            if EVEN: dm = [lambda: dmaB(jj & 1), lambda: dmaA(jj)]
        ms = [mfma(b, i, j) for j in range(NBF) for i in range(NA)]
        xm = [f"{MF16} {vr(CSA,4)}, {vr(FX,4)}, v[20:23], {vr(CSA,4)}",
              f"{MF16} {vr(CSA+4,4)}, {vr(FX+8,4)}, v[20:23], {vr(CSA+4,4)}",
              f"{MF16} {vr(CSA,4)}, {vr(FX+4,4)}, v[20:23], {vr(CSA,4)}"]
        n = len(ms)
        nr = max(1, n - 2)
        pr = pd = 0
        for k, m in enumerate(ms):
            a(m)
            tr = min(len(rd), -(-len(rd) * (k + 1) // nr))
            while pr < tr:
                a(rd[pr]); pr += 1
                if pr == NA and nxt:
                    ja = (jj + 1) % 4
                    if ja == 0: advA_pre()
                    a(f"v_add_u32 v{6+ja}, s68, v{6+ja}")
            td = min(len(dm), (len(dm) * (k + 2)) // n)
            while pd < td: dm[pd](); pd += 1
    a("s_mov_b32 s34, 8")
    a(f"s_branch {L}_in")
    a(".p2align 6")
    a(f"{L}_loop:")
    a(f"s_waitcnt vmcnt({VMB})\ns_barrier")
    a(f"{L}_in:")
    step(0, bar=False); step(1); step(2); step(3)
    a(f"""
s_sub_u32 s34, s34, 1
s_cmp_lg_u32 s34, 0
s_cbranch_scc1 {L}_loop
""")
    stamp(a, 2)
    step(0, dma=False); step(1, dma=False); step(2, dma=False, vm=5 if EVEN else 2); step(3, dma=False, vm3=0)
    def poll_issue():
        a("buffer_load_dword v24, v5, s[20:23], 0 offen sc1")
    def poll_check():
        a(f"""
{L}_poll:
s_waitcnt vmcnt(0)
v_cmp_eq_u32 vcc, 0, v24
s_nop 4
s_cmp_eq_u64 vcc, 0
s_cbranch_scc1 {L}_pollok
s_sleep 2
buffer_load_dword v24, v5, s[20:23], 0 offen sc1
s_branch {L}_poll
{L}_pollok:
""")
        stamp(a, 3)
        if GU: a("s_lshl_b32 s76, s27, 8\ns_lshl_b32 s77, s80, 6\ns_add_u32 s76, s76, s77")
        else: a("s_mov_b32 s76, s29")
        a(f"""
v_and_b32 v25, 31, v1
v_add_u32 v26, s76, v25
v_lshlrev_b32 v26, 2, v26
s_mov_b32 s69, {MBO}
s_mov_b32 s70, {RIO}
""")
        for i in range(NA):
            a(f"buffer_load_dword v{28+i}, v26, s[16:19], s69 offen offset:{128*i} sc1")
        if kind == "V":
            a(f"""
v_lshrrev_b32 v27, 5, v1
v_lshlrev_b32 v27, 2, v27
v_add_u32 v27, s76, v27
v_lshlrev_b32 v27, 2, v27
""")
            for i in range(4):
                a(f"buffer_load_dwordx4 {vr(40+4*i,4)}, v27, s[16:19], s70 offen offset:{32*i} sc1")
        else:
            for i in range(NA):
                a(f"buffer_load_dword v{30+i}, v26, s[16:19], s70 offen offset:{128*i} sc1")
        if GU:
            a(f"""
v_and_b32 v27, 15, v1
v_bfe_u32 v32, v1, 4, 1
v_mul_u32_u24 v32, 1536, v32
v_add_u32 v27, v27, v32
v_lshlrev_b32 v27, 2, v27
s_mul_i32 s69, s28, {96*4}
s_mul_i32 s70, s81, {48*4}
s_add_u32 s69, s69, s70
s_add_u32 s69, s69, {CSO + 1920*4}
""")
            for kq in range(4):
                for j in range(3): a(f"buffer_load_dword v{CP+5*kq+j}, v27, s[16:19], s69 offen offset:{64*j} sc1")
                if kq < 3: a(f"s_add_u32 s69, s69, {4992*4}")
        else:
            a(f"""
v_lshlrev_b32 v32, 2, v25
s_mul_i32 s69, s28, {160*4}
s_add_u32 s69, s69, {CSO}
""")
            for kq in range(4):
                for j in range(5): a(f"buffer_load_dword v{CP+5*kq+j}, v32, s[16:19], s69 offen offset:{128*j} sc1")
                if kq < 3: a(f"s_add_u32 s69, s69, {4992*4}")
    def cs_publish():
        a(f"""
v_and_b32 v27, 15, v1
v_cmp_eq_u32 vcc, 0, v27
v_and_b32 v27, 48, v1
s_lshl_b32 s70, s24, 6
s_add_u32 s70, s70, {CS_OFF}
v_add_u32 v32, s70, v27
s_lshl_b32 s70, s73, 6
s_add_u32 s70, s70, {CS_OFF + 512}
v_add_u32 v33, s70, v27
s_and_saveexec_b64 s[74:75], vcc
ds_write_b128 v32, {vr(CSA,4)}
""")
        if not GU: a(f"s_cmp_ge_u32 s24, 4\ns_cbranch_scc1 {L}_nox")
        for r in range(4): a(f"ds_add_f32 v33, v{CSA+4+r} offset:{4*r}")
        if not GU: a(f"{L}_nox:")
        a("s_mov_b64 exec, -1\ns_waitcnt lgkmcnt(0)\ns_barrier")
        if GU:
            a(f"""
v_and_b32 v27, 15, v1
v_bfe_u32 v32, v1, 4, 1
v_mul_u32_u24 v32, 96, v32
v_add_u32 v27, v27, v32
s_mul_i32 s70, s81, 48
v_add_u32 v27, s70, v27
v_lshlrev_b32 v27, 2, v27
v_add_u32 v27, {CS_OFF}, v27
""")
            for j in range(3): a(f"ds_read_b32 v{34+j}, v27 offset:{64*j}")
        else:
            a(f"v_lshlrev_b32 v27, 2, v25\nv_add_u32 v27, {CS_OFF}, v27")
            for j in range(5): a(f"ds_read_b32 v{34+j}, v27 offset:{128*j}")
    step(0, dma=False, vm=0, extra=poll_issue, xm_early=True); step(1, dma=False, extra=poll_check, xm_early=True)
    step(2, dma=False, bar=False); step(3, dma=False, nxt=False, xm_early=True)
    stamp(a, 4)
    XC = FR
    WC = FR + 8
    a(f"""
s_waitcnt vmcnt(0)
s_mov_b32 s64, -1
s_mov_b32 s65, 0
""")
    for j in range(NBF):
        a(f"v_add_f32 v{34+j}, v{CP+j}, v{CP+5+j}\nv_add_f32 v{CP+10+j}, v{CP+10+j}, v{CP+15+j}\nv_add_f32 v{34+j}, v{34+j}, v{CP+10+j}")
    for i in range(NA):
        a(f"""
v_xor_b32 v24, 0x80000000, v{28+i}
v_lshrrev_b32 v25, 16, v24
v_or_b32 v26, v25, v24
v_cndmask_b32 v{XC+4*i}, 0, v26, s[64:65]
v_cndmask_b32 v{XC+4*i+1}, 0, v25, s[64:65]
v_mov_b32 v{XC+4*i+2}, 0
v_mov_b32 v{XC+4*i+3}, 0
""")
    WCr = [FX, FX + 4, FX + 8, WC, WC + 4]
    for j in range(NBF):
        w = WCr[j]; c = 34 + j
        a(f"""
v_and_b32 v24, 0xffff0000, v{c}
v_sub_f32 v25, v{c}, v24
v_and_b32 v26, 0xffff0000, v25
v_sub_f32 v25, v25, v26
v_lshrrev_b32 v24, 16, v24
v_or_b32 v{w}, v24, v26
v_lshrrev_b32 v{w+1}, 16, v25
v_mov_b32 v{w+2}, 0
v_mov_b32 v{w+3}, 0
""")
        if j == NBF - 1: a("s_nop 1")
        if j >= 1:
            for i in range(NA):
                d = vr(acc(i, j - 1), 16)
                if kind == "V": a(f"{MFMA} {d}, {vr(XC+4*i,4)}, {vr(WCr[j-1],4)}, {d}")
                else: a(f"{MFMA} {d}, {vr(WCr[j-1],4)}, {vr(XC+4*i,4)}, {d}")
    for i in range(NA):
        d = vr(acc(i, NBF - 1), 16)
        if kind == "V": a(f"{MFMA} {d}, {vr(XC+4*i,4)}, {vr(WCr[NBF-1],4)}, {d}")
        else: a(f"{MFMA} {d}, {vr(WCr[NBF-1],4)}, {vr(XC+4*i,4)}, {d}")
    a("s_lshr_b32 s69, s76, 5")
    PK = FR + 16 if False else 24
    if kind == "QK":
        a(f"""
s_cmp_lt_u32 s28, 4
s_cselect_b32 s70, {hex(f32bits(QSCALE))}, 1.0
v_mul_f32 v4, s70, v30
s_cselect_b32 s71, {QF}, {KF}
s_and_b32 s72, s28, 3
s_mul_i32 s72, s72, {8*81920}
s_add_u32 s71, s71, s72
s_mul_i32 s72, s69, 1280
s_add_u32 s71, s71, s72
v_lshlrev_b32 v2, 4, v1
v_and_b32 v3, 31, v1
v_lshlrev_b32 v3, 3, v3
v_lshrrev_b32 v5, 5, v1
s_mov_b32 s72, 81920
v_mul_lo_u32 v5, v5, s72
v_add3_u32 v3, v3, v5, 0
v_add_u32 v3, 1024, v3
""")
        for P in range(4):
            for i in range(20):
                r = ACC + 20 * P + i
                a(f"v_mul_f32 v{r}, v{r}, v4")
            for i in range(10):
                r = ACC + 20 * P + 2 * i
                a(f"v_cvt_pk_bf16_f32 v{PK+10*P+i}, v{r}, v{r+1}")
            a(f"buffer_store_dwordx4 {vr(PK+10*P,4)}, v2, s[16:19], s71 offen")
            a(f"buffer_store_dwordx2 {vr(PK+10*P+4,2)}, v3, s[16:19], s71 offen")
            a(f"s_add_u32 s71, s71, 81920")
            a(f"buffer_store_dwordx4 {vr(PK+10*P+6,4)}, v2, s[16:19], s71 offen")
            a(f"s_add_u32 s71, s71, 81920")
    elif kind == "V":
        PK = FR
        a(f"""
s_sub_u32 s72, s28, 8
s_mul_i32 s72, s72, {8*81920}
s_mul_i32 s71, s69, 1280
s_add_u32 s71, s71, s72
s_add_u32 s71, s71, {VF}
s_mov_b32 s72, 81920
v_and_b32 v2, 31, v1
v_lshrrev_b32 v3, 5, v1
v_mul_u32_u24 v3, 320, v3
""")
        for j in range(5):
            a(f"""
v_add_u32 v24, {32*j}, v2
v_mul_u32_u24 v25, 52429, v24
v_lshrrev_b32 v25, 20, v25
v_mul_u32_u24 v26, 20, v25
v_sub_u32 v26, v24, v26
v_mul_lo_u32 v25, v25, s72
v_lshl_add_u32 v25, v26, 4, v25
v_add_u32 v{28+j}, v25, v3
""")
        for j in range(5):
            for i in range(16):
                r = ACC + 16 * j + i
                a(f"v_mul_f32 v{r}, v{r}, v{40+i}")
            for i in range(8):
                r = ACC + 16 * j + 2 * i
                a(f"v_cvt_pk_bf16_f32 v{PK+8*j+i}, v{r}, v{r+1}")
            a(f"buffer_store_dwordx4 {vr(PK+8*j,4)}, v{28+j}, s[16:19], s71 offen")
            a(f"buffer_store_dwordx4 {vr(PK+8*j+4,4)}, v{28+j}, s[16:19], s71 offen offset:640")
    else:
        PK = 32
        a(f"""
v_mul_f32 v4, v30, v30
v_mul_f32 v5, v31, v31
s_lshl_b32 s71, s69, 1                  ; rowtile16
s_mul_i32 s71, s71, {68*1024}
s_mul_i32 s72, s28, {3*1024}
s_add_u32 s71, s71, s72
s_mul_i32 s72, s81, {3*512}
s_add_u32 s71, s71, s72
s_add_u32 s71, s71, {AF + 20*1024}
s_add_u32 s72, s71, {2*68*1024}
v_bfe_u32 v2, v1, 4, 1
v_mul_u32_u24 v2, {68*1024}, v2
v_and_b32 v3, 15, v1
v_lshl_add_u32 v2, v3, 4, v2
v_lshrrev_b32 v3, 5, v1
v_lshl_add_u32 v2, v3, 8, v2
s_nop 3
""")
        for j in range(3):
            for i in range(2):
                for r in range(8):
                    g = acc(i, j) + r; u = g + 8
                    a(f"v_max_f32 v{g}, 0, v{g}")
                    a(f"v_mul_f32 v{u}, v{u}, v{4+i}")
                    a(f"v_mul_f32 v{g}, v{g}, v{u}")
                for r in range(4):
                    a(f"v_cvt_pk_bf16_f32 v{PK+8*j+4*i+r}, v{acc(i,j)+2*r}, v{acc(i,j)+2*r+1}")
                a(f"buffer_store_dwordx4 {vr(PK+8*j+4*i,4)}, v2, s[16:19], s{71+i} offen offset:{j*512}")
    stamp_out(a, 5)
    a("s_endpgm")

def prep(a):
    X = 64; CX = 48
    a("LP:\ns_waitcnt lgkmcnt(0)")
    srd(a, 8, 36, 37, 2048 * 640 * 2)
    srd(a, 16, 54, 55, WS_BYTES)
    srd(a, 20, 52, 53, 256)
    a(f"""
s_lshl_b32 s27, s25, 2
s_add_u32 s27, s27, s26               ; p
s_cmp_ge_u32 s24, 5
s_cbranch_scc1 LP_st
s_mul_i32 s30, s27, 5
s_add_u32 s30, s30, s24               ; u
s_cmp_ge_u32 s30, 156
s_cbranch_scc1 LP_flag
s_lshr_b32 s31, s30, 2                ; b
s_and_b32 s30, s30, 3                 ; kq
s_cmp_lt_u32 s31, 27
s_cselect_b32 s12, s44, s46
s_cselect_b32 s13, s45, s47
s_cselect_b32 s56, 15, 27
s_mov_b32 s14, {640*1536*2}
s_mov_b32 s60, 3072
s_cmp_lt_u32 s31, 15
s_cselect_b32 s12, s38, s12
s_cselect_b32 s13, s39, s13
s_cselect_b32 s56, 0, s56
s_cselect_b32 s14, {640*1920*2}, s14
s_cselect_b32 s60, 3840, s60
s_mov_b32 s15, 0x00020000
s_sub_u32 s56, s31, s56
s_lshl_b32 s57, s56, 8
s_mul_i32 s61, s30, 160
v_lshrrev_b32 v6, 4, v1
v_add_u32 v6, s61, v6
v_mul_lo_u32 v6, v6, s60
v_and_b32 v7, 15, v1
v_lshl_add_u32 v6, v7, 4, v6
s_lshl_b32 s62, s60, 2
""")
    for t in range(40):
        a(f"buffer_load_dwordx4 {vr(CX+4*t,4)}, v6, s[12:15], s57 offen")
        a("s_add_u32 s57, s57, s62")
    a("s_mov_b32 s58, 0x00003f80\ns_mov_b32 s59, 0x3f800000")
    for i in range(8): a(f"v_mov_b32 v{16+i}, 0")
    for t in range(40):
        a(f"s_waitcnt vmcnt({39-t})")
        for i in range(4):
            a(f"v_dot2c_f32_bf16 v{16+2*i}, s58, v{CX+4*t+i}\nv_dot2c_f32_bf16 v{17+2*i}, s59, v{CX+4*t+i}")
    a("s_nop 2")
    for i in range(8): a(f"ds_swizzle_b32 v{24+i}, v{16+i} offset:0x401F")
    a("s_waitcnt lgkmcnt(0)")
    for i in range(8): a(f"v_add_f32 v{16+i}, v{16+i}, v{24+i}\nv_mov_b32 v{24+i}, v{16+i}")
    a("s_nop 1")
    for i in range(8): a(f"v_permlane32_swap_b32 v{16+i}, v{24+i}")
    a("s_nop 1")
    for i in range(8): a(f"v_add_f32 v{16+i}, v{16+i}, v{24+i}")
    a(f"""
s_mul_i32 s58, s30, {4992*4}
s_lshl_b32 s59, s31, 9
s_add_u32 s58, s58, s59
s_add_u32 s58, s58, {CSO}
v_lshlrev_b32 v7, 5, v7
s_mov_b64 exec, 0xffff
buffer_store_dwordx4 v[16:19], v7, s[16:19], s58 offen sc1
buffer_store_dwordx4 v[20:23], v7, s[16:19], s58 offen offset:16 sc1
s_mov_b64 exec, -1
s_branch LP_flag
LP_st:
s_cmp_eq_u32 s24, 7
s_cbranch_scc0 LP_st2
s_getpc_b64 s[56:57]
LPC_ref:
s_sub_u32 s12, s56, LPC_ref-k1_kernel
s_subb_u32 s13, s57, 0
s_mov_b32 s14, LCODE_END-k1_kernel
s_mov_b32 s15, 0x00020000
s_lshl_b32 s58, s26, 13
v_lshlrev_b32 v5, 4, v1
buffer_load_dwordx4 v[200:203], v5, s[12:15], s58 offen
buffer_load_dwordx4 v[200:203], v5, s[12:15], s58 offen offset:1024
buffer_load_dwordx4 v[200:203], v5, s[12:15], s58 offen offset:2048
buffer_load_dwordx4 v[200:203], v5, s[12:15], s58 offen offset:3072
s_add_u32 s58, s58, 4096
buffer_load_dwordx4 v[200:203], v5, s[12:15], s58 offen
buffer_load_dwordx4 v[200:203], v5, s[12:15], s58 offen offset:1024
buffer_load_dwordx4 v[200:203], v5, s[12:15], s58 offen offset:2048
buffer_load_dwordx4 v[200:203], v5, s[12:15], s58 offen offset:3072
s_branch LP_flag
LP_st2:
s_lshl_b32 s28, s27, 6
s_sub_u32 s29, s24, 5
s_lshl_b32 s29, s29, 5
s_add_u32 s28, s28, s29
v_lshrrev_b32 v2, 3, v1
v_add_u32 v2, s28, v2
v_mul_u32_u24 v3, 1280, v2
v_and_b32 v4, 7, v1
v_lshl_add_u32 v3, v4, 4, v3
s_mov_b32 s57, 0
""")
    for ps in range(4):
        for t in range(10):
            a(f"buffer_load_dwordx4 {vr(CX+40*ps+4*t,4)}, v3, s[8:11], s57 offen offset:{128*t}")
        a(f"s_add_u32 s57, s57, {8*1280}")
    a(f"""
s_mov_b32 s58, 0x3f803f80
v_lshlrev_b32 v2, 2, v2
v_cmp_eq_u32 vcc, 0, v4
s_mov_b32 s32, {MBO}
s_mov_b32 s33, {RIO}
s_mov_b64 s[34:35], vcc
""")
    for i in range(8): a(f"v_mov_b32 v{16+i}, 0")
    for ps in range(4):
        for t in range(10):
            a(f"s_waitcnt vmcnt({39-10*ps-t})")
            for i in range(4):
                r = CX + 40 * ps + 4 * t + i
                a(f"v_dot2c_f32_bf16 v{16+2*ps}, s58, v{r}\nv_dot2c_f32_bf16 v{17+2*ps}, v{r}, v{r}")
    a("s_nop 2")
    for m in (0x041F, 0x081F, 0x101F):
        for i in range(8): a(f"ds_swizzle_b32 v{24+i}, v{16+i} offset:{m}")
        a("s_waitcnt lgkmcnt(0)")
        for i in range(8): a(f"v_add_f32 v{16+i}, v{16+i}, v{24+i}")
    for ps in range(4):
        rinv_calc(a, 16 + 2 * ps, 17 + 2 * ps, 24 + ps, 28 + ps, 32)
    a("s_mov_b64 exec, s[34:35]")
    for ps in range(4):
        a(f"buffer_store_dword v{24+ps}, v2, s[16:19], s32 offen offset:{32*ps} sc1")
        a(f"buffer_store_dword v{28+ps}, v2, s[16:19], s33 offen offset:{32*ps} sc1")
    a("s_mov_b64 exec, -1\nLP_flag:")
    stamp(a, 1)
    a(f"""
s_cmp_eq_u32 s24, 7
s_cbranch_scc1 LP_nw
s_waitcnt vmcnt(0)
LP_nw:
s_barrier
s_cmp_lg_u32 s24, 0
s_cbranch_scc1 LP_tr
v_mov_b32 v12, 1
v_mov_b32 v13, s27
v_lshlrev_b32 v13, 2, v13
s_mov_b64 exec, 1
buffer_store_dword v12, v13, s[20:23], 0 offen sc1
s_mov_b64 exec, -1
LP_tr:
""")
    stamp(a, 2)
    a(f"""
s_lshl_b32 s56, s27, 3
s_add_u32 s56, s56, s24
s_mul_i32 s57, s24, 12288
v_lshrrev_b32 v6, 3, v1
v_mul_u32_u24 v6, 1280, v6
v_and_b32 v7, 7, v1
v_lshl_add_u32 v6, v7, 4, v6
v_add_u32 v7, {8*1280-1024}, v6
v_add_u32 v8, {16*1280-2048}, v6
v_add_u32 v9, {24*1280-3072}, v6
v_lshrrev_b32 v10, 5, v1
v_lshlrev_b32 v10, 4, v10
v_bfe_u32 v11, v1, 4, 1
v_lshl_add_u32 v10, v11, 2, v10
v_bfe_u32 v11, v1, 2, 2
v_add_u32 v10, v10, v11
v_lshlrev_b32 v10, 7, v10
v_and_b32 v11, 3, v1
v_lshl_add_u32 v10, v11, 3, v10
v_add_u32 v10, s57, v10
v_lshlrev_b32 v11, 4, v1
""")
    for t in range(3):
        a(f"""
s_min_u32 s60, s56, 679
s_mul_i32 s58, s60, 52429
s_lshr_b32 s58, s58, 19
s_mul_i32 s59, s58, 10
s_sub_u32 s59, s60, s59
s_cmp_lt_u32 s58, 20
s_cselect_b32 s12, s40, s48
s_cselect_b32 s13, s41, s49
s_mov_b32 s14, {1536*640*2}
s_cselect_b32 s14, {640*640*2}, s14
s_mov_b32 s15, 0x00020000
s_cselect_b32 s60, 0, 20
s_sub_u32 s60, s58, s60
s_mul_i32 s60, s60, {32*1280}
s_lshl_b32 s61, s59, 7
s_add_u32 s60, s60, s61
s_add_u32 m0, s57, {4096*t}
s_nop 0
buffer_load_dwordx4 v6, s[12:15], s60 offen lds
buffer_load_dwordx4 v7, s[12:15], s60 offen offset:1024 lds
buffer_load_dwordx4 v8, s[12:15], s60 offen offset:2048 lds
buffer_load_dwordx4 v9, s[12:15], s60 offen offset:3072 lds
s_mul_i32 s60, s58, {40*1024}
s_lshl_b32 s61, s59, 12
s_add_u32 s60, s60, s61
s_add_u32 s{64+t}, s60, {BF}
s_add_u32 s56, s56, 256
""")
    for t in range(3):
        a("s_waitcnt vmcnt(8)")
        for jt in range(4):
            for r in range(2):
                a(f"ds_read_b64_tr_b16 {vr(X+16*t+4*jt+2*r,2)}, v10 offset:{4096*t + jt*32 + r*8*128}")
        a("s_waitcnt lgkmcnt(0)")
        for jt in range(4):
            a(f"buffer_store_dwordx4 {vr(X+16*t+4*jt,4)}, v11, s[16:19], s{64+t} offen offset:{jt*1024} sc1")
    stamp_out(a, 5)
    a("s_endpgm")

def k1_kernel(a, name):
    kernel_header(a, name)
    a(f"""
s_cmp_ge_u32 s2, 256
s_cbranch_scc1 LK1_end
""")
    stamp(a, 0)
    a(f"""
s_load_dwordx16 s[36:51], s[0:1], 0
s_load_dwordx4 s[52:55], s[0:1], 64
v_and_b32 v1, 63, v0
v_lshrrev_b32 v2, 6, v0
s_and_b32 s25, s2, 7
v_readfirstlane_b32 s24, v2
s_lshr_b32 s26, s2, 3
s_and_b32 s80, s24, 3
s_lshr_b32 s81, s24, 2
""")
    a(f"""
s_cmp_lt_u32 s26, 4
s_cbranch_scc1 LP
s_sub_u32 s26, s26, 4
s_and_b32 s27, s25, 1
s_lshl_b32 s27, s27, 2
s_and_b32 s28, s26, 3
s_add_u32 s27, s27, s28               ; mblock
s_lshl_b32 s29, s27, 8
s_lshl_b32 s28, s24, 5
s_add_u32 s29, s29, s28
s_lshl_b32 s63, s24, 12
v_and_b32 v5, 31, v1
v_lshlrev_b32 v5, 2, v5
v_lshrrev_b32 v24, 3, v1
v_add_u32 v24, s29, v24
v_mul_u32_u24 v24, 1280, v24
v_lshrrev_b32 v25, 4, v1
v_and_b32 v26, 7, v1
v_xor_b32 v27, v26, v25
v_lshl_add_u32 v10, v27, 4, v24
v_xor_b32 v27, 4, v27
v_lshl_add_u32 v11, v27, 4, v24
v_add_u32 v12, {16*1280-2048}, v10
v_add_u32 v13, {24*1280-3072}, v11
v_add_u32 v11, {8*1280-1024}, v11
v_and_b32 v24, 31, v1
v_lshrrev_b32 v25, 5, v1
v_bfe_u32 v26, v24, 1, 3
v_xor_b32 v26, v26, v25
v_lshlrev_b32 v24, 7, v24
""")
    for j in range(4):
        a(f"v_xor_b32 v27, {2*j}, v26\nv_lshl_add_u32 v{6+j}, v27, 4, v24")
    a(f"""
s_lshr_b32 s26, s26, 2
s_lshr_b32 s56, s25, 1
s_cmp_lt_u32 s26, 3
s_cbranch_scc0 LK1_gu
s_mul_i32 s28, s56, 3
s_add_u32 s28, s28, s26
s_cmp_lt_u32 s28, 8
s_cbranch_scc1 LGQK
s_branch LGV
LK1_gu:
s_lshl_b32 s28, s56, 2
s_add_u32 s28, s28, s26
s_sub_u32 s28, s28, 3
s_branch LGGU
LK1_end:
s_endpgm
""")
    gemm(a, "QK"); gemm(a, "V"); gemm(a, "GU")
    prep(a)

if __name__ == "__main__":
    import sys
    PROF = len(sys.argv) > 1
    VAR = sys.argv[1] if PROF else ""
    a = Asm()
    hdr = f"; @launch kernel=k1_kernel grid=(256,1,1) block=(512,1,1) lds={K1_LDS}\n"
    a('.amdgcn_target "amdgcn-amd-amdhsa--gfx950"\n.text')
    k1_kernel(a, "k1_kernel")
    a("LCODE_END:")
    txt = hdr + a.text() + '.section .rodata,"a"\n' + kernel_desc("k1_kernel", K1_VGPR, 100)
    open("k1_only.s", "w").write(txt)
```

```python
from asmlib import *
MFMA = "v_mfma_f32_32x32x16_bf16"
MF16 = "v_mfma_f32_16x16x32_bf16"
QA, QAT, QB, QBT = 8, 12, 16, 20
SA, SB = 24, 40
PA, PB = 56, 64
OA, OB = 72, 88
KB, VB, NB = 104, 136, 4
MA, MB = 0, 2
K2_VGPR = 168
K2_LDS = 53248
PROF = False
VAR = ''
DBGOUT = False
KPERM = "v2"

def prof_out(a, base, srd, wave_s, regs):
    a("s_waitcnt vmcnt(0) lgkmcnt(0)")
    a(f"s_memrealtime s[{regs[-1]}:{regs[-1]+1}]")
    a("s_waitcnt lgkmcnt(0)")
    for k in range(4):
        a(f"v_mov_b32 v{8+k}, s{regs[min(k, len(regs)-1)]}")
    a(f"""
s_lshl_b32 s34, s2, 2
s_add_u32 s34, s34, s{wave_s}
s_lshl_b32 s34, s34, 4
s_add_u32 s34, s34, {base}
v_mov_b32 v16, 0
s_mov_b64 exec, 1
buffer_store_dwordx4 v[8:11], v16, s[{srd}:{srd+3}], s34 offen
""")

def attn(a):
    T = PA
    a(f"""
LA:
s_and_b32 s21, s3, 7
s_lshl_b32 s21, s21, 2
s_lshr_b32 s22, s3, 3
s_and_b32 s23, s22, 3
s_add_u32 s21, s21, s23              ; head
s_lshr_b32 s22, s3, 5                ; qblock
s_and_b32 s23, s20, 1
s_lshl_b32 s24, s16, 1
s_add_u32 s23, s23, s24              ; qsub
s_lshr_b32 s24, s20, 1               ; khalf
s_mul_i32 s25, s21, {64*1280}
s_lshl_b32 s26, s22, 3
s_lshl_b32 s27, s23, 1
s_add_u32 s26, s26, s27              ; qtile a
s_mul_i32 s27, s26, 1280
s_add_u32 s27, s27, s25
s_mul_i32 s28, s24, {32*1280}
s_add_u32 s28, s28, s25
s_add_u32 s29, s28, {VF}
s_add_u32 s28, s28, {KF}
v_lshlrev_b32 v3, 4, v1
v_and_b32 v4, 31, v1
v_lshrrev_b32 v5, 5, v1
v_lshlrev_b32 v6, 3, v4
v_lshl_add_u32 v6, v5, 2, v6
v_add_u32 v6, 1024, v6
v_mul_u32_u24 v7, 320, v5
v_lshl_add_u32 v7, v4, 4, v7
buffer_load_dwordx4 {vr(QA,4)}, v3, s[8:11], s27 offen
buffer_load_dword {vr(QAT)}, v6, s[8:11], s27 offen
buffer_load_dwordx4 {vr(QB,4)}, v3, s[8:11], s27 offen offset:1280
buffer_load_dword {vr(QBT)}, v6, s[8:11], s27 offen offset:1280
s_mov_b32 s30, 0
s_mov_b32 s12, 0x000FFFFF
s_mov_b32 s13, 0x000FFFFF
s_mov_b32 s14, 0xFFFFFFFF
s_mov_b32 s15, 0
""")
    def rowmax(S, M, init):
        if init:
            a(f"v_max3_f32 {vr(M)}, {vr(S)}, {vr(S+1)}, {vr(S+2)}")
            a(f"v_max_f32 {vr(M)}, {vr(M)}, {vr(S+3)}")
            st = 4
        else: st = 0
        for j in range(st, 16, 2):
            a(f"v_max3_f32 {vr(M)}, {vr(M)}, {vr(S+j)}, {vr(S+j+1)}")
    def qk(S, Qm, Qt, kb):
        a(f"{MFMA} {vr(S,16)}, {vr(KB+8*kb,4)}, {vr(Qm,4)}, 0")
        a(f"{MFMA} {vr(S,16)}, {vr(KB+8*kb+4,4)}, {vr(Qt,4)}, {vr(S,16)}")
    def loadK(kb, soff, imm=0):
        a(f"buffer_load_dwordx4 {vr(KB+8*kb,4)}, v3, s[8:11], {soff} offen offset:{imm}")
        a(f"buffer_load_dword {vr(KB+8*kb+4)}, v6, s[8:11], {soff} offen offset:{imm}")
    def loadV(vb, soff, imm=0):
        a("s_mov_b64 exec, s[12:13]")
        a(f"buffer_load_dwordx4 {vr(VB+8*vb,4)}, v7, s[8:11], {soff} offen offset:{imm}")
        a(f"buffer_load_dwordx4 {vr(VB+8*vb+4,4)}, v7, s[8:11], {soff} offen offset:{imm+640}")
        a("s_mov_b64 exec, -1")
    a("s_branch LA_pro")
    a("LA_restart:")
    for q in (QAT, QBT):
        for j in (1, 2): a(f"v_mov_b32 {vr(q+j)}, 0")
    a(f"""
v_mov_b32 {vr(MA)}, 0xff800000
v_mov_b32 {vr(MB)}, 0xff800000
s_mov_b32 s31, s28
s_mov_b32 s32, 32
LA_maxloop:
""")
    loadK(0, "s31")
    a("s_waitcnt vmcnt(0)")
    qk(SA, QA, QAT, 0); qk(SB, QB, QBT, 0)
    a("s_nop 15\ns_nop 3")
    rowmax(SA, MA, False); rowmax(SB, MB, False)
    a(f"""
s_add_u32 s31, s31, 1280
s_sub_u32 s32, s32, 1
s_cmp_lg_u32 s32, 0
s_cbranch_scc1 LA_maxloop
LA_pro:
""")
    loadK(0, "s28", 0)
    loadK(1, "s28", 1280)
    a(f"""
v_mov_b32 {vr(T)}, 0x3f803f80
v_cmp_eq_u32 vcc, 20, v4
v_cndmask_b32 {vr(T+2)}, 0, {vr(T)}, s[14:15]
s_nop 0
v_cndmask_b32 {vr(T+1)}, 0, {vr(T)}, vcc
""")
    for j in range(8): a(f"v_mov_b32 {vr(VB+j)}, {vr(T+1)}")
    loadV(0, "s29", 0)
    loadK(2, "s28", 2560)
    for j in range(8): a(f"v_mov_b32 {vr(VB+8+j)}, {vr(T+1)}")
    loadV(1, "s29", 1280)
    a(f"s_add_u32 s31, s28, {3*1280}")
    loadK(3, "s31", 0)
    for j in range(8): a(f"v_mov_b32 {vr(VB+16+j)}, {vr(T+1)}")
    loadV(2, "s29", 2560)
    for j in range(8): a(f"v_mov_b32 {vr(VB+24+j)}, {vr(T+1)}")
    for i in range(NB):
        a(f"v_mov_b32 {vr(KB+8*i+5)}, {vr(T+2)}")
        a(f"v_mov_b32 {vr(KB+8*i+6)}, {vr(T+2)}")
        a(f"v_mov_b32 {vr(KB+8*i+7)}, 0")
    for j in range(16):
        a(f"v_mov_b32 {vr(OA+j)}, 0")
        a(f"v_mov_b32 {vr(OB+j)}, 0")
    for j in range(8): a(f"v_mov_b32 {vr(PB+j)}, 0")
    a(f"""
s_cmp_lg_u32 s30, 0
s_cbranch_scc1 LA_setm0
""")
    for q in (QAT, QBT):
        for j in (1, 2, 3): a(f"v_mov_b32 {vr(q+j)}, 0")
    a("s_waitcnt vmcnt(12)")
    qk(SA, QA, QAT, 0); qk(SB, QB, QBT, 0)
    a("s_nop 11")
    rowmax(SA, MA, True); rowmax(SB, MB, True)
    a("LA_setm0:\ns_waitcnt vmcnt(12)")
    for (M, QT) in ((MA, QAT), (MB, QBT)):
        t, u, w = T, T+1, T+2
        a(f"""
v_mov_b32 {vr(t)}, {vr(M)}
v_mov_b32 {vr(u)}, {vr(M)}
s_nop 1
v_permlane32_swap_b32 {vr(t)}, {vr(u)}
s_nop 1
v_max_f32 {vr(M)}, {vr(t)}, {vr(u)}
v_sub_f32 {vr(t)}, 0, {vr(M)}
v_and_b32 {vr(u)}, 0xffff0000, {vr(t)}
v_sub_f32 {vr(t)}, {vr(t)}, {vr(u)}
v_and_b32 {vr(w)}, 0xffff0000, {vr(t)}
v_sub_f32 {vr(t)}, {vr(t)}, {vr(w)}
v_lshrrev_b32 {vr(u)}, 16, {vr(u)}
v_or_b32 {vr(u)}, {vr(u)}, {vr(w)}
v_lshrrev_b32 {vr(t)}, 16, {vr(t)}
v_cndmask_b32 {vr(QT+1)}, 0, {vr(u)}, s[14:15]
v_cndmask_b32 {vr(QT+2)}, 0, {vr(t)}, s[14:15]
""")
        if M == MA:
            a("s_nop 1")
            qk(SA, QA, QAT, 0)
    a(f"""
s_add_u32 s31, s28, {4*1280}
s_add_u32 s33, s29, {3*1280}
s_mov_b32 s32, 8
""")
    if PROF: a("s_memrealtime s[42:43]")
    a(".p2align 6\nLA_loop:")
    def phase(Sx, Px, Sy, Py, Oy, Qy, Qyt, kb, vb, mid=None, post=None, pre=None):
        e = lambda j: a(f"v_exp_f32 {vr(Sx+j)}, {vr(Sx+j)}")
        c = lambda j: a(f"v_cvt_pk_bf16_f32 {vr(Px+j)}, {vr(Sx+2*j)}, {vr(Sx+2*j+1)}")
        if pre: pre()
        a(f"{MFMA} {vr(Sy,16)}, {vr(KB+8*kb,4)}, {vr(Qy,4)}, 0")
        e(0); e(1); e(2); e(3)
        a(f"{MFMA} {vr(Sy,16)}, {vr(KB+8*kb+4,4)}, {vr(Qyt,4)}, {vr(Sy,16)}")
        if mid: mid()
        c(0); c(1); e(4); e(5); e(6); e(7)
        a(f"{MFMA} {vr(Oy,16)}, {vr(VB+8*vb,4)}, {vr(Py,4)}, {vr(Oy,16)}")
        c(2); c(3); e(8); e(9); e(10); e(11)
        a(f"{MFMA} {vr(Oy,16)}, {vr(VB+8*vb+4,4)}, {vr(Py+4,4)}, {vr(Oy,16)}")
        if post: post()
        c(4); c(5); e(12); e(13); e(14); e(15); c(6); c(7)
    for u in range(NB):
        def mid(u=u):
            loadK(u, "s31"); a("s_add_u32 s31, s31, 1280")
        def post(u=u):
            loadV((u+3) % NB, "s33"); a("s_add_u32 s33, s33, 1280")
        phase(SA, PA, SB, PB, OB, QB, QBT, u, (u+3) % NB, mid, post)
        phase(SB, PB, SA, PA, OA, QA, QAT, (u+1) % NB, u, pre=lambda: a("s_waitcnt vmcnt(12)"))
    a(f"""
s_sub_u32 s32, s32, 1
s_cmp_lg_u32 s32, 0
s_cbranch_scc1 LA_loop
{MFMA} {vr(OB,16)}, {vr(VB+8*3,4)}, {vr(PB,4)}, {vr(OB,16)}
{MFMA} {vr(OB,16)}, {vr(VB+8*3+4,4)}, {vr(PB+4,4)}, {vr(OB,16)}
""")
    if PROF: a("s_memrealtime s[44:45]")
    t, t1 = PA, PA + 1
    a(f"""
v_lshlrev_b32 {vr(PA+2)}, 4, v1
s_lshl_b32 s34, s20, 12
v_add_u32 {vr(PA+3)}, s34, {vr(PA+2)}
s_xor_b32 s35, s20, 2
s_lshl_b32 s35, s35, 12
v_add_u32 {vr(PA+4)}, s35, {vr(PA+2)}
v_mov_b32 {vr(t1)}, 0x71800000
v_add_f32 {vr(t)}, abs({vr(OA)}), abs({vr(OA+1)})
""")
    for j in range(2, 12): a(f"v_add_f32 {vr(t)}, {vr(t)}, abs({vr(OA+j)})")
    for j in range(12): a(f"v_add_f32 {vr(t)}, {vr(t)}, abs({vr(OB+j)})")
    a(f"""
v_cmp_nlt_f32 vcc, {vr(t)}, {vr(t1)}
s_cmp_lg_u32 s30, 0
s_cbranch_scc1 LA_comb
s_nop 2
s_cmp_eq_u64 vcc, 0
s_cbranch_scc1 LA_comb
s_mov_b32 s30, 1
s_waitcnt vmcnt(0)
s_branch LA_restart
LA_comb:
s_cmp_eq_u32 s24, 0
s_cbranch_scc1 LA_c0
""")
    w_, r_ = PA + 3, PA + 4
    for j in range(3): a(f"ds_write_b128 {vr(w_)}, {vr(OA+4*j,4)} offset:{j*1024}")
    a(f"ds_write_b32 {vr(w_)}, {vr(MA)} offset:3072")
    for j in range(12): a(f"v_mov_b32 {vr(OA+j)}, {vr(OB+j)}")
    a(f"v_mov_b32 {vr(MA)}, {vr(MB)}")
    a("s_add_u32 s26, s26, 1\ns_branch LA_c1\nLA_c0:")
    for j in range(3): a(f"ds_write_b128 {vr(w_)}, {vr(OB+4*j,4)} offset:{j*1024}")
    a(f"ds_write_b32 {vr(w_)}, {vr(MB)} offset:3072")
    a("LA_c1:\ns_waitcnt lgkmcnt(0)\ns_barrier")
    X = SB
    for j in range(3): a(f"ds_read_b128 {vr(X+4*j,4)}, {vr(r_)} offset:{j*1024}")
    a(f"ds_read_b32 {vr(MB)}, {vr(r_)} offset:3072")
    g_, kbv, g8 = PB, PB + 1, PB + 2
    ad = [PB + 3, PB + 4, PB + 5]
    a(f"""
s_lshl_b32 s34, s26, 1
s_mul_i32 s34, s34, {68*1024}
s_add_u32 s34, s34, {AF}
v_bfe_u32 {vr(t)}, v1, 4, 1
v_mul_u32_u24 {vr(t)}, {68*1024}, {vr(t)}
v_and_b32 {vr(t1)}, 15, v1
v_lshl_add_u32 {vr(t)}, {vr(t1)}, 4, {vr(t)}
s_mul_i32 s35, s21, 5
v_add_u32 {vr(g_)}, s35, v5
""")
    for i in range(3):
        a(f"""
v_lshrrev_b32 {vr(kbv)}, 3, {vr(g_)}
v_lshl_add_u32 {vr(ad[i])}, {vr(kbv)}, 10, {vr(t)}
""")
        if KPERM == "v2":
            a(f"""
v_and_b32 {vr(g8)}, 3, {vr(g_)}
v_lshl_add_u32 {vr(ad[i])}, {vr(g8)}, 8, {vr(ad[i])}
v_bfe_u32 {vr(g8)}, {vr(g_)}, 2, 1
v_lshl_add_u32 {vr(ad[i])}, {vr(g8)}, 3, {vr(ad[i])}
""")
        else:
            a(f"""
v_bfe_u32 {vr(g8)}, {vr(g_)}, 2, 1
v_lshl_add_u32 {vr(ad[i])}, {vr(g8)}, 9, {vr(ad[i])}
v_and_b32 {vr(g8)}, 1, {vr(g_)}
v_lshl_add_u32 {vr(ad[i])}, {vr(g8)}, 8, {vr(ad[i])}
v_bfe_u32 {vr(g8)}, {vr(g_)}, 1, 1
v_lshl_add_u32 {vr(ad[i])}, {vr(g8)}, 3, {vr(ad[i])}
""")
        if i < 2: a(f"v_add_u32 {vr(g_)}, 2, {vr(g_)}")
    m, f1, f2, l, l2 = PA + 2, PA + 3, PA + 5, PA + 6, PA + 7
    a(f"""
s_waitcnt lgkmcnt(0)
v_max_f32 {vr(m)}, {vr(MA)}, {vr(MB)}
v_sub_f32 {vr(f1)}, {vr(MA)}, {vr(m)}
v_sub_f32 {vr(f2)}, {vr(MB)}, {vr(m)}
v_exp_f32 {vr(f1)}, {vr(f1)}
v_exp_f32 {vr(f2)}, {vr(f2)}
s_nop 0
v_mul_f32 {vr(l)}, {vr(OA+8)}, {vr(f1)}
v_fmac_f32 {vr(l)}, {vr(X+8)}, {vr(f2)}
v_mov_b32 {vr(l2)}, {vr(l)}
s_nop 1
v_permlane32_swap_b32 {vr(l)}, {vr(l2)}
s_nop 1
v_rcp_f32 {vr(l2)}, {vr(l2)}
s_nop 0
v_mul_f32 {vr(f1)}, {vr(f1)}, {vr(l2)}
v_mul_f32 {vr(f2)}, {vr(f2)}, {vr(l2)}
""")
    for i in range(3):
        for j in range(4 * i, 4 * i + 4):
            a(f"v_mul_f32 {vr(OA+j)}, {vr(OA+j)}, {vr(f1)}")
            a(f"v_fmac_f32 {vr(OA+j)}, {vr(X+j)}, {vr(f2)}")
        for j in range(2):
            a(f"v_cvt_pk_bf16_f32 {vr(OB+2*i+j)}, {vr(OA+4*i+2*j)}, {vr(OA+4*i+2*j+1)}")
        if i == 2: a("s_mov_b64 exec, s[14:15]")
        a(f"buffer_store_dwordx2 {vr(OB+2*i,2)}, {vr(ad[i])}, s[8:11], s34 offen")
    if PROF:
        a("s_mov_b64 exec, -1")
        prof_out(a, 0x3100000, 8, 20, [40, 42, 44, 46])
    a("s_endpgm")


Q3 = [8, 16, 24, 32]
S3 = [40, 56]
O3 = [72, 88, 104, 120]
K3B, V3B = 136, 152
LDS_M = 49152
def attn3(a):
    a(f"""
LA:
s_and_b32 s21, s3, 7
s_lshl_b32 s21, s21, 2
s_lshr_b32 s22, s3, 3
s_and_b32 s23, s22, 3
s_add_u32 s21, s21, s23              ; head
s_lshr_b32 s22, s3, 5                ; qblock
s_mul_i32 s25, s21, {64*1280}
s_lshl_b32 s26, s22, 3
s_lshl_b32 s27, s16, 2
s_add_u32 s26, s26, s27
s_mul_i32 s27, s26, 1280
s_add_u32 s27, s27, s25
s_mul_i32 s28, s20, {16*1280}
s_add_u32 s28, s28, s25
s_add_u32 s29, s28, {VF}
s_add_u32 s28, s28, {KF}
v_lshlrev_b32 v3, 4, v1
v_and_b32 v4, 31, v1
v_lshrrev_b32 v5, 5, v1
v_lshlrev_b32 v6, 3, v4
v_lshl_add_u32 v6, v5, 2, v6
v_add_u32 v6, 1024, v6
v_mul_u32_u24 v7, 320, v5
v_lshl_add_u32 v7, v4, 4, v7
s_mov_b32 s30, 0
s_mov_b32 s12, 0x000FFFFF
s_mov_b32 s13, 0x000FFFFF
s_mov_b32 s14, 0xFFFFFFFF
s_mov_b32 s15, 0
s_add_u32 s36, s27, 2560
s_mov_b32 s37, 0xbc000000
s_waitcnt lgkmcnt(0)
""")
    srd(a, 8, 4, 5, WS_BYTES)
    def loadK(kb, soff, imm=0):
        a(f"buffer_load_dwordx4 {vr(K3B+8*kb,4)}, v3, s[8:11], {soff} offen offset:{imm}")
        a(f"buffer_load_dword {vr(K3B+8*kb+4)}, v6, s[8:11], {soff} offen offset:{imm}")
    def loadV(vb, soff, imm=0):
        a("s_mov_b64 exec, s[12:13]")
        a(f"buffer_load_dwordx4 {vr(V3B+8*vb,4)}, v7, s[8:11], {soff} offen offset:{imm}")
        a(f"buffer_load_dwordx4 {vr(V3B+8*vb+4,4)}, v7, s[8:11], {soff} offen offset:{imm+640}")
        a("s_mov_b64 exec, -1")
    def qk(S, q, kb):
        a(f"{MFMA} {vr(S,16)}, {vr(K3B+8*kb,4)}, {vr(Q3[q],4)}, 0")
        a(f"{MFMA} {vr(S,16)}, {vr(K3B+8*kb+4,4)}, {vr(Q3[q]+4,4)}, {vr(S,16)}")
    def rowmax(S, M, init):
        if init:
            a(f"v_max3_f32 {vr(M)}, {vr(S)}, {vr(S+1)}, {vr(S+2)}")
            a(f"v_max_f32 {vr(M)}, {vr(M)}, {vr(S+3)}")
            st = 4
        else: st = 0
        for j in range(st, 16, 2):
            a(f"v_max3_f32 {vr(M)}, {vr(M)}, {vr(S+j)}, {vr(S+j+1)}")
    for q in range(4):
        so = "s27" if q < 2 else "s36"
        a(f"buffer_load_dwordx4 {vr(Q3[q],4)}, v3, s[8:11], {so} offen offset:{1280*(q&1)}")
        a(f"buffer_load_dword {vr(Q3[q]+4)}, v6, s[8:11], {so} offen offset:{1280*(q&1)}")
    MX = [S3[0] + 0, S3[0] + 1, S3[0] + 2, S3[0] + 3]
    T = S3[0] + 4
    a("s_branch LA_pro")
    a("LA_restart:")
    for q in range(4):
        for j in (5, 6): a(f"v_mov_b32 {vr(Q3[q]+j)}, 0")
        a(f"v_mov_b32 {vr(MX[q])}, 0xff800000")
    a("s_mov_b32 s31, s28\ns_mov_b32 s32, 16\nLA_maxloop:")
    loadK(0, "s31")
    a("s_waitcnt vmcnt(0)")
    for q in range(4): qk(O3[q], q, 0)
    a("s_nop 15\ns_nop 3")
    for q in range(4): rowmax(O3[q], MX[q], False)
    a(f"""
s_add_u32 s31, s31, 1280
s_sub_u32 s32, s32, 1
s_cmp_lg_u32 s32, 0
s_cbranch_scc1 LA_maxloop
LA_pro:
""")
    loadK(0, "s28", 0)
    a(f"""
v_mov_b32 {vr(T)}, 0x3f803f80
v_cmp_eq_u32 vcc, 20, v4
v_cndmask_b32 {vr(T+2)}, 0, {vr(T)}, s[14:15]
s_nop 0
v_cndmask_b32 {vr(T+1)}, 0, {vr(T)}, vcc
""")
    for j in range(8): a(f"v_mov_b32 {vr(V3B+j)}, {vr(T+1)}")
    loadV(0, "s29", 0)
    loadK(1, "s28", 1280)
    for j in range(8): a(f"v_mov_b32 {vr(V3B+8+j)}, {vr(T+1)}")
    for i in range(2):
        a(f"v_mov_b32 {vr(K3B+8*i+5)}, {vr(T+2)}\nv_mov_b32 {vr(K3B+8*i+6)}, {vr(T+2)}\nv_mov_b32 {vr(K3B+8*i+7)}, 0")
    for j in range(8): a(f"v_mov_b32 {vr(S3[1]+j)}, 0")
    a(f"""
v_lshlrev_b32 v0, 2, v1
s_lshl_b32 s34, s20, 10
s_add_u32 s34, s34, {LDS_M}
v_add_u32 v0, s34, v0
s_cmp_lg_u32 s30, 0
s_cbranch_scc1 LA_setm0
""")
    for q in range(4):
        for j in (5, 6, 7): a(f"v_mov_b32 {vr(Q3[q]+j)}, 0")
    a("s_waitcnt vmcnt(4)")
    for q in range(4): qk(O3[q], q, 0)
    a("s_nop 5")
    for q in range(4): rowmax(O3[q], MX[q], True)
    for q in range(4):
        M = MX[q]; QT = Q3[q] + 4
        a(f"""
v_fma_f32 {vr(M)}, abs({vr(M)}), s37, {vr(M)}
v_and_b32 {vr(M)}, 0xffff0000, {vr(M)}
ds_write_b32 v0, {vr(M)} offset:{256*q}
v_xor_b32 {vr(T+q)}, 0x80000000, {vr(M)}
v_cndmask_b32 {vr(QT+1)}, 0, {vr(T+q)}, s[14:15]
""")
    a("s_branch LA_go")
    a("LA_setm0:\ns_waitcnt vmcnt(4)")
    for q in range(4):
        M = MX[q]; QT = Q3[q] + 4
        t, u, w = T, T + 1, T + 2
        a(f"""
v_mov_b32 {vr(t)}, {vr(M)}
v_mov_b32 {vr(u)}, {vr(M)}
s_nop 1
v_permlane32_swap_b32 {vr(t)}, {vr(u)}
s_nop 1
v_max_f32 {vr(M)}, {vr(t)}, {vr(u)}
v_sub_f32 {vr(t)}, 0, {vr(M)}
ds_write_b32 v0, {vr(M)} offset:{256*q}
v_and_b32 {vr(u)}, 0xffff0000, {vr(t)}
v_sub_f32 {vr(t)}, {vr(t)}, {vr(u)}
v_and_b32 {vr(w)}, 0xffff0000, {vr(t)}
v_sub_f32 {vr(t)}, {vr(t)}, {vr(w)}
v_lshrrev_b32 {vr(u)}, 16, {vr(u)}
v_or_b32 {vr(u)}, {vr(u)}, {vr(w)}
v_lshrrev_b32 {vr(t)}, 16, {vr(t)}
v_cndmask_b32 {vr(QT+1)}, 0, {vr(u)}, s[14:15]
v_cndmask_b32 {vr(QT+2)}, 0, {vr(t)}, s[14:15]
""")
    a("LA_go:\ns_waitcnt lgkmcnt(0)")
    qk(S3[0], 0, 0)
    for q in range(4):
        a(f"{MFMA} {vr(O3[q],16)}, {vr(S3[1],4)}, {vr(S3[1],4)}, 0")
    a("s_nop 4")
    a(f"""
s_add_u32 s31, s28, {2*1280}
s_add_u32 s33, s29, {1*1280}
s_mov_b32 s32, 8
""")
    if PROF: a("s_memrealtime s[42:43]")
    a(".p2align 6\nLA_loop:")
    def phase(Sx, Sy, Op, vb, qn, kb, pre=None, aft2=None, aft4=None):
        e = lambda j: a(f"v_exp_f32 {vr(Sx+j)}, {vr(Sx+j)}")
        c = lambda j: a(f"v_cvt_pk_bf16_f32 {vr(Sx+j)}, {vr(Sx+2*j)}, {vr(Sx+2*j+1)}")
        if pre: pre()
        a(f"{MFMA} {vr(Op,16)}, {vr(V3B+8*vb,4)}, {vr(Sy,4)}, {vr(Op,16)}")
        e(0); e(1); e(2)
        a(f"{MFMA} {vr(Op,16)}, {vr(V3B+8*vb+4,4)}, {vr(Sy+4,4)}, {vr(Op,16)}")
        if aft2: aft2()
        e(3); c(0); e(4); e(5)
        a(f"{MFMA} {vr(Sy,16)}, {vr(K3B+8*kb,4)}, {vr(Q3[qn],4)}, 0")
        c(1); e(6); e(7); e(8)
        a(f"{MFMA} {vr(Sy,16)}, {vr(K3B+8*kb+4,4)}, {vr(Q3[qn]+4,4)}, {vr(Sy,16)}")
        if aft4: aft4()
        c(2); c(3); e(9); e(10); e(11); c(4); e(12); e(13); c(5); e(14); e(15); c(6); c(7)
    w4 = lambda: a("s_waitcnt vmcnt(4)")
    for u in range(2):
        def lv(u=u):
            loadV((u + 1) % 2, "s33"); a("s_add_u32 s33, s33, 1280")
        def lk(u=u):
            loadK(u, "s31"); a("s_add_u32 s31, s31, 1280")
        phase(S3[0], S3[1], O3[3], (u + 1) % 2, 1, u, aft2=lv)
        phase(S3[1], S3[0], O3[0], u, 2, u, pre=w4)
        phase(S3[0], S3[1], O3[1], u, 3, u, aft4=lk)
        phase(S3[1], S3[0], O3[2], u, 0, (u + 1) % 2, pre=w4)
    a(f"""
s_sub_u32 s32, s32, 1
s_cmp_lg_u32 s32, 0
s_cbranch_scc1 LA_loop
{MFMA} {vr(O3[3],16)}, {vr(V3B+8,4)}, {vr(S3[1],4)}, {vr(O3[3],16)}
{MFMA} {vr(O3[3],16)}, {vr(V3B+12,4)}, {vr(S3[1]+4,4)}, {vr(O3[3],16)}
""")
    if PROF: a("s_memrealtime s[44:45]")
    t, t1, t2, t3 = S3[1] + 8, S3[1] + 9, S3[1] + 10, S3[1] + 11
    a(f"""
s_mul_i32 s34, s20, 3072
v_add_u32 {vr(t)}, s34, v3
v_mov_b32 {vr(t1)}, 0x71800000
""")
    for q in range(4):
        for j in range(3): a(f"ds_write_b128 {vr(t)}, {vr(O3[q]+4*j,4)} offset:{q*12288 + j*1024}")
        acc_ = (t2, t3)
        for j in range(0, 12):
            r = acc_[j & 1]
            if q == 0 and j < 2: a(f"v_and_b32 {vr(r)}, 0x7fffffff, {vr(O3[q]+j)}")
            else: a(f"v_add_f32 {vr(r)}, {vr(r)}, abs({vr(O3[q]+j)})")
    a(f"""
v_add_f32 {vr(t2)}, {vr(t2)}, {vr(t3)}
v_cmp_nlt_f32 vcc, {vr(t2)}, {vr(t1)}
s_cmp_lg_u32 s30, 0
s_cbranch_scc1 LA_comb
s_nop 2
s_cmp_eq_u64 vcc, 0
s_cbranch_scc1 LA_comb
s_mov_b32 s30, 1
s_waitcnt vmcnt(0) lgkmcnt(0)
s_branch LA_restart
LA_comb:
""")
    a(f"""
s_mul_i32 s34, s20, 12288
v_add_u32 {vr(t)}, s34, v3
v_lshlrev_b32 {vr(t1)}, 2, v4
s_lshl_b32 s34, s20, 8
s_add_u32 s34, s34, {LDS_M}
v_add_u32 {vr(t1)}, s34, {vr(t1)}
s_add_u32 s26, s26, s20
s_waitcnt lgkmcnt(0)
s_barrier
""")
    Mr = [Q3[0] + w for w in range(4)]
    for w in range(4): a(f"ds_read_b32 v{Mr[w]}, {vr(t1)} offset:{1024*w}")
    for w in range(4):
        for j in range(3): a(f"ds_read_b128 {vr(O3[w]+4*j,4)}, {vr(t)} offset:{w*3072 + j*1024}")
    g_, kbv, g8, tb = Q3[1], Q3[1] + 1, Q3[1] + 2, Q3[1] + 3
    ad = [Q3[1] + 4, Q3[1] + 5, Q3[1] + 6]
    a(f"""
s_lshl_b32 s34, s26, 1
s_mul_i32 s34, s34, {68*1024}
s_add_u32 s34, s34, {AF}
v_bfe_u32 {vr(tb)}, v1, 4, 1
v_mul_u32_u24 {vr(tb)}, {68*1024}, {vr(tb)}
v_and_b32 {vr(g8)}, 15, v1
v_lshl_add_u32 {vr(tb)}, {vr(g8)}, 4, {vr(tb)}
s_mul_i32 s35, s21, 5
v_add_u32 {vr(g_)}, s35, v5
""")
    for i in range(3):
        a(f"""
v_lshrrev_b32 {vr(kbv)}, 3, {vr(g_)}
v_lshl_add_u32 {vr(ad[i])}, {vr(kbv)}, 10, {vr(tb)}
v_bfe_u32 {vr(g8)}, {vr(g_)}, 2, 1
v_lshl_add_u32 {vr(ad[i])}, {vr(g8)}, 9, {vr(ad[i])}
v_and_b32 {vr(g8)}, 1, {vr(g_)}
v_lshl_add_u32 {vr(ad[i])}, {vr(g8)}, 8, {vr(ad[i])}
v_bfe_u32 {vr(g8)}, {vr(g_)}, 1, 1
v_lshl_add_u32 {vr(ad[i])}, {vr(g8)}, 3, {vr(ad[i])}
""")
        if i < 2: a(f"v_add_u32 {vr(g_)}, 2, {vr(g_)}")
    m, l, l2 = Q3[2], Q3[2] + 1, Q3[2] + 2
    a(f"""
s_waitcnt lgkmcnt(12)
v_max3_f32 {vr(m)}, v{Mr[0]}, v{Mr[1]}, v{Mr[2]}
v_max_f32 {vr(m)}, {vr(m)}, v{Mr[3]}
""")
    for w in range(4): a(f"v_sub_f32 v{Mr[w]}, v{Mr[w]}, {vr(m)}")
    for w in range(4): a(f"v_exp_f32 v{Mr[w]}, v{Mr[w]}")
    a(f"s_waitcnt lgkmcnt(0)\nv_mul_f32 {vr(l)}, {vr(O3[0]+8)}, v{Mr[0]}")
    for w in range(1, 4): a(f"v_fmac_f32 {vr(l)}, {vr(O3[w]+8)}, v{Mr[w]}")
    a(f"""
v_mov_b32 {vr(l2)}, {vr(l)}
s_nop 1
v_permlane32_swap_b32 {vr(l)}, {vr(l2)}
s_nop 1
v_rcp_f32 {vr(l2)}, {vr(l2)}
s_nop 0
""")
    for w in range(4): a(f"v_mul_f32 v{Mr[w]}, v{Mr[w]}, {vr(l2)}")
    PKo = Q3[3]
    for i in range(3):
        for j in range(4 * i, 4 * i + 4):
            a(f"v_mul_f32 {vr(O3[0]+j)}, {vr(O3[0]+j)}, v{Mr[0]}")
            for w in range(1, 4): a(f"v_fmac_f32 {vr(O3[0]+j)}, {vr(O3[w]+j)}, v{Mr[w]}")
        for j in range(2):
            a(f"v_cvt_pk_bf16_f32 {vr(PKo+2*i+j)}, {vr(O3[0]+4*i+2*j)}, {vr(O3[0]+4*i+2*j+1)}")
        if i == 2: a("s_mov_b64 exec, s[14:15]")
        a(f"buffer_store_dwordx2 {vr(PKo+2*i,2)}, {vr(ad[i])}, s[8:11], s34 offen")
    if PROF:
        a("s_mov_b64 exec, -1")
        prof_out(a, 0x3100000, 8, 20, [40, 42, 44, 46])
    a("s_endpgm")

def splitk(a, L, nkb, kb_base, D, mode, ST, ACCV, prio=None, rounds=((0, 1, 2), (3, 4)), RESR=None):
    a(f"""
{L}:
s_and_b32 s27, s3, 7
s_lshr_b32 s28, s3, 3
s_lshr_b32 s29, s27, 1
s_lshl_b32 s29, s29, 3
s_lshr_b32 s30, s28, 2
s_add_u32 s29, s29, s30               ; mb
s_and_b32 s30, s27, 1
s_lshl_b32 s30, s30, 2
s_and_b32 s31, s28, 3
s_add_u32 s30, s30, s31               ; nb
v_lshlrev_b32 v3, 4, v1
v_add_u32 v4, {1*69632}, v3
v_add_u32 v5, {2*69632}, v3
v_add_u32 v6, {3*69632}, v3
v_add_u32 v7, 4096, v3
s_mul_i32 s32, s20, {nkb}
s_add_u32 s32, s32, {kb_base}
s_mul_i32 s33, s29, {4*69632}
s_lshl_b32 s34, s32, 10
s_add_u32 s33, s33, s34
s_add_u32 s33, s33, {AF}
s_mul_i32 s34, s32, 40960
s_mul_i32 s35, s30, 5120
s_add_u32 s34, s34, s35
s_add_u32 s34, s34, {BF}
""")
    def loads(kb):
        b = ST + 36 * (kb % D)
        for j in range(4):
            a(f"buffer_load_dwordx4 {vr(b+16+4*j,4)}, v3, s[8:11], s34 offen offset:{j*1024}")
        a(f"buffer_load_dwordx4 {vr(b+32,4)}, v7, s[8:11], s34 offen")
        for i in range(4):
            a(f"buffer_load_dwordx4 {vr(b+4*i,4)}, v{3+i}, s[8:11], s33 offen")
        a("s_add_u32 s33, s33, 1024")
        a("s_add_u32 s34, s34, 40960")
    for kb in range(min(D, nkb)): loads(kb)
    a(f"""
s_lshl_b32 s36, s29, 6
s_lshl_b32 s37, s20, 4
s_add_u32 s36, s36, s37
v_and_b32 v8, 15, v1
v_add_u32 v8, s36, v8
v_mul_u32_u24 v8, 1280, v8
v_lshrrev_b32 v9, 4, v1
v_lshl_add_u32 v8, v9, 3, v8
s_mul_i32 s36, s30, 160
s_lshl_b32 s38, s29, 3
s_add_u32 s38, s38, s30
s_mul_i32 s38, s38, 20480
s_mul_i32 s39, s20, 5120
s_add_u32 s38, s38, s39
s_add_u32 s38, s38, {YY}
""")
    def resloads(RES):
        if mode == "final":
            for j in range(4): a(f"buffer_load_dwordx4 {vr(RES+4*j,4)}, v3, s[8:11], s38 offen offset:{j*1024}")
            a(f"buffer_load_dwordx4 {vr(RES+16,4)}, v7, s[8:11], s38 offen")
        else:
            for j in range(5): a(f"buffer_load_dwordx2 {vr(RES+2*j,2)}, v8, s[12:15], s36 offen offset:{32*j}")
    if RESR is not None:
        assert D >= nkb
        resloads(RESR)
    for kb in range(nkb):
        b = ST + 36 * (kb % D)
        rem = min(D - 1, nkb - 1 - kb)
        a(f"s_waitcnt vmcnt({9*rem + (5 if RESR is not None else 0)})")
        if prio: a(f"s_setprio {prio[1]}")
        for i in range(4):
            for j in range(5):
                t = 5 * i + j
                c = "0" if kb == 0 else ACCV(t)
                if not (mode == "down" and 'nomf' in VAR and kb > 0): a(f"{MF16} {ACCV(t)}, {vr(b+16+4*j,4)}, {vr(b+4*i,4)}, {c}")
        if prio and kb + D < nkb: a(f"s_setprio {prio[0]}")
        if kb + D < nkb and not (mode == "down" and 'nold' in VAR): loads(kb + D)
    if PROF: a("s_memrealtime s[44:45]")
    RES = ST if RESR is None else RESR
    if RESR is None: resloads(RES)
    else: a("s_nop 4")
    OWN = ST + 20
    R = ST + 40
    a("s_nop 3")
    a(f"""
s_mul_i32 s37, s20, {3*1024*len(rounds[0])}
v_add_u32 v9, s37, v3
""")
    SL = 1024 * len(rounds[0]); NJ = len(rounds[0])
    for rnd, js in enumerate(rounds):
        for w in range(4):
            if w < 3:
                a(f"s_cmp_eq_u32 s20, {w}\ns_cbranch_scc0 {L}_r{rnd}n{w}")
            for i in range(4):
                if i == w: continue
                slot = w if w < i else w - 1
                for jj, j in enumerate(js):
                    a(f"ds_write_b128 v3, {ACCV(5*i+j)} offset:{(i*3+slot)*SL + jj*1024}")
            for j in js:
                src = ACCV(5 * w + j)
                base = int(src[2:src.index(":")])
                for r in range(4):
                    if src[0] == "a": a(f"v_accvgpr_read_b32 v{OWN+4*j+r}, a{base+r}")
                    else: a(f"v_mov_b32 v{OWN+4*j+r}, v{base+r}")
            if w < 3:
                a(f"s_branch {L}_r{rnd}d\n{L}_r{rnd}n{w}:")
        a(f"{L}_r{rnd}d:\ns_waitcnt lgkmcnt(0)\ns_barrier")
        for s in range(3):
            for jj, j in enumerate(js):
                a(f"ds_read_b128 {vr(R+4*jj+4*NJ*(s%2),4)}, v9 offset:{s*SL+jj*1024}")
            if s >= 1:
                a(f"s_waitcnt lgkmcnt({len(js)})")
                for jj, j in enumerate(js):
                    for r in range(4): a(f"v_add_f32 v{OWN+4*j+r}, v{OWN+4*j+r}, v{R+4*jj+4*NJ*((s-1)%2)+r}")
        a("s_waitcnt lgkmcnt(0)")
        for jj, j in enumerate(js):
            for r in range(4): a(f"v_add_f32 v{OWN+4*j+r}, v{OWN+4*j+r}, v{R+4*jj+r}")
        if rnd + 1 < len(rounds): a("s_barrier")
    a("s_waitcnt vmcnt(0)")
    if mode == "final":
        for q in range(20): a(f"v_add_f32 v{OWN+q}, v{OWN+q}, v{RES+q}")
    else:
        for j in range(5):
            for hh in range(2):
                a(f"v_lshlrev_b32 v{R}, 16, v{RES+2*j+hh}")
                a(f"v_and_b32 v{R+1}, 0xffff0000, v{RES+2*j+hh}")
                a(f"v_add_f32 v{OWN+4*j+2*hh}, v{OWN+4*j+2*hh}, v{R}")
                a(f"v_add_f32 v{OWN+4*j+2*hh+1}, v{OWN+4*j+2*hh+1}, v{R+1}")
    if mode == "down":
        for j in range(4): a(f"buffer_store_dwordx4 {vr(OWN+4*j,4)}, v3, s[8:11], s38 offen offset:{j*1024} sc1")
        a(f"buffer_store_dwordx4 {vr(OWN+16,4)}, v7, s[8:11], s38 offen sc1")
    else:
        for j in range(5):
            a(f"v_cvt_pk_bf16_f32 v{R+2*j}, v{OWN+4*j}, v{OWN+4*j+1}")
            a(f"v_cvt_pk_bf16_f32 v{R+2*j+1}, v{OWN+4*j+2}, v{OWN+4*j+3}")
            a(f"buffer_store_dwordx2 {vr(R+2*j,2)}, v8, s[16:19], s36 offen offset:{32*j}")

def k2_kernel(a, name, ffn=True, prio=(0, 2), aprio=1):
    kernel_header(a, name)
    a(f"""
s_cmp_ge_u32 s2, 768
s_cbranch_scc1 LK2_end
""")
    if PROF: a("s_memrealtime s[40:41]")
    a(f"""
s_load_dwordx2 s[4:5], s[0:1], 72
s_load_dwordx2 s[6:7], s[0:1], 0
v_and_b32 v1, 63, v0
v_lshrrev_b32 v2, 6, v0
s_and_b32 s3, s2, 255
v_readfirstlane_b32 s20, v2
s_lshr_b32 s16, s2, 8                 ; type
s_cmp_eq_u32 s16, 0
s_cbranch_scc1 LK2_ffn
s_sub_u32 s16, s16, 1
s_setprio {aprio}
""")
    if 'attn2' in VAR:
        a("s_waitcnt lgkmcnt(0)")
        srd(a, 8, 4, 5, WS_BYTES)
        attn(a)
    else:
        attn3(a)
    a("LK2_ffn:")
    if ffn:
        a("s_waitcnt lgkmcnt(0)")
        srd(a, 8, 4, 5, WS_BYTES)
        srd(a, 12, 6, 7, 2048 * 640 * 2)
        if PROF: a("s_memrealtime s[42:43]")
        splitk(a, "LD", 12, 20, 2, "down", 12, lambda t: f"v[{88+4*t}:{91+4*t}]", prio=prio)
        if PROF: prof_out(a, 0x3100000, 8, 20, [40, 42, 44, 46])
    a("LK2_end:\ns_endpgm")

K3_LDS = 61440
def k3_kernel(a, name, mode="final"):
    kernel_header(a, name)
    a(f"""
s_cmp_ge_u32 s2, 256
s_cbranch_scc1 LK3_end
""")
    if PROF: a("s_memrealtime s[40:41]\ns_memrealtime s[42:43]")
    a(f"""
s_load_dwordx2 s[4:5], s[0:1], 72
s_load_dwordx2 s[6:7], s[0:1], 0
s_load_dwordx2 s[22:23], s[0:1], 56
v_and_b32 v1, 63, v0
v_lshrrev_b32 v2, 6, v0
s_mov_b32 s3, s2
v_readfirstlane_b32 s20, v2
s_waitcnt lgkmcnt(0)
""")
    srd(a, 8, 4, 5, WS_BYTES)
    srd(a, 12, 6, 7, 2048 * 640 * 2)
    srd(a, 16, 22, 23, 2048 * 640 * 2)
    if mode == "final": splitk(a, "LF", 5, 0, 5, "final", 12, lambda t: f"a[{4*t}:{4*t+3}]", rounds=((0, 1, 2, 3, 4),), RESR=192)
    else: splitk(a, "LF", 17, 0, 6, "full", 12, lambda t: f"a[{4*t}:{4*t+3}]")
    if PROF: prof_out(a, 0x3200000, 8, 20, [40, 42, 44, 46])
    if PROF and DBGOUT:
        a(f"""
s_mov_b64 exec, -1
s_or_b32 s50, s2, s20
s_cmp_lg_u32 s50, 0
s_cbranch_scc1 LK3_end
s_load_dwordx2 s[52:53], s[0:1], 64
s_waitcnt lgkmcnt(0)
s_mov_b32 s54, 256
s_mov_b32 s55, 0x00020000
v_lshlrev_b32 v20, 2, v1
s_mov_b32 s56, {0x3000000 + 200*8*32}
buffer_load_dword v21, v20, s[8:11], s56 offen
s_mov_b32 s56, {0x3000000 - 20}
buffer_load_dword v22, v20, s[8:11], s56 offen
s_mov_b32 s56, {0x3100000 + 600*4*16 - 32}
buffer_load_dword v23, v20, s[8:11], s56 offen
s_waitcnt vmcnt(0)
v_cmp_gt_u32 vcc, 6, v1
s_nop 1
v_cndmask_b32 v22, v22, v21, vcc
v_cmp_gt_u32 vcc, 8, v1
s_nop 1
v_cndmask_b32 v23, v23, v22, vcc
v_mov_b32 v24, s40
v_cmp_eq_u32 vcc, 12, v1
s_nop 1
v_cndmask_b32 v23, v23, v24, vcc
v_mov_b32 v24, s44
v_cmp_eq_u32 vcc, 13, v1
s_nop 1
v_cndmask_b32 v23, v23, v24, vcc
v_mov_b32 v24, s46
v_cmp_eq_u32 vcc, 14, v1
s_nop 1
v_cndmask_b32 v23, v23, v24, vcc
s_nop 1
v_readfirstlane_b32 s57, v23
s_nop 3
v_subrev_u32 v23, s57, v23
s_mov_b64 exec, 0xffff
buffer_store_dword v23, v20, s[52:55], 0 offen
""")
    a("LK3_end:\ns_endpgm")
K3_ARCH = 12 + 36 * 6
```

```python
from asmlib import *
MFMA = "v_mfma_f32_32x32x16_bf16"
MF16 = "v_mfma_f32_16x16x32_bf16"
A_STAGE = 32768
B_RING, B_SLOT = 98304, 12576
CS_OFF = 161184
K1_LDS = 161952
ACC = 64
CSA = 160
FR = 168
FX = 216
K1_VGPR = 256
CP = 228
QSCALE = (20 ** -0.5) * 1.4426950408889634
PROF = False
VAR = ""
def stamp(a, k):
    if PROF:
        a(f"s_memrealtime s[{82+2*k}:{83+2*k}]")
        if k in (1, 2): a(f"s_memtime s[{92+2*k}:{93+2*k}]")
def stamp_out(a, n):
    if PROF:
        a("s_waitcnt vmcnt(0) lgkmcnt(0)")
        a(f"s_memrealtime s[{82+2*n}:{83+2*n}]")
        a("s_waitcnt lgkmcnt(0)")
        for k in range(8):
            a(f"v_mov_b32 v{8+k}, s{82+2*min(k, n)}" if k < 6 else f"v_mov_b32 v{8+k}, s{94+2*(k-6)}")
        a(f"""
s_lshl_b32 s34, s2, 3
s_add_u32 s34, s34, s24
s_lshl_b32 s34, s34, 5
s_add_u32 s34, s34, 0x3000000
v_mov_b32 v16, 0
s_mov_b64 exec, 1
buffer_store_dwordx4 v[8:11], v16, s[16:19], s34 offen
buffer_store_dwordx4 v[12:15], v16, s[16:19], s34 offen offset:16
""")

def gemm(a0, kind):
    def a(t):
        if 'qsc1' in VAR and kind != "GU":
            t = "\n".join((l + " sc1" if ("buffer_store" in l and "v16, s[" not in l) else l) for l in t.split("\n"))
        a0(t)
    L = f"LG{kind}"
    GU = kind == "GU"
    RS = 192 if GU else 320
    GS = 8 * RS + 32
    UP = 4 * GS + 32
    CPR = 12 if GU else 20
    CW = 96 if GU else 80
    ldw = 3072 if GU else 3840
    EVEN = (not GU) and ('noeven' not in VAR)
    VMB = 9 if EVEN else 8
    NA = 2 if GU else 1
    NBF = 3 if GU else 5
    FA = [[FR + 24 * b + 4 * i for i in range(NA)] for b in range(2)]
    FB = [[FR + 24 * b + 4 * NA + 4 * j for j in range(NBF)] for b in range(2)]
    acc = lambda i, j: ACC + 16 * (NBF * i + j)
    a(f"{L}:")
    if GU:
        a(f"""
s_mul_i32 s58, s28, 192
s_and_b32 s57, s24, 3
s_mul_i32 s59, s57, {GS}
s_mul_i32 s60, s81, {UP}
s_add_u32 s59, s59, s60
s_mul_i32 s60, s57, {CW}
s_lshl_b32 s56, s80, 13
""")
    else:
        a(f"""
s_mul_i32 s58, s28, 320
s_lshr_b32 s59, s24, 1
s_mul_i32 s59, s59, {GS}
s_and_b32 s57, s24, 1
s_mul_i32 s57, s57, 1280
s_add_u32 s59, s59, s57
s_mul_i32 s60, s24, {CW}
s_lshl_b32 s56, s24, 12               ; 32*w*128
""")
    magic, sh = (43691, 19) if CPR == 12 else (52429, 20)
    a(f"""
s_add_u32 s59, s59, {B_RING}
s_mov_b32 s62, {ldw}
v_add_u32 v6, s56, v6
v_add_u32 v7, s56, v7
v_add_u32 v8, s56, v8
v_add_u32 v9, s56, v9
""")
    for (vd, add) in ((14, 0), (15, 64)):
        a(f"""
v_add_u32 v24, s60, v1
v_add_u32 v24, {add}, v24
v_mul_u32_u24 v25, {magic}, v24
v_lshrrev_b32 v25, {sh}, v25
v_mul_u32_u24 v26, {CPR}, v25
v_sub_u32 v26, v24, v26
v_mul_lo_u32 v25, v25, s62
v_lshl_add_u32 v25, v26, 4, v25
v_add_u32 v{vd}, s58, v25
""")
        if add: a(f"v_subrev_u32 v{vd}, 1024, v{vd}")
    a(f"""
s_mov_b32 s64, {hex((1 << (CW - 64)) - 1)}
s_mov_b32 s65, 0
s_mov_b32 s30, 0
s_mov_b32 s31, 0
s_mov_b32 s32, 0
s_mov_b32 s33, 0
s_mov_b32 s66, 0
s_mov_b32 s67, 0
""")
    def dmaA(q):
        a(f"""
s_add_u32 m0, s63, s32
s_nop 0
buffer_load_dwordx4 v{10+q}, s[8:11], s30 offen offset:{1024*q} lds
""")
        if q == 3:
            a(f"""
s_add_u32 s32, s32, {A_STAGE}
s_cmp_eq_u32 s32, {3*A_STAGE}
s_cselect_b32 s32, 0, s32
s_add_u32 s30, s30, 128
""")
    def dmaB(q):
        if q == 0:
            a(f"""
s_add_u32 m0, s59, s33
s_nop 0
buffer_load_dwordx4 v14, s[12:15], s31 offen lds
""")
        else:
            a(f"""
s_add_u32 m0, s59, s33
s_mov_b64 exec, s[64:65]
buffer_load_dwordx4 v15, s[12:15], s31 offen offset:1024 lds
s_mov_b64 exec, -1
s_add_u32 s33, s33, {B_SLOT}
s_cmp_eq_u32 s33, {5*B_SLOT}
s_cselect_b32 s33, 0, s33
s_add_u32 s31, s31, {32*ldw}
""")
    JO = 32 if GU else 64
    def reads(nb, ja, ks):
        r = [f"ds_read_b128 {vr(FA[nb][i],4)}, v{6+ja} offset:{4096*i}" for i in range(NA)]
        for j in range(NBF):
            for rr in range(2):
                r.append(f"ds_read_b64_tr_b16 {vr(FB[nb][j]+2*rr,2)}, v16 offset:{2*ks*GS + 4*rr*RS + j*JO}")
        return r
    def xsetup():
        a(f"""
s_add_u32 s69, s67, {B_SLOT}
s_cmp_eq_u32 s69, {5*B_SLOT}
s_cselect_b32 s69, 0, s69
s_cmp_eq_u32 s72, 0
s_cselect_b32 s71, s67, s69
v_add_u32 v19, s67, v17
v_add_u32 v2, s69, v17
v_add_u32 v3, s71, v18
""")
    def xreads():
        r = []
        for e, v in enumerate((19, 2, 3)):
            for rr in range(2):
                r.append(f"ds_read_b64_tr_b16 {vr(FX+4*e+2*rr,2)}, v{v} offset:{4*rr*RS}")
        return r
    def advA_pre():
        a(f"""
s_add_u32 s69, s66, {A_STAGE}
s_cmp_eq_u32 s69, {3*A_STAGE}
s_cselect_b32 s69, 0, s69
s_sub_u32 s68, s69, s66
s_mov_b32 s66, s69
""")
    def advB():
        a(f"""
s_add_u32 s69, s67, {B_SLOT}
s_cmp_eq_u32 s69, {5*B_SLOT}
s_cselect_b32 s69, 0, s69
s_sub_u32 s70, s69, s67
s_mov_b32 s67, s69
v_add_u32 v16, s70, v16
""")
    def mfma(b, i, j):
        d = vr(acc(i, j), 16)
        if kind == "V": return f"{MFMA} {d}, {vr(FA[b][i],4)}, {vr(FB[b][j],4)}, {d}"
        return f"{MFMA} {d}, {vr(FB[b][j],4)}, {vr(FA[b][i],4)}, {d}"
    a("s_waitcnt lgkmcnt(0)")
    srd(a, 8, 36, 37, 2048 * 640 * 2)
    if GU:
        a(f"""
s_cmp_ge_u32 s24, 4
s_cselect_b32 s12, s46, s44
s_cselect_b32 s13, s47, s45
s_mov_b32 s14, {640*1536*2}
s_mov_b32 s15, 0x00020000
""")
    else:
        srd(a, 12, 38, 39, 640 * 1920 * 2)
    for _ in range(2):
        if EVEN:
            for q in range(4): dmaB(q & 1); dmaA(q)
        else:
            dmaB(0); dmaB(1)
            for q in range(4): dmaA(q)
            dmaB(0); dmaB(1)
    srd(a, 16, 54, 55, WS_BYTES)
    srd(a, 20, 52, 53, 256)
    NH = UP if GU else 32
    a(f"""
v_bfe_u32 v26, v1, 2, 2
v_mul_u32_u24 v26, {RS}, v26
v_and_b32 v27, 3, v1
v_lshl_add_u32 v26, v27, 3, v26       ; (i>>2)*RS + 8*(i&3)
v_lshrrev_b32 v24, 5, v1
v_mul_u32_u24 v24, {GS}, v24
v_bfe_u32 v27, v1, 4, 1
v_mul_u32_u24 v27, {NH}, v27
v_add3_u32 v16, v24, v26, v27
""")
    if GU: a(f"s_mul_i32 s61, s81, 96\ns_add_u32 s61, s61, {B_RING}")
    else: a(f"s_mov_b32 s61, {B_RING}")
    a("v_add_u32 v16, s61, v16")
    for j in range(ACC, ACC + 16 * NA * NBF): a(f"v_mov_b32 v{j}, 0")
    a("s_waitcnt vmcnt(8) lgkmcnt(0)\ns_barrier")
    stamp(a, 1)
    for r in reads(0, 0, 0): a(r)
    advA_pre()
    a("v_add_u32 v6, s68, v6")
    def step(jj, dma=True, bar=True, vm=None, nxt=True, extra=None, xm_early=False, vm3=6):
        if vm is None: vm = VMB
        b = jj & 1; nb = b ^ 1
        if jj % 2 == 0 and bar: a(f"s_waitcnt vmcnt({vm})\ns_barrier")
        if extra: extra()
        if EVEN and jj == 3 and nxt: a(f"s_waitcnt vmcnt({vm3}) lgkmcnt(0)")
        else: a("s_waitcnt lgkmcnt(0)")
        rd = []
        if nxt:
            if jj % 2 == 1: advB()
            rd = reads(nb, (jj + 1) % 4, (jj + 1) % 2)
        dm = []
        if dma:
            dm = {0: [lambda: dmaB(0), lambda: dmaB(1), lambda: dmaA(0)], 1: [lambda: dmaA(1), lambda: dmaA(2), lambda: dmaA(3)],
                  2: [lambda: dmaB(0)], 3: [lambda: dmaB(1)]}[jj]
            if EVEN: dm = [lambda: dmaB(jj & 1), lambda: dmaA(jj)]
        ms = [mfma(b, i, j) for j in range(NBF) for i in range(NA)]
        xm = [f"{MF16} {vr(CSA,4)}, {vr(FX,4)}, v[20:23], {vr(CSA,4)}",
              f"{MF16} {vr(CSA+4,4)}, {vr(FX+8,4)}, v[20:23], {vr(CSA+4,4)}",
              f"{MF16} {vr(CSA,4)}, {vr(FX+4,4)}, v[20:23], {vr(CSA,4)}"]
        n = len(ms)
        nr = max(1, n - 2)
        pr = pd = 0
        for k, m in enumerate(ms):
            a(m)
            tr = min(len(rd), -(-len(rd) * (k + 1) // nr))
            while pr < tr:
                a(rd[pr]); pr += 1
                if pr == NA and nxt:
                    ja = (jj + 1) % 4
                    if ja == 0: advA_pre()
                    a(f"v_add_u32 v{6+ja}, s68, v{6+ja}")
            td = min(len(dm), (len(dm) * (k + 2)) // n)
            while pd < td: dm[pd](); pd += 1
    a("s_mov_b32 s34, 8")
    a(f"s_branch {L}_in")
    a(".p2align 6")
    a(f"{L}_loop:")
    a(f"s_waitcnt vmcnt({VMB})\ns_barrier")
    a(f"{L}_in:")
    step(0, bar=False); step(1); step(2); step(3)
    a(f"""
s_sub_u32 s34, s34, 1
s_cmp_lg_u32 s34, 0
s_cbranch_scc1 {L}_loop
""")
    stamp(a, 2)
    step(0, dma=False); step(1, dma=False); step(2, dma=False, vm=5 if EVEN else 2); step(3, dma=False, vm3=0)
    def poll_issue():
        a("buffer_load_dword v24, v5, s[20:23], 0 offen sc1")
    def poll_check():
        a(f"""
{L}_poll:
s_waitcnt vmcnt(0)
v_cmp_eq_u32 vcc, 0, v24
s_nop 4
s_cmp_eq_u64 vcc, 0
s_cbranch_scc1 {L}_pollok
s_sleep 2
buffer_load_dword v24, v5, s[20:23], 0 offen sc1
s_branch {L}_poll
{L}_pollok:
""")
        stamp(a, 3)
        if GU: a("s_lshl_b32 s76, s27, 8\ns_lshl_b32 s77, s80, 6\ns_add_u32 s76, s76, s77")
        else: a("s_mov_b32 s76, s29")
        a(f"""
v_and_b32 v25, 31, v1
v_add_u32 v26, s76, v25
v_lshlrev_b32 v26, 2, v26
s_mov_b32 s69, {MBO}
s_mov_b32 s70, {RIO}
""")
        for i in range(NA):
            a(f"buffer_load_dword v{28+i}, v26, s[16:19], s69 offen offset:{128*i} sc1")
        if kind == "V":
            a(f"""
v_lshrrev_b32 v27, 5, v1
v_lshlrev_b32 v27, 2, v27
v_add_u32 v27, s76, v27
v_lshlrev_b32 v27, 2, v27
""")
            for i in range(4):
                a(f"buffer_load_dwordx4 {vr(40+4*i,4)}, v27, s[16:19], s70 offen offset:{32*i} sc1")
        else:
            for i in range(NA):
                a(f"buffer_load_dword v{30+i}, v26, s[16:19], s70 offen offset:{128*i} sc1")
        if GU:
            a(f"""
v_and_b32 v27, 15, v1
v_bfe_u32 v32, v1, 4, 1
v_mul_u32_u24 v32, 1536, v32
v_add_u32 v27, v27, v32
v_lshlrev_b32 v27, 2, v27
s_mul_i32 s69, s28, {96*4}
s_mul_i32 s70, s81, {48*4}
s_add_u32 s69, s69, s70
s_add_u32 s69, s69, {CSO + 1920*4}
""")
            for kq in range(4):
                for j in range(3): a(f"buffer_load_dword v{CP+5*kq+j}, v27, s[16:19], s69 offen offset:{64*j} sc1")
                if kq < 3: a(f"s_add_u32 s69, s69, {4992*4}")
        else:
            a(f"""
v_lshlrev_b32 v32, 2, v25
s_mul_i32 s69, s28, {160*4}
s_add_u32 s69, s69, {CSO}
""")
            for kq in range(4):
                for j in range(5): a(f"buffer_load_dword v{CP+5*kq+j}, v32, s[16:19], s69 offen offset:{128*j} sc1")
                if kq < 3: a(f"s_add_u32 s69, s69, {4992*4}")
    def cs_publish():
        a(f"""
v_and_b32 v27, 15, v1
v_cmp_eq_u32 vcc, 0, v27
v_and_b32 v27, 48, v1
s_lshl_b32 s70, s24, 6
s_add_u32 s70, s70, {CS_OFF}
v_add_u32 v32, s70, v27
s_lshl_b32 s70, s73, 6
s_add_u32 s70, s70, {CS_OFF + 512}
v_add_u32 v33, s70, v27
s_and_saveexec_b64 s[74:75], vcc
ds_write_b128 v32, {vr(CSA,4)}
""")
        if not GU: a(f"s_cmp_ge_u32 s24, 4\ns_cbranch_scc1 {L}_nox")
        for r in range(4): a(f"ds_add_f32 v33, v{CSA+4+r} offset:{4*r}")
        if not GU: a(f"{L}_nox:")
        a("s_mov_b64 exec, -1\ns_waitcnt lgkmcnt(0)\ns_barrier")
        if GU:
            a(f"""
v_and_b32 v27, 15, v1
v_bfe_u32 v32, v1, 4, 1
v_mul_u32_u24 v32, 96, v32
v_add_u32 v27, v27, v32
s_mul_i32 s70, s81, 48
v_add_u32 v27, s70, v27
v_lshlrev_b32 v27, 2, v27
v_add_u32 v27, {CS_OFF}, v27
""")
            for j in range(3): a(f"ds_read_b32 v{34+j}, v27 offset:{64*j}")
        else:
            a(f"v_lshlrev_b32 v27, 2, v25\nv_add_u32 v27, {CS_OFF}, v27")
            for j in range(5): a(f"ds_read_b32 v{34+j}, v27 offset:{128*j}")
    step(0, dma=False, vm=0, extra=poll_issue, xm_early=True); step(1, dma=False, extra=poll_check, xm_early=True)
    step(2, dma=False, bar=False); step(3, dma=False, nxt=False, xm_early=True)
    stamp(a, 4)
    XC = FR
    WC = FR + 8
    a(f"""
s_waitcnt vmcnt(0)
s_mov_b32 s64, -1
s_mov_b32 s65, 0
""")
    for j in range(NBF):
        a(f"v_add_f32 v{34+j}, v{CP+j}, v{CP+5+j}\nv_add_f32 v{CP+10+j}, v{CP+10+j}, v{CP+15+j}\nv_add_f32 v{34+j}, v{34+j}, v{CP+10+j}")
    for i in range(NA):
        a(f"""
v_xor_b32 v24, 0x80000000, v{28+i}
v_lshrrev_b32 v25, 16, v24
v_or_b32 v26, v25, v24
v_cndmask_b32 v{XC+4*i}, 0, v26, s[64:65]
v_cndmask_b32 v{XC+4*i+1}, 0, v25, s[64:65]
v_mov_b32 v{XC+4*i+2}, 0
v_mov_b32 v{XC+4*i+3}, 0
""")
    WCr = [FX, FX + 4, FX + 8, WC, WC + 4]
    for j in range(NBF):
        w = WCr[j]; c = 34 + j
        a(f"""
v_and_b32 v24, 0xffff0000, v{c}
v_sub_f32 v25, v{c}, v24
v_and_b32 v26, 0xffff0000, v25
v_sub_f32 v25, v25, v26
v_lshrrev_b32 v24, 16, v24
v_or_b32 v{w}, v24, v26
v_lshrrev_b32 v{w+1}, 16, v25
v_mov_b32 v{w+2}, 0
v_mov_b32 v{w+3}, 0
""")
        if j == NBF - 1: a("s_nop 1")
        if j >= 1:
            for i in range(NA):
                d = vr(acc(i, j - 1), 16)
                if kind == "V": a(f"{MFMA} {d}, {vr(XC+4*i,4)}, {vr(WCr[j-1],4)}, {d}")
                else: a(f"{MFMA} {d}, {vr(WCr[j-1],4)}, {vr(XC+4*i,4)}, {d}")
    for i in range(NA):
        d = vr(acc(i, NBF - 1), 16)
        if kind == "V": a(f"{MFMA} {d}, {vr(XC+4*i,4)}, {vr(WCr[NBF-1],4)}, {d}")
        else: a(f"{MFMA} {d}, {vr(WCr[NBF-1],4)}, {vr(XC+4*i,4)}, {d}")
    a("s_lshr_b32 s69, s76, 5")
    PK = FR + 16 if False else 24
    if kind == "QK":
        a(f"""
s_cmp_lt_u32 s28, 4
s_cselect_b32 s70, {hex(f32bits(QSCALE))}, 1.0
v_mul_f32 v4, s70, v30
s_cselect_b32 s71, {QF}, {KF}
s_and_b32 s72, s28, 3
s_mul_i32 s72, s72, {8*81920}
s_add_u32 s71, s71, s72
s_mul_i32 s72, s69, 1280
s_add_u32 s71, s71, s72
v_lshlrev_b32 v2, 4, v1
v_and_b32 v3, 31, v1
v_lshlrev_b32 v3, 3, v3
v_lshrrev_b32 v5, 5, v1
s_mov_b32 s72, 81920
v_mul_lo_u32 v5, v5, s72
v_add3_u32 v3, v3, v5, 0
v_add_u32 v3, 1024, v3
""")
        for P in range(4):
            for i in range(20):
                r = ACC + 20 * P + i
                a(f"v_mul_f32 v{r}, v{r}, v4")
            for i in range(10):
                r = ACC + 20 * P + 2 * i
                a(f"v_cvt_pk_bf16_f32 v{PK+10*P+i}, v{r}, v{r+1}")
            a(f"buffer_store_dwordx4 {vr(PK+10*P,4)}, v2, s[16:19], s71 offen")
            a(f"buffer_store_dwordx2 {vr(PK+10*P+4,2)}, v3, s[16:19], s71 offen")
            a(f"s_add_u32 s71, s71, 81920")
            a(f"buffer_store_dwordx4 {vr(PK+10*P+6,4)}, v2, s[16:19], s71 offen")
            a(f"s_add_u32 s71, s71, 81920")
    elif kind == "V":
        PK = FR
        a(f"""
s_sub_u32 s72, s28, 8
s_mul_i32 s72, s72, {8*81920}
s_mul_i32 s71, s69, 1280
s_add_u32 s71, s71, s72
s_add_u32 s71, s71, {VF}
s_mov_b32 s72, 81920
v_and_b32 v2, 31, v1
v_lshrrev_b32 v3, 5, v1
v_mul_u32_u24 v3, 320, v3
""")
        for j in range(5):
            a(f"""
v_add_u32 v24, {32*j}, v2
v_mul_u32_u24 v25, 52429, v24
v_lshrrev_b32 v25, 20, v25
v_mul_u32_u24 v26, 20, v25
v_sub_u32 v26, v24, v26
v_mul_lo_u32 v25, v25, s72
v_lshl_add_u32 v25, v26, 4, v25
v_add_u32 v{28+j}, v25, v3
""")
        for j in range(5):
            for i in range(16):
                r = ACC + 16 * j + i
                a(f"v_mul_f32 v{r}, v{r}, v{40+i}")
            for i in range(8):
                r = ACC + 16 * j + 2 * i
                a(f"v_cvt_pk_bf16_f32 v{PK+8*j+i}, v{r}, v{r+1}")
            a(f"buffer_store_dwordx4 {vr(PK+8*j,4)}, v{28+j}, s[16:19], s71 offen")
            a(f"buffer_store_dwordx4 {vr(PK+8*j+4,4)}, v{28+j}, s[16:19], s71 offen offset:640")
    else:
        PK = 32
        a(f"""
v_mul_f32 v4, v30, v30
v_mul_f32 v5, v31, v31
s_lshl_b32 s71, s69, 1                  ; rowtile16
s_mul_i32 s71, s71, {68*1024}
s_mul_i32 s72, s28, {3*1024}
s_add_u32 s71, s71, s72
s_mul_i32 s72, s81, {3*512}
s_add_u32 s71, s71, s72
s_add_u32 s71, s71, {AF + 20*1024}
s_add_u32 s72, s71, {2*68*1024}
v_bfe_u32 v2, v1, 4, 1
v_mul_u32_u24 v2, {68*1024}, v2
v_and_b32 v3, 15, v1
v_lshl_add_u32 v2, v3, 4, v2
v_lshrrev_b32 v3, 5, v1
v_lshl_add_u32 v2, v3, 8, v2
s_nop 3
""")
        for j in range(3):
            for i in range(2):
                for r in range(8):
                    g = acc(i, j) + r; u = g + 8
                    a(f"v_max_f32 v{g}, 0, v{g}")
                    a(f"v_mul_f32 v{u}, v{u}, v{4+i}")
                    a(f"v_mul_f32 v{g}, v{g}, v{u}")
                for r in range(4):
                    a(f"v_cvt_pk_bf16_f32 v{PK+8*j+4*i+r}, v{acc(i,j)+2*r}, v{acc(i,j)+2*r+1}")
                a(f"buffer_store_dwordx4 {vr(PK+8*j+4*i,4)}, v2, s[16:19], s{71+i} offen offset:{j*512}")
    stamp_out(a, 5)
    a("s_endpgm")

def prep(a):
    X = 64; CX = 48
    a("LP:\ns_waitcnt lgkmcnt(0)")
    srd(a, 8, 36, 37, 2048 * 640 * 2)
    srd(a, 16, 54, 55, WS_BYTES)
    srd(a, 20, 52, 53, 256)
    a(f"""
s_lshl_b32 s27, s25, 2
s_add_u32 s27, s27, s26               ; p
s_cmp_ge_u32 s24, 5
s_cbranch_scc1 LP_st
s_mul_i32 s30, s27, 5
s_add_u32 s30, s30, s24               ; u
s_cmp_ge_u32 s30, 156
s_cbranch_scc1 LP_flag
s_lshr_b32 s31, s30, 2                ; b
s_and_b32 s30, s30, 3                 ; kq
s_cmp_lt_u32 s31, 27
s_cselect_b32 s12, s44, s46
s_cselect_b32 s13, s45, s47
s_cselect_b32 s56, 15, 27
s_mov_b32 s14, {640*1536*2}
s_mov_b32 s60, 3072
s_cmp_lt_u32 s31, 15
s_cselect_b32 s12, s38, s12
s_cselect_b32 s13, s39, s13
s_cselect_b32 s56, 0, s56
s_cselect_b32 s14, {640*1920*2}, s14
s_cselect_b32 s60, 3840, s60
s_mov_b32 s15, 0x00020000
s_sub_u32 s56, s31, s56
s_lshl_b32 s57, s56, 8
s_mul_i32 s61, s30, 160
v_lshrrev_b32 v6, 4, v1
v_add_u32 v6, s61, v6
v_mul_lo_u32 v6, v6, s60
v_and_b32 v7, 15, v1
v_lshl_add_u32 v6, v7, 4, v6
s_lshl_b32 s62, s60, 2
""")
    for t in range(40):
        a(f"buffer_load_dwordx4 {vr(CX+4*t,4)}, v6, s[12:15], s57 offen")
        a("s_add_u32 s57, s57, s62")
    a("s_mov_b32 s58, 0x00003f80\ns_mov_b32 s59, 0x3f800000")
    for i in range(8): a(f"v_mov_b32 v{16+i}, 0")
    for t in range(40):
        a(f"s_waitcnt vmcnt({39-t})")
        for i in range(4):
            a(f"v_dot2c_f32_bf16 v{16+2*i}, s58, v{CX+4*t+i}\nv_dot2c_f32_bf16 v{17+2*i}, s59, v{CX+4*t+i}")
    a("s_nop 2")
    for i in range(8): a(f"ds_swizzle_b32 v{24+i}, v{16+i} offset:0x401F")
    a("s_waitcnt lgkmcnt(0)")
    for i in range(8): a(f"v_add_f32 v{16+i}, v{16+i}, v{24+i}\nv_mov_b32 v{24+i}, v{16+i}")
    a("s_nop 1")
    for i in range(8): a(f"v_permlane32_swap_b32 v{16+i}, v{24+i}")
    a("s_nop 1")
    for i in range(8): a(f"v_add_f32 v{16+i}, v{16+i}, v{24+i}")
    a(f"""
s_mul_i32 s58, s30, {4992*4}
s_lshl_b32 s59, s31, 9
s_add_u32 s58, s58, s59
s_add_u32 s58, s58, {CSO}
v_lshlrev_b32 v7, 5, v7
s_mov_b64 exec, 0xffff
buffer_store_dwordx4 v[16:19], v7, s[16:19], s58 offen sc1
buffer_store_dwordx4 v[20:23], v7, s[16:19], s58 offen offset:16 sc1
s_mov_b64 exec, -1
s_branch LP_flag
LP_st:
s_cmp_eq_u32 s24, 7
s_cbranch_scc0 LP_st2
s_getpc_b64 s[56:57]
LPC_ref:
s_sub_u32 s12, s56, LPC_ref-k1_kernel
s_subb_u32 s13, s57, 0
s_mov_b32 s14, LCODE_END-k1_kernel
s_mov_b32 s15, 0x00020000
s_mul_i32 s58, s26, 12288
v_lshlrev_b32 v5, 4, v1
buffer_load_dwordx4 v[200:203], v5, s[12:15], s58 offen offset:0
buffer_load_dwordx4 v[200:203], v5, s[12:15], s58 offen offset:1024
buffer_load_dwordx4 v[200:203], v5, s[12:15], s58 offen offset:2048
buffer_load_dwordx4 v[200:203], v5, s[12:15], s58 offen offset:3072
s_add_u32 s58, s58, 4096
buffer_load_dwordx4 v[200:203], v5, s[12:15], s58 offen offset:0
buffer_load_dwordx4 v[200:203], v5, s[12:15], s58 offen offset:1024
buffer_load_dwordx4 v[200:203], v5, s[12:15], s58 offen offset:2048
buffer_load_dwordx4 v[200:203], v5, s[12:15], s58 offen offset:3072
s_add_u32 s58, s58, 4096
buffer_load_dwordx4 v[200:203], v5, s[12:15], s58 offen offset:0
buffer_load_dwordx4 v[200:203], v5, s[12:15], s58 offen offset:1024
buffer_load_dwordx4 v[200:203], v5, s[12:15], s58 offen offset:2048
buffer_load_dwordx4 v[200:203], v5, s[12:15], s58 offen offset:3072
s_branch LP_flag
LP_st2:
s_lshl_b32 s28, s27, 6
s_sub_u32 s29, s24, 5
s_lshl_b32 s29, s29, 5
s_add_u32 s28, s28, s29
v_lshrrev_b32 v2, 3, v1
v_add_u32 v2, s28, v2
v_mul_u32_u24 v3, 1280, v2
v_and_b32 v4, 7, v1
v_lshl_add_u32 v3, v4, 4, v3
s_mov_b32 s57, 0
""")
    for ps in range(4):
        for t in range(10):
            a(f"buffer_load_dwordx4 {vr(CX+40*ps+4*t,4)}, v3, s[8:11], s57 offen offset:{128*t}")
        a(f"s_add_u32 s57, s57, {8*1280}")
    a(f"""
s_mov_b32 s58, 0x3f803f80
v_lshlrev_b32 v2, 2, v2
v_cmp_eq_u32 vcc, 0, v4
s_mov_b32 s32, {MBO}
s_mov_b32 s33, {RIO}
s_mov_b64 s[34:35], vcc
""")
    for i in range(8): a(f"v_mov_b32 v{16+i}, 0")
    for ps in range(4):
        for t in range(10):
            a(f"s_waitcnt vmcnt({39-10*ps-t})")
            for i in range(4):
                r = CX + 40 * ps + 4 * t + i
                a(f"v_dot2c_f32_bf16 v{16+2*ps}, s58, v{r}\nv_dot2c_f32_bf16 v{17+2*ps}, v{r}, v{r}")
    a("s_nop 2")
    for m in (0x041F, 0x081F, 0x101F):
        for i in range(8): a(f"ds_swizzle_b32 v{24+i}, v{16+i} offset:{m}")
        a("s_waitcnt lgkmcnt(0)")
        for i in range(8): a(f"v_add_f32 v{16+i}, v{16+i}, v{24+i}")
    for ps in range(4):
        rinv_calc(a, 16 + 2 * ps, 17 + 2 * ps, 24 + ps, 28 + ps, 32)
    a("s_mov_b64 exec, s[34:35]")
    for ps in range(4):
        a(f"buffer_store_dword v{24+ps}, v2, s[16:19], s32 offen offset:{32*ps} sc1")
        a(f"buffer_store_dword v{28+ps}, v2, s[16:19], s33 offen offset:{32*ps} sc1")
    a("s_mov_b64 exec, -1\nLP_flag:")
    stamp(a, 1)
    a(f"""
s_cmp_eq_u32 s24, 7
s_cbranch_scc1 LP_nw
s_waitcnt vmcnt(0)
LP_nw:
s_barrier
s_cmp_lg_u32 s24, 0
s_cbranch_scc1 LP_tr
v_mov_b32 v12, 1
v_mov_b32 v13, s27
v_lshlrev_b32 v13, 2, v13
s_mov_b64 exec, 1
buffer_store_dword v12, v13, s[20:23], 0 offen sc1
s_mov_b64 exec, -1
LP_tr:
""")
    stamp(a, 2)
    a(f"""
s_lshl_b32 s56, s27, 3
s_add_u32 s56, s56, s24
s_mul_i32 s57, s24, 12288
v_lshrrev_b32 v6, 3, v1
v_mul_u32_u24 v6, 1280, v6
v_and_b32 v7, 7, v1
v_lshl_add_u32 v6, v7, 4, v6
v_add_u32 v7, {8*1280-1024}, v6
v_add_u32 v8, {16*1280-2048}, v6
v_add_u32 v9, {24*1280-3072}, v6
v_lshrrev_b32 v10, 5, v1
v_lshlrev_b32 v10, 4, v10
v_bfe_u32 v11, v1, 4, 1
v_lshl_add_u32 v10, v11, 2, v10
v_bfe_u32 v11, v1, 2, 2
v_add_u32 v10, v10, v11
v_lshlrev_b32 v10, 7, v10
v_and_b32 v11, 3, v1
v_lshl_add_u32 v10, v11, 3, v10
v_add_u32 v10, s57, v10
v_lshlrev_b32 v11, 4, v1
""")
    for t in range(3):
        a(f"""
s_min_u32 s60, s56, 679
s_mul_i32 s58, s60, 52429
s_lshr_b32 s58, s58, 19
s_mul_i32 s59, s58, 10
s_sub_u32 s59, s60, s59
s_cmp_lt_u32 s58, 20
s_cselect_b32 s12, s40, s48
s_cselect_b32 s13, s41, s49
s_mov_b32 s14, {1536*640*2}
s_cselect_b32 s14, {640*640*2}, s14
s_mov_b32 s15, 0x00020000
s_cselect_b32 s60, 0, 20
s_sub_u32 s60, s58, s60
s_mul_i32 s60, s60, {32*1280}
s_lshl_b32 s61, s59, 7
s_add_u32 s60, s60, s61
s_add_u32 m0, s57, {4096*t}
s_nop 0
buffer_load_dwordx4 v6, s[12:15], s60 offen lds
buffer_load_dwordx4 v7, s[12:15], s60 offen offset:1024 lds
buffer_load_dwordx4 v8, s[12:15], s60 offen offset:2048 lds
buffer_load_dwordx4 v9, s[12:15], s60 offen offset:3072 lds
s_mul_i32 s60, s58, {40*1024}
s_lshl_b32 s61, s59, 12
s_add_u32 s60, s60, s61
s_add_u32 s{64+t}, s60, {BF}
s_add_u32 s56, s56, 256
""")
    for t in range(3):
        a("s_waitcnt vmcnt(8)")
        for jt in range(4):
            for r in range(2):
                a(f"ds_read_b64_tr_b16 {vr(X+16*t+4*jt+2*r,2)}, v10 offset:{4096*t + jt*32 + r*8*128}")
        a("s_waitcnt lgkmcnt(0)")
        for jt in range(4):
            a(f"buffer_store_dwordx4 {vr(X+16*t+4*jt,4)}, v11, s[16:19], s{64+t} offen offset:{jt*1024} sc1")
    stamp_out(a, 5)
    a("s_endpgm")

def k1_kernel(a, name):
    kernel_header(a, name)
    a(f"""
s_cmp_ge_u32 s2, 256
s_cbranch_scc1 LK1_end
""")
    stamp(a, 0)
    a(f"""
s_load_dwordx16 s[36:51], s[0:1], 0
s_load_dwordx4 s[52:55], s[0:1], 64
v_and_b32 v1, 63, v0
v_lshrrev_b32 v2, 6, v0
s_and_b32 s25, s2, 7
v_readfirstlane_b32 s24, v2
s_lshr_b32 s26, s2, 3
s_and_b32 s80, s24, 3
s_lshr_b32 s81, s24, 2
""")
    a(f"""
s_cmp_lt_u32 s26, 4
s_cbranch_scc1 LP
s_sub_u32 s26, s26, 4
s_and_b32 s27, s25, 1
s_lshl_b32 s27, s27, 2
s_and_b32 s28, s26, 3
s_add_u32 s27, s27, s28               ; mblock
s_lshl_b32 s29, s27, 8
s_lshl_b32 s28, s24, 5
s_add_u32 s29, s29, s28
s_lshl_b32 s63, s24, 12
v_and_b32 v5, 31, v1
v_lshlrev_b32 v5, 2, v5
v_lshrrev_b32 v24, 3, v1
v_add_u32 v24, s29, v24
v_mul_u32_u24 v24, 1280, v24
v_lshrrev_b32 v25, 4, v1
v_and_b32 v26, 7, v1
v_xor_b32 v27, v26, v25
v_lshl_add_u32 v10, v27, 4, v24
v_xor_b32 v27, 4, v27
v_lshl_add_u32 v11, v27, 4, v24
v_add_u32 v12, {16*1280-2048}, v10
v_add_u32 v13, {24*1280-3072}, v11
v_add_u32 v11, {8*1280-1024}, v11
v_and_b32 v24, 31, v1
v_lshrrev_b32 v25, 5, v1
v_bfe_u32 v26, v24, 1, 3
v_xor_b32 v26, v26, v25
v_lshlrev_b32 v24, 7, v24
""")
    for j in range(4):
        a(f"v_xor_b32 v27, {2*j}, v26\nv_lshl_add_u32 v{6+j}, v27, 4, v24")
    a(f"""
s_lshr_b32 s26, s26, 2
s_lshr_b32 s56, s25, 1
s_cmp_lt_u32 s26, 3
s_cbranch_scc0 LK1_gu
s_mul_i32 s28, s56, 3
s_add_u32 s28, s28, s26
s_cmp_lt_u32 s28, 8
s_cbranch_scc1 LGQK
s_branch LGV
LK1_gu:
s_lshl_b32 s28, s56, 2
s_add_u32 s28, s28, s26
s_sub_u32 s28, s28, 3
s_branch LGGU
LK1_end:
s_endpgm
""")
    gemm(a, "QK"); gemm(a, "V"); gemm(a, "GU")
    prep(a)

if __name__ == "__main__":
    import sys
    PROF = len(sys.argv) > 1
    VAR = sys.argv[1] if PROF else ""
    a = Asm()
    hdr = f"; @launch kernel=k1_kernel grid=(256,1,1) block=(512,1,1) lds={K1_LDS}\n"
    a('.amdgcn_target "amdgcn-amd-amdhsa--gfx950"\n.text')
    k1_kernel(a, "k1_kernel")
    a("LCODE_END:")
    txt = hdr + a.text() + '.section .rodata,"a"\n' + kernel_desc("k1_kernel", K1_VGPR, 100)
    open("k1_only.s", "w").write(txt)
```

```python
from asmlib import *
MFMA = "v_mfma_f32_32x32x16_bf16"
MF16 = "v_mfma_f32_16x16x32_bf16"
A_STAGE = 32768
B_RING, B_SLOT = 98304, 12576
CS_OFF = 161184
K1_LDS = 161952
ACC = 64
CSA = 160
FR = 168
FX = 216
K1_VGPR = 256
CP = 228
CNT_OFF = 160000
QSCALE = (20 ** -0.5) * 1.4426950408889634
PROF = False
VAR = ""
def stamp(a, k):
    if PROF:
        a(f"s_memrealtime s[{82+2*k}:{83+2*k}]")
        if k in (1, 2): a(f"s_memtime s[{92+2*k}:{93+2*k}]")
def stamp_out(a, n):
    if PROF:
        a("s_waitcnt vmcnt(0) lgkmcnt(0)")
        a(f"s_memrealtime s[{82+2*n}:{83+2*n}]")
        a("s_waitcnt lgkmcnt(0)")
        for k in range(8):
            a(f"v_mov_b32 v{8+k}, s{82+2*min(k, n)}" if k < 6 else f"v_mov_b32 v{8+k}, s{94+2*(k-6)}")
        a(f"""
s_lshl_b32 s34, s2, 3
s_add_u32 s34, s34, s24
s_lshl_b32 s34, s34, 5
s_add_u32 s34, s34, 0x3000000
v_mov_b32 v16, 0
s_mov_b64 exec, 1
buffer_store_dwordx4 v[8:11], v16, s[16:19], s34 offen
buffer_store_dwordx4 v[12:15], v16, s[16:19], s34 offen offset:16
""")

def gemm(a0, kind):
    def a(t):
        if 'qsc1' in VAR and kind != "GU":
            t = "\n".join((l + " sc1" if ("buffer_store" in l and "v16, s[" not in l) else l) for l in t.split("\n"))
        a0(t)
    L = f"LG{kind}"
    GU = kind == "GU"
    RS = 192 if GU else 320
    GS = 8 * RS + 32
    UP = 4 * GS + 32
    CPR = 12 if GU else 20
    CW = 96 if GU else 80
    ldw = 3072 if GU else 3840
    EVEN = (not GU) and ('noeven' not in VAR)
    VMB = 9 if EVEN else 8
    NA = 2 if GU else 1
    NBF = 3 if GU else 5
    FA = [[FR + 24 * b + 4 * i for i in range(NA)] for b in range(2)]
    FB = [[FR + 24 * b + 4 * NA + 4 * j for j in range(NBF)] for b in range(2)]
    acc = lambda i, j: ACC + 16 * (NBF * i + j)
    a(f"{L}:")
    if GU:
        a(f"""
s_mul_i32 s58, s28, 192
s_and_b32 s57, s24, 3
s_mul_i32 s59, s57, {GS}
s_mul_i32 s60, s81, {UP}
s_add_u32 s59, s59, s60
s_mul_i32 s60, s57, {CW}
s_lshl_b32 s56, s80, 13
""")
    else:
        a(f"""
s_mul_i32 s58, s28, 320
s_lshr_b32 s59, s24, 1
s_mul_i32 s59, s59, {GS}
s_and_b32 s57, s24, 1
s_mul_i32 s57, s57, 1280
s_add_u32 s59, s59, s57
s_mul_i32 s60, s24, {CW}
s_lshl_b32 s56, s24, 12               ; 32*w*128
""")
    magic, sh = (43691, 19) if CPR == 12 else (52429, 20)
    a(f"""
s_add_u32 s59, s59, {B_RING}
s_mov_b32 s62, {ldw}
v_add_u32 v6, s56, v6
v_add_u32 v7, s56, v7
v_add_u32 v8, s56, v8
v_add_u32 v9, s56, v9
""")
    for (vd, add) in ((14, 0), (15, 64)):
        a(f"""
v_add_u32 v24, s60, v1
v_add_u32 v24, {add}, v24
v_mul_u32_u24 v25, {magic}, v24
v_lshrrev_b32 v25, {sh}, v25
v_mul_u32_u24 v26, {CPR}, v25
v_sub_u32 v26, v24, v26
v_mul_lo_u32 v25, v25, s62
v_lshl_add_u32 v25, v26, 4, v25
v_add_u32 v{vd}, s58, v25
""")
        if add: a(f"v_subrev_u32 v{vd}, 1024, v{vd}")
    a(f"""
s_mov_b32 s64, {hex((1 << (CW - 64)) - 1)}
s_mov_b32 s65, 0
s_mov_b32 s30, 0
s_mov_b32 s31, 0
s_mov_b32 s32, 0
s_mov_b32 s33, 0
s_mov_b32 s66, 0
s_mov_b32 s67, 0
""")
    def dmaA(q):
        a(f"""
s_add_u32 m0, s63, s32
s_nop 0
buffer_load_dwordx4 v{10+q}, s[8:11], s30 offen offset:{1024*q} lds
""")
        if q == 3:
            a(f"""
s_add_u32 s32, s32, {A_STAGE}
s_cmp_eq_u32 s32, {3*A_STAGE}
s_cselect_b32 s32, 0, s32
s_add_u32 s30, s30, 128
""")
    def dmaB(q):
        if q == 0:
            a(f"""
s_add_u32 m0, s59, s33
s_nop 0
buffer_load_dwordx4 v14, s[12:15], s31 offen lds
""")
        else:
            a(f"""
s_add_u32 m0, s59, s33
s_mov_b64 exec, s[64:65]
buffer_load_dwordx4 v15, s[12:15], s31 offen offset:1024 lds
s_mov_b64 exec, -1
s_add_u32 s33, s33, {B_SLOT}
s_cmp_eq_u32 s33, {5*B_SLOT}
s_cselect_b32 s33, 0, s33
s_add_u32 s31, s31, {32*ldw}
""")
    JO = 32 if GU else 64
    def reads(nb, ja, ks):
        r = [f"ds_read_b128 {vr(FA[nb][i],4)}, v{6+ja} offset:{4096*i}" for i in range(NA)]
        for j in range(NBF):
            for rr in range(2):
                r.append(f"ds_read_b64_tr_b16 {vr(FB[nb][j]+2*rr,2)}, v16 offset:{2*ks*GS + 4*rr*RS + j*JO}")
        return r
    def xsetup():
        a(f"""
s_add_u32 s69, s67, {B_SLOT}
s_cmp_eq_u32 s69, {5*B_SLOT}
s_cselect_b32 s69, 0, s69
s_cmp_eq_u32 s72, 0
s_cselect_b32 s71, s67, s69
v_add_u32 v19, s67, v17
v_add_u32 v2, s69, v17
v_add_u32 v3, s71, v18
""")
    def xreads():
        r = []
        for e, v in enumerate((19, 2, 3)):
            for rr in range(2):
                r.append(f"ds_read_b64_tr_b16 {vr(FX+4*e+2*rr,2)}, v{v} offset:{4*rr*RS}")
        return r
    def advA_pre():
        a(f"""
s_add_u32 s69, s66, {A_STAGE}
s_cmp_eq_u32 s69, {3*A_STAGE}
s_cselect_b32 s69, 0, s69
s_sub_u32 s68, s69, s66
s_mov_b32 s66, s69
""")
    def advB():
        a(f"""
s_add_u32 s69, s67, {B_SLOT}
s_cmp_eq_u32 s69, {5*B_SLOT}
s_cselect_b32 s69, 0, s69
s_sub_u32 s70, s69, s67
s_mov_b32 s67, s69
v_add_u32 v16, s70, v16
""")
    def mfma(b, i, j):
        d = vr(acc(i, j), 16)
        if kind == "V": return f"{MFMA} {d}, {vr(FA[b][i],4)}, {vr(FB[b][j],4)}, {d}"
        return f"{MFMA} {d}, {vr(FB[b][j],4)}, {vr(FA[b][i],4)}, {d}"
    a("s_waitcnt lgkmcnt(0)")
    if 'stx' in VAR: stamp(a, 3)
    srd(a, 8, 36, 37, 2048 * 640 * 2)
    if GU:
        a(f"""
s_cmp_ge_u32 s24, 4
s_cselect_b32 s12, s46, s44
s_cselect_b32 s13, s47, s45
s_mov_b32 s14, {640*1536*2}
s_mov_b32 s15, 0x00020000
""")
    else:
        srd(a, 12, 38, 39, 640 * 1920 * 2)
    for _ in range(2):
        if EVEN:
            for q in range(4): dmaB(q & 1); dmaA(q)
        else:
            dmaB(0); dmaB(1)
            for q in range(4): dmaA(q)
            dmaB(0); dmaB(1)
    if 'stx' in VAR: stamp(a, 4)
    srd(a, 16, 54, 55, WS_BYTES)
    srd(a, 20, 52, 53, 256)
    NH = UP if GU else 32
    a(f"""
v_bfe_u32 v26, v1, 2, 2
v_mul_u32_u24 v26, {RS}, v26
v_and_b32 v27, 3, v1
v_lshl_add_u32 v26, v27, 3, v26       ; (i>>2)*RS + 8*(i&3)
v_lshrrev_b32 v24, 5, v1
v_mul_u32_u24 v24, {GS}, v24
v_bfe_u32 v27, v1, 4, 1
v_mul_u32_u24 v27, {NH}, v27
v_add3_u32 v16, v24, v26, v27
""")
    if GU: a(f"s_mul_i32 s61, s81, 96\ns_add_u32 s61, s61, {B_RING}")
    else: a(f"s_mov_b32 s61, {B_RING}")
    a("v_add_u32 v16, s61, v16")
    for j in range(ACC, ACC + 16 * NA * NBF): a(f"v_mov_b32 v{j}, 0")
    a("s_waitcnt vmcnt(8) lgkmcnt(0)\ns_barrier")
    stamp(a, 1)
    for r in reads(0, 0, 0): a(r)
    advA_pre()
    a("v_add_u32 v6, s68, v6")
    def step(jj, dma=True, bar=True, vm=None, nxt=True, extra=None, xm_early=False, vm3=6):
        if vm is None: vm = VMB
        b = jj & 1; nb = b ^ 1
        if jj % 2 == 0 and bar: a(f"s_waitcnt vmcnt({vm})\ns_barrier")
        if extra: extra()
        if EVEN and jj == 3 and nxt: a(f"s_waitcnt vmcnt({vm3}) lgkmcnt(0)")
        else: a("s_waitcnt lgkmcnt(0)")
        rd = []
        if nxt:
            if jj % 2 == 1: advB()
            rd = reads(nb, (jj + 1) % 4, (jj + 1) % 2)
        dm = []
        if dma:
            dm = {0: [lambda: dmaB(0), lambda: dmaB(1), lambda: dmaA(0)], 1: [lambda: dmaA(1), lambda: dmaA(2), lambda: dmaA(3)],
                  2: [lambda: dmaB(0)], 3: [lambda: dmaB(1)]}[jj]
            if EVEN: dm = [lambda: dmaB(jj & 1), lambda: dmaA(jj)]
        ms = [mfma(b, i, j) for j in range(NBF) for i in range(NA)]
        xm = [f"{MF16} {vr(CSA,4)}, {vr(FX,4)}, v[20:23], {vr(CSA,4)}",
              f"{MF16} {vr(CSA+4,4)}, {vr(FX+8,4)}, v[20:23], {vr(CSA+4,4)}",
              f"{MF16} {vr(CSA,4)}, {vr(FX+4,4)}, v[20:23], {vr(CSA,4)}"]
        n = len(ms)
        nr = max(1, n - 2)
        pr = pd = 0
        for k, m in enumerate(ms):
            a(m)
            tr = min(len(rd), -(-len(rd) * (k + 1) // nr))
            while pr < tr:
                a(rd[pr]); pr += 1
                if pr == NA and nxt:
                    ja = (jj + 1) % 4
                    if ja == 0: advA_pre()
                    a(f"v_add_u32 v{6+ja}, s68, v{6+ja}")
            td = min(len(dm), (len(dm) * (k + 2)) // n)
            while pd < td: dm[pd](); pd += 1
    a("s_mov_b32 s34, 8")
    a(f"s_branch {L}_in")
    a(".p2align 6")
    a(f"{L}_loop:")
    a(f"s_waitcnt vmcnt({VMB})\ns_barrier")
    a(f"{L}_in:")
    step(0, bar=False); step(1); step(2); step(3)
    a(f"""
s_sub_u32 s34, s34, 1
s_cmp_lg_u32 s34, 0
s_cbranch_scc1 {L}_loop
""")
    stamp(a, 2)
    step(0, dma=False); step(1, dma=False); step(2, dma=False, vm=5 if EVEN else 2); step(3, dma=False, vm3=0)
    def poll_issue():
        a("buffer_load_dword v24, v5, s[20:23], 0 offen sc1")
    def poll_check():
        a(f"""
{L}_poll:
s_waitcnt vmcnt(0)
v_cmp_eq_u32 vcc, 0, v24
s_nop 4
s_cmp_eq_u64 vcc, 0
s_cbranch_scc1 {L}_pollok
s_sleep 2
buffer_load_dword v24, v5, s[20:23], 0 offen sc1
s_branch {L}_poll
{L}_pollok:
""")
        if 'stx' not in VAR: stamp(a, 3)
        if GU: a("s_lshl_b32 s76, s27, 8\ns_lshl_b32 s77, s80, 6\ns_add_u32 s76, s76, s77")
        else: a("s_mov_b32 s76, s29")
        a(f"""
v_and_b32 v25, 31, v1
v_add_u32 v26, s76, v25
v_lshlrev_b32 v26, 2, v26
s_mov_b32 s69, {MBO}
s_mov_b32 s70, {RIO}
""")
        for i in range(NA):
            a(f"buffer_load_dword v{28+i}, v26, s[16:19], s69 offen offset:{128*i} sc1")
        if kind == "V":
            a(f"""
v_lshrrev_b32 v27, 5, v1
v_lshlrev_b32 v27, 2, v27
v_add_u32 v27, s76, v27
v_lshlrev_b32 v27, 2, v27
""")
            for i in range(4):
                a(f"buffer_load_dwordx4 {vr(40+4*i,4)}, v27, s[16:19], s70 offen offset:{32*i} sc1")
        else:
            for i in range(NA):
                a(f"buffer_load_dword v{30+i}, v26, s[16:19], s70 offen offset:{128*i} sc1")
        if GU:
            a(f"""
v_and_b32 v27, 15, v1
v_bfe_u32 v32, v1, 4, 1
v_mul_u32_u24 v32, 1536, v32
v_add_u32 v27, v27, v32
v_lshlrev_b32 v27, 2, v27
s_mul_i32 s69, s28, {96*4}
s_mul_i32 s70, s81, {48*4}
s_add_u32 s69, s69, s70
s_add_u32 s69, s69, {CSO + 1920*4}
""")
            for kq in range(4):
                for j in range(3): a(f"buffer_load_dword v{CP+5*kq+j}, v27, s[16:19], s69 offen offset:{64*j} sc1")
                if kq < 3: a(f"s_add_u32 s69, s69, {4992*4}")
        else:
            a(f"""
v_lshlrev_b32 v32, 2, v25
s_mul_i32 s69, s28, {160*4}
s_add_u32 s69, s69, {CSO}
""")
            for kq in range(4):
                for j in range(5): a(f"buffer_load_dword v{CP+5*kq+j}, v32, s[16:19], s69 offen offset:{128*j} sc1")
                if kq < 3: a(f"s_add_u32 s69, s69, {4992*4}")
    def cs_publish():
        a(f"""
v_and_b32 v27, 15, v1
v_cmp_eq_u32 vcc, 0, v27
v_and_b32 v27, 48, v1
s_lshl_b32 s70, s24, 6
s_add_u32 s70, s70, {CS_OFF}
v_add_u32 v32, s70, v27
s_lshl_b32 s70, s73, 6
s_add_u32 s70, s70, {CS_OFF + 512}
v_add_u32 v33, s70, v27
s_and_saveexec_b64 s[74:75], vcc
ds_write_b128 v32, {vr(CSA,4)}
""")
        if not GU: a(f"s_cmp_ge_u32 s24, 4\ns_cbranch_scc1 {L}_nox")
        for r in range(4): a(f"ds_add_f32 v33, v{CSA+4+r} offset:{4*r}")
        if not GU: a(f"{L}_nox:")
        a("s_mov_b64 exec, -1\ns_waitcnt lgkmcnt(0)\ns_barrier")
        if GU:
            a(f"""
v_and_b32 v27, 15, v1
v_bfe_u32 v32, v1, 4, 1
v_mul_u32_u24 v32, 96, v32
v_add_u32 v27, v27, v32
s_mul_i32 s70, s81, 48
v_add_u32 v27, s70, v27
v_lshlrev_b32 v27, 2, v27
v_add_u32 v27, {CS_OFF}, v27
""")
            for j in range(3): a(f"ds_read_b32 v{34+j}, v27 offset:{64*j}")
        else:
            a(f"v_lshlrev_b32 v27, 2, v25\nv_add_u32 v27, {CS_OFF}, v27")
            for j in range(5): a(f"ds_read_b32 v{34+j}, v27 offset:{128*j}")
    step(0, dma=False, vm=0, extra=poll_issue, xm_early=True); step(1, dma=False, extra=poll_check, xm_early=True)
    step(2, dma=False, bar=False); step(3, dma=False, nxt=False, xm_early=True)
    if 'stx' not in VAR: stamp(a, 4)
    XC = FR
    WC = FR + 8
    a(f"""
s_waitcnt vmcnt(0)
s_mov_b32 s64, -1
s_mov_b32 s65, 0
""")
    for j in range(NBF):
        a(f"v_add_f32 v{34+j}, v{CP+j}, v{CP+5+j}\nv_add_f32 v{CP+10+j}, v{CP+10+j}, v{CP+15+j}\nv_add_f32 v{34+j}, v{34+j}, v{CP+10+j}")
    for i in range(NA):
        a(f"""
v_xor_b32 v24, 0x80000000, v{28+i}
v_lshrrev_b32 v25, 16, v24
v_or_b32 v26, v25, v24
v_cndmask_b32 v{XC+4*i}, 0, v26, s[64:65]
v_cndmask_b32 v{XC+4*i+1}, 0, v25, s[64:65]
v_mov_b32 v{XC+4*i+2}, 0
v_mov_b32 v{XC+4*i+3}, 0
""")
    WCr = [FX, FX + 4, FX + 8, WC, WC + 4]
    for j in range(NBF):
        w = WCr[j]; c = 34 + j
        a(f"""
v_and_b32 v24, 0xffff0000, v{c}
v_sub_f32 v25, v{c}, v24
v_and_b32 v26, 0xffff0000, v25
v_sub_f32 v25, v25, v26
v_lshrrev_b32 v24, 16, v24
v_or_b32 v{w}, v24, v26
v_lshrrev_b32 v{w+1}, 16, v25
v_mov_b32 v{w+2}, 0
v_mov_b32 v{w+3}, 0
""")
        if j == NBF - 1: a("s_nop 1")
        if j >= 1:
            for i in range(NA):
                d = vr(acc(i, j - 1), 16)
                if kind == "V": a(f"{MFMA} {d}, {vr(XC+4*i,4)}, {vr(WCr[j-1],4)}, {d}")
                else: a(f"{MFMA} {d}, {vr(WCr[j-1],4)}, {vr(XC+4*i,4)}, {d}")
    for i in range(NA):
        d = vr(acc(i, NBF - 1), 16)
        if kind == "V": a(f"{MFMA} {d}, {vr(XC+4*i,4)}, {vr(WCr[NBF-1],4)}, {d}")
        else: a(f"{MFMA} {d}, {vr(WCr[NBF-1],4)}, {vr(XC+4*i,4)}, {d}")
    a("s_lshr_b32 s69, s76, 5")
    PK = FR + 16 if False else 24
    if kind == "QK":
        a(f"""
s_cmp_lt_u32 s28, 4
s_cselect_b32 s70, {hex(f32bits(QSCALE))}, 1.0
v_mul_f32 v4, s70, v30
s_cselect_b32 s71, {QF}, {KF}
s_and_b32 s72, s28, 3
s_mul_i32 s72, s72, {8*81920}
s_add_u32 s71, s71, s72
s_mul_i32 s72, s69, 1280
s_add_u32 s71, s71, s72
v_lshlrev_b32 v2, 4, v1
v_and_b32 v3, 31, v1
v_lshlrev_b32 v3, 3, v3
v_lshrrev_b32 v5, 5, v1
s_mov_b32 s72, 81920
v_mul_lo_u32 v5, v5, s72
v_add3_u32 v3, v3, v5, 0
v_add_u32 v3, 1024, v3
""")
        for P in range(4):
            for i in range(20):
                r = ACC + 20 * P + i
                a(f"v_mul_f32 v{r}, v{r}, v4")
            for i in range(10):
                r = ACC + 20 * P + 2 * i
                a(f"v_cvt_pk_bf16_f32 v{PK+10*P+i}, v{r}, v{r+1}")
            a(f"buffer_store_dwordx4 {vr(PK+10*P,4)}, v2, s[16:19], s71 offen")
            a(f"buffer_store_dwordx2 {vr(PK+10*P+4,2)}, v3, s[16:19], s71 offen")
            a(f"s_add_u32 s71, s71, 81920")
            a(f"buffer_store_dwordx4 {vr(PK+10*P+6,4)}, v2, s[16:19], s71 offen")
            a(f"s_add_u32 s71, s71, 81920")
    elif kind == "V":
        PK = FR
        a(f"""
s_sub_u32 s72, s28, 8
s_mul_i32 s72, s72, {8*81920}
s_mul_i32 s71, s69, 1280
s_add_u32 s71, s71, s72
s_add_u32 s71, s71, {VF}
s_mov_b32 s72, 81920
v_and_b32 v2, 31, v1
v_lshrrev_b32 v3, 5, v1
v_mul_u32_u24 v3, 320, v3
""")
        for j in range(5):
            a(f"""
v_add_u32 v24, {32*j}, v2
v_mul_u32_u24 v25, 52429, v24
v_lshrrev_b32 v25, 20, v25
v_mul_u32_u24 v26, 20, v25
v_sub_u32 v26, v24, v26
v_mul_lo_u32 v25, v25, s72
v_lshl_add_u32 v25, v26, 4, v25
v_add_u32 v{28+j}, v25, v3
""")
        for j in range(5):
            for i in range(16):
                r = ACC + 16 * j + i
                a(f"v_mul_f32 v{r}, v{r}, v{40+i}")
            for i in range(8):
                r = ACC + 16 * j + 2 * i
                a(f"v_cvt_pk_bf16_f32 v{PK+8*j+i}, v{r}, v{r+1}")
            a(f"buffer_store_dwordx4 {vr(PK+8*j,4)}, v{28+j}, s[16:19], s71 offen")
            a(f"buffer_store_dwordx4 {vr(PK+8*j+4,4)}, v{28+j}, s[16:19], s71 offen offset:640")
    else:
        PK = 32
        a(f"""
v_mul_f32 v4, v30, v30
v_mul_f32 v5, v31, v31
s_lshl_b32 s71, s69, 1                  ; rowtile16
s_mul_i32 s71, s71, {68*1024}
s_mul_i32 s72, s28, {3*1024}
s_add_u32 s71, s71, s72
s_mul_i32 s72, s81, {3*512}
s_add_u32 s71, s71, s72
s_add_u32 s71, s71, {AF + 20*1024}
s_add_u32 s72, s71, {2*68*1024}
v_bfe_u32 v2, v1, 4, 1
v_mul_u32_u24 v2, {68*1024}, v2
v_and_b32 v3, 15, v1
v_lshl_add_u32 v2, v3, 4, v2
v_lshrrev_b32 v3, 5, v1
v_lshl_add_u32 v2, v3, 8, v2
s_nop 3
""")
        for j in range(3):
            for i in range(2):
                for r in range(8):
                    g = acc(i, j) + r; u = g + 8
                    a(f"v_max_f32 v{g}, 0, v{g}")
                    a(f"v_mul_f32 v{u}, v{u}, v{4+i}")
                    a(f"v_mul_f32 v{g}, v{g}, v{u}")
                for r in range(4):
                    a(f"v_cvt_pk_bf16_f32 v{PK+8*j+4*i+r}, v{acc(i,j)+2*r}, v{acc(i,j)+2*r+1}")
                a(f"buffer_store_dwordx4 {vr(PK+8*j+4*i,4)}, v2, s[16:19], s{71+i} offen offset:{j*512}")
    stamp_out(a, 5)
    a("s_endpgm")

def prep(a):
    X = 64; CX = 48
    a("LP:\ns_waitcnt lgkmcnt(0)")
    srd(a, 8, 36, 37, 2048 * 640 * 2)
    srd(a, 16, 54, 55, WS_BYTES)
    srd(a, 20, 52, 53, 256)
    a(f"""
v_mov_b32 v2, {CNT_OFF}
v_mov_b32 v3, 0
ds_write_b32 v2, v3
s_lshl_b32 s27, s25, 2
s_add_u32 s27, s27, s26               ; p
s_waitcnt lgkmcnt(0)
s_barrier
s_cmp_ge_u32 s24, 5
s_cbranch_scc1 LP_st
s_mul_i32 s30, s27, 5
s_add_u32 s30, s30, s24               ; u
s_cmp_ge_u32 s30, 156
s_cbranch_scc1 LP_flag
s_lshr_b32 s31, s30, 2                ; b
s_and_b32 s30, s30, 3                 ; kq
s_cmp_lt_u32 s31, 27
s_cselect_b32 s12, s44, s46
s_cselect_b32 s13, s45, s47
s_cselect_b32 s56, 15, 27
s_mov_b32 s14, {640*1536*2}
s_mov_b32 s60, 3072
s_cmp_lt_u32 s31, 15
s_cselect_b32 s12, s38, s12
s_cselect_b32 s13, s39, s13
s_cselect_b32 s56, 0, s56
s_cselect_b32 s14, {640*1920*2}, s14
s_cselect_b32 s60, 3840, s60
s_mov_b32 s15, 0x00020000
s_sub_u32 s56, s31, s56
s_lshl_b32 s57, s56, 8
s_mul_i32 s61, s30, 160
v_lshrrev_b32 v6, 4, v1
v_add_u32 v6, s61, v6
v_mul_lo_u32 v6, v6, s60
v_and_b32 v7, 15, v1
v_lshl_add_u32 v6, v7, 4, v6
s_lshl_b32 s62, s60, 2
""")
    for t in range(40):
        a(f"buffer_load_dwordx4 {vr(CX+4*t,4)}, v6, s[12:15], s57 offen")
        a("s_add_u32 s57, s57, s62")
    a("s_mov_b32 s58, 0x00003f80\ns_mov_b32 s59, 0x3f800000")
    for i in range(8): a(f"v_mov_b32 v{16+i}, 0")
    for t in range(40):
        a(f"s_waitcnt vmcnt({39-t})")
        for i in range(4):
            a(f"v_dot2c_f32_bf16 v{16+2*i}, s58, v{CX+4*t+i}\nv_dot2c_f32_bf16 v{17+2*i}, s59, v{CX+4*t+i}")
    a("s_nop 2")
    for i in range(8): a(f"ds_swizzle_b32 v{24+i}, v{16+i} offset:0x401F")
    a("s_waitcnt lgkmcnt(0)")
    for i in range(8): a(f"v_add_f32 v{16+i}, v{16+i}, v{24+i}\nv_mov_b32 v{24+i}, v{16+i}")
    a("s_nop 1")
    for i in range(8): a(f"v_permlane32_swap_b32 v{16+i}, v{24+i}")
    a("s_nop 1")
    for i in range(8): a(f"v_add_f32 v{16+i}, v{16+i}, v{24+i}")
    a(f"""
s_mul_i32 s58, s30, {4992*4}
s_lshl_b32 s59, s31, 9
s_add_u32 s58, s58, s59
s_add_u32 s58, s58, {CSO}
v_lshlrev_b32 v7, 5, v7
s_mov_b64 exec, 0xffff
buffer_store_dwordx4 v[16:19], v7, s[16:19], s58 offen sc1
buffer_store_dwordx4 v[20:23], v7, s[16:19], s58 offen offset:16 sc1
s_mov_b64 exec, -1
s_branch LP_flag
LP_st:
s_cmp_eq_u32 s24, 7
s_cbranch_scc0 LP_st2
s_getpc_b64 s[56:57]
LPC_ref:
s_sub_u32 s12, s56, LPC_ref-k1_kernel
s_subb_u32 s13, s57, 0
s_mov_b32 s14, LCODE_END-k1_kernel
s_mov_b32 s15, 0x00020000
s_mul_i32 s58, s26, 12288
v_lshlrev_b32 v5, 4, v1
buffer_load_dwordx4 v[200:203], v5, s[12:15], s58 offen offset:0
buffer_load_dwordx4 v[200:203], v5, s[12:15], s58 offen offset:1024
buffer_load_dwordx4 v[200:203], v5, s[12:15], s58 offen offset:2048
buffer_load_dwordx4 v[200:203], v5, s[12:15], s58 offen offset:3072
s_add_u32 s58, s58, 4096
buffer_load_dwordx4 v[200:203], v5, s[12:15], s58 offen offset:0
buffer_load_dwordx4 v[200:203], v5, s[12:15], s58 offen offset:1024
buffer_load_dwordx4 v[200:203], v5, s[12:15], s58 offen offset:2048
buffer_load_dwordx4 v[200:203], v5, s[12:15], s58 offen offset:3072
s_add_u32 s58, s58, 4096
buffer_load_dwordx4 v[200:203], v5, s[12:15], s58 offen offset:0
buffer_load_dwordx4 v[200:203], v5, s[12:15], s58 offen offset:1024
buffer_load_dwordx4 v[200:203], v5, s[12:15], s58 offen offset:2048
buffer_load_dwordx4 v[200:203], v5, s[12:15], s58 offen offset:3072
s_branch LP_tr
LP_st2:
s_lshl_b32 s28, s27, 6
s_sub_u32 s29, s24, 5
s_lshl_b32 s29, s29, 5
s_add_u32 s28, s28, s29
v_lshrrev_b32 v2, 3, v1
v_add_u32 v2, s28, v2
v_mul_u32_u24 v3, 1280, v2
v_and_b32 v4, 7, v1
v_lshl_add_u32 v3, v4, 4, v3
s_mov_b32 s57, 0
""")
    for ps in range(4):
        for t in range(10):
            a(f"buffer_load_dwordx4 {vr(CX+40*ps+4*t,4)}, v3, s[8:11], s57 offen offset:{128*t}")
        a(f"s_add_u32 s57, s57, {8*1280}")
    a(f"""
s_mov_b32 s58, 0x3f803f80
v_lshlrev_b32 v2, 2, v2
v_cmp_eq_u32 vcc, 0, v4
s_mov_b32 s32, {MBO}
s_mov_b32 s33, {RIO}
s_mov_b64 s[34:35], vcc
""")
    for i in range(8): a(f"v_mov_b32 v{16+i}, 0")
    for ps in range(4):
        for t in range(10):
            a(f"s_waitcnt vmcnt({39-10*ps-t})")
            for i in range(4):
                r = CX + 40 * ps + 4 * t + i
                a(f"v_dot2c_f32_bf16 v{16+2*ps}, s58, v{r}\nv_dot2c_f32_bf16 v{17+2*ps}, v{r}, v{r}")
    a("s_nop 2")
    for m in (0x041F, 0x081F, 0x101F):
        for i in range(8): a(f"ds_swizzle_b32 v{24+i}, v{16+i} offset:{m}")
        a("s_waitcnt lgkmcnt(0)")
        for i in range(8): a(f"v_add_f32 v{16+i}, v{16+i}, v{24+i}")
    for ps in range(4):
        rinv_calc(a, 16 + 2 * ps, 17 + 2 * ps, 24 + ps, 28 + ps, 32)
    a("s_mov_b64 exec, s[34:35]")
    for ps in range(4):
        a(f"buffer_store_dword v{24+ps}, v2, s[16:19], s32 offen offset:{32*ps} sc1")
        a(f"buffer_store_dword v{28+ps}, v2, s[16:19], s33 offen offset:{32*ps} sc1")
    a("s_mov_b64 exec, -1\nLP_flag:")
    stamp(a, 1)
    a(f"""
s_waitcnt vmcnt(0)
v_mov_b32 v12, 1
v_mov_b32 v13, {CNT_OFF}
s_mov_b64 exec, 1
ds_add_rtn_u32 v14, v13, v12
s_waitcnt lgkmcnt(0)
v_readfirstlane_b32 s56, v14
v_mov_b32 v13, s27
v_lshlrev_b32 v13, 2, v13
s_cmp_lg_u32 s56, 6
s_cbranch_scc1 LP_done
buffer_store_dword v12, v13, s[20:23], 0 offen sc1
LP_done:
s_mov_b64 exec, -1
""")
    stamp(a, 2)
    stamp_out(a, 5)
    a("s_endpgm")
    DEP = 6
    a(f"""
LP_tr:
v_lshrrev_b32 v6, 3, v1
v_mul_u32_u24 v6, 1280, v6
v_and_b32 v7, 7, v1
v_lshl_add_u32 v6, v7, 4, v6
v_add_u32 v7, {8*1280-1024}, v6
v_add_u32 v8, {16*1280-2048}, v6
v_add_u32 v9, {24*1280-3072}, v6
v_lshrrev_b32 v10, 5, v1
v_lshlrev_b32 v10, 4, v10
v_bfe_u32 v11, v1, 4, 1
v_lshl_add_u32 v10, v11, 2, v10
v_bfe_u32 v11, v1, 2, 2
v_add_u32 v10, v10, v11
v_lshlrev_b32 v10, 7, v10
v_and_b32 v11, 3, v1
v_lshl_add_u32 v10, v11, 3, v10
v_lshlrev_b32 v11, 4, v1
s_mov_b32 s56, s27
s_mov_b32 s57, 0
s_mov_b32 s62, s27
s_mov_b32 s63, {-DEP}                 ; iteration
LP_trl:
s_min_u32 s60, s56, 679
s_mul_i32 s58, s60, 52429
s_lshr_b32 s58, s58, 19
s_mul_i32 s59, s58, 10
s_sub_u32 s59, s60, s59
s_cmp_lt_u32 s58, 20
s_cselect_b32 s12, s40, s48
s_cselect_b32 s13, s41, s49
s_mov_b32 s14, {1536*640*2}
s_cselect_b32 s14, {640*640*2}, s14
s_mov_b32 s15, 0x00020000
s_cselect_b32 s60, 0, 20
s_sub_u32 s60, s58, s60
s_mul_i32 s60, s60, {32*1280}
s_lshl_b32 s61, s59, 7
s_add_u32 s60, s60, s61
s_mov_b32 m0, s57
s_add_u32 s57, s57, 4096
buffer_load_dwordx4 v6, s[12:15], s60 offen lds
buffer_load_dwordx4 v7, s[12:15], s60 offen offset:1024 lds
buffer_load_dwordx4 v8, s[12:15], s60 offen offset:2048 lds
buffer_load_dwordx4 v9, s[12:15], s60 offen offset:3072 lds
s_add_u32 s56, s56, 32
s_add_i32 s63, s63, 1
s_cmp_le_i32 s63, 0
s_cbranch_scc1 LP_trl
s_waitcnt vmcnt({4*DEP})
""")
    for jt in range(4):
        for r in range(2):
            a(f"ds_read_b64_tr_b16 {vr(X+4*jt+2*r,2)}, v10 offset:{jt*32 + r*8*128}")
    a(f"""
v_add_u32 v10, 4096, v10
s_mul_i32 s58, s62, 52429
s_lshr_b32 s58, s58, 19
s_mul_i32 s59, s58, 10
s_sub_u32 s59, s62, s59
s_mul_i32 s60, s58, {40*1024}
s_lshl_b32 s61, s59, 12
s_add_u32 s60, s60, s61
s_add_u32 s60, s60, {BF}
s_waitcnt lgkmcnt(0)
""")
    for jt in range(4):
        a(f"buffer_store_dwordx4 {vr(X+4*jt,4)}, v11, s[16:19], s60 offen offset:{jt*1024} sc1")
    a(f"""
s_add_u32 s62, s62, 32
s_cmp_lt_u32 s62, 680
s_cbranch_scc1 LP_trl
""")
    stamp(a, 1); stamp(a, 2)
    stamp_out(a, 5)
    a("s_endpgm")

def k1_kernel(a, name):
    kernel_header(a, name)
    a(f"""
s_cmp_ge_u32 s2, 256
s_cbranch_scc1 LK1_end
""")
    stamp(a, 0)
    a(f"""
s_load_dwordx16 s[36:51], s[0:1], 0
s_load_dwordx4 s[52:55], s[0:1], 64
v_and_b32 v1, 63, v0
v_lshrrev_b32 v2, 6, v0
s_and_b32 s25, s2, 7
v_readfirstlane_b32 s24, v2
s_lshr_b32 s26, s2, 3
s_and_b32 s80, s24, 3
s_lshr_b32 s81, s24, 2
""")
    a(f"""
s_cmp_lt_u32 s26, 4
s_cbranch_scc1 LP
s_sub_u32 s26, s26, 4
s_and_b32 s27, s25, 1
s_lshl_b32 s27, s27, 2
s_and_b32 s28, s26, 3
s_add_u32 s27, s27, s28               ; mblock
s_lshl_b32 s29, s27, 8
s_lshl_b32 s28, s24, 5
s_add_u32 s29, s29, s28
s_lshl_b32 s63, s24, 12
v_and_b32 v5, 31, v1
v_lshlrev_b32 v5, 2, v5
v_lshrrev_b32 v24, 3, v1
v_add_u32 v24, s29, v24
v_mul_u32_u24 v24, 1280, v24
v_lshrrev_b32 v25, 4, v1
v_and_b32 v26, 7, v1
v_xor_b32 v27, v26, v25
v_lshl_add_u32 v10, v27, 4, v24
v_xor_b32 v27, 4, v27
v_lshl_add_u32 v11, v27, 4, v24
v_add_u32 v12, {16*1280-2048}, v10
v_add_u32 v13, {24*1280-3072}, v11
v_add_u32 v11, {8*1280-1024}, v11
v_and_b32 v24, 31, v1
v_lshrrev_b32 v25, 5, v1
v_bfe_u32 v26, v24, 1, 3
v_xor_b32 v26, v26, v25
v_lshlrev_b32 v24, 7, v24
""")
    for j in range(4):
        a(f"v_xor_b32 v27, {2*j}, v26\nv_lshl_add_u32 v{6+j}, v27, 4, v24")
    a(f"""
s_lshr_b32 s26, s26, 2
s_lshr_b32 s56, s25, 1
s_cmp_lt_u32 s26, 3
s_cbranch_scc0 LK1_gu
s_mul_i32 s28, s56, 3
s_add_u32 s28, s28, s26
s_cmp_lt_u32 s28, 8
s_cbranch_scc1 LGQK
s_branch LGV
LK1_gu:
s_lshl_b32 s28, s56, 2
s_add_u32 s28, s28, s26
s_sub_u32 s28, s28, 3
s_branch LGGU
LK1_end:
s_endpgm
""")
    gemm(a, "QK"); gemm(a, "V"); gemm(a, "GU")
    prep(a)

if __name__ == "__main__":
    import sys
    PROF = len(sys.argv) > 1
    VAR = sys.argv[1] if PROF else ""
    a = Asm()
    hdr = f"; @launch kernel=k1_kernel grid=(256,1,1) block=(512,1,1) lds={K1_LDS}\n"
    a('.amdgcn_target "amdgcn-amd-amdhsa--gfx950"\n.text')
    k1_kernel(a, "k1_kernel")
    a("LCODE_END:")
    txt = hdr + a.text() + '.section .rodata,"a"\n' + kernel_desc("k1_kernel", K1_VGPR, 100)
    open("k1_only.s", "w").write(txt)
```

```python
from asmlib import *
MFMA = "v_mfma_f32_32x32x16_bf16"
MF16 = "v_mfma_f32_16x16x32_bf16"
A_STAGE = 32768
B_RING, B_SLOT = 98304, 12576
CS_OFF = 161184
K1_LDS = 161952
ACC = 64
CSA = 160
FR = 168
FX = 216
K1_VGPR = 256
CP = 228
CNT_OFF = 160000
QSCALE = (20 ** -0.5) * 1.4426950408889634
PROF = False
VAR = ""
def stamp(a, k):
    if PROF:
        a(f"s_memrealtime s[{82+2*k}:{83+2*k}]")
        if k in (1, 2): a(f"s_memtime s[{92+2*k}:{93+2*k}]")
def stamp_out(a, n):
    if PROF:
        a("s_waitcnt vmcnt(0) lgkmcnt(0)")
        a(f"s_memrealtime s[{82+2*n}:{83+2*n}]")
        a("s_waitcnt lgkmcnt(0)")
        for k in range(8):
            a(f"v_mov_b32 v{8+k}, s{82+2*min(k, n)}" if k < 6 else f"v_mov_b32 v{8+k}, s{94+2*(k-6)}")
        a(f"""
s_lshl_b32 s34, s2, 3
s_add_u32 s34, s34, s24
s_lshl_b32 s34, s34, 5
s_add_u32 s34, s34, 0x3000000
v_mov_b32 v16, 0
s_mov_b64 exec, 1
buffer_store_dwordx4 v[8:11], v16, s[16:19], s34 offen
buffer_store_dwordx4 v[12:15], v16, s[16:19], s34 offen offset:16
""")

def gemm(a0, kind):
    def a(t):
        if 'qsc1' in VAR and kind != "GU":
            t = "\n".join((l + " sc1" if ("buffer_store" in l and "v16, s[" not in l) else l) for l in t.split("\n"))
        a0(t)
    L = f"LG{kind}"
    GU = kind == "GU"
    RS = 192 if GU else 320
    GS = 8 * RS + 32
    UP = 4 * GS + 32
    CPR = 12 if GU else 20
    CW = 96 if GU else 80
    ldw = 3072 if GU else 3840
    EVEN = (not GU) and ('noeven' not in VAR)
    VMB = 9 if EVEN else 8
    NA = 2 if GU else 1
    NBF = 3 if GU else 5
    FA = [[FR + 24 * b + 4 * i for i in range(NA)] for b in range(2)]
    FB = [[FR + 24 * b + 4 * NA + 4 * j for j in range(NBF)] for b in range(2)]
    acc = lambda i, j: ACC + 16 * (NBF * i + j)
    a(f"{L}:")
    if GU:
        a(f"""
s_mul_i32 s58, s28, 192
s_and_b32 s57, s24, 3
s_mul_i32 s59, s57, {GS}
s_mul_i32 s60, s81, {UP}
s_add_u32 s59, s59, s60
s_mul_i32 s60, s57, {CW}
s_lshl_b32 s56, s80, 13
""")
    else:
        a(f"""
s_mul_i32 s58, s28, 320
s_lshr_b32 s59, s24, 1
s_mul_i32 s59, s59, {GS}
s_and_b32 s57, s24, 1
s_mul_i32 s57, s57, 1280
s_add_u32 s59, s59, s57
s_mul_i32 s60, s24, {CW}
s_lshl_b32 s56, s24, 12               ; 32*w*128
""")
    magic, sh = (43691, 19) if CPR == 12 else (52429, 20)
    a(f"""
s_add_u32 s59, s59, {B_RING}
s_mov_b32 s62, {ldw}
v_add_u32 v6, s56, v6
v_add_u32 v7, s56, v7
v_add_u32 v8, s56, v8
v_add_u32 v9, s56, v9
""")
    for (vd, add) in ((14, 0), (15, 64)):
        a(f"""
v_add_u32 v24, s60, v1
v_add_u32 v24, {add}, v24
v_mul_u32_u24 v25, {magic}, v24
v_lshrrev_b32 v25, {sh}, v25
v_mul_u32_u24 v26, {CPR}, v25
v_sub_u32 v26, v24, v26
v_mul_lo_u32 v25, v25, s62
v_lshl_add_u32 v25, v26, 4, v25
v_add_u32 v{vd}, s58, v25
""")
        if add: a(f"v_subrev_u32 v{vd}, 1024, v{vd}")
    a(f"""
s_mov_b32 s64, {hex((1 << (CW - 64)) - 1)}
s_mov_b32 s65, 0
s_mov_b32 s30, 0
s_mov_b32 s31, 0
s_mov_b32 s32, 0
s_mov_b32 s33, 0
s_mov_b32 s66, 0
s_mov_b32 s67, 0
""")
    def dmaA(q):
        a(f"""
s_add_u32 m0, s63, s32
s_nop 0
buffer_load_dwordx4 v{10+q}, s[8:11], s30 offen offset:{1024*q} lds
""")
        if q == 3:
            a(f"""
s_add_u32 s32, s32, {A_STAGE}
s_cmp_eq_u32 s32, {3*A_STAGE}
s_cselect_b32 s32, 0, s32
s_add_u32 s30, s30, 128
""")
    def dmaB(q):
        if q == 0:
            a(f"""
s_add_u32 m0, s59, s33
s_nop 0
buffer_load_dwordx4 v14, s[12:15], s31 offen lds
""")
        else:
            a(f"""
s_add_u32 m0, s59, s33
s_mov_b64 exec, s[64:65]
buffer_load_dwordx4 v15, s[12:15], s31 offen offset:1024 lds
s_mov_b64 exec, -1
s_add_u32 s33, s33, {B_SLOT}
s_cmp_eq_u32 s33, {5*B_SLOT}
s_cselect_b32 s33, 0, s33
s_add_u32 s31, s31, {32*ldw}
""")
    JO = 32 if GU else 64
    def reads(nb, ja, ks):
        r = [f"ds_read_b128 {vr(FA[nb][i],4)}, v{6+ja} offset:{4096*i}" for i in range(NA)]
        for j in range(NBF):
            for rr in range(2):
                r.append(f"ds_read_b64_tr_b16 {vr(FB[nb][j]+2*rr,2)}, v16 offset:{2*ks*GS + 4*rr*RS + j*JO}")
        return r
    def xsetup():
        a(f"""
s_add_u32 s69, s67, {B_SLOT}
s_cmp_eq_u32 s69, {5*B_SLOT}
s_cselect_b32 s69, 0, s69
s_cmp_eq_u32 s72, 0
s_cselect_b32 s71, s67, s69
v_add_u32 v19, s67, v17
v_add_u32 v2, s69, v17
v_add_u32 v3, s71, v18
""")
    def xreads():
        r = []
        for e, v in enumerate((19, 2, 3)):
            for rr in range(2):
                r.append(f"ds_read_b64_tr_b16 {vr(FX+4*e+2*rr,2)}, v{v} offset:{4*rr*RS}")
        return r
    def advA_pre():
        a(f"""
s_add_u32 s69, s66, {A_STAGE}
s_cmp_eq_u32 s69, {3*A_STAGE}
s_cselect_b32 s69, 0, s69
s_sub_u32 s68, s69, s66
s_mov_b32 s66, s69
""")
    def advB():
        a(f"""
s_add_u32 s69, s67, {B_SLOT}
s_cmp_eq_u32 s69, {5*B_SLOT}
s_cselect_b32 s69, 0, s69
s_sub_u32 s70, s69, s67
s_mov_b32 s67, s69
v_add_u32 v16, s70, v16
""")
    def mfma(b, i, j):
        d = vr(acc(i, j), 16)
        if kind == "V": return f"{MFMA} {d}, {vr(FA[b][i],4)}, {vr(FB[b][j],4)}, {d}"
        return f"{MFMA} {d}, {vr(FB[b][j],4)}, {vr(FA[b][i],4)}, {d}"
    a("s_waitcnt lgkmcnt(0)")
    if 'stx' in VAR: stamp(a, 3)
    srd(a, 8, 36, 37, 2048 * 640 * 2)
    if GU:
        a(f"""
s_cmp_ge_u32 s24, 4
s_cselect_b32 s12, s46, s44
s_cselect_b32 s13, s47, s45
s_mov_b32 s14, {640*1536*2}
s_mov_b32 s15, 0x00020000
""")
    else:
        srd(a, 12, 38, 39, 640 * 1920 * 2)
    for _ in range(2):
        if EVEN:
            for q in range(4): dmaB(q & 1); dmaA(q)
        else:
            dmaB(0); dmaB(1)
            for q in range(4): dmaA(q)
            dmaB(0); dmaB(1)
    if 'stx' in VAR: stamp(a, 4)
    srd(a, 16, 54, 55, WS_BYTES)
    srd(a, 20, 52, 53, 256)
    NH = UP if GU else 32
    a(f"""
v_bfe_u32 v26, v1, 2, 2
v_mul_u32_u24 v26, {RS}, v26
v_and_b32 v27, 3, v1
v_lshl_add_u32 v26, v27, 3, v26       ; (i>>2)*RS + 8*(i&3)
v_lshrrev_b32 v24, 5, v1
v_mul_u32_u24 v24, {GS}, v24
v_bfe_u32 v27, v1, 4, 1
v_mul_u32_u24 v27, {NH}, v27
v_add3_u32 v16, v24, v26, v27
""")
    if GU: a(f"s_mul_i32 s61, s81, 96\ns_add_u32 s61, s61, {B_RING}")
    else: a(f"s_mov_b32 s61, {B_RING}")
    a("v_add_u32 v16, s61, v16")
    for j in range(ACC, ACC + 16 * NA * NBF): a(f"v_mov_b32 v{j}, 0")
    a("s_waitcnt vmcnt(8) lgkmcnt(0)\ns_barrier")
    stamp(a, 1)
    for r in reads(0, 0, 0): a(r)
    advA_pre()
    a("v_add_u32 v6, s68, v6")
    def step(jj, dma=True, bar=True, vm=None, nxt=True, extra=None, xm_early=False, vm3=6):
        if vm is None: vm = VMB
        b = jj & 1; nb = b ^ 1
        if jj % 2 == 0 and bar: a(f"s_waitcnt vmcnt({vm})\ns_barrier")
        if extra: extra()
        if EVEN and jj == 3 and nxt: a(f"s_waitcnt vmcnt({vm3}) lgkmcnt(0)")
        else: a("s_waitcnt lgkmcnt(0)")
        rd = []
        if nxt:
            if jj % 2 == 1: advB()
            rd = reads(nb, (jj + 1) % 4, (jj + 1) % 2)
        dm = []
        if dma:
            dm = {0: [lambda: dmaB(0), lambda: dmaB(1), lambda: dmaA(0)], 1: [lambda: dmaA(1), lambda: dmaA(2), lambda: dmaA(3)],
                  2: [lambda: dmaB(0)], 3: [lambda: dmaB(1)]}[jj]
            if EVEN: dm = [lambda: dmaB(jj & 1), lambda: dmaA(jj)]
        ms = [mfma(b, i, j) for j in range(NBF) for i in range(NA)]
        xm = [f"{MF16} {vr(CSA,4)}, {vr(FX,4)}, v[20:23], {vr(CSA,4)}",
              f"{MF16} {vr(CSA+4,4)}, {vr(FX+8,4)}, v[20:23], {vr(CSA+4,4)}",
              f"{MF16} {vr(CSA,4)}, {vr(FX+4,4)}, v[20:23], {vr(CSA,4)}"]
        n = len(ms)
        nr = max(1, n - 2)
        pr = pd = 0
        for k, m in enumerate(ms):
            a(m)
            tr = min(len(rd), -(-len(rd) * (k + 1) // nr))
            while pr < tr:
                a(rd[pr]); pr += 1
                if pr == NA and nxt:
                    ja = (jj + 1) % 4
                    if ja == 0: advA_pre()
                    a(f"v_add_u32 v{6+ja}, s68, v{6+ja}")
            td = min(len(dm), (len(dm) * (k + 2)) // n)
            while pd < td: dm[pd](); pd += 1
    a("s_mov_b32 s34, 8")
    a(f"s_branch {L}_in")
    a(".p2align 6")
    a(f"{L}_loop:")
    a(f"s_waitcnt vmcnt({VMB})\ns_barrier")
    a(f"{L}_in:")
    step(0, bar=False); step(1); step(2); step(3)
    a(f"""
s_sub_u32 s34, s34, 1
s_cmp_lg_u32 s34, 0
s_cbranch_scc1 {L}_loop
""")
    stamp(a, 2)
    step(0, dma=False); step(1, dma=False); step(2, dma=False, vm=5 if EVEN else 2); step(3, dma=False, vm3=0)
    def poll_issue():
        a("buffer_load_dword v24, v5, s[20:23], 0 offen sc1")
    def poll_check(final=False):
        sfx = "F" if final else ""
        if final:
            a(f"""
s_cmp_lg_u32 s78, 0
s_cbranch_scc1 {L}_have
{L}_poll:
buffer_load_dword v24, v5, s[20:23], 0 offen sc1
s_waitcnt vmcnt(0)
v_cmp_eq_u32 vcc, 0, v24
s_nop 4
s_cmp_eq_u64 vcc, 0
s_cbranch_scc1 {L}_pollok
s_sleep 1
s_branch {L}_poll
{L}_pollok:
""")
        else:
            a(f"""
s_waitcnt vmcnt(0)
v_cmp_eq_u32 vcc, 0, v24
s_mov_b32 s78, 0
s_nop 3
s_cmp_eq_u64 vcc, 0
s_cbranch_scc0 {L}_notyet
s_mov_b32 s78, 1
""")
        if 'stx' not in VAR: stamp(a, 3)
        if GU: a("s_lshl_b32 s76, s27, 8\ns_lshl_b32 s77, s80, 6\ns_add_u32 s76, s76, s77")
        else: a("s_mov_b32 s76, s29")
        a(f"""
v_and_b32 v25, 31, v1
v_add_u32 v26, s76, v25
v_lshlrev_b32 v26, 2, v26
s_mov_b32 s69, {MBO}
s_mov_b32 s70, {RIO}
""")
        for i in range(NA):
            a(f"buffer_load_dword v{28+i}, v26, s[16:19], s69 offen offset:{128*i} sc1")
        if kind == "V":
            a(f"""
v_lshrrev_b32 v27, 5, v1
v_lshlrev_b32 v27, 2, v27
v_add_u32 v27, s76, v27
v_lshlrev_b32 v27, 2, v27
""")
            for i in range(4):
                a(f"buffer_load_dwordx4 {vr(40+4*i,4)}, v27, s[16:19], s70 offen offset:{32*i} sc1")
        else:
            for i in range(NA):
                a(f"buffer_load_dword v{30+i}, v26, s[16:19], s70 offen offset:{128*i} sc1")
        if GU:
            a(f"""
v_and_b32 v27, 15, v1
v_bfe_u32 v32, v1, 4, 1
v_mul_u32_u24 v32, 1536, v32
v_add_u32 v27, v27, v32
v_lshlrev_b32 v27, 2, v27
s_mul_i32 s69, s28, {96*4}
s_mul_i32 s70, s81, {48*4}
s_add_u32 s69, s69, s70
s_add_u32 s69, s69, {CSO + 1920*4}
""")
            for kq in range(4):
                for j in range(3): a(f"buffer_load_dword v{CP+5*kq+j}, v27, s[16:19], s69 offen offset:{64*j} sc1")
                if kq < 3: a(f"s_add_u32 s69, s69, {4992*4}")
        else:
            a(f"""
v_lshlrev_b32 v32, 2, v25
s_mul_i32 s69, s28, {160*4}
s_add_u32 s69, s69, {CSO}
""")
            for kq in range(4):
                for j in range(5): a(f"buffer_load_dword v{CP+5*kq+j}, v32, s[16:19], s69 offen offset:{128*j} sc1")
                if kq < 3: a(f"s_add_u32 s69, s69, {4992*4}")
        a(f"{L}_have:" if final else f"{L}_notyet:")
    def cs_publish():
        a(f"""
v_and_b32 v27, 15, v1
v_cmp_eq_u32 vcc, 0, v27
v_and_b32 v27, 48, v1
s_lshl_b32 s70, s24, 6
s_add_u32 s70, s70, {CS_OFF}
v_add_u32 v32, s70, v27
s_lshl_b32 s70, s73, 6
s_add_u32 s70, s70, {CS_OFF + 512}
v_add_u32 v33, s70, v27
s_and_saveexec_b64 s[74:75], vcc
ds_write_b128 v32, {vr(CSA,4)}
""")
        if not GU: a(f"s_cmp_ge_u32 s24, 4\ns_cbranch_scc1 {L}_nox")
        for r in range(4): a(f"ds_add_f32 v33, v{CSA+4+r} offset:{4*r}")
        if not GU: a(f"{L}_nox:")
        a("s_mov_b64 exec, -1\ns_waitcnt lgkmcnt(0)\ns_barrier")
        if GU:
            a(f"""
v_and_b32 v27, 15, v1
v_bfe_u32 v32, v1, 4, 1
v_mul_u32_u24 v32, 96, v32
v_add_u32 v27, v27, v32
s_mul_i32 s70, s81, 48
v_add_u32 v27, s70, v27
v_lshlrev_b32 v27, 2, v27
v_add_u32 v27, {CS_OFF}, v27
""")
            for j in range(3): a(f"ds_read_b32 v{34+j}, v27 offset:{64*j}")
        else:
            a(f"v_lshlrev_b32 v27, 2, v25\nv_add_u32 v27, {CS_OFF}, v27")
            for j in range(5): a(f"ds_read_b32 v{34+j}, v27 offset:{128*j}")
    step(0, dma=False, vm=0, extra=poll_issue, xm_early=True); step(1, dma=False, extra=poll_check, xm_early=True)
    step(2, dma=False, bar=False); step(3, dma=False, nxt=False, xm_early=True)
    if 'stx' not in VAR: stamp(a, 4)
    poll_check(final=True)
    XC = FR
    WC = FR + 8
    a(f"""
s_waitcnt vmcnt(0)
s_mov_b32 s64, -1
s_mov_b32 s65, 0
""")
    for j in range(NBF):
        a(f"v_add_f32 v{34+j}, v{CP+j}, v{CP+5+j}\nv_add_f32 v{CP+10+j}, v{CP+10+j}, v{CP+15+j}\nv_add_f32 v{34+j}, v{34+j}, v{CP+10+j}")
    for i in range(NA):
        a(f"""
v_xor_b32 v24, 0x80000000, v{28+i}
v_lshrrev_b32 v25, 16, v24
v_or_b32 v26, v25, v24
v_cndmask_b32 v{XC+4*i}, 0, v26, s[64:65]
v_cndmask_b32 v{XC+4*i+1}, 0, v25, s[64:65]
v_mov_b32 v{XC+4*i+2}, 0
v_mov_b32 v{XC+4*i+3}, 0
""")
    WCr = [FX, FX + 4, FX + 8, WC, WC + 4]
    for j in range(NBF):
        w = WCr[j]; c = 34 + j
        a(f"""
v_and_b32 v24, 0xffff0000, v{c}
v_sub_f32 v25, v{c}, v24
v_and_b32 v26, 0xffff0000, v25
v_sub_f32 v25, v25, v26
v_lshrrev_b32 v24, 16, v24
v_or_b32 v{w}, v24, v26
v_lshrrev_b32 v{w+1}, 16, v25
v_mov_b32 v{w+2}, 0
v_mov_b32 v{w+3}, 0
""")
        if j == NBF - 1: a("s_nop 1")
        if j >= 1:
            for i in range(NA):
                d = vr(acc(i, j - 1), 16)
                if kind == "V": a(f"{MFMA} {d}, {vr(XC+4*i,4)}, {vr(WCr[j-1],4)}, {d}")
                else: a(f"{MFMA} {d}, {vr(WCr[j-1],4)}, {vr(XC+4*i,4)}, {d}")
    for i in range(NA):
        d = vr(acc(i, NBF - 1), 16)
        if kind == "V": a(f"{MFMA} {d}, {vr(XC+4*i,4)}, {vr(WCr[NBF-1],4)}, {d}")
        else: a(f"{MFMA} {d}, {vr(WCr[NBF-1],4)}, {vr(XC+4*i,4)}, {d}")
    a("s_lshr_b32 s69, s76, 5")
    PK = FR + 16 if False else 24
    if kind == "QK":
        a(f"""
s_cmp_lt_u32 s28, 4
s_cselect_b32 s70, {hex(f32bits(QSCALE))}, 1.0
v_mul_f32 v4, s70, v30
s_cselect_b32 s71, {QF}, {KF}
s_and_b32 s72, s28, 3
s_mul_i32 s72, s72, {8*81920}
s_add_u32 s71, s71, s72
s_mul_i32 s72, s69, 1280
s_add_u32 s71, s71, s72
v_lshlrev_b32 v2, 4, v1
v_and_b32 v3, 31, v1
v_lshlrev_b32 v3, 3, v3
v_lshrrev_b32 v5, 5, v1
s_mov_b32 s72, 81920
v_mul_lo_u32 v5, v5, s72
v_add3_u32 v3, v3, v5, 0
v_add_u32 v3, 1024, v3
""")
        for P in range(4):
            for i in range(20):
                r = ACC + 20 * P + i
                a(f"v_mul_f32 v{r}, v{r}, v4")
            for i in range(10):
                r = ACC + 20 * P + 2 * i
                a(f"v_cvt_pk_bf16_f32 v{PK+10*P+i}, v{r}, v{r+1}")
            a(f"buffer_store_dwordx4 {vr(PK+10*P,4)}, v2, s[16:19], s71 offen")
            a(f"buffer_store_dwordx2 {vr(PK+10*P+4,2)}, v3, s[16:19], s71 offen")
            a(f"s_add_u32 s71, s71, 81920")
            a(f"buffer_store_dwordx4 {vr(PK+10*P+6,4)}, v2, s[16:19], s71 offen")
            a(f"s_add_u32 s71, s71, 81920")
    elif kind == "V":
        PK = FR
        a(f"""
s_sub_u32 s72, s28, 8
s_mul_i32 s72, s72, {8*81920}
s_mul_i32 s71, s69, 1280
s_add_u32 s71, s71, s72
s_add_u32 s71, s71, {VF}
s_mov_b32 s72, 81920
v_and_b32 v2, 31, v1
v_lshrrev_b32 v3, 5, v1
v_mul_u32_u24 v3, 320, v3
""")
        for j in range(5):
            a(f"""
v_add_u32 v24, {32*j}, v2
v_mul_u32_u24 v25, 52429, v24
v_lshrrev_b32 v25, 20, v25
v_mul_u32_u24 v26, 20, v25
v_sub_u32 v26, v24, v26
v_mul_lo_u32 v25, v25, s72
v_lshl_add_u32 v25, v26, 4, v25
v_add_u32 v{28+j}, v25, v3
""")
        for j in range(5):
            for i in range(16):
                r = ACC + 16 * j + i
                a(f"v_mul_f32 v{r}, v{r}, v{40+i}")
            for i in range(8):
                r = ACC + 16 * j + 2 * i
                a(f"v_cvt_pk_bf16_f32 v{PK+8*j+i}, v{r}, v{r+1}")
            a(f"buffer_store_dwordx4 {vr(PK+8*j,4)}, v{28+j}, s[16:19], s71 offen")
            a(f"buffer_store_dwordx4 {vr(PK+8*j+4,4)}, v{28+j}, s[16:19], s71 offen offset:640")
    else:
        PK = 32
        a(f"""
v_mul_f32 v4, v30, v30
v_mul_f32 v5, v31, v31
s_lshl_b32 s71, s69, 1                  ; rowtile16
s_mul_i32 s71, s71, {68*1024}
s_mul_i32 s72, s28, {3*1024}
s_add_u32 s71, s71, s72
s_mul_i32 s72, s81, {3*512}
s_add_u32 s71, s71, s72
s_add_u32 s71, s71, {AF + 20*1024}
s_add_u32 s72, s71, {2*68*1024}
v_bfe_u32 v2, v1, 4, 1
v_mul_u32_u24 v2, {68*1024}, v2
v_and_b32 v3, 15, v1
v_lshl_add_u32 v2, v3, 4, v2
v_lshrrev_b32 v3, 5, v1
v_lshl_add_u32 v2, v3, 8, v2
s_nop 3
""")
        for j in range(3):
            for i in range(2):
                for r in range(8):
                    g = acc(i, j) + r; u = g + 8
                    a(f"v_max_f32 v{g}, 0, v{g}")
                    a(f"v_mul_f32 v{u}, v{u}, v{4+i}")
                    a(f"v_mul_f32 v{g}, v{g}, v{u}")
                for r in range(4):
                    a(f"v_cvt_pk_bf16_f32 v{PK+8*j+4*i+r}, v{acc(i,j)+2*r}, v{acc(i,j)+2*r+1}")
                a(f"buffer_store_dwordx4 {vr(PK+8*j+4*i,4)}, v2, s[16:19], s{71+i} offen offset:{j*512}")
    stamp_out(a, 5)
    a("s_endpgm")

def prep(a):
    X = 64; CX = 48
    a("LP:\ns_waitcnt lgkmcnt(0)")
    srd(a, 8, 36, 37, 2048 * 640 * 2)
    srd(a, 16, 54, 55, WS_BYTES)
    srd(a, 20, 52, 53, 256)
    a(f"""
v_mov_b32 v2, {CNT_OFF}
v_mov_b32 v3, 0
ds_write_b32 v2, v3
s_lshl_b32 s27, s25, 2
s_add_u32 s27, s27, s26               ; p
s_waitcnt lgkmcnt(0)
s_barrier
s_cmp_ge_u32 s24, 5
s_cbranch_scc1 LP_st
s_mul_i32 s30, s27, 5
s_add_u32 s30, s30, s24               ; u
s_cmp_ge_u32 s30, 156
s_cbranch_scc1 LP_flag
s_lshr_b32 s31, s30, 2                ; b
s_and_b32 s30, s30, 3                 ; kq
s_cmp_lt_u32 s31, 27
s_cselect_b32 s12, s44, s46
s_cselect_b32 s13, s45, s47
s_cselect_b32 s56, 15, 27
s_mov_b32 s14, {640*1536*2}
s_mov_b32 s60, 3072
s_cmp_lt_u32 s31, 15
s_cselect_b32 s12, s38, s12
s_cselect_b32 s13, s39, s13
s_cselect_b32 s56, 0, s56
s_cselect_b32 s14, {640*1920*2}, s14
s_cselect_b32 s60, 3840, s60
s_mov_b32 s15, 0x00020000
s_sub_u32 s56, s31, s56
s_lshl_b32 s57, s56, 8
s_mul_i32 s61, s30, 160
v_lshrrev_b32 v6, 4, v1
v_add_u32 v6, s61, v6
v_mul_lo_u32 v6, v6, s60
v_and_b32 v7, 15, v1
v_lshl_add_u32 v6, v7, 4, v6
s_lshl_b32 s62, s60, 2
""")
    LOOPED = 'loop' in VAR
    NBUF, PER = (4, 5) if LOOPED else (8, 5)
    a("s_mov_b32 s58, 0x00003f80\ns_mov_b32 s59, 0x3f800000\ns_mov_b32 s61, 0")
    for i in range(8): a(f"v_mov_b32 v{16+i}, 0")
    for t in range(NBUF * PER):
        a(f"buffer_load_dwordx4 {vr(CX+4*t,4)}, v6, s[12:15], s57 offen")
        a("s_add_u32 s57, s57, s62")
    a("LP_csl:")
    for bf in range(NBUF):
        a(f"s_waitcnt vmcnt({(NBUF-1)*PER if LOOPED else (NBUF-1-bf)*PER})")
        for t in range(PER):
            for i in range(4):
                r = CX + 4 * (bf * PER + t) + i
                a(f"v_dot2c_f32_bf16 v{16+2*i}, s58, v{r}\nv_dot2c_f32_bf16 v{17+2*i}, s59, v{r}")
        for t in range(PER if LOOPED else 0):
            a(f"buffer_load_dwordx4 {vr(CX+4*(bf*PER+t),4)}, v6, s[12:15], s57 offen")
            a("s_add_u32 s57, s57, s62")
    if LOOPED: a(f"""
s_mov_b32 s57, 0x7ffffff0
s_mov_b32 s62, 0
s_add_u32 s61, s61, 1
s_cmp_lt_u32 s61, 2
s_cbranch_scc1 LP_csl
""")
    a("s_nop 2")
    for i in range(8): a(f"ds_swizzle_b32 v{24+i}, v{16+i} offset:0x401F")
    a("s_waitcnt lgkmcnt(0)")
    for i in range(8): a(f"v_add_f32 v{16+i}, v{16+i}, v{24+i}\nv_mov_b32 v{24+i}, v{16+i}")
    a("s_nop 1")
    for i in range(8): a(f"v_permlane32_swap_b32 v{16+i}, v{24+i}")
    a("s_nop 1")
    for i in range(8): a(f"v_add_f32 v{16+i}, v{16+i}, v{24+i}")
    a(f"""
s_mul_i32 s58, s30, {4992*4}
s_lshl_b32 s59, s31, 9
s_add_u32 s58, s58, s59
s_add_u32 s58, s58, {CSO}
v_lshlrev_b32 v7, 5, v7
s_mov_b64 exec, 0xffff
buffer_store_dwordx4 v[16:19], v7, s[16:19], s58 offen sc1
buffer_store_dwordx4 v[20:23], v7, s[16:19], s58 offen offset:16 sc1
s_mov_b64 exec, -1
s_branch LP_flag
LP_st:
s_cmp_eq_u32 s24, 7
s_cbranch_scc0 LP_st2
s_getpc_b64 s[56:57]
LPC_ref:
s_sub_u32 s12, s56, LPC_ref-k1_kernel
s_subb_u32 s13, s57, 0
s_mov_b32 s14, LCODE_END-k1_kernel
s_mov_b32 s15, 0x00020000
s_mul_i32 s58, s26, 12288
v_lshlrev_b32 v5, 4, v1
buffer_load_dwordx4 v[200:203], v5, s[12:15], s58 offen offset:0
buffer_load_dwordx4 v[200:203], v5, s[12:15], s58 offen offset:1024
buffer_load_dwordx4 v[200:203], v5, s[12:15], s58 offen offset:2048
buffer_load_dwordx4 v[200:203], v5, s[12:15], s58 offen offset:3072
s_add_u32 s58, s58, 4096
buffer_load_dwordx4 v[200:203], v5, s[12:15], s58 offen offset:0
buffer_load_dwordx4 v[200:203], v5, s[12:15], s58 offen offset:1024
buffer_load_dwordx4 v[200:203], v5, s[12:15], s58 offen offset:2048
buffer_load_dwordx4 v[200:203], v5, s[12:15], s58 offen offset:3072
s_add_u32 s58, s58, 4096
buffer_load_dwordx4 v[200:203], v5, s[12:15], s58 offen offset:0
buffer_load_dwordx4 v[200:203], v5, s[12:15], s58 offen offset:1024
buffer_load_dwordx4 v[200:203], v5, s[12:15], s58 offen offset:2048
buffer_load_dwordx4 v[200:203], v5, s[12:15], s58 offen offset:3072
s_branch LP_tr
LP_st2:
s_lshl_b32 s28, s27, 6
s_sub_u32 s29, s24, 5
s_lshl_b32 s29, s29, 5
s_add_u32 s28, s28, s29
v_lshrrev_b32 v2, 3, v1
v_add_u32 v2, s28, v2
v_mul_u32_u24 v3, 1280, v2
v_and_b32 v4, 7, v1
v_lshl_add_u32 v3, v4, 4, v3
s_mov_b32 s57, 0
""")
    for ps in range(4):
        for t in range(10):
            a(f"buffer_load_dwordx4 {vr(CX+40*ps+4*t,4)}, v3, s[8:11], s57 offen offset:{128*t}")
        a(f"s_add_u32 s57, s57, {8*1280}")
    a(f"""
s_mov_b32 s58, 0x3f803f80
v_lshlrev_b32 v2, 2, v2
v_cmp_eq_u32 vcc, 0, v4
s_mov_b32 s32, {MBO}
s_mov_b32 s33, {RIO}
s_mov_b64 s[34:35], vcc
""")
    for i in range(8): a(f"v_mov_b32 v{16+i}, 0")
    for ps in range(4):
        for t in range(10):
            if t % 5 == 0: a(f"s_waitcnt vmcnt({35-10*ps-t})")
            for i in range(4):
                r = CX + 40 * ps + 4 * t + i
                a(f"v_dot2c_f32_bf16 v{16+2*ps}, s58, v{r}\nv_dot2c_f32_bf16 v{17+2*ps}, v{r}, v{r}")
    a("s_nop 2")
    for m in (0x041F, 0x081F, 0x101F):
        for i in range(8): a(f"ds_swizzle_b32 v{24+i}, v{16+i} offset:{m}")
        a("s_waitcnt lgkmcnt(0)")
        for i in range(8): a(f"v_add_f32 v{16+i}, v{16+i}, v{24+i}")
    for ps in range(4):
        rinv_calc(a, 16 + 2 * ps, 17 + 2 * ps, 24 + ps, 28 + ps, 32)
    a("s_mov_b64 exec, s[34:35]")
    for ps in range(4):
        a(f"buffer_store_dword v{24+ps}, v2, s[16:19], s32 offen offset:{32*ps} sc1")
        a(f"buffer_store_dword v{28+ps}, v2, s[16:19], s33 offen offset:{32*ps} sc1")
    a("s_mov_b64 exec, -1\nLP_flag:")
    stamp(a, 1)
    a(f"""
s_waitcnt vmcnt(0)
v_mov_b32 v12, 1
v_mov_b32 v13, {CNT_OFF}
s_mov_b64 exec, 1
ds_add_rtn_u32 v14, v13, v12
s_waitcnt lgkmcnt(0)
v_readfirstlane_b32 s56, v14
v_mov_b32 v13, s27
v_lshlrev_b32 v13, 2, v13
s_cmp_lg_u32 s56, 6
s_cbranch_scc1 LP_done
buffer_store_dword v12, v13, s[20:23], 0 offen sc1
LP_done:
s_mov_b64 exec, -1
""")
    stamp(a, 2)
    stamp_out(a, 5)
    a("s_endpgm")
    DEP = 10
    TRSTART = 5 if 'tr5' in VAR else (7 if 'tr7' in VAR else 6)
    a(f"""
LP_tr:
v_lshrrev_b32 v6, 3, v1
v_mul_u32_u24 v6, 1280, v6
v_and_b32 v7, 7, v1
v_lshl_add_u32 v6, v7, 4, v6
v_add_u32 v7, {8*1280-1024}, v6
v_add_u32 v8, {16*1280-2048}, v6
v_add_u32 v9, {24*1280-3072}, v6
v_lshrrev_b32 v10, 5, v1
v_lshlrev_b32 v10, 4, v10
v_bfe_u32 v11, v1, 4, 1
v_lshl_add_u32 v10, v11, 2, v10
v_bfe_u32 v11, v1, 2, 2
v_add_u32 v10, v10, v11
v_lshlrev_b32 v10, 7, v10
v_and_b32 v11, 3, v1
v_lshl_add_u32 v10, v11, 3, v10
v_lshlrev_b32 v11, 4, v1
v_mov_b32 v13, {CNT_OFF}
LP_wt:
s_sleep 8
ds_read_b32 v14, v13
s_waitcnt lgkmcnt(0)
v_readfirstlane_b32 s56, v14
s_nop 3
s_cmp_lt_u32 s56, {TRSTART}
s_cbranch_scc1 LP_wt
s_mov_b32 s56, s27
s_mov_b32 s57, 0
s_mov_b32 s62, s27
s_mov_b32 s63, {-DEP}                 ; iteration
LP_trl:
s_min_u32 s60, s56, 679
s_mul_i32 s58, s60, 52429
s_lshr_b32 s58, s58, 19
s_mul_i32 s59, s58, 10
s_sub_u32 s59, s60, s59
s_cmp_lt_u32 s58, 20
s_cselect_b32 s12, s40, s48
s_cselect_b32 s13, s41, s49
s_mov_b32 s14, {1536*640*2}
s_cselect_b32 s14, {640*640*2}, s14
s_mov_b32 s15, 0x00020000
s_cselect_b32 s60, 0, 20
s_sub_u32 s60, s58, s60
s_mul_i32 s60, s60, {32*1280}
s_lshl_b32 s61, s59, 7
s_add_u32 s60, s60, s61
s_mov_b32 m0, s57
s_add_u32 s57, s57, 4096
buffer_load_dwordx4 v6, s[12:15], s60 offen lds
buffer_load_dwordx4 v7, s[12:15], s60 offen offset:1024 lds
buffer_load_dwordx4 v8, s[12:15], s60 offen offset:2048 lds
buffer_load_dwordx4 v9, s[12:15], s60 offen offset:3072 lds
s_add_u32 s56, s56, 32
s_add_i32 s63, s63, 1
s_cmp_le_i32 s63, 0
s_cbranch_scc1 LP_trl
s_waitcnt vmcnt({4*DEP})
""")
    for jt in range(4):
        for r in range(2):
            a(f"ds_read_b64_tr_b16 {vr(X+4*jt+2*r,2)}, v10 offset:{jt*32 + r*8*128}")
    a(f"""
v_add_u32 v10, 4096, v10
s_mul_i32 s58, s62, 52429
s_lshr_b32 s58, s58, 19
s_mul_i32 s59, s58, 10
s_sub_u32 s59, s62, s59
s_mul_i32 s60, s58, {40*1024}
s_lshl_b32 s61, s59, 12
s_add_u32 s60, s60, s61
s_add_u32 s60, s60, {BF}
s_waitcnt lgkmcnt(0)
""")
    for jt in range(4):
        a(f"buffer_store_dwordx4 {vr(X+4*jt,4)}, v11, s[16:19], s60 offen offset:{jt*1024} sc1")
    a(f"""
s_add_u32 s62, s62, 32
s_cmp_lt_u32 s62, 680
s_cbranch_scc1 LP_trl
""")
    stamp(a, 1); stamp(a, 2)
    stamp_out(a, 5)
    a("s_endpgm")

def k1_kernel(a, name):
    kernel_header(a, name)
    a(f"""
s_cmp_ge_u32 s2, 256
s_cbranch_scc1 LK1_end
""")
    stamp(a, 0)
    a(f"""
s_load_dwordx16 s[36:51], s[0:1], 0
s_load_dwordx4 s[52:55], s[0:1], 64
v_and_b32 v1, 63, v0
v_lshrrev_b32 v2, 6, v0
s_and_b32 s25, s2, 7
v_readfirstlane_b32 s24, v2
s_lshr_b32 s26, s2, 3
s_and_b32 s80, s24, 3
s_lshr_b32 s81, s24, 2
""")
    a(f"""
s_cmp_lt_u32 s26, 4
s_cbranch_scc1 LP
s_sub_u32 s26, s26, 4
s_and_b32 s27, s25, 1
s_lshl_b32 s27, s27, 2
s_and_b32 s28, s26, 3
s_add_u32 s27, s27, s28               ; mblock
s_lshl_b32 s29, s27, 8
s_lshl_b32 s28, s24, 5
s_add_u32 s29, s29, s28
s_lshl_b32 s63, s24, 12
v_and_b32 v5, 31, v1
v_lshlrev_b32 v5, 2, v5
v_lshrrev_b32 v24, 3, v1
v_add_u32 v24, s29, v24
v_mul_u32_u24 v24, 1280, v24
v_lshrrev_b32 v25, 4, v1
v_and_b32 v26, 7, v1
v_xor_b32 v27, v26, v25
v_lshl_add_u32 v10, v27, 4, v24
v_xor_b32 v27, 4, v27
v_lshl_add_u32 v11, v27, 4, v24
v_add_u32 v12, {16*1280-2048}, v10
v_add_u32 v13, {24*1280-3072}, v11
v_add_u32 v11, {8*1280-1024}, v11
v_and_b32 v24, 31, v1
v_lshrrev_b32 v25, 5, v1
v_bfe_u32 v26, v24, 1, 3
v_xor_b32 v26, v26, v25
v_lshlrev_b32 v24, 7, v24
""")
    for j in range(4):
        a(f"v_xor_b32 v27, {2*j}, v26\nv_lshl_add_u32 v{6+j}, v27, 4, v24")
    a(f"""
s_lshr_b32 s26, s26, 2
s_lshr_b32 s56, s25, 1
s_cmp_lt_u32 s26, 3
s_cbranch_scc0 LK1_gu
s_mul_i32 s28, s56, 3
s_add_u32 s28, s28, s26
s_cmp_lt_u32 s28, 8
s_cbranch_scc1 LGQK
s_branch LGV
LK1_gu:
s_lshl_b32 s28, s56, 2
s_add_u32 s28, s28, s26
s_sub_u32 s28, s28, 3
s_branch LGGU
LK1_end:
s_endpgm
""")
    gemm(a, "QK"); gemm(a, "V"); gemm(a, "GU")
    prep(a)

if __name__ == "__main__":
    import sys
    PROF = len(sys.argv) > 1
    VAR = sys.argv[1] if PROF else ""
    a = Asm()
    hdr = f"; @launch kernel=k1_kernel grid=(256,1,1) block=(512,1,1) lds={K1_LDS}\n"
    a('.amdgcn_target "amdgcn-amd-amdhsa--gfx950"\n.text')
    k1_kernel(a, "k1_kernel")
    a("LCODE_END:")
    txt = hdr + a.text() + '.section .rodata,"a"\n' + kernel_desc("k1_kernel", K1_VGPR, 100)
    open("k1_only.s", "w").write(txt)
```

```python
from asmlib import *
MFMA = "v_mfma_f32_32x32x16_bf16"
MF16 = "v_mfma_f32_16x16x32_bf16"
A_STAGE = 32768
B_RING, B_SLOT = 98304, 12576
CS_OFF = 161184
K1_LDS = 161952
ACC = 64
CSA = 160
FR = 168
FX = 216
K1_VGPR = 256
CP = 228
CNT_OFF = 160000
QSCALE = (20 ** -0.5) * 1.4426950408889634
PROF = False
VAR = ""
def stamp(a, k):
    if PROF:
        a(f"s_memrealtime s[{82+2*k}:{83+2*k}]")
        if k in (1, 2): a(f"s_memtime s[{92+2*k}:{93+2*k}]")
def stamp_out(a, n):
    if PROF:
        a("s_waitcnt vmcnt(0) lgkmcnt(0)")
        a(f"s_memrealtime s[{82+2*n}:{83+2*n}]")
        a("s_waitcnt lgkmcnt(0)")
        for k in range(8):
            a(f"v_mov_b32 v{8+k}, s{82+2*min(k, n)}" if k < 6 else f"v_mov_b32 v{8+k}, s{94+2*(k-6)}")
        a(f"""
s_lshl_b32 s34, s2, 3
s_add_u32 s34, s34, s24
s_lshl_b32 s34, s34, 5
s_add_u32 s34, s34, 0x3000000
v_mov_b32 v16, 0
s_mov_b64 exec, 1
buffer_store_dwordx4 v[8:11], v16, s[16:19], s34 offen
buffer_store_dwordx4 v[12:15], v16, s[16:19], s34 offen offset:16
""")

def gemm(a0, kind):
    def a(t):
        if 'qsc1' in VAR and kind != "GU":
            t = "\n".join((l + " sc1" if ("buffer_store" in l and "v16, s[" not in l) else l) for l in t.split("\n"))
        a0(t)
    L = f"LG{kind}"
    GU = kind == "GU"
    RS = 192 if GU else 320
    GS = 8 * RS + 32
    UP = 4 * GS + 32
    CPR = 12 if GU else 20
    CW = 96 if GU else 80
    ldw = 3072 if GU else 3840
    EVEN = (not GU) and ('noeven' not in VAR)
    VMB = 9 if EVEN else 8
    NA = 2 if GU else 1
    NBF = 3 if GU else 5
    FA = [[FR + 24 * b + 4 * i for i in range(NA)] for b in range(2)]
    FB = [[FR + 24 * b + 4 * NA + 4 * j for j in range(NBF)] for b in range(2)]
    acc = lambda i, j: ACC + 16 * (NBF * i + j)
    a(f"{L}:")
    if GU:
        a(f"""
s_mul_i32 s58, s28, 192
s_and_b32 s57, s24, 3
s_mul_i32 s59, s57, {GS}
s_mul_i32 s60, s81, {UP}
s_add_u32 s59, s59, s60
s_mul_i32 s60, s57, {CW}
s_lshl_b32 s56, s80, 13
""")
    else:
        a(f"""
s_mul_i32 s58, s28, 320
s_lshr_b32 s59, s24, 1
s_mul_i32 s59, s59, {GS}
s_and_b32 s57, s24, 1
s_mul_i32 s57, s57, 1280
s_add_u32 s59, s59, s57
s_mul_i32 s60, s24, {CW}
s_lshl_b32 s56, s24, 12               ; 32*w*128
""")
    magic, sh = (43691, 19) if CPR == 12 else (52429, 20)
    a(f"""
s_add_u32 s59, s59, {B_RING}
s_mov_b32 s62, {ldw}
v_add_u32 v6, s56, v6
v_add_u32 v7, s56, v7
v_add_u32 v8, s56, v8
v_add_u32 v9, s56, v9
""")
    for (vd, add) in ((14, 0), (15, 64)):
        a(f"""
v_add_u32 v24, s60, v1
v_add_u32 v24, {add}, v24
v_mul_u32_u24 v25, {magic}, v24
v_lshrrev_b32 v25, {sh}, v25
v_mul_u32_u24 v26, {CPR}, v25
v_sub_u32 v26, v24, v26
v_mul_lo_u32 v25, v25, s62
v_lshl_add_u32 v25, v26, 4, v25
v_add_u32 v{vd}, s58, v25
""")
        if add: a(f"v_subrev_u32 v{vd}, 1024, v{vd}")
    a(f"""
s_mov_b32 s64, {hex((1 << (CW - 64)) - 1)}
s_mov_b32 s65, 0
s_mov_b32 s30, 0
s_mov_b32 s31, 0
s_mov_b32 s32, 0
s_mov_b32 s33, 0
s_mov_b32 s66, 0
s_mov_b32 s67, 0
""")
    def dmaA(q):
        a(f"""
s_add_u32 m0, s63, s32
s_nop 0
buffer_load_dwordx4 v{10+q}, s[8:11], s30 offen offset:{1024*q} lds
""")
        if q == 3:
            a(f"""
s_add_u32 s32, s32, {A_STAGE}
s_cmp_eq_u32 s32, {3*A_STAGE}
s_cselect_b32 s32, 0, s32
s_add_u32 s30, s30, 128
""")
    def dmaB(q):
        if q == 0:
            a(f"""
s_add_u32 m0, s59, s33
s_nop 0
buffer_load_dwordx4 v14, s[12:15], s31 offen lds
""")
        else:
            a(f"""
s_add_u32 m0, s59, s33
s_mov_b64 exec, s[64:65]
buffer_load_dwordx4 v15, s[12:15], s31 offen offset:1024 lds
s_mov_b64 exec, -1
s_add_u32 s33, s33, {B_SLOT}
s_cmp_eq_u32 s33, {5*B_SLOT}
s_cselect_b32 s33, 0, s33
s_add_u32 s31, s31, {32*ldw}
""")
    JO = 32 if GU else 64
    def reads(nb, ja, ks):
        r = [f"ds_read_b128 {vr(FA[nb][i],4)}, v{6+ja} offset:{4096*i}" for i in range(NA)]
        for j in range(NBF):
            for rr in range(2):
                r.append(f"ds_read_b64_tr_b16 {vr(FB[nb][j]+2*rr,2)}, v16 offset:{2*ks*GS + 4*rr*RS + j*JO}")
        return r
    def xsetup():
        a(f"""
s_add_u32 s69, s67, {B_SLOT}
s_cmp_eq_u32 s69, {5*B_SLOT}
s_cselect_b32 s69, 0, s69
s_cmp_eq_u32 s72, 0
s_cselect_b32 s71, s67, s69
v_add_u32 v19, s67, v17
v_add_u32 v2, s69, v17
v_add_u32 v3, s71, v18
""")
    def xreads():
        r = []
        for e, v in enumerate((19, 2, 3)):
            for rr in range(2):
                r.append(f"ds_read_b64_tr_b16 {vr(FX+4*e+2*rr,2)}, v{v} offset:{4*rr*RS}")
        return r
    def advA_pre():
        a(f"""
s_add_u32 s69, s66, {A_STAGE}
s_cmp_eq_u32 s69, {3*A_STAGE}
s_cselect_b32 s69, 0, s69
s_sub_u32 s68, s69, s66
s_mov_b32 s66, s69
""")
    def advB():
        a(f"""
s_add_u32 s69, s67, {B_SLOT}
s_cmp_eq_u32 s69, {5*B_SLOT}
s_cselect_b32 s69, 0, s69
s_sub_u32 s70, s69, s67
s_mov_b32 s67, s69
v_add_u32 v16, s70, v16
""")
    def mfma(b, i, j):
        d = vr(acc(i, j), 16)
        if kind == "V": return f"{MFMA} {d}, {vr(FA[b][i],4)}, {vr(FB[b][j],4)}, {d}"
        return f"{MFMA} {d}, {vr(FB[b][j],4)}, {vr(FA[b][i],4)}, {d}"
    a("s_waitcnt lgkmcnt(0)")
    if 'stx' in VAR: stamp(a, 3)
    srd(a, 8, 36, 37, 2048 * 640 * 2)
    if GU:
        a(f"""
s_cmp_ge_u32 s24, 4
s_cselect_b32 s12, s46, s44
s_cselect_b32 s13, s47, s45
s_mov_b32 s14, {640*1536*2}
s_mov_b32 s15, 0x00020000
""")
    else:
        srd(a, 12, 38, 39, 640 * 1920 * 2)
    for _ in range(2):
        if EVEN:
            for q in range(4): dmaB(q & 1); dmaA(q)
        else:
            dmaB(0); dmaB(1)
            for q in range(4): dmaA(q)
            dmaB(0); dmaB(1)
    if 'stx' in VAR: stamp(a, 4)
    srd(a, 16, 54, 55, WS_BYTES)
    srd(a, 20, 52, 53, 256)
    NH = UP if GU else 32
    a(f"""
v_bfe_u32 v26, v1, 2, 2
v_mul_u32_u24 v26, {RS}, v26
v_and_b32 v27, 3, v1
v_lshl_add_u32 v26, v27, 3, v26       ; (i>>2)*RS + 8*(i&3)
v_lshrrev_b32 v24, 5, v1
v_mul_u32_u24 v24, {GS}, v24
v_bfe_u32 v27, v1, 4, 1
v_mul_u32_u24 v27, {NH}, v27
v_add3_u32 v16, v24, v26, v27
""")
    if GU: a(f"s_mul_i32 s61, s81, 96\ns_add_u32 s61, s61, {B_RING}")
    else: a(f"s_mov_b32 s61, {B_RING}")
    a("v_add_u32 v16, s61, v16")
    for j in range(ACC, ACC + 16 * NA * NBF): a(f"v_mov_b32 v{j}, 0")
    a("s_waitcnt vmcnt(8) lgkmcnt(0)\ns_barrier")
    stamp(a, 1)
    for r in reads(0, 0, 0): a(r)
    advA_pre()
    a("v_add_u32 v6, s68, v6")
    def step(jj, dma=True, bar=True, vm=None, nxt=True, extra=None, xm_early=False, vm3=6):
        if vm is None: vm = VMB
        b = jj & 1; nb = b ^ 1
        if jj % 2 == 0 and bar: a(f"s_waitcnt vmcnt({vm})\ns_barrier")
        if extra: extra()
        if EVEN and jj == 3 and nxt: a(f"s_waitcnt vmcnt({vm3}) lgkmcnt(0)")
        else: a("s_waitcnt lgkmcnt(0)")
        rd = []
        if nxt:
            if jj % 2 == 1: advB()
            rd = reads(nb, (jj + 1) % 4, (jj + 1) % 2)
        dm = []
        if dma:
            dm = {0: [lambda: dmaB(0), lambda: dmaB(1), lambda: dmaA(0)], 1: [lambda: dmaA(1), lambda: dmaA(2), lambda: dmaA(3)],
                  2: [lambda: dmaB(0)], 3: [lambda: dmaB(1)]}[jj]
            if EVEN: dm = [lambda: dmaB(jj & 1), lambda: dmaA(jj)]
        ms = [mfma(b, i, j) for j in range(NBF) for i in range(NA)]
        xm = [f"{MF16} {vr(CSA,4)}, {vr(FX,4)}, v[20:23], {vr(CSA,4)}",
              f"{MF16} {vr(CSA+4,4)}, {vr(FX+8,4)}, v[20:23], {vr(CSA+4,4)}",
              f"{MF16} {vr(CSA,4)}, {vr(FX+4,4)}, v[20:23], {vr(CSA,4)}"]
        n = len(ms)
        nr = max(1, n - 2)
        pr = pd = 0
        for k, m in enumerate(ms):
            a(m)
            tr = min(len(rd), -(-len(rd) * (k + 1) // nr))
            while pr < tr:
                a(rd[pr]); pr += 1
                if pr == NA and nxt:
                    ja = (jj + 1) % 4
                    if ja == 0: advA_pre()
                    a(f"v_add_u32 v{6+ja}, s68, v{6+ja}")
            td = min(len(dm), (len(dm) * (k + 2)) // n)
            while pd < td: dm[pd](); pd += 1
    a("s_mov_b32 s34, 8")
    a(f"s_branch {L}_in")
    a(".p2align 6")
    a(f"{L}_loop:")
    a(f"s_waitcnt vmcnt({VMB})\ns_barrier")
    a(f"{L}_in:")
    step(0, bar=False); step(1); step(2); step(3)
    a(f"""
s_sub_u32 s34, s34, 1
s_cmp_lg_u32 s34, 0
s_cbranch_scc1 {L}_loop
""")
    stamp(a, 2)
    step(0, dma=False); step(1, dma=False); step(2, dma=False, vm=5 if EVEN else 2); step(3, dma=False, vm3=0)
    def poll_issue():
        a("buffer_load_dword v24, v5, s[20:23], 0 offen sc1")
    def poll_check(final=False):
        sfx = "F" if final else ""
        if final:
            a(f"""
s_cmp_lg_u32 s78, 0
s_cbranch_scc1 {L}_have
{L}_poll:
buffer_load_dword v24, v5, s[20:23], 0 offen sc1
s_waitcnt vmcnt(0)
v_cmp_eq_u32 vcc, 0, v24
s_nop 4
s_cmp_eq_u64 vcc, 0
s_cbranch_scc1 {L}_pollok
s_sleep 1
s_branch {L}_poll
{L}_pollok:
""")
        else:
            a(f"""
s_waitcnt vmcnt(0)
v_cmp_eq_u32 vcc, 0, v24
s_mov_b32 s78, 0
s_nop 3
s_cmp_eq_u64 vcc, 0
s_cbranch_scc0 {L}_notyet
s_mov_b32 s78, 1
""")
        if 'stx' not in VAR: stamp(a, 3)
        if GU: a("s_lshl_b32 s76, s27, 8\ns_lshl_b32 s77, s80, 6\ns_add_u32 s76, s76, s77")
        else: a("s_mov_b32 s76, s29")
        a(f"""
v_and_b32 v25, 31, v1
v_add_u32 v26, s76, v25
v_lshlrev_b32 v26, 2, v26
s_mov_b32 s69, {MBO}
s_mov_b32 s70, {RIO}
""")
        for i in range(NA):
            a(f"buffer_load_dword v{28+i}, v26, s[16:19], s69 offen offset:{128*i} sc1")
        if kind == "V":
            a(f"""
v_lshrrev_b32 v27, 5, v1
v_lshlrev_b32 v27, 2, v27
v_add_u32 v27, s76, v27
v_lshlrev_b32 v27, 2, v27
""")
            for i in range(4):
                a(f"buffer_load_dwordx4 {vr(40+4*i,4)}, v27, s[16:19], s70 offen offset:{32*i} sc1")
        else:
            for i in range(NA):
                a(f"buffer_load_dword v{30+i}, v26, s[16:19], s70 offen offset:{128*i} sc1")
        if GU:
            a(f"""
v_and_b32 v27, 15, v1
v_bfe_u32 v32, v1, 4, 1
v_mul_u32_u24 v32, 1536, v32
v_add_u32 v27, v27, v32
v_lshlrev_b32 v27, 2, v27
s_mul_i32 s69, s28, {96*4}
s_mul_i32 s70, s81, {48*4}
s_add_u32 s69, s69, s70
s_add_u32 s69, s69, {CSO + 1920*4}
""")
            for kq in range(4):
                for j in range(3): a(f"buffer_load_dword v{CP+5*kq+j}, v27, s[16:19], s69 offen offset:{64*j} sc1")
                if kq < 3: a(f"s_add_u32 s69, s69, {4992*4}")
        else:
            a(f"""
v_lshlrev_b32 v32, 2, v25
s_mul_i32 s69, s28, {160*4}
s_add_u32 s69, s69, {CSO}
""")
            for kq in range(4):
                for j in range(5): a(f"buffer_load_dword v{CP+5*kq+j}, v32, s[16:19], s69 offen offset:{128*j} sc1")
                if kq < 3: a(f"s_add_u32 s69, s69, {4992*4}")
        a(f"{L}_have:" if final else f"{L}_notyet:")
    def cs_publish():
        a(f"""
v_and_b32 v27, 15, v1
v_cmp_eq_u32 vcc, 0, v27
v_and_b32 v27, 48, v1
s_lshl_b32 s70, s24, 6
s_add_u32 s70, s70, {CS_OFF}
v_add_u32 v32, s70, v27
s_lshl_b32 s70, s73, 6
s_add_u32 s70, s70, {CS_OFF + 512}
v_add_u32 v33, s70, v27
s_and_saveexec_b64 s[74:75], vcc
ds_write_b128 v32, {vr(CSA,4)}
""")
        if not GU: a(f"s_cmp_ge_u32 s24, 4\ns_cbranch_scc1 {L}_nox")
        for r in range(4): a(f"ds_add_f32 v33, v{CSA+4+r} offset:{4*r}")
        if not GU: a(f"{L}_nox:")
        a("s_mov_b64 exec, -1\ns_waitcnt lgkmcnt(0)\ns_barrier")
        if GU:
            a(f"""
v_and_b32 v27, 15, v1
v_bfe_u32 v32, v1, 4, 1
v_mul_u32_u24 v32, 96, v32
v_add_u32 v27, v27, v32
s_mul_i32 s70, s81, 48
v_add_u32 v27, s70, v27
v_lshlrev_b32 v27, 2, v27
v_add_u32 v27, {CS_OFF}, v27
""")
            for j in range(3): a(f"ds_read_b32 v{34+j}, v27 offset:{64*j}")
        else:
            a(f"v_lshlrev_b32 v27, 2, v25\nv_add_u32 v27, {CS_OFF}, v27")
            for j in range(5): a(f"ds_read_b32 v{34+j}, v27 offset:{128*j}")
    step(0, dma=False, vm=0, extra=poll_issue, xm_early=True); step(1, dma=False, extra=poll_check, xm_early=True)
    step(2, dma=False, bar=False); step(3, dma=False, nxt=False, xm_early=True)
    if 'stx' not in VAR: stamp(a, 4)
    poll_check(final=True)
    XC = FR
    WC = FR + 8
    a(f"""
s_waitcnt vmcnt(0)
s_mov_b32 s64, -1
s_mov_b32 s65, 0
""")
    for j in range(NBF):
        a(f"v_add_f32 v{34+j}, v{CP+j}, v{CP+5+j}\nv_add_f32 v{CP+10+j}, v{CP+10+j}, v{CP+15+j}\nv_add_f32 v{34+j}, v{34+j}, v{CP+10+j}")
    for i in range(NA):
        a(f"""
v_xor_b32 v24, 0x80000000, v{28+i}
v_lshrrev_b32 v25, 16, v24
v_or_b32 v26, v25, v24
v_cndmask_b32 v{XC+4*i}, 0, v26, s[64:65]
v_cndmask_b32 v{XC+4*i+1}, 0, v25, s[64:65]
v_mov_b32 v{XC+4*i+2}, 0
v_mov_b32 v{XC+4*i+3}, 0
""")
    WCr = [FX, FX + 4, FX + 8, WC, WC + 4]
    for j in range(NBF):
        w = WCr[j]; c = 34 + j
        a(f"""
v_and_b32 v24, 0xffff0000, v{c}
v_sub_f32 v25, v{c}, v24
v_and_b32 v26, 0xffff0000, v25
v_sub_f32 v25, v25, v26
v_lshrrev_b32 v24, 16, v24
v_or_b32 v{w}, v24, v26
v_lshrrev_b32 v{w+1}, 16, v25
v_mov_b32 v{w+2}, 0
v_mov_b32 v{w+3}, 0
""")
        if j == NBF - 1: a("s_nop 1")
        if j >= 1:
            for i in range(NA):
                d = vr(acc(i, j - 1), 16)
                if kind == "V": a(f"{MFMA} {d}, {vr(XC+4*i,4)}, {vr(WCr[j-1],4)}, {d}")
                else: a(f"{MFMA} {d}, {vr(WCr[j-1],4)}, {vr(XC+4*i,4)}, {d}")
    for i in range(NA):
        d = vr(acc(i, NBF - 1), 16)
        if kind == "V": a(f"{MFMA} {d}, {vr(XC+4*i,4)}, {vr(WCr[NBF-1],4)}, {d}")
        else: a(f"{MFMA} {d}, {vr(WCr[NBF-1],4)}, {vr(XC+4*i,4)}, {d}")
    a("s_lshr_b32 s69, s76, 5")
    PK = FR + 16 if False else 24
    if kind == "QK":
        a(f"""
s_cmp_lt_u32 s28, 4
s_cselect_b32 s70, {hex(f32bits(QSCALE))}, 1.0
v_mul_f32 v4, s70, v30
s_cselect_b32 s71, {QF}, {KF}
s_and_b32 s72, s28, 3
s_mul_i32 s72, s72, {8*81920}
s_add_u32 s71, s71, s72
s_mul_i32 s72, s69, 1280
s_add_u32 s71, s71, s72
v_lshlrev_b32 v2, 4, v1
v_and_b32 v3, 31, v1
v_lshlrev_b32 v3, 3, v3
v_lshrrev_b32 v5, 5, v1
s_mov_b32 s72, 81920
v_mul_lo_u32 v5, v5, s72
v_add3_u32 v3, v3, v5, 0
v_add_u32 v3, 1024, v3
""")
        for P in range(4):
            for i in range(20):
                r = ACC + 20 * P + i
                a(f"v_mul_f32 v{r}, v{r}, v4")
            for i in range(10):
                r = ACC + 20 * P + 2 * i
                a(f"v_cvt_pk_bf16_f32 v{PK+10*P+i}, v{r}, v{r+1}")
            a(f"buffer_store_dwordx4 {vr(PK+10*P,4)}, v2, s[16:19], s71 offen")
            a(f"buffer_store_dwordx2 {vr(PK+10*P+4,2)}, v3, s[16:19], s71 offen")
            a(f"s_add_u32 s71, s71, 81920")
            a(f"buffer_store_dwordx4 {vr(PK+10*P+6,4)}, v2, s[16:19], s71 offen")
            a(f"s_add_u32 s71, s71, 81920")
    elif kind == "V":
        PK = FR
        a(f"""
s_sub_u32 s72, s28, 8
s_mul_i32 s72, s72, {8*81920}
s_mul_i32 s71, s69, 1280
s_add_u32 s71, s71, s72
s_add_u32 s71, s71, {VF}
s_mov_b32 s72, 81920
v_and_b32 v2, 31, v1
v_lshrrev_b32 v3, 5, v1
v_mul_u32_u24 v3, 320, v3
""")
        for j in range(5):
            a(f"""
v_add_u32 v24, {32*j}, v2
v_mul_u32_u24 v25, 52429, v24
v_lshrrev_b32 v25, 20, v25
v_mul_u32_u24 v26, 20, v25
v_sub_u32 v26, v24, v26
v_mul_lo_u32 v25, v25, s72
v_lshl_add_u32 v25, v26, 4, v25
v_add_u32 v{28+j}, v25, v3
""")
        for j in range(5):
            for i in range(16):
                r = ACC + 16 * j + i
                a(f"v_mul_f32 v{r}, v{r}, v{40+i}")
            for i in range(8):
                r = ACC + 16 * j + 2 * i
                a(f"v_cvt_pk_bf16_f32 v{PK+8*j+i}, v{r}, v{r+1}")
            a(f"buffer_store_dwordx4 {vr(PK+8*j,4)}, v{28+j}, s[16:19], s71 offen")
            a(f"buffer_store_dwordx4 {vr(PK+8*j+4,4)}, v{28+j}, s[16:19], s71 offen offset:640")
    else:
        PK = 32
        a(f"""
v_mul_f32 v4, v30, v30
v_mul_f32 v5, v31, v31
s_lshl_b32 s71, s69, 1                  ; rowtile16
s_mul_i32 s71, s71, {68*1024}
s_mul_i32 s72, s28, {3*1024}
s_add_u32 s71, s71, s72
s_mul_i32 s72, s81, {3*512}
s_add_u32 s71, s71, s72
s_add_u32 s71, s71, {AF + 20*1024}
s_add_u32 s72, s71, {2*68*1024}
v_bfe_u32 v2, v1, 4, 1
v_mul_u32_u24 v2, {68*1024}, v2
v_and_b32 v3, 15, v1
v_lshl_add_u32 v2, v3, 4, v2
v_lshrrev_b32 v3, 5, v1
v_lshl_add_u32 v2, v3, 8, v2
s_nop 3
""")
        for j in range(3):
            for i in range(2):
                for r in range(8):
                    g = acc(i, j) + r; u = g + 8
                    a(f"v_max_f32 v{g}, 0, v{g}")
                    a(f"v_mul_f32 v{u}, v{u}, v{4+i}")
                    a(f"v_mul_f32 v{g}, v{g}, v{u}")
                for r in range(4):
                    a(f"v_cvt_pk_bf16_f32 v{PK+8*j+4*i+r}, v{acc(i,j)+2*r}, v{acc(i,j)+2*r+1}")
                a(f"buffer_store_dwordx4 {vr(PK+8*j+4*i,4)}, v2, s[16:19], s{71+i} offen offset:{j*512}")
    stamp_out(a, 5)
    a("s_endpgm")

def prep(a):
    X = 64; CX = 48
    a("LP:\ns_waitcnt lgkmcnt(0)")
    srd(a, 8, 36, 37, 2048 * 640 * 2)
    srd(a, 16, 54, 55, WS_BYTES)
    srd(a, 20, 52, 53, 256)
    a(f"""
v_mov_b32 v2, {CNT_OFF}
v_mov_b32 v3, 0
ds_write_b32 v2, v3
s_lshl_b32 s27, s25, 2
s_add_u32 s27, s27, s26               ; p
s_waitcnt lgkmcnt(0)
s_barrier
s_cmp_ge_u32 s24, 5
s_cbranch_scc1 LP_st
s_mul_i32 s30, s27, 5
s_add_u32 s30, s30, s24               ; u
s_cmp_ge_u32 s30, 156
s_cbranch_scc1 LP_flag
s_lshr_b32 s31, s30, 2                ; b
s_and_b32 s30, s30, 3                 ; kq
s_cmp_lt_u32 s31, 27
s_cselect_b32 s12, s44, s46
s_cselect_b32 s13, s45, s47
s_cselect_b32 s56, 15, 27
s_mov_b32 s14, {640*1536*2}
s_mov_b32 s60, 3072
s_cmp_lt_u32 s31, 15
s_cselect_b32 s12, s38, s12
s_cselect_b32 s13, s39, s13
s_cselect_b32 s56, 0, s56
s_cselect_b32 s14, {640*1920*2}, s14
s_cselect_b32 s60, 3840, s60
s_mov_b32 s15, 0x00020000
s_sub_u32 s56, s31, s56
s_lshl_b32 s57, s56, 8
s_mul_i32 s61, s30, 160
v_lshrrev_b32 v6, 4, v1
v_add_u32 v6, s61, v6
v_mul_lo_u32 v6, v6, s60
v_and_b32 v7, 15, v1
v_lshl_add_u32 v6, v7, 4, v6
s_lshl_b32 s62, s60, 2
""")
    LOOPED = 'loop' in VAR
    NBUF, PER = (4, 5) if LOOPED else (8, 5)
    a("s_mov_b32 s58, 0x00003f80\ns_mov_b32 s59, 0x3f800000\ns_mov_b32 s61, 0")
    for i in range(8): a(f"v_mov_b32 v{16+i}, 0")
    for t in range(NBUF * PER):
        a(f"buffer_load_dwordx4 {vr(CX+4*t,4)}, v6, s[12:15], s57 offen")
        a("s_add_u32 s57, s57, s62")
    a("LP_csl:")
    for bf in range(NBUF):
        a(f"s_waitcnt vmcnt({(NBUF-1)*PER if LOOPED else (NBUF-1-bf)*PER})")
        for t in range(PER):
            for i in range(4):
                r = CX + 4 * (bf * PER + t) + i
                a(f"v_dot2c_f32_bf16 v{16+2*i}, s58, v{r}\nv_dot2c_f32_bf16 v{17+2*i}, s59, v{r}")
        for t in range(PER if LOOPED else 0):
            a(f"buffer_load_dwordx4 {vr(CX+4*(bf*PER+t),4)}, v6, s[12:15], s57 offen")
            a("s_add_u32 s57, s57, s62")
    if LOOPED: a(f"""
s_mov_b32 s57, 0x7ffffff0
s_mov_b32 s62, 0
s_add_u32 s61, s61, 1
s_cmp_lt_u32 s61, 2
s_cbranch_scc1 LP_csl
""")
    a("s_nop 2")
    for i in range(8): a(f"ds_swizzle_b32 v{24+i}, v{16+i} offset:0x401F")
    a("s_waitcnt lgkmcnt(0)")
    for i in range(8): a(f"v_add_f32 v{16+i}, v{16+i}, v{24+i}\nv_mov_b32 v{24+i}, v{16+i}")
    a("s_nop 1")
    for i in range(8): a(f"v_permlane32_swap_b32 v{16+i}, v{24+i}")
    a("s_nop 1")
    for i in range(8): a(f"v_add_f32 v{16+i}, v{16+i}, v{24+i}")
    a(f"""
s_mul_i32 s58, s30, {4992*4}
s_lshl_b32 s59, s31, 9
s_add_u32 s58, s58, s59
s_add_u32 s58, s58, {CSO}
v_lshlrev_b32 v7, 5, v7
s_mov_b64 exec, 0xffff
buffer_store_dwordx4 v[16:19], v7, s[16:19], s58 offen sc1
buffer_store_dwordx4 v[20:23], v7, s[16:19], s58 offen offset:16 sc1
s_mov_b64 exec, -1
s_branch LP_flag
LP_st:
s_cmp_eq_u32 s24, 7
s_cbranch_scc0 LP_st2
s_getpc_b64 s[56:57]
LPC_ref:
s_sub_u32 s12, s56, LPC_ref-k1_kernel
s_subb_u32 s13, s57, 0
s_mov_b32 s14, LCODE_END-k1_kernel
s_mov_b32 s15, 0x00020000
s_mul_i32 s58, s26, 12288
v_lshlrev_b32 v5, 4, v1
buffer_load_dwordx4 v[200:203], v5, s[12:15], s58 offen offset:0
buffer_load_dwordx4 v[200:203], v5, s[12:15], s58 offen offset:1024
buffer_load_dwordx4 v[200:203], v5, s[12:15], s58 offen offset:2048
buffer_load_dwordx4 v[200:203], v5, s[12:15], s58 offen offset:3072
s_add_u32 s58, s58, 4096
buffer_load_dwordx4 v[200:203], v5, s[12:15], s58 offen offset:0
buffer_load_dwordx4 v[200:203], v5, s[12:15], s58 offen offset:1024
buffer_load_dwordx4 v[200:203], v5, s[12:15], s58 offen offset:2048
buffer_load_dwordx4 v[200:203], v5, s[12:15], s58 offen offset:3072
s_add_u32 s58, s58, 4096
buffer_load_dwordx4 v[200:203], v5, s[12:15], s58 offen offset:0
buffer_load_dwordx4 v[200:203], v5, s[12:15], s58 offen offset:1024
buffer_load_dwordx4 v[200:203], v5, s[12:15], s58 offen offset:2048
buffer_load_dwordx4 v[200:203], v5, s[12:15], s58 offen offset:3072
s_branch LP_tr
LP_st2:
s_lshl_b32 s28, s27, 6
s_sub_u32 s29, s24, 5
s_lshl_b32 s29, s29, 5
s_add_u32 s28, s28, s29
v_lshrrev_b32 v2, 3, v1
v_add_u32 v2, s28, v2
v_mul_u32_u24 v3, 1280, v2
v_and_b32 v4, 7, v1
v_lshl_add_u32 v3, v4, 4, v3
s_mov_b32 s57, 0
""")
    for ps in range(4):
        for t in range(10):
            a(f"buffer_load_dwordx4 {vr(CX+40*ps+4*t,4)}, v3, s[8:11], s57 offen offset:{128*t}")
        a(f"s_add_u32 s57, s57, {8*1280}")
    a(f"""
s_mov_b32 s58, 0x3f803f80
v_lshlrev_b32 v2, 2, v2
v_cmp_eq_u32 vcc, 0, v4
s_mov_b32 s32, {MBO}
s_mov_b32 s33, {RIO}
s_mov_b64 s[34:35], vcc
""")
    for i in range(8): a(f"v_mov_b32 v{16+i}, 0")
    for ps in range(4):
        for t in range(10):
            if t % 5 == 0: a(f"s_waitcnt vmcnt({35-10*ps-t})")
            for i in range(4):
                r = CX + 40 * ps + 4 * t + i
                a(f"v_dot2c_f32_bf16 v{16+2*ps}, s58, v{r}\nv_dot2c_f32_bf16 v{17+2*ps}, v{r}, v{r}")
    a("s_nop 2")
    for m in (0x041F, 0x081F, 0x101F):
        for i in range(8): a(f"ds_swizzle_b32 v{24+i}, v{16+i} offset:{m}")
        a("s_waitcnt lgkmcnt(0)")
        for i in range(8): a(f"v_add_f32 v{16+i}, v{16+i}, v{24+i}")
    for ps in range(4):
        rinv_calc(a, 16 + 2 * ps, 17 + 2 * ps, 24 + ps, 28 + ps, 32)
    a("s_mov_b64 exec, s[34:35]")
    for ps in range(4):
        a(f"buffer_store_dword v{24+ps}, v2, s[16:19], s32 offen offset:{32*ps} sc1")
        a(f"buffer_store_dword v{28+ps}, v2, s[16:19], s33 offen offset:{32*ps} sc1")
    a("s_mov_b64 exec, -1\nLP_flag:")
    stamp(a, 1)
    a(f"""
s_waitcnt vmcnt(0)
v_mov_b32 v12, 1
v_mov_b32 v13, {CNT_OFF}
s_mov_b64 exec, 1
ds_add_rtn_u32 v14, v13, v12
s_waitcnt lgkmcnt(0)
v_readfirstlane_b32 s56, v14
v_mov_b32 v13, s27
v_lshlrev_b32 v13, 2, v13
s_cmp_lg_u32 s56, 6
s_cbranch_scc1 LP_done
buffer_store_dword v12, v13, s[20:23], 0 offen sc1
LP_done:
s_mov_b64 exec, -1
""")
    stamp(a, 2)
    stamp_out(a, 5)
    a("s_endpgm")
    DEP = 10
    TRSTART = 5 if 'tr5' in VAR else (7 if 'tr7' in VAR else 6)
    a(f"""
LP_tr:
v_lshrrev_b32 v6, 3, v1
v_mul_u32_u24 v6, 1280, v6
v_and_b32 v7, 7, v1
v_lshl_add_u32 v6, v7, 4, v6
v_add_u32 v7, {8*1280-1024}, v6
v_add_u32 v8, {16*1280-2048}, v6
v_add_u32 v9, {24*1280-3072}, v6
v_lshrrev_b32 v10, 5, v1
v_lshlrev_b32 v10, 4, v10
v_bfe_u32 v11, v1, 4, 1
v_lshl_add_u32 v10, v11, 2, v10
v_bfe_u32 v11, v1, 2, 2
v_add_u32 v10, v10, v11
v_lshlrev_b32 v10, 7, v10
v_and_b32 v11, 3, v1
v_lshl_add_u32 v10, v11, 3, v10
v_lshlrev_b32 v11, 4, v1
s_cmp_lg_u32 s27, 0
s_cbranch_scc1 LP_nz
v_lshlrev_b32 v13, 8, v1
v_mov_b32 v14, 0
s_mov_b32 s56, {CNTW}
s_mov_b64 exec, 0xffff
buffer_store_dword v14, v13, s[16:19], s56 offen sc1
s_mov_b64 exec, -1
LP_nz:
v_mov_b32 v13, {CNT_OFF}
LP_wt:
s_sleep 8
ds_read_b32 v14, v13
s_waitcnt lgkmcnt(0)
v_readfirstlane_b32 s56, v14
s_nop 3
s_cmp_lt_u32 s56, {TRSTART}
s_cbranch_scc1 LP_wt
s_mov_b32 s56, s27
s_mov_b32 s57, 0
s_mov_b32 s62, s27
s_mov_b32 s63, {-DEP}                 ; iteration
LP_trl:
s_min_u32 s60, s56, 679
s_mul_i32 s58, s60, 52429
s_lshr_b32 s58, s58, 19
s_mul_i32 s59, s58, 10
s_sub_u32 s59, s60, s59
s_cmp_lt_u32 s58, 20
s_cselect_b32 s12, s40, s48
s_cselect_b32 s13, s41, s49
s_mov_b32 s14, {1536*640*2}
s_cselect_b32 s14, {640*640*2}, s14
s_mov_b32 s15, 0x00020000
s_cselect_b32 s60, 0, 20
s_sub_u32 s60, s58, s60
s_mul_i32 s60, s60, {32*1280}
s_lshl_b32 s61, s59, 7
s_add_u32 s60, s60, s61
s_mov_b32 m0, s57
s_add_u32 s57, s57, 4096
buffer_load_dwordx4 v6, s[12:15], s60 offen lds
buffer_load_dwordx4 v7, s[12:15], s60 offen offset:1024 lds
buffer_load_dwordx4 v8, s[12:15], s60 offen offset:2048 lds
buffer_load_dwordx4 v9, s[12:15], s60 offen offset:3072 lds
s_add_u32 s56, s56, 32
s_add_i32 s63, s63, 1
s_cmp_le_i32 s63, 0
s_cbranch_scc1 LP_trl
s_waitcnt vmcnt({4*DEP})
""")
    for jt in range(4):
        for r in range(2):
            a(f"ds_read_b64_tr_b16 {vr(X+4*jt+2*r,2)}, v10 offset:{jt*32 + r*8*128}")
    a(f"""
v_add_u32 v10, 4096, v10
s_mul_i32 s58, s62, 52429
s_lshr_b32 s58, s58, 19
s_mul_i32 s59, s58, 10
s_sub_u32 s59, s62, s59
s_mul_i32 s60, s58, {40*1024}
s_lshl_b32 s61, s59, 12
s_add_u32 s60, s60, s61
s_add_u32 s60, s60, {BF}
s_waitcnt lgkmcnt(0)
""")
    for jt in range(4):
        a(f"buffer_store_dwordx4 {vr(X+4*jt,4)}, v11, s[16:19], s60 offen offset:{jt*1024} sc1")
    a(f"""
s_add_u32 s62, s62, 32
s_cmp_lt_u32 s62, 680
s_cbranch_scc1 LP_trl
""")
    stamp(a, 1); stamp(a, 2)
    stamp_out(a, 5)
    a("s_endpgm")

def k1_kernel(a, name):
    kernel_header(a, name)
    a(f"""
s_cmp_ge_u32 s2, 256
s_cbranch_scc1 LK1_end
""")
    stamp(a, 0)
    a(f"""
s_load_dwordx16 s[36:51], s[0:1], 0
s_load_dwordx4 s[52:55], s[0:1], 64
v_and_b32 v1, 63, v0
v_lshrrev_b32 v2, 6, v0
s_and_b32 s25, s2, 7
v_readfirstlane_b32 s24, v2
s_lshr_b32 s26, s2, 3
s_and_b32 s80, s24, 3
s_lshr_b32 s81, s24, 2
""")
    a(f"""
s_cmp_lt_u32 s26, 4
s_cbranch_scc1 LP
s_sub_u32 s26, s26, 4
s_and_b32 s27, s25, 1
s_lshl_b32 s27, s27, 2
s_and_b32 s28, s26, 3
s_add_u32 s27, s27, s28               ; mblock
s_lshl_b32 s29, s27, 8
s_lshl_b32 s28, s24, 5
s_add_u32 s29, s29, s28
s_lshl_b32 s63, s24, 12
v_and_b32 v5, 31, v1
v_lshlrev_b32 v5, 2, v5
v_lshrrev_b32 v24, 3, v1
v_add_u32 v24, s29, v24
v_mul_u32_u24 v24, 1280, v24
v_lshrrev_b32 v25, 4, v1
v_and_b32 v26, 7, v1
v_xor_b32 v27, v26, v25
v_lshl_add_u32 v10, v27, 4, v24
v_xor_b32 v27, 4, v27
v_lshl_add_u32 v11, v27, 4, v24
v_add_u32 v12, {16*1280-2048}, v10
v_add_u32 v13, {24*1280-3072}, v11
v_add_u32 v11, {8*1280-1024}, v11
v_and_b32 v24, 31, v1
v_lshrrev_b32 v25, 5, v1
v_bfe_u32 v26, v24, 1, 3
v_xor_b32 v26, v26, v25
v_lshlrev_b32 v24, 7, v24
""")
    for j in range(4):
        a(f"v_xor_b32 v27, {2*j}, v26\nv_lshl_add_u32 v{6+j}, v27, 4, v24")
    a(f"""
s_lshr_b32 s26, s26, 2
s_lshr_b32 s56, s25, 1
s_cmp_lt_u32 s26, 3
s_cbranch_scc0 LK1_gu
s_mul_i32 s28, s56, 3
s_add_u32 s28, s28, s26
s_cmp_lt_u32 s28, 8
s_cbranch_scc1 LGQK
s_branch LGV
LK1_gu:
s_lshl_b32 s28, s56, 2
s_add_u32 s28, s28, s26
s_sub_u32 s28, s28, 3
s_branch LGGU
LK1_end:
s_endpgm
""")
    gemm(a, "QK"); gemm(a, "V"); gemm(a, "GU")
    prep(a)

if __name__ == "__main__":
    import sys
    PROF = len(sys.argv) > 1
    VAR = sys.argv[1] if PROF else ""
    a = Asm()
    hdr = f"; @launch kernel=k1_kernel grid=(256,1,1) block=(512,1,1) lds={K1_LDS}\n"
    a('.amdgcn_target "amdgcn-amd-amdhsa--gfx950"\n.text')
    k1_kernel(a, "k1_kernel")
    a("LCODE_END:")
    txt = hdr + a.text() + '.section .rodata,"a"\n' + kernel_desc("k1_kernel", K1_VGPR, 100)
    open("k1_only.s", "w").write(txt)
```

```python
from asmlib import *
MFMA = "v_mfma_f32_32x32x16_bf16"
MF16 = "v_mfma_f32_16x16x32_bf16"
QA, QAT, QB, QBT = 8, 12, 16, 20
SA, SB = 24, 40
PA, PB = 56, 64
OA, OB = 72, 88
KB, VB, NB = 104, 136, 4
MA, MB = 0, 2
K2_VGPR = 168
K2_LDS = 53248
PROF = False
VAR = ''
FUSE = False
SLEEP = 16
DBGOUT = False
KPERM = "v2"

def prof_out(a, base, srd, wave_s, regs):
    a("s_waitcnt vmcnt(0) lgkmcnt(0)")
    a(f"s_memrealtime s[{regs[-1]}:{regs[-1]+1}]")
    a("s_waitcnt lgkmcnt(0)")
    for k in range(4):
        a(f"v_mov_b32 v{8+k}, s{regs[min(k, len(regs)-1)]}")
    a(f"""
s_lshl_b32 s34, s2, 2
s_add_u32 s34, s34, s{wave_s}
s_lshl_b32 s34, s34, 4
s_add_u32 s34, s34, {base}
v_mov_b32 v16, 0
s_mov_b64 exec, 1
buffer_store_dwordx4 v[8:11], v16, s[{srd}:{srd+3}], s34 offen
""")

def attn(a):
    T = PA
    a(f"""
LA:
s_and_b32 s21, s3, 7
s_lshl_b32 s21, s21, 2
s_lshr_b32 s22, s3, 3
s_and_b32 s23, s22, 3
s_add_u32 s21, s21, s23              ; head
s_lshr_b32 s22, s3, 5                ; qblock
s_and_b32 s23, s20, 1
s_lshl_b32 s24, s16, 1
s_add_u32 s23, s23, s24              ; qsub
s_lshr_b32 s24, s20, 1               ; khalf
s_mul_i32 s25, s21, {64*1280}
s_lshl_b32 s26, s22, 3
s_lshl_b32 s27, s23, 1
s_add_u32 s26, s26, s27              ; qtile a
s_mul_i32 s27, s26, 1280
s_add_u32 s27, s27, s25
s_mul_i32 s28, s24, {32*1280}
s_add_u32 s28, s28, s25
s_add_u32 s29, s28, {VF}
s_add_u32 s28, s28, {KF}
v_lshlrev_b32 v3, 4, v1
v_and_b32 v4, 31, v1
v_lshrrev_b32 v5, 5, v1
v_lshlrev_b32 v6, 3, v4
v_lshl_add_u32 v6, v5, 2, v6
v_add_u32 v6, 1024, v6
v_mul_u32_u24 v7, 320, v5
v_lshl_add_u32 v7, v4, 4, v7
buffer_load_dwordx4 {vr(QA,4)}, v3, s[8:11], s27 offen
buffer_load_dword {vr(QAT)}, v6, s[8:11], s27 offen
buffer_load_dwordx4 {vr(QB,4)}, v3, s[8:11], s27 offen offset:1280
buffer_load_dword {vr(QBT)}, v6, s[8:11], s27 offen offset:1280
s_mov_b32 s30, 0
s_mov_b32 s12, 0x000FFFFF
s_mov_b32 s13, 0x000FFFFF
s_mov_b32 s14, 0xFFFFFFFF
s_mov_b32 s15, 0
""")
    def rowmax(S, M, init):
        if init:
            a(f"v_max3_f32 {vr(M)}, {vr(S)}, {vr(S+1)}, {vr(S+2)}")
            a(f"v_max_f32 {vr(M)}, {vr(M)}, {vr(S+3)}")
            st = 4
        else: st = 0
        for j in range(st, 16, 2):
            a(f"v_max3_f32 {vr(M)}, {vr(M)}, {vr(S+j)}, {vr(S+j+1)}")
    def qk(S, Qm, Qt, kb):
        a(f"{MFMA} {vr(S,16)}, {vr(KB+8*kb,4)}, {vr(Qm,4)}, 0")
        a(f"{MFMA} {vr(S,16)}, {vr(KB+8*kb+4,4)}, {vr(Qt,4)}, {vr(S,16)}")
    def loadK(kb, soff, imm=0):
        a(f"buffer_load_dwordx4 {vr(KB+8*kb,4)}, v3, s[8:11], {soff} offen offset:{imm}")
        a(f"buffer_load_dword {vr(KB+8*kb+4)}, v6, s[8:11], {soff} offen offset:{imm}")
    def loadV(vb, soff, imm=0):
        a("s_mov_b64 exec, s[12:13]")
        a(f"buffer_load_dwordx4 {vr(VB+8*vb,4)}, v7, s[8:11], {soff} offen offset:{imm}")
        a(f"buffer_load_dwordx4 {vr(VB+8*vb+4,4)}, v7, s[8:11], {soff} offen offset:{imm+640}")
        a("s_mov_b64 exec, -1")
    a("s_branch LA_pro")
    a("LA_restart:")
    for q in (QAT, QBT):
        for j in (1, 2): a(f"v_mov_b32 {vr(q+j)}, 0")
    a(f"""
v_mov_b32 {vr(MA)}, 0xff800000
v_mov_b32 {vr(MB)}, 0xff800000
s_mov_b32 s31, s28
s_mov_b32 s32, 32
LA_maxloop:
""")
    loadK(0, "s31")
    a("s_waitcnt vmcnt(0)")
    qk(SA, QA, QAT, 0); qk(SB, QB, QBT, 0)
    a("s_nop 15\ns_nop 3")
    rowmax(SA, MA, False); rowmax(SB, MB, False)
    a(f"""
s_add_u32 s31, s31, 1280
s_sub_u32 s32, s32, 1
s_cmp_lg_u32 s32, 0
s_cbranch_scc1 LA_maxloop
LA_pro:
""")
    loadK(0, "s28", 0)
    loadK(1, "s28", 1280)
    a(f"""
v_mov_b32 {vr(T)}, 0x3f803f80
v_cmp_eq_u32 vcc, 20, v4
v_cndmask_b32 {vr(T+2)}, 0, {vr(T)}, s[14:15]
s_nop 0
v_cndmask_b32 {vr(T+1)}, 0, {vr(T)}, vcc
""")
    for j in range(8): a(f"v_mov_b32 {vr(VB+j)}, {vr(T+1)}")
    loadV(0, "s29", 0)
    loadK(2, "s28", 2560)
    for j in range(8): a(f"v_mov_b32 {vr(VB+8+j)}, {vr(T+1)}")
    loadV(1, "s29", 1280)
    a(f"s_add_u32 s31, s28, {3*1280}")
    loadK(3, "s31", 0)
    for j in range(8): a(f"v_mov_b32 {vr(VB+16+j)}, {vr(T+1)}")
    loadV(2, "s29", 2560)
    for j in range(8): a(f"v_mov_b32 {vr(VB+24+j)}, {vr(T+1)}")
    for i in range(NB):
        a(f"v_mov_b32 {vr(KB+8*i+5)}, {vr(T+2)}")
        a(f"v_mov_b32 {vr(KB+8*i+6)}, {vr(T+2)}")
        a(f"v_mov_b32 {vr(KB+8*i+7)}, 0")
    for j in range(16):
        a(f"v_mov_b32 {vr(OA+j)}, 0")
        a(f"v_mov_b32 {vr(OB+j)}, 0")
    for j in range(8): a(f"v_mov_b32 {vr(PB+j)}, 0")
    a(f"""
s_cmp_lg_u32 s30, 0
s_cbranch_scc1 LA_setm0
""")
    for q in (QAT, QBT):
        for j in (1, 2, 3): a(f"v_mov_b32 {vr(q+j)}, 0")
    a("s_waitcnt vmcnt(12)")
    qk(SA, QA, QAT, 0); qk(SB, QB, QBT, 0)
    a("s_nop 11")
    rowmax(SA, MA, True); rowmax(SB, MB, True)
    a("LA_setm0:\ns_waitcnt vmcnt(12)")
    for (M, QT) in ((MA, QAT), (MB, QBT)):
        t, u, w = T, T+1, T+2
        a(f"""
v_mov_b32 {vr(t)}, {vr(M)}
v_mov_b32 {vr(u)}, {vr(M)}
s_nop 1
v_permlane32_swap_b32 {vr(t)}, {vr(u)}
s_nop 1
v_max_f32 {vr(M)}, {vr(t)}, {vr(u)}
v_sub_f32 {vr(t)}, 0, {vr(M)}
v_and_b32 {vr(u)}, 0xffff0000, {vr(t)}
v_sub_f32 {vr(t)}, {vr(t)}, {vr(u)}
v_and_b32 {vr(w)}, 0xffff0000, {vr(t)}
v_sub_f32 {vr(t)}, {vr(t)}, {vr(w)}
v_lshrrev_b32 {vr(u)}, 16, {vr(u)}
v_or_b32 {vr(u)}, {vr(u)}, {vr(w)}
v_lshrrev_b32 {vr(t)}, 16, {vr(t)}
v_cndmask_b32 {vr(QT+1)}, 0, {vr(u)}, s[14:15]
v_cndmask_b32 {vr(QT+2)}, 0, {vr(t)}, s[14:15]
""")
        if M == MA:
            a("s_nop 1")
            qk(SA, QA, QAT, 0)
    a(f"""
s_add_u32 s31, s28, {4*1280}
s_add_u32 s33, s29, {3*1280}
s_mov_b32 s32, 8
""")
    if PROF: a("s_memrealtime s[42:43]")
    a(".p2align 6\nLA_loop:")
    def phase(Sx, Px, Sy, Py, Oy, Qy, Qyt, kb, vb, mid=None, post=None, pre=None):
        e = lambda j: a(f"v_exp_f32 {vr(Sx+j)}, {vr(Sx+j)}")
        c = lambda j: a(f"v_cvt_pk_bf16_f32 {vr(Px+j)}, {vr(Sx+2*j)}, {vr(Sx+2*j+1)}")
        if pre: pre()
        a(f"{MFMA} {vr(Sy,16)}, {vr(KB+8*kb,4)}, {vr(Qy,4)}, 0")
        e(0); e(1); e(2); e(3)
        a(f"{MFMA} {vr(Sy,16)}, {vr(KB+8*kb+4,4)}, {vr(Qyt,4)}, {vr(Sy,16)}")
        if mid: mid()
        c(0); c(1); e(4); e(5); e(6); e(7)
        a(f"{MFMA} {vr(Oy,16)}, {vr(VB+8*vb,4)}, {vr(Py,4)}, {vr(Oy,16)}")
        c(2); c(3); e(8); e(9); e(10); e(11)
        a(f"{MFMA} {vr(Oy,16)}, {vr(VB+8*vb+4,4)}, {vr(Py+4,4)}, {vr(Oy,16)}")
        if post: post()
        c(4); c(5); e(12); e(13); e(14); e(15); c(6); c(7)
    for u in range(NB):
        def mid(u=u):
            loadK(u, "s31"); a("s_add_u32 s31, s31, 1280")
        def post(u=u):
            loadV((u+3) % NB, "s33"); a("s_add_u32 s33, s33, 1280")
        phase(SA, PA, SB, PB, OB, QB, QBT, u, (u+3) % NB, mid, post)
        phase(SB, PB, SA, PA, OA, QA, QAT, (u+1) % NB, u, pre=lambda: a("s_waitcnt vmcnt(12)"))
    a(f"""
s_sub_u32 s32, s32, 1
s_cmp_lg_u32 s32, 0
s_cbranch_scc1 LA_loop
{MFMA} {vr(OB,16)}, {vr(VB+8*3,4)}, {vr(PB,4)}, {vr(OB,16)}
{MFMA} {vr(OB,16)}, {vr(VB+8*3+4,4)}, {vr(PB+4,4)}, {vr(OB,16)}
""")
    if PROF: a("s_memrealtime s[44:45]")
    t, t1 = PA, PA + 1
    a(f"""
v_lshlrev_b32 {vr(PA+2)}, 4, v1
s_lshl_b32 s34, s20, 12
v_add_u32 {vr(PA+3)}, s34, {vr(PA+2)}
s_xor_b32 s35, s20, 2
s_lshl_b32 s35, s35, 12
v_add_u32 {vr(PA+4)}, s35, {vr(PA+2)}
v_mov_b32 {vr(t1)}, 0x71800000
v_add_f32 {vr(t)}, abs({vr(OA)}), abs({vr(OA+1)})
""")
    for j in range(2, 12): a(f"v_add_f32 {vr(t)}, {vr(t)}, abs({vr(OA+j)})")
    for j in range(12): a(f"v_add_f32 {vr(t)}, {vr(t)}, abs({vr(OB+j)})")
    a(f"""
v_cmp_nlt_f32 vcc, {vr(t)}, {vr(t1)}
s_cmp_lg_u32 s30, 0
s_cbranch_scc1 LA_comb
s_nop 2
s_cmp_eq_u64 vcc, 0
s_cbranch_scc1 LA_comb
s_mov_b32 s30, 1
s_waitcnt vmcnt(0)
s_branch LA_restart
LA_comb:
s_cmp_eq_u32 s24, 0
s_cbranch_scc1 LA_c0
""")
    w_, r_ = PA + 3, PA + 4
    for j in range(3): a(f"ds_write_b128 {vr(w_)}, {vr(OA+4*j,4)} offset:{j*1024}")
    a(f"ds_write_b32 {vr(w_)}, {vr(MA)} offset:3072")
    for j in range(12): a(f"v_mov_b32 {vr(OA+j)}, {vr(OB+j)}")
    a(f"v_mov_b32 {vr(MA)}, {vr(MB)}")
    a("s_add_u32 s26, s26, 1\ns_branch LA_c1\nLA_c0:")
    for j in range(3): a(f"ds_write_b128 {vr(w_)}, {vr(OB+4*j,4)} offset:{j*1024}")
    a(f"ds_write_b32 {vr(w_)}, {vr(MB)} offset:3072")
    a("LA_c1:\ns_waitcnt lgkmcnt(0)\ns_barrier")
    X = SB
    for j in range(3): a(f"ds_read_b128 {vr(X+4*j,4)}, {vr(r_)} offset:{j*1024}")
    a(f"ds_read_b32 {vr(MB)}, {vr(r_)} offset:3072")
    g_, kbv, g8 = PB, PB + 1, PB + 2
    ad = [PB + 3, PB + 4, PB + 5]
    a(f"""
s_lshl_b32 s34, s26, 1
s_mul_i32 s34, s34, {68*1024}
s_add_u32 s34, s34, {AF}
v_bfe_u32 {vr(t)}, v1, 4, 1
v_mul_u32_u24 {vr(t)}, {68*1024}, {vr(t)}
v_and_b32 {vr(t1)}, 15, v1
v_lshl_add_u32 {vr(t)}, {vr(t1)}, 4, {vr(t)}
s_mul_i32 s35, s21, 5
v_add_u32 {vr(g_)}, s35, v5
""")
    for i in range(3):
        a(f"""
v_lshrrev_b32 {vr(kbv)}, 3, {vr(g_)}
v_lshl_add_u32 {vr(ad[i])}, {vr(kbv)}, 10, {vr(t)}
""")
        if KPERM == "v2":
            a(f"""
v_and_b32 {vr(g8)}, 3, {vr(g_)}
v_lshl_add_u32 {vr(ad[i])}, {vr(g8)}, 8, {vr(ad[i])}
v_bfe_u32 {vr(g8)}, {vr(g_)}, 2, 1
v_lshl_add_u32 {vr(ad[i])}, {vr(g8)}, 3, {vr(ad[i])}
""")
        else:
            a(f"""
v_bfe_u32 {vr(g8)}, {vr(g_)}, 2, 1
v_lshl_add_u32 {vr(ad[i])}, {vr(g8)}, 9, {vr(ad[i])}
v_and_b32 {vr(g8)}, 1, {vr(g_)}
v_lshl_add_u32 {vr(ad[i])}, {vr(g8)}, 8, {vr(ad[i])}
v_bfe_u32 {vr(g8)}, {vr(g_)}, 1, 1
v_lshl_add_u32 {vr(ad[i])}, {vr(g8)}, 3, {vr(ad[i])}
""")
        if i < 2: a(f"v_add_u32 {vr(g_)}, 2, {vr(g_)}")
    m, f1, f2, l, l2 = PA + 2, PA + 3, PA + 5, PA + 6, PA + 7
    a(f"""
s_waitcnt lgkmcnt(0)
v_max_f32 {vr(m)}, {vr(MA)}, {vr(MB)}
v_sub_f32 {vr(f1)}, {vr(MA)}, {vr(m)}
v_sub_f32 {vr(f2)}, {vr(MB)}, {vr(m)}
v_exp_f32 {vr(f1)}, {vr(f1)}
v_exp_f32 {vr(f2)}, {vr(f2)}
s_nop 0
v_mul_f32 {vr(l)}, {vr(OA+8)}, {vr(f1)}
v_fmac_f32 {vr(l)}, {vr(X+8)}, {vr(f2)}
v_mov_b32 {vr(l2)}, {vr(l)}
s_nop 1
v_permlane32_swap_b32 {vr(l)}, {vr(l2)}
s_nop 1
v_rcp_f32 {vr(l2)}, {vr(l2)}
s_nop 0
v_mul_f32 {vr(f1)}, {vr(f1)}, {vr(l2)}
v_mul_f32 {vr(f2)}, {vr(f2)}, {vr(l2)}
""")
    for i in range(3):
        for j in range(4 * i, 4 * i + 4):
            a(f"v_mul_f32 {vr(OA+j)}, {vr(OA+j)}, {vr(f1)}")
            a(f"v_fmac_f32 {vr(OA+j)}, {vr(X+j)}, {vr(f2)}")
        for j in range(2):
            a(f"v_cvt_pk_bf16_f32 {vr(OB+2*i+j)}, {vr(OA+4*i+2*j)}, {vr(OA+4*i+2*j+1)}")
        if i == 2: a("s_mov_b64 exec, s[14:15]")
        a(f"buffer_store_dwordx2 {vr(OB+2*i,2)}, {vr(ad[i])}, s[8:11], s34 offen")
    if PROF:
        a("s_mov_b64 exec, -1")
        prof_out(a, 0x3100000, 8, 20, [40, 42, 44, 46])
    a("s_endpgm")


Q3 = [8, 16, 24, 32]
S3 = [40, 56]
O3 = [72, 88, 104, 120]
K3B, V3B = 136, 152
LDS_M = 49152
def attn3(a):
    a(f"""
LA:
s_and_b32 s21, s3, 7
s_lshl_b32 s21, s21, 2
s_lshr_b32 s22, s3, 3
s_and_b32 s23, s22, 3
s_add_u32 s21, s21, s23              ; head
s_lshr_b32 s22, s3, 5                ; qblock
s_mul_i32 s25, s21, {64*1280}
s_lshl_b32 s26, s22, 3
s_lshl_b32 s27, s16, 2
s_add_u32 s26, s26, s27
s_mul_i32 s27, s26, 1280
s_add_u32 s27, s27, s25
s_mul_i32 s28, s20, {16*1280}
s_add_u32 s28, s28, s25
s_add_u32 s29, s28, {VF}
s_add_u32 s28, s28, {KF}
v_lshlrev_b32 v3, 4, v1
v_and_b32 v4, 31, v1
v_lshrrev_b32 v5, 5, v1
v_lshlrev_b32 v6, 3, v4
v_lshl_add_u32 v6, v5, 2, v6
v_add_u32 v6, 1024, v6
v_mul_u32_u24 v7, 320, v5
v_lshl_add_u32 v7, v4, 4, v7
s_mov_b32 s30, 0
s_mov_b32 s12, 0x000FFFFF
s_mov_b32 s13, 0x000FFFFF
s_mov_b32 s14, 0xFFFFFFFF
s_mov_b32 s15, 0
s_add_u32 s36, s27, 2560
s_mov_b32 s37, 0xbc000000
s_waitcnt lgkmcnt(0)
""")
    srd(a, 8, 4, 5, WS_BYTES)
    def loadK(kb, soff, imm=0):
        a(f"buffer_load_dwordx4 {vr(K3B+8*kb,4)}, v3, s[8:11], {soff} offen offset:{imm}")
        a(f"buffer_load_dword {vr(K3B+8*kb+4)}, v6, s[8:11], {soff} offen offset:{imm}")
    def loadV(vb, soff, imm=0):
        a("s_mov_b64 exec, s[12:13]")
        a(f"buffer_load_dwordx4 {vr(V3B+8*vb,4)}, v7, s[8:11], {soff} offen offset:{imm}")
        a(f"buffer_load_dwordx4 {vr(V3B+8*vb+4,4)}, v7, s[8:11], {soff} offen offset:{imm+640}")
        a("s_mov_b64 exec, -1")
    def qk(S, q, kb):
        a(f"{MFMA} {vr(S,16)}, {vr(K3B+8*kb,4)}, {vr(Q3[q],4)}, 0")
        a(f"{MFMA} {vr(S,16)}, {vr(K3B+8*kb+4,4)}, {vr(Q3[q]+4,4)}, {vr(S,16)}")
    def rowmax(S, M, init):
        if init:
            a(f"v_max3_f32 {vr(M)}, {vr(S)}, {vr(S+1)}, {vr(S+2)}")
            a(f"v_max_f32 {vr(M)}, {vr(M)}, {vr(S+3)}")
            st = 4
        else: st = 0
        for j in range(st, 16, 2):
            a(f"v_max3_f32 {vr(M)}, {vr(M)}, {vr(S+j)}, {vr(S+j+1)}")
    for q in range(4):
        so = "s27" if q < 2 else "s36"
        a(f"buffer_load_dwordx4 {vr(Q3[q],4)}, v3, s[8:11], {so} offen offset:{1280*(q&1)}")
        a(f"buffer_load_dword {vr(Q3[q]+4)}, v6, s[8:11], {so} offen offset:{1280*(q&1)}")
    MX = [S3[0] + 0, S3[0] + 1, S3[0] + 2, S3[0] + 3]
    T = S3[0] + 4
    a("s_branch LA_pro")
    a("LA_restart:")
    for q in range(4):
        for j in (5, 6): a(f"v_mov_b32 {vr(Q3[q]+j)}, 0")
        a(f"v_mov_b32 {vr(MX[q])}, 0xff800000")
    a("s_mov_b32 s31, s28\ns_mov_b32 s32, 16\nLA_maxloop:")
    loadK(0, "s31")
    a("s_waitcnt vmcnt(0)")
    for q in range(4): qk(O3[q], q, 0)
    a("s_nop 15\ns_nop 3")
    for q in range(4): rowmax(O3[q], MX[q], False)
    a(f"""
s_add_u32 s31, s31, 1280
s_sub_u32 s32, s32, 1
s_cmp_lg_u32 s32, 0
s_cbranch_scc1 LA_maxloop
LA_pro:
""")
    loadK(0, "s28", 0)
    a(f"""
v_mov_b32 {vr(T)}, 0x3f803f80
v_cmp_eq_u32 vcc, 20, v4
v_cndmask_b32 {vr(T+2)}, 0, {vr(T)}, s[14:15]
s_nop 0
v_cndmask_b32 {vr(T+1)}, 0, {vr(T)}, vcc
""")
    for j in range(8): a(f"v_mov_b32 {vr(V3B+j)}, {vr(T+1)}")
    loadV(0, "s29", 0)
    loadK(1, "s28", 1280)
    for j in range(8): a(f"v_mov_b32 {vr(V3B+8+j)}, {vr(T+1)}")
    for i in range(2):
        a(f"v_mov_b32 {vr(K3B+8*i+5)}, {vr(T+2)}\nv_mov_b32 {vr(K3B+8*i+6)}, {vr(T+2)}\nv_mov_b32 {vr(K3B+8*i+7)}, 0")
    for j in range(8): a(f"v_mov_b32 {vr(S3[1]+j)}, 0")
    a(f"""
v_lshlrev_b32 v0, 2, v1
s_lshl_b32 s34, s20, 10
s_add_u32 s34, s34, {LDS_M}
v_add_u32 v0, s34, v0
s_cmp_lg_u32 s30, 0
s_cbranch_scc1 LA_setm0
""")
    for q in range(4):
        for j in (5, 6, 7): a(f"v_mov_b32 {vr(Q3[q]+j)}, 0")
    a("s_waitcnt vmcnt(4)")
    for q in range(4): qk(O3[q], q, 0)
    a("s_nop 5")
    for q in range(4): rowmax(O3[q], MX[q], True)
    for q in range(4):
        M = MX[q]; QT = Q3[q] + 4
        a(f"""
v_fma_f32 {vr(M)}, abs({vr(M)}), s37, {vr(M)}
v_and_b32 {vr(M)}, 0xffff0000, {vr(M)}
ds_write_b32 v0, {vr(M)} offset:{256*q}
v_xor_b32 {vr(T+q)}, 0x80000000, {vr(M)}
v_cndmask_b32 {vr(QT+1)}, 0, {vr(T+q)}, s[14:15]
""")
    a("s_branch LA_go")
    a("LA_setm0:\ns_waitcnt vmcnt(4)")
    for q in range(4):
        M = MX[q]; QT = Q3[q] + 4
        t, u, w = T, T + 1, T + 2
        a(f"""
v_mov_b32 {vr(t)}, {vr(M)}
v_mov_b32 {vr(u)}, {vr(M)}
s_nop 1
v_permlane32_swap_b32 {vr(t)}, {vr(u)}
s_nop 1
v_max_f32 {vr(M)}, {vr(t)}, {vr(u)}
v_sub_f32 {vr(t)}, 0, {vr(M)}
ds_write_b32 v0, {vr(M)} offset:{256*q}
v_and_b32 {vr(u)}, 0xffff0000, {vr(t)}
v_sub_f32 {vr(t)}, {vr(t)}, {vr(u)}
v_and_b32 {vr(w)}, 0xffff0000, {vr(t)}
v_sub_f32 {vr(t)}, {vr(t)}, {vr(w)}
v_lshrrev_b32 {vr(u)}, 16, {vr(u)}
v_or_b32 {vr(u)}, {vr(u)}, {vr(w)}
v_lshrrev_b32 {vr(t)}, 16, {vr(t)}
v_cndmask_b32 {vr(QT+1)}, 0, {vr(u)}, s[14:15]
v_cndmask_b32 {vr(QT+2)}, 0, {vr(t)}, s[14:15]
""")
    a("LA_go:\ns_waitcnt lgkmcnt(0)")
    qk(S3[0], 0, 0)
    for q in range(4):
        a(f"{MFMA} {vr(O3[q],16)}, {vr(S3[1],4)}, {vr(S3[1],4)}, 0")
    a("s_nop 4")
    a(f"""
s_add_u32 s31, s28, {2*1280}
s_add_u32 s33, s29, {1*1280}
s_mov_b32 s32, 8
""")
    if PROF: a("s_memrealtime s[42:43]")
    a(".p2align 6\nLA_loop:")
    def phase(Sx, Sy, Op, vb, qn, kb, pre=None, aft2=None, aft4=None):
        e = lambda j: a(f"v_exp_f32 {vr(Sx+j)}, {vr(Sx+j)}")
        c = lambda j: a(f"v_cvt_pk_bf16_f32 {vr(Sx+j)}, {vr(Sx+2*j)}, {vr(Sx+2*j+1)}")
        if pre: pre()
        a(f"{MFMA} {vr(Op,16)}, {vr(V3B+8*vb,4)}, {vr(Sy,4)}, {vr(Op,16)}")
        e(0); e(1); e(2)
        a(f"{MFMA} {vr(Op,16)}, {vr(V3B+8*vb+4,4)}, {vr(Sy+4,4)}, {vr(Op,16)}")
        if aft2: aft2()
        e(3); c(0); e(4); e(5)
        a(f"{MFMA} {vr(Sy,16)}, {vr(K3B+8*kb,4)}, {vr(Q3[qn],4)}, 0")
        c(1); e(6); e(7); e(8)
        a(f"{MFMA} {vr(Sy,16)}, {vr(K3B+8*kb+4,4)}, {vr(Q3[qn]+4,4)}, {vr(Sy,16)}")
        if aft4: aft4()
        c(2); c(3); e(9); e(10); e(11); c(4); e(12); e(13); c(5); e(14); e(15); c(6); c(7)
    w4 = lambda: a("s_waitcnt vmcnt(4)")
    for u in range(2):
        def lv(u=u):
            loadV((u + 1) % 2, "s33"); a("s_add_u32 s33, s33, 1280")
        def lk(u=u):
            loadK(u, "s31"); a("s_add_u32 s31, s31, 1280")
        phase(S3[0], S3[1], O3[3], (u + 1) % 2, 1, u, aft2=lv)
        phase(S3[1], S3[0], O3[0], u, 2, u, pre=w4)
        phase(S3[0], S3[1], O3[1], u, 3, u, aft4=lk)
        phase(S3[1], S3[0], O3[2], u, 0, (u + 1) % 2, pre=w4)
    a(f"""
s_sub_u32 s32, s32, 1
s_cmp_lg_u32 s32, 0
s_cbranch_scc1 LA_loop
{MFMA} {vr(O3[3],16)}, {vr(V3B+8,4)}, {vr(S3[1],4)}, {vr(O3[3],16)}
{MFMA} {vr(O3[3],16)}, {vr(V3B+12,4)}, {vr(S3[1]+4,4)}, {vr(O3[3],16)}
""")
    if PROF: a("s_memrealtime s[44:45]")
    t, t1, t2, t3 = S3[1] + 8, S3[1] + 9, S3[1] + 10, S3[1] + 11
    a(f"""
s_mul_i32 s34, s20, 3072
v_add_u32 {vr(t)}, s34, v3
v_mov_b32 {vr(t1)}, 0x71800000
""")
    for q in range(4):
        for j in range(3): a(f"ds_write_b128 {vr(t)}, {vr(O3[q]+4*j,4)} offset:{q*12288 + j*1024}")
        acc_ = (t2, t3)
        for j in range(0, 12):
            r = acc_[j & 1]
            if q == 0 and j < 2: a(f"v_and_b32 {vr(r)}, 0x7fffffff, {vr(O3[q]+j)}")
            else: a(f"v_add_f32 {vr(r)}, {vr(r)}, abs({vr(O3[q]+j)})")
    a(f"""
v_add_f32 {vr(t2)}, {vr(t2)}, {vr(t3)}
v_cmp_nlt_f32 vcc, {vr(t2)}, {vr(t1)}
s_cmp_lg_u32 s30, 0
s_cbranch_scc1 LA_comb
s_nop 2
s_cmp_eq_u64 vcc, 0
s_cbranch_scc1 LA_comb
s_mov_b32 s30, 1
s_waitcnt vmcnt(0) lgkmcnt(0)
s_branch LA_restart
LA_comb:
""")
    a(f"""
s_mul_i32 s34, s20, 12288
v_add_u32 {vr(t)}, s34, v3
v_lshlrev_b32 {vr(t1)}, 2, v4
s_lshl_b32 s34, s20, 8
s_add_u32 s34, s34, {LDS_M}
v_add_u32 {vr(t1)}, s34, {vr(t1)}
s_add_u32 s26, s26, s20
s_waitcnt lgkmcnt(0)
s_barrier
""")
    Mr = [Q3[0] + w for w in range(4)]
    for w in range(4): a(f"ds_read_b32 v{Mr[w]}, {vr(t1)} offset:{1024*w}")
    for w in range(4):
        for j in range(3): a(f"ds_read_b128 {vr(O3[w]+4*j,4)}, {vr(t)} offset:{w*3072 + j*1024}")
    g_, kbv, g8, tb = Q3[1], Q3[1] + 1, Q3[1] + 2, Q3[1] + 3
    ad = [Q3[1] + 4, Q3[1] + 5, Q3[1] + 6]
    a(f"""
s_lshl_b32 s34, s26, 1
s_mul_i32 s34, s34, {68*1024}
s_add_u32 s34, s34, {AF}
v_bfe_u32 {vr(tb)}, v1, 4, 1
v_mul_u32_u24 {vr(tb)}, {68*1024}, {vr(tb)}
v_and_b32 {vr(g8)}, 15, v1
v_lshl_add_u32 {vr(tb)}, {vr(g8)}, 4, {vr(tb)}
s_mul_i32 s35, s21, 5
v_add_u32 {vr(g_)}, s35, v5
""")
    for i in range(3):
        a(f"""
v_lshrrev_b32 {vr(kbv)}, 3, {vr(g_)}
v_lshl_add_u32 {vr(ad[i])}, {vr(kbv)}, 10, {vr(tb)}
v_bfe_u32 {vr(g8)}, {vr(g_)}, 2, 1
v_lshl_add_u32 {vr(ad[i])}, {vr(g8)}, 9, {vr(ad[i])}
v_and_b32 {vr(g8)}, 1, {vr(g_)}
v_lshl_add_u32 {vr(ad[i])}, {vr(g8)}, 8, {vr(ad[i])}
v_bfe_u32 {vr(g8)}, {vr(g_)}, 1, 1
v_lshl_add_u32 {vr(ad[i])}, {vr(g8)}, 3, {vr(ad[i])}
""")
        if i < 2: a(f"v_add_u32 {vr(g_)}, 2, {vr(g_)}")
    m, l, l2 = Q3[2], Q3[2] + 1, Q3[2] + 2
    a(f"""
s_waitcnt lgkmcnt(12)
v_max3_f32 {vr(m)}, v{Mr[0]}, v{Mr[1]}, v{Mr[2]}
v_max_f32 {vr(m)}, {vr(m)}, v{Mr[3]}
""")
    for w in range(4): a(f"v_sub_f32 v{Mr[w]}, v{Mr[w]}, {vr(m)}")
    for w in range(4): a(f"v_exp_f32 v{Mr[w]}, v{Mr[w]}")
    a(f"s_waitcnt lgkmcnt(0)\nv_mul_f32 {vr(l)}, {vr(O3[0]+8)}, v{Mr[0]}")
    for w in range(1, 4): a(f"v_fmac_f32 {vr(l)}, {vr(O3[w]+8)}, v{Mr[w]}")
    a(f"""
v_mov_b32 {vr(l2)}, {vr(l)}
s_nop 1
v_permlane32_swap_b32 {vr(l)}, {vr(l2)}
s_nop 1
v_rcp_f32 {vr(l2)}, {vr(l2)}
s_nop 0
""")
    for w in range(4): a(f"v_mul_f32 v{Mr[w]}, v{Mr[w]}, {vr(l2)}")
    PKo = Q3[3]
    for i in range(3):
        for j in range(4 * i, 4 * i + 4):
            a(f"v_mul_f32 {vr(O3[0]+j)}, {vr(O3[0]+j)}, v{Mr[0]}")
            for w in range(1, 4): a(f"v_fmac_f32 {vr(O3[0]+j)}, {vr(O3[w]+j)}, v{Mr[w]}")
        for j in range(2):
            a(f"v_cvt_pk_bf16_f32 {vr(PKo+2*i+j)}, {vr(O3[0]+4*i+2*j)}, {vr(O3[0]+4*i+2*j+1)}")
        if i == 2: a("s_mov_b64 exec, s[14:15]")
        a(f"buffer_store_dwordx2 {vr(PKo+2*i,2)}, {vr(ad[i])}, s[8:11], s34 offen" + (" sc1" if FUSE else ""))
    if FUSE:
        a(f"""
s_mov_b64 exec, -1
s_waitcnt vmcnt(0)
s_barrier
s_cmp_lg_u32 s20, 0
s_cbranch_scc1 LA_fin
s_lshl_b32 s55, s22, 1
s_add_u32 s55, s55, s16
s_lshl_b32 s55, s55, 8
s_add_u32 s55, s55, {CNTW}
v_mov_b32 v10, 0
v_mov_b32 v11, 1
s_mov_b64 exec, 1
buffer_atomic_add v11, v10, s[8:11], s55 offen sc1
LA_fin:
""")
    if PROF:
        a("s_mov_b64 exec, -1")
        prof_out(a, 0x3100000, 8, 20, [40, 42, 44, 46])
    a("s_endpgm")

def splitk(a, L, nkb, kb_base, D, mode, ST, ACCV, prio=None, rounds=((0, 1, 2), (3, 4)), RESR=None):
    a(f"""
{L}:
s_and_b32 s27, s3, 7
s_lshr_b32 s28, s3, 3
s_lshr_b32 s29, s27, 1
s_lshl_b32 s29, s29, 3
s_lshr_b32 s30, s28, 2
s_add_u32 s29, s29, s30               ; mb
s_and_b32 s30, s27, 1
s_lshl_b32 s30, s30, 2
s_and_b32 s31, s28, 3
s_add_u32 s30, s30, s31               ; nb
v_lshlrev_b32 v3, 4, v1
v_add_u32 v4, {1*69632}, v3
v_add_u32 v5, {2*69632}, v3
v_add_u32 v6, {3*69632}, v3
v_add_u32 v7, 4096, v3
s_mul_i32 s32, s20, {nkb}
s_add_u32 s32, s32, {kb_base}
s_mul_i32 s33, s29, {4*69632}
s_lshl_b32 s34, s32, 10
s_add_u32 s33, s33, s34
s_add_u32 s33, s33, {AF}
s_mul_i32 s34, s32, 40960
s_mul_i32 s35, s30, 5120
s_add_u32 s34, s34, s35
s_add_u32 s34, s34, {BF}
""")
    FUSED = mode == "fused"
    N1 = nkb
    if FUSED:
        nkb = N1 + 5
        a(f"""
s_mul_i32 s52, s20, 5
s_mul_i32 s53, s29, {4*69632}
s_lshl_b32 s54, s52, 10
s_add_u32 s53, s53, s54
s_add_u32 s53, s53, {AF}
s_mul_i32 s54, s52, 40960
s_add_u32 s54, s54, s35
s_add_u32 s54, s54, {BF}
""")
    def loadsB(kb):
        b = ST + 36 * (kb % D)
        if FUSED and kb == N1: a("s_mov_b32 s34, s54")
        for j in range(4):
            a(f"buffer_load_dwordx4 {vr(b+16+4*j,4)}, v3, s[8:11], s34 offen offset:{j*1024}")
        a(f"buffer_load_dwordx4 {vr(b+32,4)}, v7, s[8:11], s34 offen")
        a("s_add_u32 s34, s34, 40960")
    def loadsA(kb):
        b = ST + 36 * (kb % D)
        if FUSED and kb == N1: a("s_mov_b32 s33, s53")
        sc = " sc1" if (FUSED and kb >= N1) else ""
        for i in range(4):
            a(f"buffer_load_dwordx4 {vr(b+4*i,4)}, v{3+i}, s[8:11], s33 offen{sc}")
        a("s_add_u32 s33, s33, 1024")
    def loads(kb):
        loadsB(kb)
        if not (FUSED and kb in (N1, N1 + 1)): loadsA(kb)
    for kb in range(min(D, nkb)): loads(kb)
    a(f"""
s_lshl_b32 s36, s29, 6
s_lshl_b32 s37, s20, 4
s_add_u32 s36, s36, s37
v_and_b32 v8, 15, v1
v_add_u32 v8, s36, v8
v_mul_u32_u24 v8, 1280, v8
v_lshrrev_b32 v9, 4, v1
v_lshl_add_u32 v8, v9, 3, v8
s_mul_i32 s36, s30, 160
s_lshl_b32 s38, s29, 3
s_add_u32 s38, s38, s30
s_mul_i32 s38, s38, 20480
s_mul_i32 s39, s20, 5120
s_add_u32 s38, s38, s39
s_add_u32 s38, s38, {YY}
""")
    def resloads(RES):
        if mode == "final":
            for j in range(4): a(f"buffer_load_dwordx4 {vr(RES+4*j,4)}, v3, s[8:11], s38 offen offset:{j*1024}")
            a(f"buffer_load_dwordx4 {vr(RES+16,4)}, v7, s[8:11], s38 offen")
        else:
            for j in range(5): a(f"buffer_load_dwordx2 {vr(RES+2*j,2)}, v8, s[12:15], s36 offen offset:{32*j}")
    if RESR is not None:
        assert D >= nkb
        resloads(RESR)
    for kb in range(nkb):
        b = ST + 36 * (kb % D)
        rem = min(D - 1, nkb - 1 - kb)
        if FUSED and kb == N1 - 1: a("s_waitcnt vmcnt(5)")
        elif FUSED and kb == N1:
            a(f"""
s_cmp_lg_u32 s20, 0
s_cbranch_scc1 {L}_pw
s_lshr_b32 s55, s29, 1
s_lshl_b32 s55, s55, 8
s_add_u32 s55, s55, {CNTW}
v_mov_b32 v10, 0
s_mov_b64 exec, 1
{L}_pl:
buffer_load_dword v11, v10, s[8:11], s55 offen sc1
s_waitcnt vmcnt(0)
v_readfirstlane_b32 s56, v11
s_nop 3
s_cmp_ge_u32 s56, 32
s_cbranch_scc1 {L}_pd
s_sleep {SLEEP}
s_branch {L}_pl
{L}_pd:
s_mov_b64 exec, -1
{L}_pw:
s_barrier
""")
            if PROF: a("s_memrealtime s[42:43]")
            loadsA(N1); loadsA(N1 + 1)
            a("s_waitcnt vmcnt(4)")
        else: a(f"s_waitcnt vmcnt({9*rem + (5 if RESR is not None else 0)})")
        if prio and not FUSED: a(f"s_setprio {prio[1]}")
        for i in range(4):
            for j in range(5):
                t = 5 * i + j
                c = "0" if kb == 0 else ACCV(t)
                if not (mode == "down" and 'nomf' in VAR and kb > 0): a(f"{MF16} {ACCV(t)}, {vr(b+16+4*j,4)}, {vr(b+4*i,4)}, {c}")
        if prio and kb + D < nkb and not FUSED: a(f"s_setprio {prio[0]}")
        if kb + D < nkb and not (mode == "down" and 'nold' in VAR): loads(kb + D)
    if PROF: a("s_memrealtime s[44:45]")
    RES = ST if RESR is None else RESR
    if RESR is None: resloads(RES)
    else: a("s_nop 4")
    OWN = ST + 20
    R = ST + 40
    a("s_nop 3")
    a(f"""
s_mul_i32 s37, s20, {3*1024*len(rounds[0])}
v_add_u32 v9, s37, v3
""")
    SL = 1024 * len(rounds[0]); NJ = len(rounds[0])
    for rnd, js in enumerate(rounds):
        for w in range(4):
            if w < 3:
                a(f"s_cmp_eq_u32 s20, {w}\ns_cbranch_scc0 {L}_r{rnd}n{w}")
            for i in range(4):
                if i == w: continue
                slot = w if w < i else w - 1
                for jj, j in enumerate(js):
                    a(f"ds_write_b128 v3, {ACCV(5*i+j)} offset:{(i*3+slot)*SL + jj*1024}")
            for j in js:
                src = ACCV(5 * w + j)
                base = int(src[2:src.index(":")])
                for r in range(4):
                    if src[0] == "a": a(f"v_accvgpr_read_b32 v{OWN+4*j+r}, a{base+r}")
                    else: a(f"v_mov_b32 v{OWN+4*j+r}, v{base+r}")
            if w < 3:
                a(f"s_branch {L}_r{rnd}d\n{L}_r{rnd}n{w}:")
        a(f"{L}_r{rnd}d:\ns_waitcnt lgkmcnt(0)\ns_barrier")
        for s in range(3):
            for jj, j in enumerate(js):
                a(f"ds_read_b128 {vr(R+4*jj+4*NJ*(s%2),4)}, v9 offset:{s*SL+jj*1024}")
            if s >= 1:
                a(f"s_waitcnt lgkmcnt({len(js)})")
                for jj, j in enumerate(js):
                    for r in range(4): a(f"v_add_f32 v{OWN+4*j+r}, v{OWN+4*j+r}, v{R+4*jj+4*NJ*((s-1)%2)+r}")
        a("s_waitcnt lgkmcnt(0)")
        for jj, j in enumerate(js):
            for r in range(4): a(f"v_add_f32 v{OWN+4*j+r}, v{OWN+4*j+r}, v{R+4*jj+r}")
        if rnd + 1 < len(rounds): a("s_barrier")
    a("s_waitcnt vmcnt(0)")
    if mode == "final":
        for q in range(20): a(f"v_add_f32 v{OWN+q}, v{OWN+q}, v{RES+q}")
    else:
        for j in range(5):
            for hh in range(2):
                a(f"v_lshlrev_b32 v{R}, 16, v{RES+2*j+hh}")
                a(f"v_and_b32 v{R+1}, 0xffff0000, v{RES+2*j+hh}")
                a(f"v_add_f32 v{OWN+4*j+2*hh}, v{OWN+4*j+2*hh}, v{R}")
                a(f"v_add_f32 v{OWN+4*j+2*hh+1}, v{OWN+4*j+2*hh+1}, v{R+1}")
    if mode == "down":
        for j in range(4): a(f"buffer_store_dwordx4 {vr(OWN+4*j,4)}, v3, s[8:11], s38 offen offset:{j*1024} sc1")
        a(f"buffer_store_dwordx4 {vr(OWN+16,4)}, v7, s[8:11], s38 offen sc1")
    else:
        for j in range(5):
            a(f"v_cvt_pk_bf16_f32 v{R+2*j}, v{OWN+4*j}, v{OWN+4*j+1}")
            a(f"v_cvt_pk_bf16_f32 v{R+2*j+1}, v{OWN+4*j+2}, v{OWN+4*j+3}")
            a(f"buffer_store_dwordx2 {vr(R+2*j,2)}, v8, s[16:19], s36 offen offset:{32*j}")

def k2_kernel(a, name, ffn=True, prio=(0, 2), aprio=1):
    kernel_header(a, name)
    a(f"""
s_cmp_ge_u32 s2, 768
s_cbranch_scc1 LK2_end
""")
    if PROF: a("s_memrealtime s[40:41]")
    a(f"""
s_load_dwordx2 s[4:5], s[0:1], 72
s_load_dwordx2 s[6:7], s[0:1], 0
s_load_dwordx2 s[52:53], s[0:1], 64
s_load_dwordx2 s[58:59], s[0:1], 56
v_and_b32 v1, 63, v0
v_lshrrev_b32 v2, 6, v0
s_and_b32 s3, s2, 255
v_readfirstlane_b32 s20, v2
s_lshr_b32 s16, s2, 8                 ; type
s_cmp_eq_u32 s16, 0
s_cbranch_scc1 LK2_ffn
s_sub_u32 s16, s16, 1
s_setprio {aprio}
""")
    if 'attn2' in VAR:
        a("s_waitcnt lgkmcnt(0)")
        srd(a, 8, 4, 5, WS_BYTES)
        attn(a)
    else:
        attn3(a)
    a("LK2_ffn:")
    if ffn:
        a("s_waitcnt lgkmcnt(0)")
        srd(a, 8, 4, 5, WS_BYTES)
        srd(a, 12, 6, 7, 2048 * 640 * 2)
        if PROF: a("s_memrealtime s[42:43]")
        if FUSE:
            srd(a, 16, 58, 59, 2048 * 640 * 2)
        splitk(a, "LD", 12, 20, 2, "fused" if FUSE else "down", 12, lambda t: f"v[{88+4*t}:{91+4*t}]", prio=prio)
        if PROF: prof_out(a, 0x3100000, 8, 20, [40, 42, 44, 46])
    a("LK2_end:\ns_endpgm")

K3_LDS = 61440
def k3_kernel(a, name, mode="final"):
    kernel_header(a, name)
    a(f"""
s_cmp_ge_u32 s2, 256
s_cbranch_scc1 LK3_end
""")
    if PROF: a("s_memrealtime s[40:41]\ns_memrealtime s[42:43]")
    a(f"""
s_load_dwordx2 s[4:5], s[0:1], 72
s_load_dwordx2 s[6:7], s[0:1], 0
s_load_dwordx2 s[22:23], s[0:1], 56
v_and_b32 v1, 63, v0
v_lshrrev_b32 v2, 6, v0
s_mov_b32 s3, s2
v_readfirstlane_b32 s20, v2
s_waitcnt lgkmcnt(0)
""")
    srd(a, 8, 4, 5, WS_BYTES)
    srd(a, 12, 6, 7, 2048 * 640 * 2)
    srd(a, 16, 22, 23, 2048 * 640 * 2)
    if mode == "final": splitk(a, "LF", 5, 0, 5, "final", 12, lambda t: f"a[{4*t}:{4*t+3}]", rounds=((0, 1, 2, 3, 4),), RESR=192)
    else: splitk(a, "LF", 17, 0, 6, "full", 12, lambda t: f"a[{4*t}:{4*t+3}]")
    if PROF: prof_out(a, 0x3200000, 8, 20, [40, 42, 44, 46])
    if PROF and DBGOUT:
        a(f"""
s_mov_b64 exec, -1
s_or_b32 s50, s2, s20
s_cmp_lg_u32 s50, 0
s_cbranch_scc1 LK3_end
s_load_dwordx2 s[52:53], s[0:1], 64
s_waitcnt lgkmcnt(0)
s_mov_b32 s54, 256
s_mov_b32 s55, 0x00020000
v_lshlrev_b32 v20, 2, v1
s_mov_b32 s56, {0x3000000 + 200*8*32}
buffer_load_dword v21, v20, s[8:11], s56 offen
s_mov_b32 s56, {0x3000000 - 20}
buffer_load_dword v22, v20, s[8:11], s56 offen
s_mov_b32 s56, {0x3100000 + 600*4*16 - 32}
buffer_load_dword v23, v20, s[8:11], s56 offen
s_waitcnt vmcnt(0)
v_cmp_gt_u32 vcc, 6, v1
s_nop 1
v_cndmask_b32 v22, v22, v21, vcc
v_cmp_gt_u32 vcc, 8, v1
s_nop 1
v_cndmask_b32 v23, v23, v22, vcc
v_mov_b32 v24, s40
v_cmp_eq_u32 vcc, 12, v1
s_nop 1
v_cndmask_b32 v23, v23, v24, vcc
v_mov_b32 v24, s44
v_cmp_eq_u32 vcc, 13, v1
s_nop 1
v_cndmask_b32 v23, v23, v24, vcc
v_mov_b32 v24, s46
v_cmp_eq_u32 vcc, 14, v1
s_nop 1
v_cndmask_b32 v23, v23, v24, vcc
s_nop 1
v_readfirstlane_b32 s57, v23
s_nop 3
v_subrev_u32 v23, s57, v23
s_mov_b64 exec, 0xffff
buffer_store_dword v23, v20, s[52:55], 0 offen
""")
    a("LK3_end:\ns_endpgm")
K3_ARCH = 12 + 36 * 6
```

```python
import sys
from asmlib import *
import gen_k1e, gen_k1f, gen_k2
gen_k1 = gen_k1e if 'k1e' in sys.argv else gen_k1f
gen_k2.KPERM = 'v1'
HEAD = open("parallel_sum__mha_block__glu_gated_reglu__prompt.s.ref").read().split("; Override launch")[0]
opts = sys.argv[2:]
PROF = "prof" in opts
gen_k1.PROF = PROF; gen_k2.PROF = PROF; gen_k2.DBGOUT = 'dbg' in opts
arch = "A" if "A" in opts else "C"
gen_k1.VAR = "_".join(opts) + "_qsc1_nopf2"; gen_k2.VAR = "_".join(opts) + "_nopf3"
FUSE = "fuse" in opts
gen_k2.FUSE = FUSE
for o in opts:
    if o.startswith('sl'): gen_k2.SLEEP = int(o[2:])
a = Asm()
hdr = HEAD + f"""; @launch kernel=k1_kernel grid=(256,1,1) block=(512,1,1) lds={gen_k1.K1_LDS}
; @launch kernel=k2_kernel grid=(768,1,1) block=(256,1,1) lds={gen_k2.K2_LDS}
""" + ("" if FUSE else f"; @launch kernel=k3_kernel grid=(256,1,1) block=(256,1,1) lds={gen_k2.K3_LDS}\n")
a('.amdgcn_target "amdgcn-amd-amdhsa--gfx950"\n.text')
gen_k1.k1_kernel(a, "k1_kernel")
prio = (0, 2) if "p2" in opts else (0, 0)
gen_k2.k2_kernel(a, "k2_kernel", ffn=(arch == "C"), prio=prio)
if not FUSE: gen_k2.k3_kernel(a, "k3_kernel", mode="final" if arch == "C" else "full")
a('LCODE_END:')
txt = hdr + a.text() + '.section .rodata,"a"\n' + kernel_desc("k1_kernel", gen_k1.K1_VGPR, 100) + kernel_desc("k2_kernel", gen_k2.K2_VGPR, 64) + ("" if FUSE else kernel_desc("k3_kernel", gen_k2.K3_ARCH + 80, 60, accum=gen_k2.K3_ARCH))
open(sys.argv[1], "w").write(txt)
```

```python
from asmlib import *
MFMA = "v_mfma_f32_32x32x16_bf16"
MF16 = "v_mfma_f32_16x16x32_bf16"
A_STAGE = 32768
B_RING, B_SLOT = 98304, 12576
CS_OFF = 161184
K1_LDS = 161952
ACC = 64
CSA = 160
FR = 168
FX = 216
K1_VGPR = 256
CP = 228
CNT_OFF = 160000
QSCALE = (20 ** -0.5) * 1.4426950408889634
PROF = False
VAR = ""
def stamp(a, k):
    if PROF:
        a(f"s_memrealtime s[{82+2*k}:{83+2*k}]")
        if k in (1, 2): a(f"s_memtime s[{92+2*k}:{93+2*k}]")
def stamp_out(a, n):
    if PROF:
        a("s_waitcnt vmcnt(0) lgkmcnt(0)")
        a(f"s_memrealtime s[{82+2*n}:{83+2*n}]")
        a("s_waitcnt lgkmcnt(0)")
        for k in range(8):
            a(f"v_mov_b32 v{8+k}, s{82+2*min(k, n)}" if k < 6 else f"v_mov_b32 v{8+k}, s{94+2*(k-6)}")
        a(f"""
s_lshl_b32 s34, s2, 3
s_add_u32 s34, s34, s24
s_lshl_b32 s34, s34, 5
s_add_u32 s34, s34, 0x3000000
v_mov_b32 v16, 0
s_mov_b64 exec, 1
buffer_store_dwordx4 v[8:11], v16, s[16:19], s34 offen
buffer_store_dwordx4 v[12:15], v16, s[16:19], s34 offen offset:16
""")

def gemm(a0, kind):
    def a(t):
        if 'qsc1' in VAR and kind != "GU":
            t = "\n".join((l + " sc1" if ("buffer_store" in l and "v16, s[" not in l) else l) for l in t.split("\n"))
        a0(t)
    L = f"LG{kind}"
    GU = kind == "GU"
    RS = 192 if GU else 320
    GS = 8 * RS + 32
    UP = 4 * GS + 32
    CPR = 12 if GU else 20
    CW = 96 if GU else 80
    ldw = 3072 if GU else 3840
    EVEN = (not GU) and ('noeven' not in VAR)
    VMB = 9 if EVEN else 8
    NA = 2 if GU else 1
    NBF = 3 if GU else 5
    FA = [[FR + 24 * b + 4 * i for i in range(NA)] for b in range(2)]
    FB = [[FR + 24 * b + 4 * NA + 4 * j for j in range(NBF)] for b in range(2)]
    acc = lambda i, j: ACC + 16 * (NBF * i + j)
    a(f"{L}:")
    if GU:
        a(f"""
s_mul_i32 s58, s28, 192
s_and_b32 s57, s24, 3
s_mul_i32 s59, s57, {GS}
s_mul_i32 s60, s81, {UP}
s_add_u32 s59, s59, s60
s_mul_i32 s60, s57, {CW}
s_lshl_b32 s56, s80, 13
""")
    else:
        a(f"""
s_mul_i32 s58, s28, 320
s_lshr_b32 s59, s24, 1
s_mul_i32 s59, s59, {GS}
s_and_b32 s57, s24, 1
s_mul_i32 s57, s57, 1280
s_add_u32 s59, s59, s57
s_mul_i32 s60, s24, {CW}
s_lshl_b32 s56, s24, 12               ; 32*w*128
""")
    magic, sh = (43691, 19) if CPR == 12 else (52429, 20)
    a(f"""
s_add_u32 s59, s59, {B_RING}
s_mov_b32 s62, {ldw}
v_add_u32 v6, s56, v6
v_add_u32 v7, s56, v7
v_add_u32 v8, s56, v8
v_add_u32 v9, s56, v9
""")
    for (vd, add) in ((14, 0), (15, 64)):
        a(f"""
v_add_u32 v24, s60, v1
v_add_u32 v24, {add}, v24
v_mul_u32_u24 v25, {magic}, v24
v_lshrrev_b32 v25, {sh}, v25
v_mul_u32_u24 v26, {CPR}, v25
v_sub_u32 v26, v24, v26
v_mul_lo_u32 v25, v25, s62
v_lshl_add_u32 v25, v26, 4, v25
v_add_u32 v{vd}, s58, v25
""")
        if add: a(f"v_subrev_u32 v{vd}, 1024, v{vd}")
    a(f"""
s_mov_b32 s64, {hex((1 << (CW - 64)) - 1)}
s_mov_b32 s65, 0
s_mov_b32 s30, 0
s_mov_b32 s31, 0
s_mov_b32 s32, 0
s_mov_b32 s33, 0
s_mov_b32 s66, 0
s_mov_b32 s67, 0
""")
    def dmaA(q):
        a(f"""
s_add_u32 m0, s63, s32
s_nop 0
buffer_load_dwordx4 v{10+q}, s[8:11], s30 offen offset:{1024*q} lds
""")
        if q == 3:
            a(f"""
s_add_u32 s32, s32, {A_STAGE}
s_cmp_eq_u32 s32, {3*A_STAGE}
s_cselect_b32 s32, 0, s32
s_add_u32 s30, s30, 128
""")
    def dmaB(q):
        if q == 0:
            a(f"""
s_add_u32 m0, s59, s33
s_nop 0
buffer_load_dwordx4 v14, s[12:15], s31 offen lds
""")
        else:
            a(f"""
s_add_u32 m0, s59, s33
s_mov_b64 exec, s[64:65]
buffer_load_dwordx4 v15, s[12:15], s31 offen offset:1024 lds
s_mov_b64 exec, -1
s_add_u32 s33, s33, {B_SLOT}
s_cmp_eq_u32 s33, {5*B_SLOT}
s_cselect_b32 s33, 0, s33
s_add_u32 s31, s31, {32*ldw}
""")
    JO = 32 if GU else 64
    def reads(nb, ja, ks):
        r = [f"ds_read_b128 {vr(FA[nb][i],4)}, v{6+ja} offset:{4096*i}" for i in range(NA)]
        for j in range(NBF):
            for rr in range(2):
                r.append(f"ds_read_b64_tr_b16 {vr(FB[nb][j]+2*rr,2)}, v16 offset:{2*ks*GS + 4*rr*RS + j*JO}")
        return r
    def xsetup():
        a(f"""
s_add_u32 s69, s67, {B_SLOT}
s_cmp_eq_u32 s69, {5*B_SLOT}
s_cselect_b32 s69, 0, s69
s_cmp_eq_u32 s72, 0
s_cselect_b32 s71, s67, s69
v_add_u32 v19, s67, v17
v_add_u32 v2, s69, v17
v_add_u32 v3, s71, v18
""")
    def xreads():
        r = []
        for e, v in enumerate((19, 2, 3)):
            for rr in range(2):
                r.append(f"ds_read_b64_tr_b16 {vr(FX+4*e+2*rr,2)}, v{v} offset:{4*rr*RS}")
        return r
    def advA_pre():
        a(f"""
s_add_u32 s69, s66, {A_STAGE}
s_cmp_eq_u32 s69, {3*A_STAGE}
s_cselect_b32 s69, 0, s69
s_sub_u32 s68, s69, s66
s_mov_b32 s66, s69
""")
    def advB():
        a(f"""
s_add_u32 s69, s67, {B_SLOT}
s_cmp_eq_u32 s69, {5*B_SLOT}
s_cselect_b32 s69, 0, s69
s_sub_u32 s70, s69, s67
s_mov_b32 s67, s69
v_add_u32 v16, s70, v16
""")
    def mfma(b, i, j):
        d = vr(acc(i, j), 16)
        if kind == "V": return f"{MFMA} {d}, {vr(FA[b][i],4)}, {vr(FB[b][j],4)}, {d}"
        return f"{MFMA} {d}, {vr(FB[b][j],4)}, {vr(FA[b][i],4)}, {d}"
    a("s_waitcnt lgkmcnt(0)")
    if 'stx' in VAR: stamp(a, 3)
    srd(a, 8, 36, 37, 2048 * 640 * 2)
    if GU:
        a(f"""
s_cmp_ge_u32 s24, 4
s_cselect_b32 s12, s46, s44
s_cselect_b32 s13, s47, s45
s_mov_b32 s14, {640*1536*2}
s_mov_b32 s15, 0x00020000
""")
    else:
        srd(a, 12, 38, 39, 640 * 1920 * 2)
    for _ in range(2):
        if EVEN:
            for q in range(4): dmaB(q & 1); dmaA(q)
        else:
            dmaB(0); dmaB(1)
            for q in range(4): dmaA(q)
            dmaB(0); dmaB(1)
    if 'stx' in VAR: stamp(a, 4)
    srd(a, 16, 54, 55, WS_BYTES)
    srd(a, 20, 52, 53, 256)
    NH = UP if GU else 32
    a(f"""
v_bfe_u32 v26, v1, 2, 2
v_mul_u32_u24 v26, {RS}, v26
v_and_b32 v27, 3, v1
v_lshl_add_u32 v26, v27, 3, v26       ; (i>>2)*RS + 8*(i&3)
v_lshrrev_b32 v24, 5, v1
v_mul_u32_u24 v24, {GS}, v24
v_bfe_u32 v27, v1, 4, 1
v_mul_u32_u24 v27, {NH}, v27
v_add3_u32 v16, v24, v26, v27
""")
    if GU: a(f"s_mul_i32 s61, s81, 96\ns_add_u32 s61, s61, {B_RING}")
    else: a(f"s_mov_b32 s61, {B_RING}")
    a("v_add_u32 v16, s61, v16")
    for j in range(ACC, ACC + 16 * NA * NBF): a(f"v_mov_b32 v{j}, 0")
    a("s_waitcnt vmcnt(8) lgkmcnt(0)\ns_barrier")
    stamp(a, 1)
    for r in reads(0, 0, 0): a(r)
    advA_pre()
    a("v_add_u32 v6, s68, v6")
    def step(jj, dma=True, bar=True, vm=None, nxt=True, extra=None, xm_early=False, vm3=6):
        if vm is None: vm = VMB
        b = jj & 1; nb = b ^ 1
        if jj % 2 == 0 and bar: a(f"s_waitcnt vmcnt({vm})\ns_barrier")
        if extra: extra()
        if EVEN and jj == 3 and nxt: a(f"s_waitcnt vmcnt({vm3}) lgkmcnt(0)")
        else: a("s_waitcnt lgkmcnt(0)")
        rd = []
        if nxt:
            if jj % 2 == 1: advB()
            rd = reads(nb, (jj + 1) % 4, (jj + 1) % 2)
        dm = []
        if dma:
            dm = {0: [lambda: dmaB(0), lambda: dmaB(1), lambda: dmaA(0)], 1: [lambda: dmaA(1), lambda: dmaA(2), lambda: dmaA(3)],
                  2: [lambda: dmaB(0)], 3: [lambda: dmaB(1)]}[jj]
            if EVEN: dm = [lambda: dmaB(jj & 1), lambda: dmaA(jj)]
        ms = [mfma(b, i, j) for j in range(NBF) for i in range(NA)]
        xm = [f"{MF16} {vr(CSA,4)}, {vr(FX,4)}, v[20:23], {vr(CSA,4)}",
              f"{MF16} {vr(CSA+4,4)}, {vr(FX+8,4)}, v[20:23], {vr(CSA+4,4)}",
              f"{MF16} {vr(CSA,4)}, {vr(FX+4,4)}, v[20:23], {vr(CSA,4)}"]
        n = len(ms)
        nr = max(1, n - 2)
        pr = pd = 0
        for k, m in enumerate(ms):
            a(m)
            tr = min(len(rd), -(-len(rd) * (k + 1) // nr))
            while pr < tr:
                a(rd[pr]); pr += 1
                if pr == NA and nxt:
                    ja = (jj + 1) % 4
                    if ja == 0: advA_pre()
                    a(f"v_add_u32 v{6+ja}, s68, v{6+ja}")
            td = min(len(dm), (len(dm) * (k + 2)) // n)
            while pd < td: dm[pd](); pd += 1
    a("s_mov_b32 s34, 8")
    a(f"s_branch {L}_in")
    a(".p2align 6")
    a(f"{L}_loop:")
    a(f"s_waitcnt vmcnt({VMB})\ns_barrier")
    a(f"{L}_in:")
    step(0, bar=False); step(1); step(2); step(3)
    a(f"""
s_sub_u32 s34, s34, 1
s_cmp_lg_u32 s34, 0
s_cbranch_scc1 {L}_loop
""")
    stamp(a, 2)
    step(0, dma=False); step(1, dma=False); step(2, dma=False, vm=5 if EVEN else 2); step(3, dma=False, vm3=0)
    def poll_issue():
        a("buffer_load_dword v24, v5, s[20:23], 0 offen sc1")
    def poll_check(final=False):
        sfx = "F" if final else ""
        if final:
            a(f"""
s_cmp_lg_u32 s78, 0
s_cbranch_scc1 {L}_have
{L}_poll:
buffer_load_dword v24, v5, s[20:23], 0 offen sc1
s_waitcnt vmcnt(0)
v_cmp_eq_u32 vcc, 0, v24
s_nop 4
s_cmp_eq_u64 vcc, 0
s_cbranch_scc1 {L}_pollok
s_sleep 1
s_branch {L}_poll
{L}_pollok:
""")
        else:
            a(f"""
s_waitcnt vmcnt(0)
v_cmp_eq_u32 vcc, 0, v24
s_mov_b32 s78, 0
s_nop 3
s_cmp_eq_u64 vcc, 0
s_cbranch_scc0 {L}_notyet
s_mov_b32 s78, 1
""")
        if 'stx' not in VAR: stamp(a, 3)
        if GU: a("s_lshl_b32 s76, s27, 8\ns_lshl_b32 s77, s80, 6\ns_add_u32 s76, s76, s77")
        else: a("s_mov_b32 s76, s29")
        a(f"""
v_and_b32 v25, 31, v1
v_add_u32 v26, s76, v25
v_lshlrev_b32 v26, 2, v26
s_mov_b32 s69, {MBO}
s_mov_b32 s70, {RIO}
""")
        for i in range(NA):
            a(f"buffer_load_dword v{28+i}, v26, s[16:19], s69 offen offset:{128*i} sc1")
        if kind == "V":
            a(f"""
v_lshrrev_b32 v27, 5, v1
v_lshlrev_b32 v27, 2, v27
v_add_u32 v27, s76, v27
v_lshlrev_b32 v27, 2, v27
""")
            for i in range(4):
                a(f"buffer_load_dwordx4 {vr(40+4*i,4)}, v27, s[16:19], s70 offen offset:{32*i} sc1")
        else:
            for i in range(NA):
                a(f"buffer_load_dword v{30+i}, v26, s[16:19], s70 offen offset:{128*i} sc1")
        if GU:
            a(f"""
v_and_b32 v27, 15, v1
v_bfe_u32 v32, v1, 4, 1
v_mul_u32_u24 v32, 1536, v32
v_add_u32 v27, v27, v32
v_lshlrev_b32 v27, 2, v27
s_mul_i32 s69, s28, {96*4}
s_mul_i32 s70, s81, {48*4}
s_add_u32 s69, s69, s70
s_add_u32 s69, s69, {CSO + 1920*4}
""")
            for kq in range(4):
                for j in range(3): a(f"buffer_load_dword v{CP+5*kq+j}, v27, s[16:19], s69 offen offset:{64*j} sc1")
                if kq < 3: a(f"s_add_u32 s69, s69, {4992*4}")
        else:
            a(f"""
v_lshlrev_b32 v32, 2, v25
s_mul_i32 s69, s28, {160*4}
s_add_u32 s69, s69, {CSO}
""")
            for kq in range(4):
                for j in range(5): a(f"buffer_load_dword v{CP+5*kq+j}, v32, s[16:19], s69 offen offset:{128*j} sc1")
                if kq < 3: a(f"s_add_u32 s69, s69, {4992*4}")
        a(f"{L}_have:" if final else f"{L}_notyet:")
    def cs_publish():
        a(f"""
v_and_b32 v27, 15, v1
v_cmp_eq_u32 vcc, 0, v27
v_and_b32 v27, 48, v1
s_lshl_b32 s70, s24, 6
s_add_u32 s70, s70, {CS_OFF}
v_add_u32 v32, s70, v27
s_lshl_b32 s70, s73, 6
s_add_u32 s70, s70, {CS_OFF + 512}
v_add_u32 v33, s70, v27
s_and_saveexec_b64 s[74:75], vcc
ds_write_b128 v32, {vr(CSA,4)}
""")
        if not GU: a(f"s_cmp_ge_u32 s24, 4\ns_cbranch_scc1 {L}_nox")
        for r in range(4): a(f"ds_add_f32 v33, v{CSA+4+r} offset:{4*r}")
        if not GU: a(f"{L}_nox:")
        a("s_mov_b64 exec, -1\ns_waitcnt lgkmcnt(0)\ns_barrier")
        if GU:
            a(f"""
v_and_b32 v27, 15, v1
v_bfe_u32 v32, v1, 4, 1
v_mul_u32_u24 v32, 96, v32
v_add_u32 v27, v27, v32
s_mul_i32 s70, s81, 48
v_add_u32 v27, s70, v27
v_lshlrev_b32 v27, 2, v27
v_add_u32 v27, {CS_OFF}, v27
""")
            for j in range(3): a(f"ds_read_b32 v{34+j}, v27 offset:{64*j}")
        else:
            a(f"v_lshlrev_b32 v27, 2, v25\nv_add_u32 v27, {CS_OFF}, v27")
            for j in range(5): a(f"ds_read_b32 v{34+j}, v27 offset:{128*j}")
    step(0, dma=False, vm=0, extra=poll_issue, xm_early=True); step(1, dma=False, extra=poll_check, xm_early=True)
    step(2, dma=False, bar=False); step(3, dma=False, nxt=False, xm_early=True)
    if 'stx' not in VAR: stamp(a, 4)
    poll_check(final=True)
    XC = FR
    WC = FR + 8
    a(f"""
s_waitcnt vmcnt(0)
s_mov_b32 s64, -1
s_mov_b32 s65, 0
""")
    for j in range(NBF):
        a(f"v_add_f32 v{34+j}, v{CP+j}, v{CP+5+j}\nv_add_f32 v{CP+10+j}, v{CP+10+j}, v{CP+15+j}\nv_add_f32 v{34+j}, v{34+j}, v{CP+10+j}")
    for i in range(NA):
        a(f"""
v_xor_b32 v24, 0x80000000, v{28+i}
v_lshrrev_b32 v25, 16, v24
v_or_b32 v26, v25, v24
v_cndmask_b32 v{XC+4*i}, 0, v26, s[64:65]
v_cndmask_b32 v{XC+4*i+1}, 0, v25, s[64:65]
v_mov_b32 v{XC+4*i+2}, 0
v_mov_b32 v{XC+4*i+3}, 0
""")
    WCr = [FX, FX + 4, FX + 8, WC, WC + 4]
    for j in range(NBF):
        w = WCr[j]; c = 34 + j
        a(f"""
v_and_b32 v24, 0xffff0000, v{c}
v_sub_f32 v25, v{c}, v24
v_and_b32 v26, 0xffff0000, v25
v_sub_f32 v25, v25, v26
v_lshrrev_b32 v24, 16, v24
v_or_b32 v{w}, v24, v26
v_lshrrev_b32 v{w+1}, 16, v25
v_mov_b32 v{w+2}, 0
v_mov_b32 v{w+3}, 0
""")
        if j == NBF - 1: a("s_nop 1")
        if j >= 1:
            for i in range(NA):
                d = vr(acc(i, j - 1), 16)
                if kind == "V": a(f"{MFMA} {d}, {vr(XC+4*i,4)}, {vr(WCr[j-1],4)}, {d}")
                else: a(f"{MFMA} {d}, {vr(WCr[j-1],4)}, {vr(XC+4*i,4)}, {d}")
    for i in range(NA):
        d = vr(acc(i, NBF - 1), 16)
        if kind == "V": a(f"{MFMA} {d}, {vr(XC+4*i,4)}, {vr(WCr[NBF-1],4)}, {d}")
        else: a(f"{MFMA} {d}, {vr(WCr[NBF-1],4)}, {vr(XC+4*i,4)}, {d}")
    a("s_lshr_b32 s69, s76, 5")
    PK = FR + 16 if False else 24
    if kind == "QK":
        a(f"""
s_cmp_lt_u32 s28, 4
s_cselect_b32 s70, {hex(f32bits(QSCALE))}, 1.0
v_mul_f32 v4, s70, v30
s_cselect_b32 s71, {QF}, {KF}
s_and_b32 s72, s28, 3
s_mul_i32 s72, s72, {8*81920}
s_add_u32 s71, s71, s72
s_mul_i32 s72, s69, 1280
s_add_u32 s71, s71, s72
v_lshlrev_b32 v2, 4, v1
v_and_b32 v3, 31, v1
v_lshlrev_b32 v3, 3, v3
v_lshrrev_b32 v5, 5, v1
s_mov_b32 s72, 81920
v_mul_lo_u32 v5, v5, s72
v_add3_u32 v3, v3, v5, 0
v_add_u32 v3, 1024, v3
""")
        for P in range(4):
            for i in range(20):
                r = ACC + 20 * P + i
                a(f"v_mul_f32 v{r}, v{r}, v4")
            for i in range(10):
                r = ACC + 20 * P + 2 * i
                a(f"v_cvt_pk_bf16_f32 v{PK+10*P+i}, v{r}, v{r+1}")
            a(f"buffer_store_dwordx4 {vr(PK+10*P,4)}, v2, s[16:19], s71 offen")
            a(f"buffer_store_dwordx2 {vr(PK+10*P+4,2)}, v3, s[16:19], s71 offen")
            a(f"s_add_u32 s71, s71, 81920")
            a(f"buffer_store_dwordx4 {vr(PK+10*P+6,4)}, v2, s[16:19], s71 offen")
            a(f"s_add_u32 s71, s71, 81920")
    elif kind == "V":
        PK = FR
        a(f"""
s_sub_u32 s72, s28, 8
s_mul_i32 s72, s72, {8*81920}
s_mul_i32 s71, s69, 1280
s_add_u32 s71, s71, s72
s_add_u32 s71, s71, {VF}
s_mov_b32 s72, 81920
v_and_b32 v2, 31, v1
v_lshrrev_b32 v3, 5, v1
v_mul_u32_u24 v3, 320, v3
""")
        for j in range(5):
            a(f"""
v_add_u32 v24, {32*j}, v2
v_mul_u32_u24 v25, 52429, v24
v_lshrrev_b32 v25, 20, v25
v_mul_u32_u24 v26, 20, v25
v_sub_u32 v26, v24, v26
v_mul_lo_u32 v25, v25, s72
v_lshl_add_u32 v25, v26, 4, v25
v_add_u32 v{28+j}, v25, v3
""")
        for j in range(5):
            for i in range(16):
                r = ACC + 16 * j + i
                a(f"v_mul_f32 v{r}, v{r}, v{40+i}")
            for i in range(8):
                r = ACC + 16 * j + 2 * i
                a(f"v_cvt_pk_bf16_f32 v{PK+8*j+i}, v{r}, v{r+1}")
            a(f"buffer_store_dwordx4 {vr(PK+8*j,4)}, v{28+j}, s[16:19], s71 offen")
            a(f"buffer_store_dwordx4 {vr(PK+8*j+4,4)}, v{28+j}, s[16:19], s71 offen offset:640")
    else:
        PK = 32
        a(f"""
v_mul_f32 v4, v30, v30
v_mul_f32 v5, v31, v31
s_lshl_b32 s71, s69, 1                  ; rowtile16
s_mul_i32 s71, s71, {68*1024}
s_mul_i32 s72, s28, {3*1024}
s_add_u32 s71, s71, s72
s_mul_i32 s72, s81, {3*512}
s_add_u32 s71, s71, s72
s_add_u32 s71, s71, {AF + 20*1024}
s_add_u32 s72, s71, {2*68*1024}
v_bfe_u32 v2, v1, 4, 1
v_mul_u32_u24 v2, {68*1024}, v2
v_and_b32 v3, 15, v1
v_lshl_add_u32 v2, v3, 4, v2
v_lshrrev_b32 v3, 5, v1
v_lshl_add_u32 v2, v3, 8, v2
s_nop 3
""")
        for j in range(3):
            for i in range(2):
                for r in range(8):
                    g = acc(i, j) + r; u = g + 8
                    a(f"v_max_f32 v{g}, 0, v{g}")
                    a(f"v_mul_f32 v{u}, v{u}, v{4+i}")
                    a(f"v_mul_f32 v{g}, v{g}, v{u}")
                for r in range(4):
                    a(f"v_cvt_pk_bf16_f32 v{PK+8*j+4*i+r}, v{acc(i,j)+2*r}, v{acc(i,j)+2*r+1}")
                a(f"buffer_store_dwordx4 {vr(PK+8*j+4*i,4)}, v2, s[16:19], s{71+i} offen offset:{j*512}")
    stamp_out(a, 5)
    a("s_endpgm")

def prep(a):
    X = 64; CX = 48
    a("LP:\ns_waitcnt lgkmcnt(0)")
    srd(a, 8, 36, 37, 2048 * 640 * 2)
    srd(a, 16, 54, 55, WS_BYTES)
    srd(a, 20, 52, 53, 256)
    a(f"""
v_mov_b32 v2, {CNT_OFF}
v_mov_b32 v3, 0
ds_write_b32 v2, v3
s_lshl_b32 s27, s25, 2
s_add_u32 s27, s27, s26               ; p
s_waitcnt lgkmcnt(0)
s_barrier
s_cmp_ge_u32 s24, 5
s_cbranch_scc1 LP_st
s_mul_i32 s30, s27, 5
s_add_u32 s30, s30, s24               ; u
s_cmp_ge_u32 s30, 156
s_cbranch_scc1 LP_flag
s_lshr_b32 s31, s30, 2                ; b
s_and_b32 s30, s30, 3                 ; kq
s_cmp_lt_u32 s31, 27
s_cselect_b32 s12, s44, s46
s_cselect_b32 s13, s45, s47
s_cselect_b32 s56, 15, 27
s_mov_b32 s14, {640*1536*2}
s_mov_b32 s60, 3072
s_cmp_lt_u32 s31, 15
s_cselect_b32 s12, s38, s12
s_cselect_b32 s13, s39, s13
s_cselect_b32 s56, 0, s56
s_cselect_b32 s14, {640*1920*2}, s14
s_cselect_b32 s60, 3840, s60
s_mov_b32 s15, 0x00020000
s_sub_u32 s56, s31, s56
s_lshl_b32 s57, s56, 8
s_mul_i32 s61, s30, 160
v_lshrrev_b32 v6, 4, v1
v_add_u32 v6, s61, v6
v_mul_lo_u32 v6, v6, s60
v_and_b32 v7, 15, v1
v_lshl_add_u32 v6, v7, 4, v6
s_lshl_b32 s62, s60, 2
""")
    LOOPED = 'loop' in VAR
    NBUF, PER = (4, 5) if LOOPED else (8, 5)
    a("s_mov_b32 s58, 0x00003f80\ns_mov_b32 s59, 0x3f800000\ns_mov_b32 s61, 0")
    for i in range(8): a(f"v_mov_b32 v{16+i}, 0")
    for t in range(NBUF * PER):
        a(f"buffer_load_dwordx4 {vr(CX+4*t,4)}, v6, s[12:15], s57 offen")
        a("s_add_u32 s57, s57, s62")
    a("LP_csl:")
    for bf in range(NBUF):
        a(f"s_waitcnt vmcnt({(NBUF-1)*PER if LOOPED else (NBUF-1-bf)*PER})")
        for t in range(PER):
            for i in range(4):
                r = CX + 4 * (bf * PER + t) + i
                a(f"v_dot2c_f32_bf16 v{16+2*i}, s58, v{r}\nv_dot2c_f32_bf16 v{17+2*i}, s59, v{r}")
        for t in range(PER if LOOPED else 0):
            a(f"buffer_load_dwordx4 {vr(CX+4*(bf*PER+t),4)}, v6, s[12:15], s57 offen")
            a("s_add_u32 s57, s57, s62")
    if LOOPED: a(f"""
s_mov_b32 s57, 0x7ffffff0
s_mov_b32 s62, 0
s_add_u32 s61, s61, 1
s_cmp_lt_u32 s61, 2
s_cbranch_scc1 LP_csl
""")
    a("s_nop 2")
    for i in range(8): a(f"ds_swizzle_b32 v{24+i}, v{16+i} offset:0x401F")
    a("s_waitcnt lgkmcnt(0)")
    for i in range(8): a(f"v_add_f32 v{16+i}, v{16+i}, v{24+i}\nv_mov_b32 v{24+i}, v{16+i}")
    a("s_nop 1")
    for i in range(8): a(f"v_permlane32_swap_b32 v{16+i}, v{24+i}")
    a("s_nop 1")
    for i in range(8): a(f"v_add_f32 v{16+i}, v{16+i}, v{24+i}")
    a(f"""
s_mul_i32 s58, s30, {4992*4}
s_lshl_b32 s59, s31, 9
s_add_u32 s58, s58, s59
s_add_u32 s58, s58, {CSO}
v_lshlrev_b32 v7, 5, v7
s_mov_b64 exec, 0xffff
buffer_store_dwordx4 v[16:19], v7, s[16:19], s58 offen sc1
buffer_store_dwordx4 v[20:23], v7, s[16:19], s58 offen offset:16 sc1
s_mov_b64 exec, -1
s_branch LP_flag
LP_st:
s_cmp_eq_u32 s24, 7
s_cbranch_scc0 LP_st2
s_getpc_b64 s[56:57]
LPC_ref:
s_sub_u32 s12, s56, LPC_ref-k1_kernel
s_subb_u32 s13, s57, 0
s_mov_b32 s14, LCODE_END-k1_kernel
s_mov_b32 s15, 0x00020000
s_mul_i32 s58, s26, 12288
v_lshlrev_b32 v5, 4, v1
buffer_load_dwordx4 v[200:203], v5, s[12:15], s58 offen offset:0
buffer_load_dwordx4 v[200:203], v5, s[12:15], s58 offen offset:1024
buffer_load_dwordx4 v[200:203], v5, s[12:15], s58 offen offset:2048
buffer_load_dwordx4 v[200:203], v5, s[12:15], s58 offen offset:3072
s_add_u32 s58, s58, 4096
buffer_load_dwordx4 v[200:203], v5, s[12:15], s58 offen offset:0
buffer_load_dwordx4 v[200:203], v5, s[12:15], s58 offen offset:1024
buffer_load_dwordx4 v[200:203], v5, s[12:15], s58 offen offset:2048
buffer_load_dwordx4 v[200:203], v5, s[12:15], s58 offen offset:3072
s_add_u32 s58, s58, 4096
buffer_load_dwordx4 v[200:203], v5, s[12:15], s58 offen offset:0
buffer_load_dwordx4 v[200:203], v5, s[12:15], s58 offen offset:1024
buffer_load_dwordx4 v[200:203], v5, s[12:15], s58 offen offset:2048
buffer_load_dwordx4 v[200:203], v5, s[12:15], s58 offen offset:3072
s_branch LP_tr
LP_st2:
s_lshl_b32 s28, s27, 6
s_sub_u32 s29, s24, 5
s_lshl_b32 s29, s29, 5
s_add_u32 s28, s28, s29
v_lshrrev_b32 v2, 3, v1
v_add_u32 v2, s28, v2
v_mul_u32_u24 v3, 1280, v2
v_and_b32 v4, 7, v1
v_lshl_add_u32 v3, v4, 4, v3
s_mov_b32 s57, 0
""")
    for ps in range(4):
        for t in range(10):
            a(f"buffer_load_dwordx4 {vr(CX+40*ps+4*t,4)}, v3, s[8:11], s57 offen offset:{128*t}")
        a(f"s_add_u32 s57, s57, {8*1280}")
    a(f"""
s_mov_b32 s58, 0x3f803f80
v_lshlrev_b32 v2, 2, v2
v_cmp_eq_u32 vcc, 0, v4
s_mov_b32 s32, {MBO}
s_mov_b32 s33, {RIO}
s_mov_b64 s[34:35], vcc
""")
    for i in range(8): a(f"v_mov_b32 v{16+i}, 0")
    for ps in range(4):
        for t in range(10):
            if t % 5 == 0: a(f"s_waitcnt vmcnt({35-10*ps-t})")
            for i in range(4):
                r = CX + 40 * ps + 4 * t + i
                a(f"v_dot2c_f32_bf16 v{16+2*ps}, s58, v{r}\nv_dot2c_f32_bf16 v{17+2*ps}, v{r}, v{r}")
    a("s_nop 2")
    for m in (0x041F, 0x081F, 0x101F):
        for i in range(8): a(f"ds_swizzle_b32 v{24+i}, v{16+i} offset:{m}")
        a("s_waitcnt lgkmcnt(0)")
        for i in range(8): a(f"v_add_f32 v{16+i}, v{16+i}, v{24+i}")
    for ps in range(4):
        rinv_calc(a, 16 + 2 * ps, 17 + 2 * ps, 24 + ps, 28 + ps, 32)
    a("s_mov_b64 exec, s[34:35]")
    for ps in range(4):
        a(f"buffer_store_dword v{24+ps}, v2, s[16:19], s32 offen offset:{32*ps} sc1")
        a(f"buffer_store_dword v{28+ps}, v2, s[16:19], s33 offen offset:{32*ps} sc1")
    a("s_mov_b64 exec, -1\nLP_flag:")
    stamp(a, 1)
    a(f"""
s_waitcnt vmcnt(0)
v_mov_b32 v12, 1
v_mov_b32 v13, {CNT_OFF}
s_mov_b64 exec, 1
ds_add_rtn_u32 v14, v13, v12
s_waitcnt lgkmcnt(0)
v_readfirstlane_b32 s56, v14
v_mov_b32 v13, s27
v_lshlrev_b32 v13, 2, v13
s_cmp_lg_u32 s56, 6
s_cbranch_scc1 LP_done
buffer_store_dword v12, v13, s[20:23], 0 offen sc1
LP_done:
s_mov_b64 exec, -1
""")
    stamp(a, 2)
    stamp_out(a, 5)
    a("s_endpgm")
    DEP = 10
    TRSTART = 5 if 'tr5' in VAR else (7 if 'tr7' in VAR else 6)
    a(f"""
LP_tr:
v_lshrrev_b32 v6, 3, v1
v_mul_u32_u24 v6, 1280, v6
v_and_b32 v7, 7, v1
v_lshl_add_u32 v6, v7, 4, v6
v_add_u32 v7, {8*1280-1024}, v6
v_add_u32 v8, {16*1280-2048}, v6
v_add_u32 v9, {24*1280-3072}, v6
v_lshrrev_b32 v10, 5, v1
v_lshlrev_b32 v10, 4, v10
v_bfe_u32 v11, v1, 4, 1
v_lshl_add_u32 v10, v11, 2, v10
v_bfe_u32 v11, v1, 2, 2
v_add_u32 v10, v10, v11
v_lshlrev_b32 v10, 7, v10
v_and_b32 v11, 3, v1
v_lshl_add_u32 v10, v11, 3, v10
v_lshlrev_b32 v11, 4, v1
s_cmp_lg_u32 s27, 0
s_cbranch_scc1 LP_nz
v_lshlrev_b32 v13, 8, v1
v_mov_b32 v14, 0
s_mov_b32 s56, {CNTW}
s_mov_b64 exec, 0xffff
buffer_store_dword v14, v13, s[16:19], s56 offen sc1
s_mov_b64 exec, -1
LP_nz:
v_mov_b32 v13, {CNT_OFF}
LP_wt:
s_sleep 8
ds_read_b32 v14, v13
s_waitcnt lgkmcnt(0)
v_readfirstlane_b32 s56, v14
s_nop 3
s_cmp_lt_u32 s56, {TRSTART}
s_cbranch_scc1 LP_wt
s_mov_b32 s56, s27
s_mov_b32 s57, 0
s_mov_b32 s62, s27
s_mov_b32 s63, {-DEP}                 ; iteration
LP_trl:
s_min_u32 s60, s56, 679
s_mul_i32 s58, s60, 52429
s_lshr_b32 s58, s58, 19
s_mul_i32 s59, s58, 10
s_sub_u32 s59, s60, s59
s_cmp_lt_u32 s58, 20
s_cselect_b32 s12, s40, s48
s_cselect_b32 s13, s41, s49
s_mov_b32 s14, {1536*640*2}
s_cselect_b32 s14, {640*640*2}, s14
s_mov_b32 s15, 0x00020000
s_cselect_b32 s60, 0, 20
s_sub_u32 s60, s58, s60
s_mul_i32 s60, s60, {32*1280}
s_lshl_b32 s61, s59, 7
s_add_u32 s60, s60, s61
s_mov_b32 m0, s57
s_add_u32 s57, s57, 4096
buffer_load_dwordx4 v6, s[12:15], s60 offen lds
buffer_load_dwordx4 v7, s[12:15], s60 offen offset:1024 lds
buffer_load_dwordx4 v8, s[12:15], s60 offen offset:2048 lds
buffer_load_dwordx4 v9, s[12:15], s60 offen offset:3072 lds
s_add_u32 s56, s56, 32
s_add_i32 s63, s63, 1
s_cmp_le_i32 s63, 0
s_cbranch_scc1 LP_trl
s_waitcnt vmcnt({4*DEP})
""")
    for jt in range(4):
        for r in range(2):
            a(f"ds_read_b64_tr_b16 {vr(X+4*jt+2*r,2)}, v10 offset:{jt*32 + r*8*128}")
    a(f"""
v_add_u32 v10, 4096, v10
s_mul_i32 s58, s62, 52429
s_lshr_b32 s58, s58, 19
s_mul_i32 s59, s58, 10
s_sub_u32 s59, s62, s59
s_mul_i32 s60, s58, {40*1024}
s_lshl_b32 s61, s59, 12
s_add_u32 s60, s60, s61
s_add_u32 s60, s60, {BF}
s_waitcnt lgkmcnt(0)
""")
    for jt in range(4):
        a(f"buffer_store_dwordx4 {vr(X+4*jt,4)}, v11, s[16:19], s60 offen offset:{jt*1024} sc1")
    a(f"""
s_add_u32 s62, s62, 32
s_cmp_lt_u32 s62, 680
s_cbranch_scc1 LP_trl
""")
    if 'nopf2' not in VAR:
        a(f"""
s_getpc_b64 s[56:57]
LPC2_ref:
s_add_u32 s12, s56, k2_kernel-LPC2_ref
s_addc_u32 s13, s57, 0
s_mov_b32 s14, LCODE_END-k2_kernel
s_mov_b32 s15, 0x00020000
s_lshl_b32 s58, s26, 12
buffer_load_dwordx4 v[200:203], v11, s[12:15], s58 offen
buffer_load_dwordx4 v[200:203], v11, s[12:15], s58 offen offset:1024
buffer_load_dwordx4 v[200:203], v11, s[12:15], s58 offen offset:2048
buffer_load_dwordx4 v[200:203], v11, s[12:15], s58 offen offset:3072
""")
    stamp(a, 1); stamp(a, 2)
    stamp_out(a, 5)
    a("s_endpgm")

def k1_kernel(a, name):
    kernel_header(a, name)
    a(f"""
s_cmp_ge_u32 s2, 256
s_cbranch_scc1 LK1_end
""")
    stamp(a, 0)
    a(f"""
s_load_dwordx16 s[36:51], s[0:1], 0
s_load_dwordx4 s[52:55], s[0:1], 64
v_and_b32 v1, 63, v0
v_lshrrev_b32 v2, 6, v0
s_and_b32 s25, s2, 7
v_readfirstlane_b32 s24, v2
s_lshr_b32 s26, s2, 3
s_and_b32 s80, s24, 3
s_lshr_b32 s81, s24, 2
""")
    a(f"""
s_cmp_lt_u32 s26, 4
s_cbranch_scc1 LP
s_sub_u32 s26, s26, 4
s_and_b32 s27, s25, 1
s_lshl_b32 s27, s27, 2
s_and_b32 s28, s26, 3
s_add_u32 s27, s27, s28               ; mblock
s_lshl_b32 s29, s27, 8
s_lshl_b32 s28, s24, 5
s_add_u32 s29, s29, s28
s_lshl_b32 s63, s24, 12
v_and_b32 v5, 31, v1
v_lshlrev_b32 v5, 2, v5
v_lshrrev_b32 v24, 3, v1
v_add_u32 v24, s29, v24
v_mul_u32_u24 v24, 1280, v24
v_lshrrev_b32 v25, 4, v1
v_and_b32 v26, 7, v1
v_xor_b32 v27, v26, v25
v_lshl_add_u32 v10, v27, 4, v24
v_xor_b32 v27, 4, v27
v_lshl_add_u32 v11, v27, 4, v24
v_add_u32 v12, {16*1280-2048}, v10
v_add_u32 v13, {24*1280-3072}, v11
v_add_u32 v11, {8*1280-1024}, v11
v_and_b32 v24, 31, v1
v_lshrrev_b32 v25, 5, v1
v_bfe_u32 v26, v24, 1, 3
v_xor_b32 v26, v26, v25
v_lshlrev_b32 v24, 7, v24
""")
    for j in range(4):
        a(f"v_xor_b32 v27, {2*j}, v26\nv_lshl_add_u32 v{6+j}, v27, 4, v24")
    a(f"""
s_lshr_b32 s26, s26, 2
s_lshr_b32 s56, s25, 1
s_cmp_lt_u32 s26, 3
s_cbranch_scc0 LK1_gu
s_mul_i32 s28, s56, 3
s_add_u32 s28, s28, s26
s_cmp_lt_u32 s28, 8
s_cbranch_scc1 LGQK
s_branch LGV
LK1_gu:
s_lshl_b32 s28, s56, 2
s_add_u32 s28, s28, s26
s_sub_u32 s28, s28, 3
s_branch LGGU
LK1_end:
s_endpgm
""")
    gemm(a, "QK"); gemm(a, "V"); gemm(a, "GU")
    prep(a)

if __name__ == "__main__":
    import sys
    PROF = len(sys.argv) > 1
    VAR = sys.argv[1] if PROF else ""
    a = Asm()
    hdr = f"; @launch kernel=k1_kernel grid=(256,1,1) block=(512,1,1) lds={K1_LDS}\n"
    a('.amdgcn_target "amdgcn-amd-amdhsa--gfx950"\n.text')
    k1_kernel(a, "k1_kernel")
    a("LCODE_END:")
    txt = hdr + a.text() + '.section .rodata,"a"\n' + kernel_desc("k1_kernel", K1_VGPR, 100)
    open("k1_only.s", "w").write(txt)
```

```python
from asmlib import *
MFMA = "v_mfma_f32_32x32x16_bf16"
MF16 = "v_mfma_f32_16x16x32_bf16"
QA, QAT, QB, QBT = 8, 12, 16, 20
SA, SB = 24, 40
PA, PB = 56, 64
OA, OB = 72, 88
KB, VB, NB = 104, 136, 4
MA, MB = 0, 2
K2_VGPR = 168
K2_LDS = 53248
PROF = False
VAR = ''
FUSE = False
SLEEP = 16
DBGOUT = False
KPERM = "v2"

def prof_out(a, base, srd, wave_s, regs):
    a("s_waitcnt vmcnt(0) lgkmcnt(0)")
    a(f"s_memrealtime s[{regs[-1]}:{regs[-1]+1}]")
    a("s_waitcnt lgkmcnt(0)")
    for k in range(4):
        a(f"v_mov_b32 v{8+k}, s{regs[min(k, len(regs)-1)]}")
    a(f"""
s_lshl_b32 s34, s2, 2
s_add_u32 s34, s34, s{wave_s}
s_lshl_b32 s34, s34, 4
s_add_u32 s34, s34, {base}
v_mov_b32 v16, 0
s_mov_b64 exec, 1
buffer_store_dwordx4 v[8:11], v16, s[{srd}:{srd+3}], s34 offen
""")

def attn(a):
    T = PA
    a(f"""
LA:
s_and_b32 s21, s3, 7
s_lshl_b32 s21, s21, 2
s_lshr_b32 s22, s3, 3
s_and_b32 s23, s22, 3
s_add_u32 s21, s21, s23              ; head
s_lshr_b32 s22, s3, 5                ; qblock
s_and_b32 s23, s20, 1
s_lshl_b32 s24, s16, 1
s_add_u32 s23, s23, s24              ; qsub
s_lshr_b32 s24, s20, 1               ; khalf
s_mul_i32 s25, s21, {64*1280}
s_lshl_b32 s26, s22, 3
s_lshl_b32 s27, s23, 1
s_add_u32 s26, s26, s27              ; qtile a
s_mul_i32 s27, s26, 1280
s_add_u32 s27, s27, s25
s_mul_i32 s28, s24, {32*1280}
s_add_u32 s28, s28, s25
s_add_u32 s29, s28, {VF}
s_add_u32 s28, s28, {KF}
v_lshlrev_b32 v3, 4, v1
v_and_b32 v4, 31, v1
v_lshrrev_b32 v5, 5, v1
v_lshlrev_b32 v6, 3, v4
v_lshl_add_u32 v6, v5, 2, v6
v_add_u32 v6, 1024, v6
v_mul_u32_u24 v7, 320, v5
v_lshl_add_u32 v7, v4, 4, v7
buffer_load_dwordx4 {vr(QA,4)}, v3, s[8:11], s27 offen
buffer_load_dword {vr(QAT)}, v6, s[8:11], s27 offen
buffer_load_dwordx4 {vr(QB,4)}, v3, s[8:11], s27 offen offset:1280
buffer_load_dword {vr(QBT)}, v6, s[8:11], s27 offen offset:1280
s_mov_b32 s30, 0
s_mov_b32 s12, 0x000FFFFF
s_mov_b32 s13, 0x000FFFFF
s_mov_b32 s14, 0xFFFFFFFF
s_mov_b32 s15, 0
""")
    def rowmax(S, M, init):
        if init:
            a(f"v_max3_f32 {vr(M)}, {vr(S)}, {vr(S+1)}, {vr(S+2)}")
            a(f"v_max_f32 {vr(M)}, {vr(M)}, {vr(S+3)}")
            st = 4
        else: st = 0
        for j in range(st, 16, 2):
            a(f"v_max3_f32 {vr(M)}, {vr(M)}, {vr(S+j)}, {vr(S+j+1)}")
    def qk(S, Qm, Qt, kb):
        a(f"{MFMA} {vr(S,16)}, {vr(KB+8*kb,4)}, {vr(Qm,4)}, 0")
        a(f"{MFMA} {vr(S,16)}, {vr(KB+8*kb+4,4)}, {vr(Qt,4)}, {vr(S,16)}")
    def loadK(kb, soff, imm=0):
        a(f"buffer_load_dwordx4 {vr(KB+8*kb,4)}, v3, s[8:11], {soff} offen offset:{imm}")
        a(f"buffer_load_dword {vr(KB+8*kb+4)}, v6, s[8:11], {soff} offen offset:{imm}")
    def loadV(vb, soff, imm=0):
        a("s_mov_b64 exec, s[12:13]")
        a(f"buffer_load_dwordx4 {vr(VB+8*vb,4)}, v7, s[8:11], {soff} offen offset:{imm}")
        a(f"buffer_load_dwordx4 {vr(VB+8*vb+4,4)}, v7, s[8:11], {soff} offen offset:{imm+640}")
        a("s_mov_b64 exec, -1")
    a("s_branch LA_pro")
    a("LA_restart:")
    for q in (QAT, QBT):
        for j in (1, 2): a(f"v_mov_b32 {vr(q+j)}, 0")
    a(f"""
v_mov_b32 {vr(MA)}, 0xff800000
v_mov_b32 {vr(MB)}, 0xff800000
s_mov_b32 s31, s28
s_mov_b32 s32, 32
LA_maxloop:
""")
    loadK(0, "s31")
    a("s_waitcnt vmcnt(0)")
    qk(SA, QA, QAT, 0); qk(SB, QB, QBT, 0)
    a("s_nop 15\ns_nop 3")
    rowmax(SA, MA, False); rowmax(SB, MB, False)
    a(f"""
s_add_u32 s31, s31, 1280
s_sub_u32 s32, s32, 1
s_cmp_lg_u32 s32, 0
s_cbranch_scc1 LA_maxloop
LA_pro:
""")
    loadK(0, "s28", 0)
    loadK(1, "s28", 1280)
    a(f"""
v_mov_b32 {vr(T)}, 0x3f803f80
v_cmp_eq_u32 vcc, 20, v4
v_cndmask_b32 {vr(T+2)}, 0, {vr(T)}, s[14:15]
s_nop 0
v_cndmask_b32 {vr(T+1)}, 0, {vr(T)}, vcc
""")
    for j in range(8): a(f"v_mov_b32 {vr(VB+j)}, {vr(T+1)}")
    loadV(0, "s29", 0)
    loadK(2, "s28", 2560)
    for j in range(8): a(f"v_mov_b32 {vr(VB+8+j)}, {vr(T+1)}")
    loadV(1, "s29", 1280)
    a(f"s_add_u32 s31, s28, {3*1280}")
    loadK(3, "s31", 0)
    for j in range(8): a(f"v_mov_b32 {vr(VB+16+j)}, {vr(T+1)}")
    loadV(2, "s29", 2560)
    for j in range(8): a(f"v_mov_b32 {vr(VB+24+j)}, {vr(T+1)}")
    for i in range(NB):
        a(f"v_mov_b32 {vr(KB+8*i+5)}, {vr(T+2)}")
        a(f"v_mov_b32 {vr(KB+8*i+6)}, {vr(T+2)}")
        a(f"v_mov_b32 {vr(KB+8*i+7)}, 0")
    for j in range(16):
        a(f"v_mov_b32 {vr(OA+j)}, 0")
        a(f"v_mov_b32 {vr(OB+j)}, 0")
    for j in range(8): a(f"v_mov_b32 {vr(PB+j)}, 0")
    a(f"""
s_cmp_lg_u32 s30, 0
s_cbranch_scc1 LA_setm0
""")
    for q in (QAT, QBT):
        for j in (1, 2, 3): a(f"v_mov_b32 {vr(q+j)}, 0")
    a("s_waitcnt vmcnt(12)")
    qk(SA, QA, QAT, 0); qk(SB, QB, QBT, 0)
    a("s_nop 11")
    rowmax(SA, MA, True); rowmax(SB, MB, True)
    a("LA_setm0:\ns_waitcnt vmcnt(12)")
    for (M, QT) in ((MA, QAT), (MB, QBT)):
        t, u, w = T, T+1, T+2
        a(f"""
v_mov_b32 {vr(t)}, {vr(M)}
v_mov_b32 {vr(u)}, {vr(M)}
s_nop 1
v_permlane32_swap_b32 {vr(t)}, {vr(u)}
s_nop 1
v_max_f32 {vr(M)}, {vr(t)}, {vr(u)}
v_sub_f32 {vr(t)}, 0, {vr(M)}
v_and_b32 {vr(u)}, 0xffff0000, {vr(t)}
v_sub_f32 {vr(t)}, {vr(t)}, {vr(u)}
v_and_b32 {vr(w)}, 0xffff0000, {vr(t)}
v_sub_f32 {vr(t)}, {vr(t)}, {vr(w)}
v_lshrrev_b32 {vr(u)}, 16, {vr(u)}
v_or_b32 {vr(u)}, {vr(u)}, {vr(w)}
v_lshrrev_b32 {vr(t)}, 16, {vr(t)}
v_cndmask_b32 {vr(QT+1)}, 0, {vr(u)}, s[14:15]
v_cndmask_b32 {vr(QT+2)}, 0, {vr(t)}, s[14:15]
""")
        if M == MA:
            a("s_nop 1")
            qk(SA, QA, QAT, 0)
    a(f"""
s_add_u32 s31, s28, {4*1280}
s_add_u32 s33, s29, {3*1280}
s_mov_b32 s32, 8
""")
    if PROF: a("s_memrealtime s[42:43]")
    a(".p2align 6\nLA_loop:")
    def phase(Sx, Px, Sy, Py, Oy, Qy, Qyt, kb, vb, mid=None, post=None, pre=None):
        e = lambda j: a(f"v_exp_f32 {vr(Sx+j)}, {vr(Sx+j)}")
        c = lambda j: a(f"v_cvt_pk_bf16_f32 {vr(Px+j)}, {vr(Sx+2*j)}, {vr(Sx+2*j+1)}")
        if pre: pre()
        a(f"{MFMA} {vr(Sy,16)}, {vr(KB+8*kb,4)}, {vr(Qy,4)}, 0")
        e(0); e(1); e(2); e(3)
        a(f"{MFMA} {vr(Sy,16)}, {vr(KB+8*kb+4,4)}, {vr(Qyt,4)}, {vr(Sy,16)}")
        if mid: mid()
        c(0); c(1); e(4); e(5); e(6); e(7)
        a(f"{MFMA} {vr(Oy,16)}, {vr(VB+8*vb,4)}, {vr(Py,4)}, {vr(Oy,16)}")
        c(2); c(3); e(8); e(9); e(10); e(11)
        a(f"{MFMA} {vr(Oy,16)}, {vr(VB+8*vb+4,4)}, {vr(Py+4,4)}, {vr(Oy,16)}")
        if post: post()
        c(4); c(5); e(12); e(13); e(14); e(15); c(6); c(7)
    for u in range(NB):
        def mid(u=u):
            loadK(u, "s31"); a("s_add_u32 s31, s31, 1280")
        def post(u=u):
            loadV((u+3) % NB, "s33"); a("s_add_u32 s33, s33, 1280")
        phase(SA, PA, SB, PB, OB, QB, QBT, u, (u+3) % NB, mid, post)
        phase(SB, PB, SA, PA, OA, QA, QAT, (u+1) % NB, u, pre=lambda: a("s_waitcnt vmcnt(12)"))
    a(f"""
s_sub_u32 s32, s32, 1
s_cmp_lg_u32 s32, 0
s_cbranch_scc1 LA_loop
{MFMA} {vr(OB,16)}, {vr(VB+8*3,4)}, {vr(PB,4)}, {vr(OB,16)}
{MFMA} {vr(OB,16)}, {vr(VB+8*3+4,4)}, {vr(PB+4,4)}, {vr(OB,16)}
""")
    if PROF: a("s_memrealtime s[44:45]")
    t, t1 = PA, PA + 1
    a(f"""
v_lshlrev_b32 {vr(PA+2)}, 4, v1
s_lshl_b32 s34, s20, 12
v_add_u32 {vr(PA+3)}, s34, {vr(PA+2)}
s_xor_b32 s35, s20, 2
s_lshl_b32 s35, s35, 12
v_add_u32 {vr(PA+4)}, s35, {vr(PA+2)}
v_mov_b32 {vr(t1)}, 0x71800000
v_add_f32 {vr(t)}, abs({vr(OA)}), abs({vr(OA+1)})
""")
    for j in range(2, 12): a(f"v_add_f32 {vr(t)}, {vr(t)}, abs({vr(OA+j)})")
    for j in range(12): a(f"v_add_f32 {vr(t)}, {vr(t)}, abs({vr(OB+j)})")
    a(f"""
v_cmp_nlt_f32 vcc, {vr(t)}, {vr(t1)}
s_cmp_lg_u32 s30, 0
s_cbranch_scc1 LA_comb
s_nop 2
s_cmp_eq_u64 vcc, 0
s_cbranch_scc1 LA_comb
s_mov_b32 s30, 1
s_waitcnt vmcnt(0)
s_branch LA_restart
LA_comb:
s_cmp_eq_u32 s24, 0
s_cbranch_scc1 LA_c0
""")
    w_, r_ = PA + 3, PA + 4
    for j in range(3): a(f"ds_write_b128 {vr(w_)}, {vr(OA+4*j,4)} offset:{j*1024}")
    a(f"ds_write_b32 {vr(w_)}, {vr(MA)} offset:3072")
    for j in range(12): a(f"v_mov_b32 {vr(OA+j)}, {vr(OB+j)}")
    a(f"v_mov_b32 {vr(MA)}, {vr(MB)}")
    a("s_add_u32 s26, s26, 1\ns_branch LA_c1\nLA_c0:")
    for j in range(3): a(f"ds_write_b128 {vr(w_)}, {vr(OB+4*j,4)} offset:{j*1024}")
    a(f"ds_write_b32 {vr(w_)}, {vr(MB)} offset:3072")
    a("LA_c1:\ns_waitcnt lgkmcnt(0)\ns_barrier")
    X = SB
    for j in range(3): a(f"ds_read_b128 {vr(X+4*j,4)}, {vr(r_)} offset:{j*1024}")
    a(f"ds_read_b32 {vr(MB)}, {vr(r_)} offset:3072")
    g_, kbv, g8 = PB, PB + 1, PB + 2
    ad = [PB + 3, PB + 4, PB + 5]
    a(f"""
s_lshl_b32 s34, s26, 1
s_mul_i32 s34, s34, {68*1024}
s_add_u32 s34, s34, {AF}
v_bfe_u32 {vr(t)}, v1, 4, 1
v_mul_u32_u24 {vr(t)}, {68*1024}, {vr(t)}
v_and_b32 {vr(t1)}, 15, v1
v_lshl_add_u32 {vr(t)}, {vr(t1)}, 4, {vr(t)}
s_mul_i32 s35, s21, 5
v_add_u32 {vr(g_)}, s35, v5
""")
    for i in range(3):
        a(f"""
v_lshrrev_b32 {vr(kbv)}, 3, {vr(g_)}
v_lshl_add_u32 {vr(ad[i])}, {vr(kbv)}, 10, {vr(t)}
""")
        if KPERM == "v2":
            a(f"""
v_and_b32 {vr(g8)}, 3, {vr(g_)}
v_lshl_add_u32 {vr(ad[i])}, {vr(g8)}, 8, {vr(ad[i])}
v_bfe_u32 {vr(g8)}, {vr(g_)}, 2, 1
v_lshl_add_u32 {vr(ad[i])}, {vr(g8)}, 3, {vr(ad[i])}
""")
        else:
            a(f"""
v_bfe_u32 {vr(g8)}, {vr(g_)}, 2, 1
v_lshl_add_u32 {vr(ad[i])}, {vr(g8)}, 9, {vr(ad[i])}
v_and_b32 {vr(g8)}, 1, {vr(g_)}
v_lshl_add_u32 {vr(ad[i])}, {vr(g8)}, 8, {vr(ad[i])}
v_bfe_u32 {vr(g8)}, {vr(g_)}, 1, 1
v_lshl_add_u32 {vr(ad[i])}, {vr(g8)}, 3, {vr(ad[i])}
""")
        if i < 2: a(f"v_add_u32 {vr(g_)}, 2, {vr(g_)}")
    m, f1, f2, l, l2 = PA + 2, PA + 3, PA + 5, PA + 6, PA + 7
    a(f"""
s_waitcnt lgkmcnt(0)
v_max_f32 {vr(m)}, {vr(MA)}, {vr(MB)}
v_sub_f32 {vr(f1)}, {vr(MA)}, {vr(m)}
v_sub_f32 {vr(f2)}, {vr(MB)}, {vr(m)}
v_exp_f32 {vr(f1)}, {vr(f1)}
v_exp_f32 {vr(f2)}, {vr(f2)}
s_nop 0
v_mul_f32 {vr(l)}, {vr(OA+8)}, {vr(f1)}
v_fmac_f32 {vr(l)}, {vr(X+8)}, {vr(f2)}
v_mov_b32 {vr(l2)}, {vr(l)}
s_nop 1
v_permlane32_swap_b32 {vr(l)}, {vr(l2)}
s_nop 1
v_rcp_f32 {vr(l2)}, {vr(l2)}
s_nop 0
v_mul_f32 {vr(f1)}, {vr(f1)}, {vr(l2)}
v_mul_f32 {vr(f2)}, {vr(f2)}, {vr(l2)}
""")
    for i in range(3):
        for j in range(4 * i, 4 * i + 4):
            a(f"v_mul_f32 {vr(OA+j)}, {vr(OA+j)}, {vr(f1)}")
            a(f"v_fmac_f32 {vr(OA+j)}, {vr(X+j)}, {vr(f2)}")
        for j in range(2):
            a(f"v_cvt_pk_bf16_f32 {vr(OB+2*i+j)}, {vr(OA+4*i+2*j)}, {vr(OA+4*i+2*j+1)}")
        if i == 2: a("s_mov_b64 exec, s[14:15]")
        a(f"buffer_store_dwordx2 {vr(OB+2*i,2)}, {vr(ad[i])}, s[8:11], s34 offen")
    if PROF:
        a("s_mov_b64 exec, -1")
        prof_out(a, 0x3100000, 8, 20, [40, 42, 44, 46])
    a("s_endpgm")


Q3 = [8, 16, 24, 32]
S3 = [40, 56]
O3 = [72, 88, 104, 120]
K3B, V3B = 136, 152
LDS_M = 49152
def attn3(a):
    a(f"""
LA:
s_and_b32 s21, s3, 7
s_lshl_b32 s21, s21, 2
s_lshr_b32 s22, s3, 3
s_and_b32 s23, s22, 3
s_add_u32 s21, s21, s23              ; head
s_lshr_b32 s22, s3, 5                ; qblock
s_mul_i32 s25, s21, {64*1280}
s_lshl_b32 s26, s22, 3
s_lshl_b32 s27, s16, 2
s_add_u32 s26, s26, s27
s_mul_i32 s27, s26, 1280
s_add_u32 s27, s27, s25
s_mul_i32 s28, s20, {16*1280}
s_add_u32 s28, s28, s25
s_add_u32 s29, s28, {VF}
s_add_u32 s28, s28, {KF}
v_lshlrev_b32 v3, 4, v1
v_and_b32 v4, 31, v1
v_lshrrev_b32 v5, 5, v1
v_lshlrev_b32 v6, 3, v4
v_lshl_add_u32 v6, v5, 2, v6
v_add_u32 v6, 1024, v6
v_mul_u32_u24 v7, 320, v5
v_lshl_add_u32 v7, v4, 4, v7
s_mov_b32 s30, 0
s_mov_b32 s12, 0x000FFFFF
s_mov_b32 s13, 0x000FFFFF
s_mov_b32 s14, 0xFFFFFFFF
s_mov_b32 s15, 0
s_add_u32 s36, s27, 2560
s_mov_b32 s37, 0xbc000000
s_waitcnt lgkmcnt(0)
""")
    srd(a, 8, 4, 5, WS_BYTES)
    def loadK(kb, soff, imm=0):
        a(f"buffer_load_dwordx4 {vr(K3B+8*kb,4)}, v3, s[8:11], {soff} offen offset:{imm}")
        a(f"buffer_load_dword {vr(K3B+8*kb+4)}, v6, s[8:11], {soff} offen offset:{imm}")
    def loadV(vb, soff, imm=0):
        a("s_mov_b64 exec, s[12:13]")
        a(f"buffer_load_dwordx4 {vr(V3B+8*vb,4)}, v7, s[8:11], {soff} offen offset:{imm}")
        a(f"buffer_load_dwordx4 {vr(V3B+8*vb+4,4)}, v7, s[8:11], {soff} offen offset:{imm+640}")
        a("s_mov_b64 exec, -1")
    def qk(S, q, kb):
        a(f"{MFMA} {vr(S,16)}, {vr(K3B+8*kb,4)}, {vr(Q3[q],4)}, 0")
        a(f"{MFMA} {vr(S,16)}, {vr(K3B+8*kb+4,4)}, {vr(Q3[q]+4,4)}, {vr(S,16)}")
    def rowmax(S, M, init):
        if init:
            a(f"v_max3_f32 {vr(M)}, {vr(S)}, {vr(S+1)}, {vr(S+2)}")
            a(f"v_max_f32 {vr(M)}, {vr(M)}, {vr(S+3)}")
            st = 4
        else: st = 0
        for j in range(st, 16, 2):
            a(f"v_max3_f32 {vr(M)}, {vr(M)}, {vr(S+j)}, {vr(S+j+1)}")
    for q in range(4):
        so = "s27" if q < 2 else "s36"
        a(f"buffer_load_dwordx4 {vr(Q3[q],4)}, v3, s[8:11], {so} offen offset:{1280*(q&1)}")
        a(f"buffer_load_dword {vr(Q3[q]+4)}, v6, s[8:11], {so} offen offset:{1280*(q&1)}")
    MX = [S3[0] + 0, S3[0] + 1, S3[0] + 2, S3[0] + 3]
    T = S3[0] + 4
    a("s_branch LA_pro")
    a("LA_restart:")
    for q in range(4):
        for j in (5, 6): a(f"v_mov_b32 {vr(Q3[q]+j)}, 0")
        a(f"v_mov_b32 {vr(MX[q])}, 0xff800000")
    a("s_mov_b32 s31, s28\ns_mov_b32 s32, 16\nLA_maxloop:")
    loadK(0, "s31")
    a("s_waitcnt vmcnt(0)")
    for q in range(4): qk(O3[q], q, 0)
    a("s_nop 15\ns_nop 3")
    for q in range(4): rowmax(O3[q], MX[q], False)
    a(f"""
s_add_u32 s31, s31, 1280
s_sub_u32 s32, s32, 1
s_cmp_lg_u32 s32, 0
s_cbranch_scc1 LA_maxloop
LA_pro:
""")
    loadK(0, "s28", 0)
    a(f"""
v_mov_b32 {vr(T)}, 0x3f803f80
v_cmp_eq_u32 vcc, 20, v4
v_cndmask_b32 {vr(T+2)}, 0, {vr(T)}, s[14:15]
s_nop 0
v_cndmask_b32 {vr(T+1)}, 0, {vr(T)}, vcc
""")
    for j in range(8): a(f"v_mov_b32 {vr(V3B+j)}, {vr(T+1)}")
    loadV(0, "s29", 0)
    loadK(1, "s28", 1280)
    for j in range(8): a(f"v_mov_b32 {vr(V3B+8+j)}, {vr(T+1)}")
    for i in range(2):
        a(f"v_mov_b32 {vr(K3B+8*i+5)}, {vr(T+2)}\nv_mov_b32 {vr(K3B+8*i+6)}, {vr(T+2)}\nv_mov_b32 {vr(K3B+8*i+7)}, 0")
    for j in range(8): a(f"v_mov_b32 {vr(S3[1]+j)}, 0")
    a(f"""
v_lshlrev_b32 v0, 2, v1
s_lshl_b32 s34, s20, 10
s_add_u32 s34, s34, {LDS_M}
v_add_u32 v0, s34, v0
s_cmp_lg_u32 s30, 0
s_cbranch_scc1 LA_setm0
""")
    for q in range(4):
        for j in (5, 6, 7): a(f"v_mov_b32 {vr(Q3[q]+j)}, 0")
    a("s_waitcnt vmcnt(4)")
    for q in range(4): qk(O3[q], q, 0)
    a("s_nop 5")
    for q in range(4): rowmax(O3[q], MX[q], True)
    for q in range(4):
        M = MX[q]; QT = Q3[q] + 4
        a(f"""
v_fma_f32 {vr(M)}, abs({vr(M)}), s37, {vr(M)}
v_and_b32 {vr(M)}, 0xffff0000, {vr(M)}
ds_write_b32 v0, {vr(M)} offset:{256*q}
v_xor_b32 {vr(T+q)}, 0x80000000, {vr(M)}
v_cndmask_b32 {vr(QT+1)}, 0, {vr(T+q)}, s[14:15]
""")
    a("s_branch LA_go")
    a("LA_setm0:\ns_waitcnt vmcnt(4)")
    for q in range(4):
        M = MX[q]; QT = Q3[q] + 4
        t, u, w = T, T + 1, T + 2
        a(f"""
v_mov_b32 {vr(t)}, {vr(M)}
v_mov_b32 {vr(u)}, {vr(M)}
s_nop 1
v_permlane32_swap_b32 {vr(t)}, {vr(u)}
s_nop 1
v_max_f32 {vr(M)}, {vr(t)}, {vr(u)}
v_sub_f32 {vr(t)}, 0, {vr(M)}
ds_write_b32 v0, {vr(M)} offset:{256*q}
v_and_b32 {vr(u)}, 0xffff0000, {vr(t)}
v_sub_f32 {vr(t)}, {vr(t)}, {vr(u)}
v_and_b32 {vr(w)}, 0xffff0000, {vr(t)}
v_sub_f32 {vr(t)}, {vr(t)}, {vr(w)}
v_lshrrev_b32 {vr(u)}, 16, {vr(u)}
v_or_b32 {vr(u)}, {vr(u)}, {vr(w)}
v_lshrrev_b32 {vr(t)}, 16, {vr(t)}
v_cndmask_b32 {vr(QT+1)}, 0, {vr(u)}, s[14:15]
v_cndmask_b32 {vr(QT+2)}, 0, {vr(t)}, s[14:15]
""")
    a("LA_go:\ns_waitcnt lgkmcnt(0)")
    qk(S3[0], 0, 0)
    for q in range(4):
        a(f"{MFMA} {vr(O3[q],16)}, {vr(S3[1],4)}, {vr(S3[1],4)}, 0")
    a("s_nop 4")
    a(f"""
s_add_u32 s31, s28, {2*1280}
s_add_u32 s33, s29, {1*1280}
s_mov_b32 s32, 8
""")
    if PROF: a("s_memrealtime s[42:43]")
    a(".p2align 6\nLA_loop:")
    def phase(Sx, Sy, Op, vb, qn, kb, pre=None, aft2=None, aft4=None):
        e = lambda j: a(f"v_exp_f32 {vr(Sx+j)}, {vr(Sx+j)}")
        c = lambda j: a(f"v_cvt_pk_bf16_f32 {vr(Sx+j)}, {vr(Sx+2*j)}, {vr(Sx+2*j+1)}")
        if pre: pre()
        a(f"{MFMA} {vr(Op,16)}, {vr(V3B+8*vb,4)}, {vr(Sy,4)}, {vr(Op,16)}")
        e(0); e(1); e(2)
        a(f"{MFMA} {vr(Op,16)}, {vr(V3B+8*vb+4,4)}, {vr(Sy+4,4)}, {vr(Op,16)}")
        if aft2: aft2()
        e(3); c(0); e(4); e(5)
        a(f"{MFMA} {vr(Sy,16)}, {vr(K3B+8*kb,4)}, {vr(Q3[qn],4)}, 0")
        c(1); e(6); e(7); e(8)
        a(f"{MFMA} {vr(Sy,16)}, {vr(K3B+8*kb+4,4)}, {vr(Q3[qn]+4,4)}, {vr(Sy,16)}")
        if aft4: aft4()
        c(2); c(3); e(9); e(10); e(11); c(4); e(12); e(13); c(5); e(14); e(15); c(6); c(7)
    w4 = lambda: a("s_waitcnt vmcnt(4)")
    for u in range(2):
        def lv(u=u):
            loadV((u + 1) % 2, "s33"); a("s_add_u32 s33, s33, 1280")
        def lk(u=u):
            loadK(u, "s31"); a("s_add_u32 s31, s31, 1280")
        phase(S3[0], S3[1], O3[3], (u + 1) % 2, 1, u, aft2=lv)
        phase(S3[1], S3[0], O3[0], u, 2, u, pre=w4)
        phase(S3[0], S3[1], O3[1], u, 3, u, aft4=lk)
        phase(S3[1], S3[0], O3[2], u, 0, (u + 1) % 2, pre=w4)
    a(f"""
s_sub_u32 s32, s32, 1
s_cmp_lg_u32 s32, 0
s_cbranch_scc1 LA_loop
{MFMA} {vr(O3[3],16)}, {vr(V3B+8,4)}, {vr(S3[1],4)}, {vr(O3[3],16)}
{MFMA} {vr(O3[3],16)}, {vr(V3B+12,4)}, {vr(S3[1]+4,4)}, {vr(O3[3],16)}
""")
    if PROF: a("s_memrealtime s[44:45]")
    t, t1, t2, t3 = S3[1] + 8, S3[1] + 9, S3[1] + 10, S3[1] + 11
    a(f"""
s_mul_i32 s34, s20, 3072
v_add_u32 {vr(t)}, s34, v3
v_mov_b32 {vr(t1)}, 0x71800000
""")
    for q in range(4):
        for j in range(3): a(f"ds_write_b128 {vr(t)}, {vr(O3[q]+4*j,4)} offset:{q*12288 + j*1024}")
        acc_ = (t2, t3)
        for j in range(0, 12):
            r = acc_[j & 1]
            if q == 0 and j < 2: a(f"v_and_b32 {vr(r)}, 0x7fffffff, {vr(O3[q]+j)}")
            else: a(f"v_add_f32 {vr(r)}, {vr(r)}, abs({vr(O3[q]+j)})")
    a(f"""
v_add_f32 {vr(t2)}, {vr(t2)}, {vr(t3)}
v_cmp_nlt_f32 vcc, {vr(t2)}, {vr(t1)}
s_cmp_lg_u32 s30, 0
s_cbranch_scc1 LA_comb
s_nop 2
s_cmp_eq_u64 vcc, 0
s_cbranch_scc1 LA_comb
s_mov_b32 s30, 1
s_waitcnt vmcnt(0) lgkmcnt(0)
s_branch LA_restart
LA_comb:
""")
    a(f"""
s_mul_i32 s34, s20, 12288
v_add_u32 {vr(t)}, s34, v3
v_lshlrev_b32 {vr(t1)}, 2, v4
s_lshl_b32 s34, s20, 8
s_add_u32 s34, s34, {LDS_M}
v_add_u32 {vr(t1)}, s34, {vr(t1)}
s_add_u32 s26, s26, s20
s_waitcnt lgkmcnt(0)
s_barrier
""")
    Mr = [Q3[0] + w for w in range(4)]
    for w in range(4): a(f"ds_read_b32 v{Mr[w]}, {vr(t1)} offset:{1024*w}")
    for w in range(4):
        for j in range(3): a(f"ds_read_b128 {vr(O3[w]+4*j,4)}, {vr(t)} offset:{w*3072 + j*1024}")
    g_, kbv, g8, tb = Q3[1], Q3[1] + 1, Q3[1] + 2, Q3[1] + 3
    ad = [Q3[1] + 4, Q3[1] + 5, Q3[1] + 6]
    a(f"""
s_lshl_b32 s34, s26, 1
s_mul_i32 s34, s34, {68*1024}
s_add_u32 s34, s34, {AF}
v_bfe_u32 {vr(tb)}, v1, 4, 1
v_mul_u32_u24 {vr(tb)}, {68*1024}, {vr(tb)}
v_and_b32 {vr(g8)}, 15, v1
v_lshl_add_u32 {vr(tb)}, {vr(g8)}, 4, {vr(tb)}
s_mul_i32 s35, s21, 5
v_add_u32 {vr(g_)}, s35, v5
""")
    for i in range(3):
        a(f"""
v_lshrrev_b32 {vr(kbv)}, 3, {vr(g_)}
v_lshl_add_u32 {vr(ad[i])}, {vr(kbv)}, 10, {vr(tb)}
v_bfe_u32 {vr(g8)}, {vr(g_)}, 2, 1
v_lshl_add_u32 {vr(ad[i])}, {vr(g8)}, 9, {vr(ad[i])}
v_and_b32 {vr(g8)}, 1, {vr(g_)}
v_lshl_add_u32 {vr(ad[i])}, {vr(g8)}, 8, {vr(ad[i])}
v_bfe_u32 {vr(g8)}, {vr(g_)}, 1, 1
v_lshl_add_u32 {vr(ad[i])}, {vr(g8)}, 3, {vr(ad[i])}
""")
        if i < 2: a(f"v_add_u32 {vr(g_)}, 2, {vr(g_)}")
    m, l, l2 = Q3[2], Q3[2] + 1, Q3[2] + 2
    a(f"""
s_waitcnt lgkmcnt(12)
v_max3_f32 {vr(m)}, v{Mr[0]}, v{Mr[1]}, v{Mr[2]}
v_max_f32 {vr(m)}, {vr(m)}, v{Mr[3]}
""")
    for w in range(4): a(f"v_sub_f32 v{Mr[w]}, v{Mr[w]}, {vr(m)}")
    for w in range(4): a(f"v_exp_f32 v{Mr[w]}, v{Mr[w]}")
    a(f"s_waitcnt lgkmcnt(0)\nv_mul_f32 {vr(l)}, {vr(O3[0]+8)}, v{Mr[0]}")
    for w in range(1, 4): a(f"v_fmac_f32 {vr(l)}, {vr(O3[w]+8)}, v{Mr[w]}")
    a(f"""
v_mov_b32 {vr(l2)}, {vr(l)}
s_nop 1
v_permlane32_swap_b32 {vr(l)}, {vr(l2)}
s_nop 1
v_rcp_f32 {vr(l2)}, {vr(l2)}
s_nop 0
""")
    for w in range(4): a(f"v_mul_f32 v{Mr[w]}, v{Mr[w]}, {vr(l2)}")
    PKo = Q3[3]
    for i in range(3):
        for j in range(4 * i, 4 * i + 4):
            a(f"v_mul_f32 {vr(O3[0]+j)}, {vr(O3[0]+j)}, v{Mr[0]}")
            for w in range(1, 4): a(f"v_fmac_f32 {vr(O3[0]+j)}, {vr(O3[w]+j)}, v{Mr[w]}")
        for j in range(2):
            a(f"v_cvt_pk_bf16_f32 {vr(PKo+2*i+j)}, {vr(O3[0]+4*i+2*j)}, {vr(O3[0]+4*i+2*j+1)}")
        if i == 2: a("s_mov_b64 exec, s[14:15]")
        a(f"buffer_store_dwordx2 {vr(PKo+2*i,2)}, {vr(ad[i])}, s[8:11], s34 offen" + (" sc1" if FUSE else ""))
    if FUSE:
        a(f"""
s_mov_b64 exec, -1
s_waitcnt vmcnt(0)
s_barrier
s_cmp_lg_u32 s20, 0
s_cbranch_scc1 LA_fin
s_lshl_b32 s55, s22, 1
s_add_u32 s55, s55, s16
s_lshl_b32 s55, s55, 8
s_add_u32 s55, s55, {CNTW}
v_mov_b32 v10, 0
v_mov_b32 v11, 1
s_mov_b64 exec, 1
buffer_atomic_add v11, v10, s[8:11], s55 offen sc1
LA_fin:
""")
    if PROF:
        a("s_mov_b64 exec, -1")
        prof_out(a, 0x3100000, 8, 20, [40, 42, 44, 46])
    a("s_endpgm")

def splitk(a, L, nkb, kb_base, D, mode, ST, ACCV, prio=None, rounds=((0, 1, 2), (3, 4)), RESR=None):
    a(f"""
{L}:
s_and_b32 s27, s3, 7
s_lshr_b32 s28, s3, 3
s_lshr_b32 s29, s27, 1
s_lshl_b32 s29, s29, 3
s_lshr_b32 s30, s28, 2
s_add_u32 s29, s29, s30               ; mb
s_and_b32 s30, s27, 1
s_lshl_b32 s30, s30, 2
s_and_b32 s31, s28, 3
s_add_u32 s30, s30, s31               ; nb
v_lshlrev_b32 v3, 4, v1
v_add_u32 v4, {1*69632}, v3
v_add_u32 v5, {2*69632}, v3
v_add_u32 v6, {3*69632}, v3
v_add_u32 v7, 4096, v3
s_mul_i32 s32, s20, {nkb}
s_add_u32 s32, s32, {kb_base}
s_mul_i32 s33, s29, {4*69632}
s_lshl_b32 s34, s32, 10
s_add_u32 s33, s33, s34
s_add_u32 s33, s33, {AF}
s_mul_i32 s34, s32, 40960
s_mul_i32 s35, s30, 5120
s_add_u32 s34, s34, s35
s_add_u32 s34, s34, {BF}
""")
    FUSED = mode == "fused"
    N1 = nkb
    if FUSED:
        nkb = N1 + 5
        a(f"""
s_mul_i32 s52, s20, 5
s_mul_i32 s53, s29, {4*69632}
s_lshl_b32 s54, s52, 10
s_add_u32 s53, s53, s54
s_add_u32 s53, s53, {AF}
s_mul_i32 s54, s52, 40960
s_add_u32 s54, s54, s35
s_add_u32 s54, s54, {BF}
""")
    def loadsB(kb):
        b = ST + 36 * (kb % D)
        if FUSED and kb == N1: a("s_mov_b32 s34, s54")
        for j in range(4):
            a(f"buffer_load_dwordx4 {vr(b+16+4*j,4)}, v3, s[8:11], s34 offen offset:{j*1024}")
        a(f"buffer_load_dwordx4 {vr(b+32,4)}, v7, s[8:11], s34 offen")
        a("s_add_u32 s34, s34, 40960")
    def loadsA(kb):
        b = ST + 36 * (kb % D)
        if FUSED and kb == N1: a("s_mov_b32 s33, s53")
        sc = " sc1" if (FUSED and kb >= N1) else ""
        for i in range(4):
            a(f"buffer_load_dwordx4 {vr(b+4*i,4)}, v{3+i}, s[8:11], s33 offen{sc}")
        a("s_add_u32 s33, s33, 1024")
    def loads(kb):
        loadsB(kb)
        if not (FUSED and kb in (N1, N1 + 1)): loadsA(kb)
    for kb in range(min(D, nkb)): loads(kb)
    a(f"""
s_lshl_b32 s36, s29, 6
s_lshl_b32 s37, s20, 4
s_add_u32 s36, s36, s37
v_and_b32 v8, 15, v1
v_add_u32 v8, s36, v8
v_mul_u32_u24 v8, 1280, v8
v_lshrrev_b32 v9, 4, v1
v_lshl_add_u32 v8, v9, 3, v8
s_mul_i32 s36, s30, 160
s_lshl_b32 s38, s29, 3
s_add_u32 s38, s38, s30
s_mul_i32 s38, s38, 20480
s_mul_i32 s39, s20, 5120
s_add_u32 s38, s38, s39
s_add_u32 s38, s38, {YY}
""")
    def resloads(RES):
        if mode == "final":
            for j in range(4): a(f"buffer_load_dwordx4 {vr(RES+4*j,4)}, v3, s[8:11], s38 offen offset:{j*1024}")
            a(f"buffer_load_dwordx4 {vr(RES+16,4)}, v7, s[8:11], s38 offen")
        else:
            for j in range(5): a(f"buffer_load_dwordx2 {vr(RES+2*j,2)}, v8, s[12:15], s36 offen offset:{32*j}")
    if RESR is not None:
        assert D >= nkb
        resloads(RESR)
    for kb in range(nkb):
        b = ST + 36 * (kb % D)
        rem = min(D - 1, nkb - 1 - kb)
        if FUSED and kb == N1 - 1: a("s_waitcnt vmcnt(5)")
        elif FUSED and kb == N1:
            a(f"""
s_cmp_lg_u32 s20, 0
s_cbranch_scc1 {L}_pw
s_lshr_b32 s55, s29, 1
s_lshl_b32 s55, s55, 8
s_add_u32 s55, s55, {CNTW}
v_mov_b32 v10, 0
s_mov_b64 exec, 1
{L}_pl:
buffer_load_dword v11, v10, s[8:11], s55 offen sc1
s_waitcnt vmcnt(0)
v_readfirstlane_b32 s56, v11
s_nop 3
s_cmp_ge_u32 s56, 32
s_cbranch_scc1 {L}_pd
s_sleep {SLEEP}
s_branch {L}_pl
{L}_pd:
s_mov_b64 exec, -1
{L}_pw:
s_barrier
""")
            if PROF: a("s_memrealtime s[42:43]")
            loadsA(N1); loadsA(N1 + 1)
            a("s_waitcnt vmcnt(4)")
        else: a(f"s_waitcnt vmcnt({9*rem + (5 if RESR is not None else 0)})")
        if prio and not FUSED: a(f"s_setprio {prio[1]}")
        for i in range(4):
            for j in range(5):
                t = 5 * i + j
                c = "0" if kb == 0 else ACCV(t)
                if not (mode == "down" and 'nomf' in VAR and kb > 0): a(f"{MF16} {ACCV(t)}, {vr(b+16+4*j,4)}, {vr(b+4*i,4)}, {c}")
        if prio and kb + D < nkb and not FUSED: a(f"s_setprio {prio[0]}")
        if kb + D < nkb and not (mode == "down" and 'nold' in VAR): loads(kb + D)
    if PROF: a("s_memrealtime s[44:45]")
    RES = ST if RESR is None else RESR
    if RESR is None: resloads(RES)
    else: a("s_nop 4")
    OWN = ST + 20
    R = ST + 40
    a("s_nop 3")
    a(f"""
s_mul_i32 s37, s20, {3*1024*len(rounds[0])}
v_add_u32 v9, s37, v3
""")
    SL = 1024 * len(rounds[0]); NJ = len(rounds[0])
    for rnd, js in enumerate(rounds):
        for w in range(4):
            if w < 3:
                a(f"s_cmp_eq_u32 s20, {w}\ns_cbranch_scc0 {L}_r{rnd}n{w}")
            for i in range(4):
                if i == w: continue
                slot = w if w < i else w - 1
                for jj, j in enumerate(js):
                    a(f"ds_write_b128 v3, {ACCV(5*i+j)} offset:{(i*3+slot)*SL + jj*1024}")
            for j in js:
                src = ACCV(5 * w + j)
                base = int(src[2:src.index(":")])
                for r in range(4):
                    if src[0] == "a": a(f"v_accvgpr_read_b32 v{OWN+4*j+r}, a{base+r}")
                    else: a(f"v_mov_b32 v{OWN+4*j+r}, v{base+r}")
            if w < 3:
                a(f"s_branch {L}_r{rnd}d\n{L}_r{rnd}n{w}:")
        a(f"{L}_r{rnd}d:\ns_waitcnt lgkmcnt(0)\ns_barrier")
        for s in range(3):
            for jj, j in enumerate(js):
                a(f"ds_read_b128 {vr(R+4*jj+4*NJ*(s%2),4)}, v9 offset:{s*SL+jj*1024}")
            if s >= 1:
                a(f"s_waitcnt lgkmcnt({len(js)})")
                for jj, j in enumerate(js):
                    for r in range(4): a(f"v_add_f32 v{OWN+4*j+r}, v{OWN+4*j+r}, v{R+4*jj+4*NJ*((s-1)%2)+r}")
        a("s_waitcnt lgkmcnt(0)")
        for jj, j in enumerate(js):
            for r in range(4): a(f"v_add_f32 v{OWN+4*j+r}, v{OWN+4*j+r}, v{R+4*jj+r}")
        if rnd + 1 < len(rounds): a("s_barrier")
    a("s_waitcnt vmcnt(0)")
    if mode == "final":
        for q in range(20): a(f"v_add_f32 v{OWN+q}, v{OWN+q}, v{RES+q}")
    else:
        for j in range(5):
            for hh in range(2):
                a(f"v_lshlrev_b32 v{R}, 16, v{RES+2*j+hh}")
                a(f"v_and_b32 v{R+1}, 0xffff0000, v{RES+2*j+hh}")
                a(f"v_add_f32 v{OWN+4*j+2*hh}, v{OWN+4*j+2*hh}, v{R}")
                a(f"v_add_f32 v{OWN+4*j+2*hh+1}, v{OWN+4*j+2*hh+1}, v{R+1}")
    if mode == "down":
        for j in range(4): a(f"buffer_store_dwordx4 {vr(OWN+4*j,4)}, v3, s[8:11], s38 offen offset:{j*1024} sc1")
        a(f"buffer_store_dwordx4 {vr(OWN+16,4)}, v7, s[8:11], s38 offen sc1")
    else:
        for j in range(5):
            a(f"v_cvt_pk_bf16_f32 v{R+2*j}, v{OWN+4*j}, v{OWN+4*j+1}")
            a(f"v_cvt_pk_bf16_f32 v{R+2*j+1}, v{OWN+4*j+2}, v{OWN+4*j+3}")
            a(f"buffer_store_dwordx2 {vr(R+2*j,2)}, v8, s[16:19], s36 offen offset:{32*j}")

def k2_kernel(a, name, ffn=True, prio=(0, 2), aprio=1):
    kernel_header(a, name)
    a(f"""
s_cmp_ge_u32 s2, 768
s_cbranch_scc1 LK2_end
""")
    if PROF: a("s_memrealtime s[40:41]")
    a(f"""
s_load_dwordx2 s[4:5], s[0:1], 72
s_load_dwordx2 s[6:7], s[0:1], 0
s_load_dwordx2 s[52:53], s[0:1], 64
s_load_dwordx2 s[58:59], s[0:1], 56
v_and_b32 v1, 63, v0
v_lshrrev_b32 v2, 6, v0
s_and_b32 s3, s2, 255
v_readfirstlane_b32 s20, v2
s_lshr_b32 s16, s2, 8                 ; type
s_cmp_eq_u32 s16, 0
s_cbranch_scc1 LK2_ffn
s_sub_u32 s16, s16, 1
s_setprio {aprio}
""")
    if 'attn2' in VAR:
        a("s_waitcnt lgkmcnt(0)")
        srd(a, 8, 4, 5, WS_BYTES)
        attn(a)
    else:
        attn3(a)
    a("LK2_ffn:")
    if ffn:
        a("s_waitcnt lgkmcnt(0)")
        srd(a, 8, 4, 5, WS_BYTES)
        srd(a, 12, 6, 7, 2048 * 640 * 2)
        if PROF: a("s_memrealtime s[42:43]")
        if FUSE:
            srd(a, 16, 58, 59, 2048 * 640 * 2)
        splitk(a, "LD", 12, 20, 2, "fused" if FUSE else "down", 12, lambda t: f"v[{88+4*t}:{91+4*t}]", prio=prio)
        if not FUSE and 'nopf3' not in VAR:
            a(f"""
s_getpc_b64 s[56:57]
LPC3_ref:
s_add_u32 s48, s56, k3_kernel-LPC3_ref
s_addc_u32 s49, s57, 0
s_mov_b32 s50, LCODE_END-k3_kernel
s_mov_b32 s51, 0x00020000
s_lshl_b32 s58, s20, 10
buffer_load_dwordx4 v[12:15], v3, s[48:51], s58 offen
""")
        if PROF: prof_out(a, 0x3100000, 8, 20, [40, 42, 44, 46])
    a("LK2_end:\ns_endpgm")

K3_LDS = 61440
def k3_kernel(a, name, mode="final"):
    kernel_header(a, name)
    a(f"""
s_cmp_ge_u32 s2, 256
s_cbranch_scc1 LK3_end
""")
    if PROF: a("s_memrealtime s[40:41]\ns_memrealtime s[42:43]")
    a(f"""
s_load_dwordx2 s[4:5], s[0:1], 72
s_load_dwordx2 s[6:7], s[0:1], 0
s_load_dwordx2 s[22:23], s[0:1], 56
v_and_b32 v1, 63, v0
v_lshrrev_b32 v2, 6, v0
s_mov_b32 s3, s2
v_readfirstlane_b32 s20, v2
s_waitcnt lgkmcnt(0)
""")
    srd(a, 8, 4, 5, WS_BYTES)
    srd(a, 12, 6, 7, 2048 * 640 * 2)
    srd(a, 16, 22, 23, 2048 * 640 * 2)
    if mode == "final": splitk(a, "LF", 5, 0, 5, "final", 12, lambda t: f"a[{4*t}:{4*t+3}]", rounds=((0, 1, 2, 3, 4),), RESR=192)
    else: splitk(a, "LF", 17, 0, 6, "full", 12, lambda t: f"a[{4*t}:{4*t+3}]")
    if PROF: prof_out(a, 0x3200000, 8, 20, [40, 42, 44, 46])
    if PROF and DBGOUT:
        a(f"""
s_mov_b64 exec, -1
s_or_b32 s50, s2, s20
s_cmp_lg_u32 s50, 0
s_cbranch_scc1 LK3_end
s_load_dwordx2 s[52:53], s[0:1], 64
s_waitcnt lgkmcnt(0)
s_mov_b32 s54, 256
s_mov_b32 s55, 0x00020000
v_lshlrev_b32 v20, 2, v1
s_mov_b32 s56, {0x3000000 + 200*8*32}
buffer_load_dword v21, v20, s[8:11], s56 offen
s_mov_b32 s56, {0x3000000 - 20}
buffer_load_dword v22, v20, s[8:11], s56 offen
s_mov_b32 s56, {0x3100000 + 600*4*16 - 32}
buffer_load_dword v23, v20, s[8:11], s56 offen
s_waitcnt vmcnt(0)
v_cmp_gt_u32 vcc, 6, v1
s_nop 1
v_cndmask_b32 v22, v22, v21, vcc
v_cmp_gt_u32 vcc, 8, v1
s_nop 1
v_cndmask_b32 v23, v23, v22, vcc
v_mov_b32 v24, s40
v_cmp_eq_u32 vcc, 12, v1
s_nop 1
v_cndmask_b32 v23, v23, v24, vcc
v_mov_b32 v24, s44
v_cmp_eq_u32 vcc, 13, v1
s_nop 1
v_cndmask_b32 v23, v23, v24, vcc
v_mov_b32 v24, s46
v_cmp_eq_u32 vcc, 14, v1
s_nop 1
v_cndmask_b32 v23, v23, v24, vcc
s_nop 1
v_readfirstlane_b32 s57, v23
s_nop 3
v_subrev_u32 v23, s57, v23
s_mov_b64 exec, 0xffff
buffer_store_dword v23, v20, s[52:55], 0 offen
""")
    a("LK3_end:\ns_endpgm")
K3_ARCH = 12 + 36 * 6
```

```python
from asmlib import *
MFMA = "v_mfma_f32_32x32x16_bf16"
MF16 = "v_mfma_f32_16x16x32_bf16"
A_STAGE = 32768
B_RING, B_SLOT = 98304, 12576
CS_OFF = 161184
K1_LDS = 161952
ACC = 64
CSA = 160
FR = 168
FX = 216
K1_VGPR = 256
CP = 228
CNT_OFF = 160000
QSCALE = (20 ** -0.5) * 1.4426950408889634
PROF = False
VAR = ""
def stamp(a, k):
    if PROF:
        a(f"s_memrealtime s[{82+2*k}:{83+2*k}]")
        if k in (1, 2): a(f"s_memtime s[{92+2*k}:{93+2*k}]")
def stamp_out(a, n):
    if PROF:
        a("s_waitcnt vmcnt(0) lgkmcnt(0)")
        a(f"s_memrealtime s[{82+2*n}:{83+2*n}]")
        a("s_waitcnt lgkmcnt(0)")
        for k in range(8):
            a(f"v_mov_b32 v{8+k}, s{82+2*min(k, n)}" if k < 6 else f"v_mov_b32 v{8+k}, s{94+2*(k-6)}")
        a(f"""
s_lshl_b32 s34, s2, 3
s_add_u32 s34, s34, s24
s_lshl_b32 s34, s34, 5
s_add_u32 s34, s34, 0x3000000
v_mov_b32 v16, 0
s_mov_b64 exec, 1
buffer_store_dwordx4 v[8:11], v16, s[16:19], s34 offen
buffer_store_dwordx4 v[12:15], v16, s[16:19], s34 offen offset:16
""")

def gemm(a0, kind):
    def a(t):
        if 'qsc1' in VAR and kind != "GU":
            t = "\n".join((l + " sc1" if ("buffer_store" in l and "v16, s[" not in l) else l) for l in t.split("\n"))
        a0(t)
    L = f"LG{kind}"
    GU = kind == "GU"
    RS = 192 if GU else 320
    GS = 8 * RS + 32
    UP = 4 * GS + 32
    CPR = 12 if GU else 20
    CW = 96 if GU else 80
    ldw = 3072 if GU else 3840
    EVEN = (not GU) and ('noeven' not in VAR)
    VMB = 9 if EVEN else 8
    NA = 2 if GU else 1
    NBF = 3 if GU else 5
    FA = [[FR + 24 * b + 4 * i for i in range(NA)] for b in range(2)]
    FB = [[FR + 24 * b + 4 * NA + 4 * j for j in range(NBF)] for b in range(2)]
    acc = lambda i, j: ACC + 16 * (NBF * i + j)
    a(f"{L}:")
    if ('noqkv' in VAR and not GU) or ('nogu' in VAR and GU):
        a("s_endpgm")
        return
    if GU:
        a(f"""
s_mul_i32 s58, s28, 192
s_and_b32 s57, s24, 3
s_mul_i32 s59, s57, {GS}
s_mul_i32 s60, s81, {UP}
s_add_u32 s59, s59, s60
s_mul_i32 s60, s57, {CW}
s_lshl_b32 s56, s80, 13
""")
    else:
        a(f"""
s_mul_i32 s58, s28, 320
s_lshr_b32 s59, s24, 1
s_mul_i32 s59, s59, {GS}
s_and_b32 s57, s24, 1
s_mul_i32 s57, s57, 1280
s_add_u32 s59, s59, s57
s_mul_i32 s60, s24, {CW}
s_lshl_b32 s56, s24, 12               ; 32*w*128
""")
    magic, sh = (43691, 19) if CPR == 12 else (52429, 20)
    a(f"""
s_add_u32 s59, s59, {B_RING}
s_mov_b32 s62, {ldw}
v_add_u32 v6, s56, v6
v_add_u32 v7, s56, v7
v_add_u32 v8, s56, v8
v_add_u32 v9, s56, v9
""")
    for (vd, add) in ((14, 0), (15, 64)):
        a(f"""
v_add_u32 v24, s60, v1
v_add_u32 v24, {add}, v24
v_mul_u32_u24 v25, {magic}, v24
v_lshrrev_b32 v25, {sh}, v25
v_mul_u32_u24 v26, {CPR}, v25
v_sub_u32 v26, v24, v26
v_mul_lo_u32 v25, v25, s62
v_lshl_add_u32 v25, v26, 4, v25
v_add_u32 v{vd}, s58, v25
""")
        if add: a(f"v_subrev_u32 v{vd}, 1024, v{vd}")
    a(f"""
s_mov_b32 s64, {hex((1 << (CW - 64)) - 1)}
s_mov_b32 s65, 0
s_mov_b32 s30, 0
s_mov_b32 s31, 0
s_mov_b32 s32, 0
s_mov_b32 s33, 0
s_mov_b32 s66, 0
s_mov_b32 s67, 0
""")
    def dmaA(q):
        a(f"""
s_add_u32 m0, s63, s32
s_nop 0
buffer_load_dwordx4 v{10+q}, s[8:11], s30 offen offset:{1024*q} lds
""")
        if q == 3:
            a(f"""
s_add_u32 s32, s32, {A_STAGE}
s_cmp_eq_u32 s32, {3*A_STAGE}
s_cselect_b32 s32, 0, s32
s_add_u32 s30, s30, 128
""")
    def dmaB(q):
        if q == 0:
            a(f"""
s_add_u32 m0, s59, s33
s_nop 0
buffer_load_dwordx4 v14, s[12:15], s31 offen lds
""")
        else:
            a(f"""
s_add_u32 m0, s59, s33
s_mov_b64 exec, s[64:65]
buffer_load_dwordx4 v15, s[12:15], s31 offen offset:1024 lds
s_mov_b64 exec, -1
s_add_u32 s33, s33, {B_SLOT}
s_cmp_eq_u32 s33, {5*B_SLOT}
s_cselect_b32 s33, 0, s33
s_add_u32 s31, s31, {32*ldw}
""")
    JO = 32 if GU else 64
    def reads(nb, ja, ks):
        r = [f"ds_read_b128 {vr(FA[nb][i],4)}, v{6+ja} offset:{4096*i}" for i in range(NA)]
        for j in range(NBF):
            for rr in range(2):
                r.append(f"ds_read_b64_tr_b16 {vr(FB[nb][j]+2*rr,2)}, v16 offset:{2*ks*GS + 4*rr*RS + j*JO}")
        return r
    def xsetup():
        a(f"""
s_add_u32 s69, s67, {B_SLOT}
s_cmp_eq_u32 s69, {5*B_SLOT}
s_cselect_b32 s69, 0, s69
s_cmp_eq_u32 s72, 0
s_cselect_b32 s71, s67, s69
v_add_u32 v19, s67, v17
v_add_u32 v2, s69, v17
v_add_u32 v3, s71, v18
""")
    def xreads():
        r = []
        for e, v in enumerate((19, 2, 3)):
            for rr in range(2):
                r.append(f"ds_read_b64_tr_b16 {vr(FX+4*e+2*rr,2)}, v{v} offset:{4*rr*RS}")
        return r
    def advA_pre():
        a(f"""
s_add_u32 s69, s66, {A_STAGE}
s_cmp_eq_u32 s69, {3*A_STAGE}
s_cselect_b32 s69, 0, s69
s_sub_u32 s68, s69, s66
s_mov_b32 s66, s69
""")
    def advB():
        a(f"""
s_add_u32 s69, s67, {B_SLOT}
s_cmp_eq_u32 s69, {5*B_SLOT}
s_cselect_b32 s69, 0, s69
s_sub_u32 s70, s69, s67
s_mov_b32 s67, s69
v_add_u32 v16, s70, v16
""")
    def mfma(b, i, j):
        d = vr(acc(i, j), 16)
        if kind == "V": return f"{MFMA} {d}, {vr(FA[b][i],4)}, {vr(FB[b][j],4)}, {d}"
        return f"{MFMA} {d}, {vr(FB[b][j],4)}, {vr(FA[b][i],4)}, {d}"
    a("s_waitcnt lgkmcnt(0)")
    if 'stx' in VAR: stamp(a, 3)
    srd(a, 8, 36, 37, 2048 * 640 * 2)
    if GU:
        a(f"""
s_cmp_ge_u32 s24, 4
s_cselect_b32 s12, s46, s44
s_cselect_b32 s13, s47, s45
s_mov_b32 s14, {640*1536*2}
s_mov_b32 s15, 0x00020000
""")
    else:
        srd(a, 12, 38, 39, 640 * 1920 * 2)
    for _ in range(2):
        if EVEN:
            for q in range(4): dmaB(q & 1); dmaA(q)
        else:
            dmaB(0); dmaB(1)
            for q in range(4): dmaA(q)
            dmaB(0); dmaB(1)
    if 'stx' in VAR: stamp(a, 4)
    srd(a, 16, 54, 55, WS_BYTES)
    srd(a, 20, 52, 53, 256)
    NH = UP if GU else 32
    a(f"""
v_bfe_u32 v26, v1, 2, 2
v_mul_u32_u24 v26, {RS}, v26
v_and_b32 v27, 3, v1
v_lshl_add_u32 v26, v27, 3, v26       ; (i>>2)*RS + 8*(i&3)
v_lshrrev_b32 v24, 5, v1
v_mul_u32_u24 v24, {GS}, v24
v_bfe_u32 v27, v1, 4, 1
v_mul_u32_u24 v27, {NH}, v27
v_add3_u32 v16, v24, v26, v27
""")
    if GU: a(f"s_mul_i32 s61, s81, 96\ns_add_u32 s61, s61, {B_RING}")
    else: a(f"s_mov_b32 s61, {B_RING}")
    a("v_add_u32 v16, s61, v16")
    for j in range(ACC, ACC + 16 * NA * NBF): a(f"v_mov_b32 v{j}, 0")
    a("s_waitcnt vmcnt(8) lgkmcnt(0)\ns_barrier")
    stamp(a, 1)
    for r in reads(0, 0, 0): a(r)
    advA_pre()
    a("v_add_u32 v6, s68, v6")
    def step(jj, dma=True, bar=True, vm=None, nxt=True, extra=None, xm_early=False, vm3=6):
        if vm is None: vm = VMB
        b = jj & 1; nb = b ^ 1
        if jj % 2 == 0 and bar: a(f"s_waitcnt vmcnt({vm})\ns_barrier")
        if extra: extra()
        if EVEN and jj == 3 and nxt: a(f"s_waitcnt vmcnt({vm3}) lgkmcnt(0)")
        else: a("s_waitcnt lgkmcnt(0)")
        rd = []
        if nxt:
            if jj % 2 == 1: advB()
            rd = reads(nb, (jj + 1) % 4, (jj + 1) % 2)
        dm = []
        if dma:
            dm = {0: [lambda: dmaB(0), lambda: dmaB(1), lambda: dmaA(0)], 1: [lambda: dmaA(1), lambda: dmaA(2), lambda: dmaA(3)],
                  2: [lambda: dmaB(0)], 3: [lambda: dmaB(1)]}[jj]
            if EVEN: dm = [lambda: dmaB(jj & 1), lambda: dmaA(jj)]
        ms = [mfma(b, i, j) for j in range(NBF) for i in range(NA)]
        xm = [f"{MF16} {vr(CSA,4)}, {vr(FX,4)}, v[20:23], {vr(CSA,4)}",
              f"{MF16} {vr(CSA+4,4)}, {vr(FX+8,4)}, v[20:23], {vr(CSA+4,4)}",
              f"{MF16} {vr(CSA,4)}, {vr(FX+4,4)}, v[20:23], {vr(CSA,4)}"]
        n = len(ms)
        nr = max(1, n - 2)
        pr = pd = 0
        for k, m in enumerate(ms):
            a(m)
            tr = min(len(rd), -(-len(rd) * (k + 1) // nr))
            while pr < tr:
                a(rd[pr]); pr += 1
                if pr == NA and nxt:
                    ja = (jj + 1) % 4
                    if ja == 0: advA_pre()
                    a(f"v_add_u32 v{6+ja}, s68, v{6+ja}")
            td = min(len(dm), (len(dm) * (k + 2)) // n)
            while pd < td: dm[pd](); pd += 1
    a("s_mov_b32 s34, 8")
    a(f"s_branch {L}_in")
    a(".p2align 6")
    a(f"{L}_loop:")
    a(f"s_waitcnt vmcnt({VMB})\ns_barrier")
    a(f"{L}_in:")
    step(0, bar=False); step(1); step(2); step(3)
    a(f"""
s_sub_u32 s34, s34, 1
s_cmp_lg_u32 s34, 0
s_cbranch_scc1 {L}_loop
""")
    stamp(a, 2)
    step(0, dma=False); step(1, dma=False); step(2, dma=False, vm=5 if EVEN else 2); step(3, dma=False, vm3=0)
    def poll_issue():
        a("buffer_load_dword v24, v5, s[20:23], 0 offen sc1")
    def poll_check(final=False):
        sfx = "F" if final else ""
        if final:
            a(f"""
s_cmp_lg_u32 s78, 0
s_cbranch_scc1 {L}_have
{L}_poll:
buffer_load_dword v24, v5, s[20:23], 0 offen sc1
s_waitcnt vmcnt(0)
v_cmp_eq_u32 vcc, 0, v24
s_nop 4
s_cmp_eq_u64 vcc, 0
s_cbranch_scc1 {L}_pollok
s_sleep 1
s_branch {L}_poll
{L}_pollok:
""")
        else:
            a(f"""
s_waitcnt vmcnt(0)
v_cmp_eq_u32 vcc, 0, v24
s_mov_b32 s78, 0
s_nop 3
s_cmp_eq_u64 vcc, 0
s_cbranch_scc0 {L}_notyet
s_mov_b32 s78, 1
""")
        if 'stx' not in VAR: stamp(a, 3)
        if GU: a("s_lshl_b32 s76, s27, 8\ns_lshl_b32 s77, s80, 6\ns_add_u32 s76, s76, s77")
        else: a("s_mov_b32 s76, s29")
        a(f"""
v_and_b32 v25, 31, v1
v_add_u32 v26, s76, v25
v_lshlrev_b32 v26, 2, v26
s_mov_b32 s69, {MBO}
s_mov_b32 s70, {RIO}
""")
        for i in range(NA):
            a(f"buffer_load_dword v{28+i}, v26, s[16:19], s69 offen offset:{128*i} sc1")
        if kind == "V":
            a(f"""
v_lshrrev_b32 v27, 5, v1
v_lshlrev_b32 v27, 2, v27
v_add_u32 v27, s76, v27
v_lshlrev_b32 v27, 2, v27
""")
            for i in range(4):
                a(f"buffer_load_dwordx4 {vr(40+4*i,4)}, v27, s[16:19], s70 offen offset:{32*i} sc1")
        else:
            for i in range(NA):
                a(f"buffer_load_dword v{30+i}, v26, s[16:19], s70 offen offset:{128*i} sc1")
        if GU:
            a(f"""
v_and_b32 v27, 15, v1
v_bfe_u32 v32, v1, 4, 1
v_mul_u32_u24 v32, 1536, v32
v_add_u32 v27, v27, v32
v_lshlrev_b32 v27, 2, v27
s_mul_i32 s69, s28, {96*4}
s_mul_i32 s70, s81, {48*4}
s_add_u32 s69, s69, s70
s_add_u32 s69, s69, {CSO + 1920*4}
""")
            for kq in range(4):
                for j in range(3): a(f"buffer_load_dword v{CP+5*kq+j}, v27, s[16:19], s69 offen offset:{64*j} sc1")
                if kq < 3: a(f"s_add_u32 s69, s69, {4992*4}")
        else:
            a(f"""
v_lshlrev_b32 v32, 2, v25
s_mul_i32 s69, s28, {160*4}
s_add_u32 s69, s69, {CSO}
""")
            for kq in range(4):
                for j in range(5): a(f"buffer_load_dword v{CP+5*kq+j}, v32, s[16:19], s69 offen offset:{128*j} sc1")
                if kq < 3: a(f"s_add_u32 s69, s69, {4992*4}")
        a(f"{L}_have:" if final else f"{L}_notyet:")
    def cs_publish():
        a(f"""
v_and_b32 v27, 15, v1
v_cmp_eq_u32 vcc, 0, v27
v_and_b32 v27, 48, v1
s_lshl_b32 s70, s24, 6
s_add_u32 s70, s70, {CS_OFF}
v_add_u32 v32, s70, v27
s_lshl_b32 s70, s73, 6
s_add_u32 s70, s70, {CS_OFF + 512}
v_add_u32 v33, s70, v27
s_and_saveexec_b64 s[74:75], vcc
ds_write_b128 v32, {vr(CSA,4)}
""")
        if not GU: a(f"s_cmp_ge_u32 s24, 4\ns_cbranch_scc1 {L}_nox")
        for r in range(4): a(f"ds_add_f32 v33, v{CSA+4+r} offset:{4*r}")
        if not GU: a(f"{L}_nox:")
        a("s_mov_b64 exec, -1\ns_waitcnt lgkmcnt(0)\ns_barrier")
        if GU:
            a(f"""
v_and_b32 v27, 15, v1
v_bfe_u32 v32, v1, 4, 1
v_mul_u32_u24 v32, 96, v32
v_add_u32 v27, v27, v32
s_mul_i32 s70, s81, 48
v_add_u32 v27, s70, v27
v_lshlrev_b32 v27, 2, v27
v_add_u32 v27, {CS_OFF}, v27
""")
            for j in range(3): a(f"ds_read_b32 v{34+j}, v27 offset:{64*j}")
        else:
            a(f"v_lshlrev_b32 v27, 2, v25\nv_add_u32 v27, {CS_OFF}, v27")
            for j in range(5): a(f"ds_read_b32 v{34+j}, v27 offset:{128*j}")
    step(0, dma=False, vm=0, extra=poll_issue, xm_early=True); step(1, dma=False, extra=poll_check, xm_early=True)
    step(2, dma=False, bar=False); step(3, dma=False, nxt=False, xm_early=True)
    if 'stx' not in VAR: stamp(a, 4)
    poll_check(final=True)
    XC = FR
    WC = FR + 8
    a(f"""
s_waitcnt vmcnt(0)
s_mov_b32 s64, -1
s_mov_b32 s65, 0
""")
    for j in range(NBF):
        a(f"v_add_f32 v{34+j}, v{CP+j}, v{CP+5+j}\nv_add_f32 v{CP+10+j}, v{CP+10+j}, v{CP+15+j}\nv_add_f32 v{34+j}, v{34+j}, v{CP+10+j}")
    for i in range(NA):
        a(f"""
v_xor_b32 v24, 0x80000000, v{28+i}
v_lshrrev_b32 v25, 16, v24
v_or_b32 v26, v25, v24
v_cndmask_b32 v{XC+4*i}, 0, v26, s[64:65]
v_cndmask_b32 v{XC+4*i+1}, 0, v25, s[64:65]
v_mov_b32 v{XC+4*i+2}, 0
v_mov_b32 v{XC+4*i+3}, 0
""")
    WCr = [FX, FX + 4, FX + 8, WC, WC + 4]
    for j in range(NBF):
        w = WCr[j]; c = 34 + j
        a(f"""
v_and_b32 v24, 0xffff0000, v{c}
v_sub_f32 v25, v{c}, v24
v_and_b32 v26, 0xffff0000, v25
v_sub_f32 v25, v25, v26
v_lshrrev_b32 v24, 16, v24
v_or_b32 v{w}, v24, v26
v_lshrrev_b32 v{w+1}, 16, v25
v_mov_b32 v{w+2}, 0
v_mov_b32 v{w+3}, 0
""")
        if j == NBF - 1: a("s_nop 1")
        if j >= 1:
            for i in range(NA):
                d = vr(acc(i, j - 1), 16)
                if kind == "V": a(f"{MFMA} {d}, {vr(XC+4*i,4)}, {vr(WCr[j-1],4)}, {d}")
                else: a(f"{MFMA} {d}, {vr(WCr[j-1],4)}, {vr(XC+4*i,4)}, {d}")
    for i in range(NA):
        d = vr(acc(i, NBF - 1), 16)
        if kind == "V": a(f"{MFMA} {d}, {vr(XC+4*i,4)}, {vr(WCr[NBF-1],4)}, {d}")
        else: a(f"{MFMA} {d}, {vr(WCr[NBF-1],4)}, {vr(XC+4*i,4)}, {d}")
    a("s_lshr_b32 s69, s76, 5")
    PK = FR + 16 if False else 24
    if kind == "QK":
        a(f"""
s_cmp_lt_u32 s28, 4
s_cselect_b32 s70, {hex(f32bits(QSCALE))}, 1.0
v_mul_f32 v4, s70, v30
s_cselect_b32 s71, {QF}, {KF}
s_and_b32 s72, s28, 3
s_mul_i32 s72, s72, {8*81920}
s_add_u32 s71, s71, s72
s_mul_i32 s72, s69, 1280
s_add_u32 s71, s71, s72
v_lshlrev_b32 v2, 4, v1
v_and_b32 v3, 31, v1
v_lshlrev_b32 v3, 3, v3
v_lshrrev_b32 v5, 5, v1
s_mov_b32 s72, 81920
v_mul_lo_u32 v5, v5, s72
v_add3_u32 v3, v3, v5, 0
v_add_u32 v3, 1024, v3
""")
        for P in range(4):
            for i in range(20):
                r = ACC + 20 * P + i
                a(f"v_mul_f32 v{r}, v{r}, v4")
            for i in range(10):
                r = ACC + 20 * P + 2 * i
                a(f"v_cvt_pk_bf16_f32 v{PK+10*P+i}, v{r}, v{r+1}")
            a(f"buffer_store_dwordx4 {vr(PK+10*P,4)}, v2, s[16:19], s71 offen")
            a(f"buffer_store_dwordx2 {vr(PK+10*P+4,2)}, v3, s[16:19], s71 offen")
            a(f"s_add_u32 s71, s71, 81920")
            a(f"buffer_store_dwordx4 {vr(PK+10*P+6,4)}, v2, s[16:19], s71 offen")
            a(f"s_add_u32 s71, s71, 81920")
    elif kind == "V":
        PK = FR
        a(f"""
s_sub_u32 s72, s28, 8
s_mul_i32 s72, s72, {8*81920}
s_mul_i32 s71, s69, 1280
s_add_u32 s71, s71, s72
s_add_u32 s71, s71, {VF}
s_mov_b32 s72, 81920
v_and_b32 v2, 31, v1
v_lshrrev_b32 v3, 5, v1
v_mul_u32_u24 v3, 320, v3
""")
        for j in range(5):
            a(f"""
v_add_u32 v24, {32*j}, v2
v_mul_u32_u24 v25, 52429, v24
v_lshrrev_b32 v25, 20, v25
v_mul_u32_u24 v26, 20, v25
v_sub_u32 v26, v24, v26
v_mul_lo_u32 v25, v25, s72
v_lshl_add_u32 v25, v26, 4, v25
v_add_u32 v{28+j}, v25, v3
""")
        for j in range(5):
            for i in range(16):
                r = ACC + 16 * j + i
                a(f"v_mul_f32 v{r}, v{r}, v{40+i}")
            for i in range(8):
                r = ACC + 16 * j + 2 * i
                a(f"v_cvt_pk_bf16_f32 v{PK+8*j+i}, v{r}, v{r+1}")
            a(f"buffer_store_dwordx4 {vr(PK+8*j,4)}, v{28+j}, s[16:19], s71 offen")
            a(f"buffer_store_dwordx4 {vr(PK+8*j+4,4)}, v{28+j}, s[16:19], s71 offen offset:640")
    else:
        PK = 32
        a(f"""
v_mul_f32 v4, v30, v30
v_mul_f32 v5, v31, v31
s_lshl_b32 s71, s69, 1                  ; rowtile16
s_mul_i32 s71, s71, {68*1024}
s_mul_i32 s72, s28, {3*1024}
s_add_u32 s71, s71, s72
s_mul_i32 s72, s81, {3*512}
s_add_u32 s71, s71, s72
s_add_u32 s71, s71, {AF + 20*1024}
s_add_u32 s72, s71, {2*68*1024}
v_bfe_u32 v2, v1, 4, 1
v_mul_u32_u24 v2, {68*1024}, v2
v_and_b32 v3, 15, v1
v_lshl_add_u32 v2, v3, 4, v2
v_lshrrev_b32 v3, 5, v1
v_lshl_add_u32 v2, v3, 8, v2
s_nop 3
""")
        for j in range(3):
            for i in range(2):
                for r in range(8):
                    g = acc(i, j) + r; u = g + 8
                    a(f"v_max_f32 v{g}, 0, v{g}")
                    a(f"v_mul_f32 v{u}, v{u}, v{4+i}")
                    a(f"v_mul_f32 v{g}, v{g}, v{u}")
                for r in range(4):
                    a(f"v_cvt_pk_bf16_f32 v{PK+8*j+4*i+r}, v{acc(i,j)+2*r}, v{acc(i,j)+2*r+1}")
                a(f"buffer_store_dwordx4 {vr(PK+8*j+4*i,4)}, v2, s[16:19], s{71+i} offen offset:{j*512}")
    stamp_out(a, 5)
    a("s_endpgm")

def prep(a):
    X = 64; CX = 48
    a("LP:\ns_waitcnt lgkmcnt(0)")
    srd(a, 8, 36, 37, 2048 * 640 * 2)
    srd(a, 16, 54, 55, WS_BYTES)
    srd(a, 20, 52, 53, 256)
    a(f"""
v_mov_b32 v2, {CNT_OFF}
v_mov_b32 v3, 0
ds_write_b32 v2, v3
s_lshl_b32 s27, s25, 2
s_add_u32 s27, s27, s26               ; p
s_waitcnt lgkmcnt(0)
s_barrier
s_cmp_ge_u32 s24, 5
s_cbranch_scc1 LP_st
s_mul_i32 s30, s27, 5
s_add_u32 s30, s30, s24               ; u
s_cmp_ge_u32 s30, 156
s_cbranch_scc1 LP_flag
s_lshr_b32 s31, s30, 2                ; b
s_and_b32 s30, s30, 3                 ; kq
s_cmp_lt_u32 s31, 27
s_cselect_b32 s12, s44, s46
s_cselect_b32 s13, s45, s47
s_cselect_b32 s56, 15, 27
s_mov_b32 s14, {640*1536*2}
s_mov_b32 s60, 3072
s_cmp_lt_u32 s31, 15
s_cselect_b32 s12, s38, s12
s_cselect_b32 s13, s39, s13
s_cselect_b32 s56, 0, s56
s_cselect_b32 s14, {640*1920*2}, s14
s_cselect_b32 s60, 3840, s60
s_mov_b32 s15, 0x00020000
s_sub_u32 s56, s31, s56
s_lshl_b32 s57, s56, 8
s_mul_i32 s61, s30, 160
v_lshrrev_b32 v6, 4, v1
v_add_u32 v6, s61, v6
v_mul_lo_u32 v6, v6, s60
v_and_b32 v7, 15, v1
v_lshl_add_u32 v6, v7, 4, v6
s_lshl_b32 s62, s60, 2
""")
    LOOPED = 'loop' in VAR
    NBUF, PER = (4, 5) if LOOPED else (8, 5)
    a("s_mov_b32 s58, 0x00003f80\ns_mov_b32 s59, 0x3f800000\ns_mov_b32 s61, 0")
    for i in range(8): a(f"v_mov_b32 v{16+i}, 0")
    for t in range(NBUF * PER):
        a(f"buffer_load_dwordx4 {vr(CX+4*t,4)}, v6, s[12:15], s57 offen")
        a("s_add_u32 s57, s57, s62")
    a("LP_csl:")
    for bf in range(NBUF):
        a(f"s_waitcnt vmcnt({(NBUF-1)*PER if LOOPED else (NBUF-1-bf)*PER})")
        for t in range(PER):
            for i in range(4):
                r = CX + 4 * (bf * PER + t) + i
                a(f"v_dot2c_f32_bf16 v{16+2*i}, s58, v{r}\nv_dot2c_f32_bf16 v{17+2*i}, s59, v{r}")
        for t in range(PER if LOOPED else 0):
            a(f"buffer_load_dwordx4 {vr(CX+4*(bf*PER+t),4)}, v6, s[12:15], s57 offen")
            a("s_add_u32 s57, s57, s62")
    if LOOPED: a(f"""
s_mov_b32 s57, 0x7ffffff0
s_mov_b32 s62, 0
s_add_u32 s61, s61, 1
s_cmp_lt_u32 s61, 2
s_cbranch_scc1 LP_csl
""")
    a("s_nop 2")
    for i in range(8): a(f"ds_swizzle_b32 v{24+i}, v{16+i} offset:0x401F")
    a("s_waitcnt lgkmcnt(0)")
    for i in range(8): a(f"v_add_f32 v{16+i}, v{16+i}, v{24+i}\nv_mov_b32 v{24+i}, v{16+i}")
    a("s_nop 1")
    for i in range(8): a(f"v_permlane32_swap_b32 v{16+i}, v{24+i}")
    a("s_nop 1")
    for i in range(8): a(f"v_add_f32 v{16+i}, v{16+i}, v{24+i}")
    a(f"""
s_mul_i32 s58, s30, {4992*4}
s_lshl_b32 s59, s31, 9
s_add_u32 s58, s58, s59
s_add_u32 s58, s58, {CSO}
v_lshlrev_b32 v7, 5, v7
s_mov_b64 exec, 0xffff
buffer_store_dwordx4 v[16:19], v7, s[16:19], s58 offen sc1
buffer_store_dwordx4 v[20:23], v7, s[16:19], s58 offen offset:16 sc1
s_mov_b64 exec, -1
s_branch LP_flag
LP_st:
s_cmp_eq_u32 s24, 7
s_cbranch_scc0 LP_st2
s_getpc_b64 s[56:57]
LPC_ref:
s_sub_u32 s12, s56, LPC_ref-k1_kernel
s_subb_u32 s13, s57, 0
s_mov_b32 s14, LCODE_END-k1_kernel
s_mov_b32 s15, 0x00020000
s_mul_i32 s58, s26, 12288
v_lshlrev_b32 v5, 4, v1
buffer_load_dwordx4 v[200:203], v5, s[12:15], s58 offen offset:0
buffer_load_dwordx4 v[200:203], v5, s[12:15], s58 offen offset:1024
buffer_load_dwordx4 v[200:203], v5, s[12:15], s58 offen offset:2048
buffer_load_dwordx4 v[200:203], v5, s[12:15], s58 offen offset:3072
s_add_u32 s58, s58, 4096
buffer_load_dwordx4 v[200:203], v5, s[12:15], s58 offen offset:0
buffer_load_dwordx4 v[200:203], v5, s[12:15], s58 offen offset:1024
buffer_load_dwordx4 v[200:203], v5, s[12:15], s58 offen offset:2048
buffer_load_dwordx4 v[200:203], v5, s[12:15], s58 offen offset:3072
s_add_u32 s58, s58, 4096
buffer_load_dwordx4 v[200:203], v5, s[12:15], s58 offen offset:0
buffer_load_dwordx4 v[200:203], v5, s[12:15], s58 offen offset:1024
buffer_load_dwordx4 v[200:203], v5, s[12:15], s58 offen offset:2048
buffer_load_dwordx4 v[200:203], v5, s[12:15], s58 offen offset:3072
s_branch LP_tr
LP_st2:
s_lshl_b32 s28, s27, 6
s_sub_u32 s29, s24, 5
s_lshl_b32 s29, s29, 5
s_add_u32 s28, s28, s29
v_lshrrev_b32 v2, 3, v1
v_add_u32 v2, s28, v2
v_mul_u32_u24 v3, 1280, v2
v_and_b32 v4, 7, v1
v_lshl_add_u32 v3, v4, 4, v3
s_mov_b32 s57, 0
""")
    for ps in range(4):
        for t in range(10):
            a(f"buffer_load_dwordx4 {vr(CX+40*ps+4*t,4)}, v3, s[8:11], s57 offen offset:{128*t}")
        a(f"s_add_u32 s57, s57, {8*1280}")
    a(f"""
s_mov_b32 s58, 0x3f803f80
v_lshlrev_b32 v2, 2, v2
v_cmp_eq_u32 vcc, 0, v4
s_mov_b32 s32, {MBO}
s_mov_b32 s33, {RIO}
s_mov_b64 s[34:35], vcc
""")
    for i in range(8): a(f"v_mov_b32 v{16+i}, 0")
    for ps in range(4):
        for t in range(10):
            if t % 5 == 0: a(f"s_waitcnt vmcnt({35-10*ps-t})")
            for i in range(4):
                r = CX + 40 * ps + 4 * t + i
                a(f"v_dot2c_f32_bf16 v{16+2*ps}, s58, v{r}\nv_dot2c_f32_bf16 v{17+2*ps}, v{r}, v{r}")
    a("s_nop 2")
    for m in (0x041F, 0x081F, 0x101F):
        for i in range(8): a(f"ds_swizzle_b32 v{24+i}, v{16+i} offset:{m}")
        a("s_waitcnt lgkmcnt(0)")
        for i in range(8): a(f"v_add_f32 v{16+i}, v{16+i}, v{24+i}")
    for ps in range(4):
        rinv_calc(a, 16 + 2 * ps, 17 + 2 * ps, 24 + ps, 28 + ps, 32)
    a("s_mov_b64 exec, s[34:35]")
    for ps in range(4):
        a(f"buffer_store_dword v{24+ps}, v2, s[16:19], s32 offen offset:{32*ps} sc1")
        a(f"buffer_store_dword v{28+ps}, v2, s[16:19], s33 offen offset:{32*ps} sc1")
    a("s_mov_b64 exec, -1\nLP_flag:")
    stamp(a, 1)
    a(f"""
s_waitcnt vmcnt(0)
v_mov_b32 v12, 1
v_mov_b32 v13, {CNT_OFF}
s_mov_b64 exec, 1
ds_add_rtn_u32 v14, v13, v12
s_waitcnt lgkmcnt(0)
v_readfirstlane_b32 s56, v14
v_mov_b32 v13, s27
v_lshlrev_b32 v13, 2, v13
s_cmp_lg_u32 s56, 6
s_cbranch_scc1 LP_done
buffer_store_dword v12, v13, s[20:23], 0 offen sc1
LP_done:
s_mov_b64 exec, -1
""")
    stamp(a, 2)
    stamp_out(a, 5)
    a("s_endpgm")
    DEP = 10
    ZC = f"""s_cmp_lg_u32 s27, 0
s_cbranch_scc1 LP_nz
v_lshlrev_b32 v13, 8, v1
v_mov_b32 v14, 0
s_mov_b32 s56, {CNTW}
s_mov_b64 exec, 0xffff
buffer_store_dword v14, v13, s[16:19], s56 offen sc1
s_mov_b64 exec, -1
LP_nz:
"""
    TRSTART = 5 if 'tr5' in VAR else (7 if 'tr7' in VAR else 6)
    a(f"""
LP_tr:
v_lshrrev_b32 v6, 3, v1
v_mul_u32_u24 v6, 1280, v6
v_and_b32 v7, 7, v1
v_lshl_add_u32 v6, v7, 4, v6
v_add_u32 v7, {8*1280-1024}, v6
v_add_u32 v8, {16*1280-2048}, v6
v_add_u32 v9, {24*1280-3072}, v6
v_lshrrev_b32 v10, 5, v1
v_lshlrev_b32 v10, 4, v10
v_bfe_u32 v11, v1, 4, 1
v_lshl_add_u32 v10, v11, 2, v10
v_bfe_u32 v11, v1, 2, 2
v_add_u32 v10, v10, v11
v_lshlrev_b32 v10, 7, v10
v_and_b32 v11, 3, v1
v_lshl_add_u32 v10, v11, 3, v10
v_lshlrev_b32 v11, 4, v1
{ZC if 'fuse' in VAR else ''}
v_mov_b32 v13, {CNT_OFF}
LP_wt:
s_sleep 8
ds_read_b32 v14, v13
s_waitcnt lgkmcnt(0)
v_readfirstlane_b32 s56, v14
s_nop 3
s_cmp_lt_u32 s56, {TRSTART}
s_cbranch_scc1 LP_wt
s_mov_b32 s56, s27
s_mov_b32 s57, 0
s_mov_b32 s62, s27
s_mov_b32 s63, {-DEP}                 ; iteration
LP_trl:
s_min_u32 s60, s56, 679
s_mul_i32 s58, s60, 52429
s_lshr_b32 s58, s58, 19
s_mul_i32 s59, s58, 10
s_sub_u32 s59, s60, s59
s_cmp_lt_u32 s58, 20
s_cselect_b32 s12, s40, s48
s_cselect_b32 s13, s41, s49
s_mov_b32 s14, {1536*640*2}
s_cselect_b32 s14, {640*640*2}, s14
s_mov_b32 s15, 0x00020000
s_cselect_b32 s60, 0, 20
s_sub_u32 s60, s58, s60
s_mul_i32 s60, s60, {32*1280}
s_lshl_b32 s61, s59, 7
s_add_u32 s60, s60, s61
s_mov_b32 m0, s57
s_add_u32 s57, s57, 4096
buffer_load_dwordx4 v6, s[12:15], s60 offen lds
buffer_load_dwordx4 v7, s[12:15], s60 offen offset:1024 lds
buffer_load_dwordx4 v8, s[12:15], s60 offen offset:2048 lds
buffer_load_dwordx4 v9, s[12:15], s60 offen offset:3072 lds
s_add_u32 s56, s56, 32
s_add_i32 s63, s63, 1
s_cmp_le_i32 s63, 0
s_cbranch_scc1 LP_trl
s_waitcnt vmcnt({4*DEP})
""")
    for jt in range(4):
        for r in range(2):
            a(f"ds_read_b64_tr_b16 {vr(X+4*jt+2*r,2)}, v10 offset:{jt*32 + r*8*128}")
    a(f"""
v_add_u32 v10, 4096, v10
s_mul_i32 s58, s62, 52429
s_lshr_b32 s58, s58, 19
s_mul_i32 s59, s58, 10
s_sub_u32 s59, s62, s59
s_mul_i32 s60, s58, {40*1024}
s_lshl_b32 s61, s59, 12
s_add_u32 s60, s60, s61
s_add_u32 s60, s60, {BF}
s_waitcnt lgkmcnt(0)
""")
    for jt in range(4):
        a(f"buffer_store_dwordx4 {vr(X+4*jt,4)}, v11, s[16:19], s60 offen offset:{jt*1024} sc1")
    a(f"""
s_add_u32 s62, s62, 32
s_cmp_lt_u32 s62, 680
s_cbranch_scc1 LP_trl
""")
    if 'nopf2' not in VAR:
        a(f"""
s_getpc_b64 s[56:57]
LPC2_ref:
s_add_u32 s12, s56, k2_kernel-LPC2_ref
s_addc_u32 s13, s57, 0
s_mov_b32 s14, LCODE_END-k2_kernel
s_mov_b32 s15, 0x00020000
s_lshl_b32 s58, s26, 12
buffer_load_dwordx4 v[200:203], v11, s[12:15], s58 offen
buffer_load_dwordx4 v[200:203], v11, s[12:15], s58 offen offset:1024
buffer_load_dwordx4 v[200:203], v11, s[12:15], s58 offen offset:2048
buffer_load_dwordx4 v[200:203], v11, s[12:15], s58 offen offset:3072
""")
    stamp(a, 1); stamp(a, 2)
    stamp_out(a, 5)
    a("s_endpgm")

def k1_kernel(a, name):
    kernel_header(a, name)
    a(f"""
s_cmp_ge_u32 s2, 256
s_cbranch_scc1 LK1_end
""")
    stamp(a, 0)
    a(f"""
s_load_dwordx16 s[36:51], s[0:1], 0
s_load_dwordx4 s[52:55], s[0:1], 64
v_and_b32 v1, 63, v0
v_lshrrev_b32 v2, 6, v0
s_and_b32 s25, s2, 7
v_readfirstlane_b32 s24, v2
s_lshr_b32 s26, s2, 3
s_and_b32 s80, s24, 3
s_lshr_b32 s81, s24, 2
""")
    a(f"""
s_cmp_lt_u32 s26, 4
s_cbranch_scc1 LP
s_sub_u32 s26, s26, 4
s_and_b32 s27, s25, 1
s_lshl_b32 s27, s27, 2
s_and_b32 s28, s26, 3
s_add_u32 s27, s27, s28               ; mblock
s_lshl_b32 s29, s27, 8
s_lshl_b32 s28, s24, 5
s_add_u32 s29, s29, s28
s_lshl_b32 s63, s24, 12
v_and_b32 v5, 31, v1
v_lshlrev_b32 v5, 2, v5
v_lshrrev_b32 v24, 3, v1
v_add_u32 v24, s29, v24
v_mul_u32_u24 v24, 1280, v24
v_lshrrev_b32 v25, 4, v1
v_and_b32 v26, 7, v1
v_xor_b32 v27, v26, v25
v_lshl_add_u32 v10, v27, 4, v24
v_xor_b32 v27, 4, v27
v_lshl_add_u32 v11, v27, 4, v24
v_add_u32 v12, {16*1280-2048}, v10
v_add_u32 v13, {24*1280-3072}, v11
v_add_u32 v11, {8*1280-1024}, v11
v_and_b32 v24, 31, v1
v_lshrrev_b32 v25, 5, v1
v_bfe_u32 v26, v24, 1, 3
v_xor_b32 v26, v26, v25
v_lshlrev_b32 v24, 7, v24
""")
    for j in range(4):
        a(f"v_xor_b32 v27, {2*j}, v26\nv_lshl_add_u32 v{6+j}, v27, 4, v24")
    a(f"""
s_lshr_b32 s26, s26, 2
s_lshr_b32 s56, s25, 1
s_cmp_lt_u32 s26, 3
s_cbranch_scc0 LK1_gu
s_mul_i32 s28, s56, 3
s_add_u32 s28, s28, s26
s_cmp_lt_u32 s28, 8
s_cbranch_scc1 LGQK
s_branch LGV
LK1_gu:
s_lshl_b32 s28, s56, 2
s_add_u32 s28, s28, s26
s_sub_u32 s28, s28, 3
s_branch LGGU
LK1_end:
s_endpgm
""")
    gemm(a, "QK"); gemm(a, "V"); gemm(a, "GU")
    prep(a)

if __name__ == "__main__":
    import sys
    PROF = len(sys.argv) > 1
    VAR = sys.argv[1] if PROF else ""
    a = Asm()
    hdr = f"; @launch kernel=k1_kernel grid=(256,1,1) block=(512,1,1) lds={K1_LDS}\n"
    a('.amdgcn_target "amdgcn-amd-amdhsa--gfx950"\n.text')
    k1_kernel(a, "k1_kernel")
    a("LCODE_END:")
    txt = hdr + a.text() + '.section .rodata,"a"\n' + kernel_desc("k1_kernel", K1_VGPR, 100)
    open("k1_only.s", "w").write(txt)
```

```python
from asmlib import *
MFMA = "v_mfma_f32_32x32x16_bf16"
MF16 = "v_mfma_f32_16x16x32_bf16"
QA, QAT, QB, QBT = 8, 12, 16, 20
SA, SB = 24, 40
PA, PB = 56, 64
OA, OB = 72, 88
KB, VB, NB = 104, 136, 4
MA, MB = 0, 2
K2_VGPR = 168
K2_LDS = 53248
PROF = False
VAR = ''
FUSE = False
SLEEP = 16
DBGOUT = False
KPERM = "v2"

def prof_out(a, base, srd, wave_s, regs):
    a("s_waitcnt vmcnt(0) lgkmcnt(0)")
    a(f"s_memrealtime s[{regs[-1]}:{regs[-1]+1}]")
    a("s_waitcnt lgkmcnt(0)")
    for k in range(4):
        a(f"v_mov_b32 v{8+k}, s{regs[min(k, len(regs)-1)]}")
    a(f"""
s_lshl_b32 s34, s2, 2
s_add_u32 s34, s34, s{wave_s}
s_lshl_b32 s34, s34, 4
s_add_u32 s34, s34, {base}
v_mov_b32 v16, 0
s_mov_b64 exec, 1
buffer_store_dwordx4 v[8:11], v16, s[{srd}:{srd+3}], s34 offen
""")

def attn(a):
    T = PA
    a(f"""
LA:
s_and_b32 s21, s3, 7
s_lshl_b32 s21, s21, 2
s_lshr_b32 s22, s3, 3
s_and_b32 s23, s22, 3
s_add_u32 s21, s21, s23              ; head
s_lshr_b32 s22, s3, 5                ; qblock
s_and_b32 s23, s20, 1
s_lshl_b32 s24, s16, 1
s_add_u32 s23, s23, s24              ; qsub
s_lshr_b32 s24, s20, 1               ; khalf
s_mul_i32 s25, s21, {64*1280}
s_lshl_b32 s26, s22, 3
s_lshl_b32 s27, s23, 1
s_add_u32 s26, s26, s27              ; qtile a
s_mul_i32 s27, s26, 1280
s_add_u32 s27, s27, s25
s_mul_i32 s28, s24, {32*1280}
s_add_u32 s28, s28, s25
s_add_u32 s29, s28, {VF}
s_add_u32 s28, s28, {KF}
v_lshlrev_b32 v3, 4, v1
v_and_b32 v4, 31, v1
v_lshrrev_b32 v5, 5, v1
v_lshlrev_b32 v6, 3, v4
v_lshl_add_u32 v6, v5, 2, v6
v_add_u32 v6, 1024, v6
v_mul_u32_u24 v7, 320, v5
v_lshl_add_u32 v7, v4, 4, v7
buffer_load_dwordx4 {vr(QA,4)}, v3, s[8:11], s27 offen
buffer_load_dword {vr(QAT)}, v6, s[8:11], s27 offen
buffer_load_dwordx4 {vr(QB,4)}, v3, s[8:11], s27 offen offset:1280
buffer_load_dword {vr(QBT)}, v6, s[8:11], s27 offen offset:1280
s_mov_b32 s30, 0
s_mov_b32 s12, 0x000FFFFF
s_mov_b32 s13, 0x000FFFFF
s_mov_b32 s14, 0xFFFFFFFF
s_mov_b32 s15, 0
""")
    def rowmax(S, M, init):
        if init:
            a(f"v_max3_f32 {vr(M)}, {vr(S)}, {vr(S+1)}, {vr(S+2)}")
            a(f"v_max_f32 {vr(M)}, {vr(M)}, {vr(S+3)}")
            st = 4
        else: st = 0
        for j in range(st, 16, 2):
            a(f"v_max3_f32 {vr(M)}, {vr(M)}, {vr(S+j)}, {vr(S+j+1)}")
    def qk(S, Qm, Qt, kb):
        a(f"{MFMA} {vr(S,16)}, {vr(KB+8*kb,4)}, {vr(Qm,4)}, 0")
        a(f"{MFMA} {vr(S,16)}, {vr(KB+8*kb+4,4)}, {vr(Qt,4)}, {vr(S,16)}")
    def loadK(kb, soff, imm=0):
        a(f"buffer_load_dwordx4 {vr(KB+8*kb,4)}, v3, s[8:11], {soff} offen offset:{imm}")
        a(f"buffer_load_dword {vr(KB+8*kb+4)}, v6, s[8:11], {soff} offen offset:{imm}")
    def loadV(vb, soff, imm=0):
        a("s_mov_b64 exec, s[12:13]")
        a(f"buffer_load_dwordx4 {vr(VB+8*vb,4)}, v7, s[8:11], {soff} offen offset:{imm}")
        a(f"buffer_load_dwordx4 {vr(VB+8*vb+4,4)}, v7, s[8:11], {soff} offen offset:{imm+640}")
        a("s_mov_b64 exec, -1")
    a("s_branch LA_pro")
    a("LA_restart:")
    for q in (QAT, QBT):
        for j in (1, 2): a(f"v_mov_b32 {vr(q+j)}, 0")
    a(f"""
v_mov_b32 {vr(MA)}, 0xff800000
v_mov_b32 {vr(MB)}, 0xff800000
s_mov_b32 s31, s28
s_mov_b32 s32, 32
LA_maxloop:
""")
    loadK(0, "s31")
    a("s_waitcnt vmcnt(0)")
    qk(SA, QA, QAT, 0); qk(SB, QB, QBT, 0)
    a("s_nop 15\ns_nop 3")
    rowmax(SA, MA, False); rowmax(SB, MB, False)
    a(f"""
s_add_u32 s31, s31, 1280
s_sub_u32 s32, s32, 1
s_cmp_lg_u32 s32, 0
s_cbranch_scc1 LA_maxloop
LA_pro:
""")
    loadK(0, "s28", 0)
    loadK(1, "s28", 1280)
    a(f"""
v_mov_b32 {vr(T)}, 0x3f803f80
v_cmp_eq_u32 vcc, 20, v4
v_cndmask_b32 {vr(T+2)}, 0, {vr(T)}, s[14:15]
s_nop 0
v_cndmask_b32 {vr(T+1)}, 0, {vr(T)}, vcc
""")
    for j in range(8): a(f"v_mov_b32 {vr(VB+j)}, {vr(T+1)}")
    loadV(0, "s29", 0)
    loadK(2, "s28", 2560)
    for j in range(8): a(f"v_mov_b32 {vr(VB+8+j)}, {vr(T+1)}")
    loadV(1, "s29", 1280)
    a(f"s_add_u32 s31, s28, {3*1280}")
    loadK(3, "s31", 0)
    for j in range(8): a(f"v_mov_b32 {vr(VB+16+j)}, {vr(T+1)}")
    loadV(2, "s29", 2560)
    for j in range(8): a(f"v_mov_b32 {vr(VB+24+j)}, {vr(T+1)}")
    for i in range(NB):
        a(f"v_mov_b32 {vr(KB+8*i+5)}, {vr(T+2)}")
        a(f"v_mov_b32 {vr(KB+8*i+6)}, {vr(T+2)}")
        a(f"v_mov_b32 {vr(KB+8*i+7)}, 0")
    for j in range(16):
        a(f"v_mov_b32 {vr(OA+j)}, 0")
        a(f"v_mov_b32 {vr(OB+j)}, 0")
    for j in range(8): a(f"v_mov_b32 {vr(PB+j)}, 0")
    a(f"""
s_cmp_lg_u32 s30, 0
s_cbranch_scc1 LA_setm0
""")
    for q in (QAT, QBT):
        for j in (1, 2, 3): a(f"v_mov_b32 {vr(q+j)}, 0")
    a("s_waitcnt vmcnt(12)")
    qk(SA, QA, QAT, 0); qk(SB, QB, QBT, 0)
    a("s_nop 11")
    rowmax(SA, MA, True); rowmax(SB, MB, True)
    a("LA_setm0:\ns_waitcnt vmcnt(12)")
    for (M, QT) in ((MA, QAT), (MB, QBT)):
        t, u, w = T, T+1, T+2
        a(f"""
v_mov_b32 {vr(t)}, {vr(M)}
v_mov_b32 {vr(u)}, {vr(M)}
s_nop 1
v_permlane32_swap_b32 {vr(t)}, {vr(u)}
s_nop 1
v_max_f32 {vr(M)}, {vr(t)}, {vr(u)}
v_sub_f32 {vr(t)}, 0, {vr(M)}
v_and_b32 {vr(u)}, 0xffff0000, {vr(t)}
v_sub_f32 {vr(t)}, {vr(t)}, {vr(u)}
v_and_b32 {vr(w)}, 0xffff0000, {vr(t)}
v_sub_f32 {vr(t)}, {vr(t)}, {vr(w)}
v_lshrrev_b32 {vr(u)}, 16, {vr(u)}
v_or_b32 {vr(u)}, {vr(u)}, {vr(w)}
v_lshrrev_b32 {vr(t)}, 16, {vr(t)}
v_cndmask_b32 {vr(QT+1)}, 0, {vr(u)}, s[14:15]
v_cndmask_b32 {vr(QT+2)}, 0, {vr(t)}, s[14:15]
""")
        if M == MA:
            a("s_nop 1")
            qk(SA, QA, QAT, 0)
    a(f"""
s_add_u32 s31, s28, {4*1280}
s_add_u32 s33, s29, {3*1280}
s_mov_b32 s32, 8
""")
    if PROF: a("s_memrealtime s[42:43]")
    a(".p2align 6\nLA_loop:")
    def phase(Sx, Px, Sy, Py, Oy, Qy, Qyt, kb, vb, mid=None, post=None, pre=None):
        e = lambda j: a(f"v_exp_f32 {vr(Sx+j)}, {vr(Sx+j)}")
        c = lambda j: a(f"v_cvt_pk_bf16_f32 {vr(Px+j)}, {vr(Sx+2*j)}, {vr(Sx+2*j+1)}")
        if pre: pre()
        a(f"{MFMA} {vr(Sy,16)}, {vr(KB+8*kb,4)}, {vr(Qy,4)}, 0")
        e(0); e(1); e(2); e(3)
        a(f"{MFMA} {vr(Sy,16)}, {vr(KB+8*kb+4,4)}, {vr(Qyt,4)}, {vr(Sy,16)}")
        if mid: mid()
        c(0); c(1); e(4); e(5); e(6); e(7)
        a(f"{MFMA} {vr(Oy,16)}, {vr(VB+8*vb,4)}, {vr(Py,4)}, {vr(Oy,16)}")
        c(2); c(3); e(8); e(9); e(10); e(11)
        a(f"{MFMA} {vr(Oy,16)}, {vr(VB+8*vb+4,4)}, {vr(Py+4,4)}, {vr(Oy,16)}")
        if post: post()
        c(4); c(5); e(12); e(13); e(14); e(15); c(6); c(7)
    for u in range(NB):
        def mid(u=u):
            loadK(u, "s31"); a("s_add_u32 s31, s31, 1280")
        def post(u=u):
            loadV((u+3) % NB, "s33"); a("s_add_u32 s33, s33, 1280")
        phase(SA, PA, SB, PB, OB, QB, QBT, u, (u+3) % NB, mid, post)
        phase(SB, PB, SA, PA, OA, QA, QAT, (u+1) % NB, u, pre=lambda: a("s_waitcnt vmcnt(12)"))
    a(f"""
s_sub_u32 s32, s32, 1
s_cmp_lg_u32 s32, 0
s_cbranch_scc1 LA_loop
{MFMA} {vr(OB,16)}, {vr(VB+8*3,4)}, {vr(PB,4)}, {vr(OB,16)}
{MFMA} {vr(OB,16)}, {vr(VB+8*3+4,4)}, {vr(PB+4,4)}, {vr(OB,16)}
""")
    if PROF: a("s_memrealtime s[44:45]")
    t, t1 = PA, PA + 1
    a(f"""
v_lshlrev_b32 {vr(PA+2)}, 4, v1
s_lshl_b32 s34, s20, 12
v_add_u32 {vr(PA+3)}, s34, {vr(PA+2)}
s_xor_b32 s35, s20, 2
s_lshl_b32 s35, s35, 12
v_add_u32 {vr(PA+4)}, s35, {vr(PA+2)}
v_mov_b32 {vr(t1)}, 0x71800000
v_add_f32 {vr(t)}, abs({vr(OA)}), abs({vr(OA+1)})
""")
    for j in range(2, 12): a(f"v_add_f32 {vr(t)}, {vr(t)}, abs({vr(OA+j)})")
    for j in range(12): a(f"v_add_f32 {vr(t)}, {vr(t)}, abs({vr(OB+j)})")
    a(f"""
v_cmp_nlt_f32 vcc, {vr(t)}, {vr(t1)}
s_cmp_lg_u32 s30, 0
s_cbranch_scc1 LA_comb
s_nop 2
s_cmp_eq_u64 vcc, 0
s_cbranch_scc1 LA_comb
s_mov_b32 s30, 1
s_waitcnt vmcnt(0)
s_branch LA_restart
LA_comb:
s_cmp_eq_u32 s24, 0
s_cbranch_scc1 LA_c0
""")
    w_, r_ = PA + 3, PA + 4
    for j in range(3): a(f"ds_write_b128 {vr(w_)}, {vr(OA+4*j,4)} offset:{j*1024}")
    a(f"ds_write_b32 {vr(w_)}, {vr(MA)} offset:3072")
    for j in range(12): a(f"v_mov_b32 {vr(OA+j)}, {vr(OB+j)}")
    a(f"v_mov_b32 {vr(MA)}, {vr(MB)}")
    a("s_add_u32 s26, s26, 1\ns_branch LA_c1\nLA_c0:")
    for j in range(3): a(f"ds_write_b128 {vr(w_)}, {vr(OB+4*j,4)} offset:{j*1024}")
    a(f"ds_write_b32 {vr(w_)}, {vr(MB)} offset:3072")
    a("LA_c1:\ns_waitcnt lgkmcnt(0)\ns_barrier")
    X = SB
    for j in range(3): a(f"ds_read_b128 {vr(X+4*j,4)}, {vr(r_)} offset:{j*1024}")
    a(f"ds_read_b32 {vr(MB)}, {vr(r_)} offset:3072")
    g_, kbv, g8 = PB, PB + 1, PB + 2
    ad = [PB + 3, PB + 4, PB + 5]
    a(f"""
s_lshl_b32 s34, s26, 1
s_mul_i32 s34, s34, {68*1024}
s_add_u32 s34, s34, {AF}
v_bfe_u32 {vr(t)}, v1, 4, 1
v_mul_u32_u24 {vr(t)}, {68*1024}, {vr(t)}
v_and_b32 {vr(t1)}, 15, v1
v_lshl_add_u32 {vr(t)}, {vr(t1)}, 4, {vr(t)}
s_mul_i32 s35, s21, 5
v_add_u32 {vr(g_)}, s35, v5
""")
    for i in range(3):
        a(f"""
v_lshrrev_b32 {vr(kbv)}, 3, {vr(g_)}
v_lshl_add_u32 {vr(ad[i])}, {vr(kbv)}, 10, {vr(t)}
""")
        if KPERM == "v2":
            a(f"""
v_and_b32 {vr(g8)}, 3, {vr(g_)}
v_lshl_add_u32 {vr(ad[i])}, {vr(g8)}, 8, {vr(ad[i])}
v_bfe_u32 {vr(g8)}, {vr(g_)}, 2, 1
v_lshl_add_u32 {vr(ad[i])}, {vr(g8)}, 3, {vr(ad[i])}
""")
        else:
            a(f"""
v_bfe_u32 {vr(g8)}, {vr(g_)}, 2, 1
v_lshl_add_u32 {vr(ad[i])}, {vr(g8)}, 9, {vr(ad[i])}
v_and_b32 {vr(g8)}, 1, {vr(g_)}
v_lshl_add_u32 {vr(ad[i])}, {vr(g8)}, 8, {vr(ad[i])}
v_bfe_u32 {vr(g8)}, {vr(g_)}, 1, 1
v_lshl_add_u32 {vr(ad[i])}, {vr(g8)}, 3, {vr(ad[i])}
""")
        if i < 2: a(f"v_add_u32 {vr(g_)}, 2, {vr(g_)}")
    m, f1, f2, l, l2 = PA + 2, PA + 3, PA + 5, PA + 6, PA + 7
    a(f"""
s_waitcnt lgkmcnt(0)
v_max_f32 {vr(m)}, {vr(MA)}, {vr(MB)}
v_sub_f32 {vr(f1)}, {vr(MA)}, {vr(m)}
v_sub_f32 {vr(f2)}, {vr(MB)}, {vr(m)}
v_exp_f32 {vr(f1)}, {vr(f1)}
v_exp_f32 {vr(f2)}, {vr(f2)}
s_nop 0
v_mul_f32 {vr(l)}, {vr(OA+8)}, {vr(f1)}
v_fmac_f32 {vr(l)}, {vr(X+8)}, {vr(f2)}
v_mov_b32 {vr(l2)}, {vr(l)}
s_nop 1
v_permlane32_swap_b32 {vr(l)}, {vr(l2)}
s_nop 1
v_rcp_f32 {vr(l2)}, {vr(l2)}
s_nop 0
v_mul_f32 {vr(f1)}, {vr(f1)}, {vr(l2)}
v_mul_f32 {vr(f2)}, {vr(f2)}, {vr(l2)}
""")
    for i in range(3):
        for j in range(4 * i, 4 * i + 4):
            a(f"v_mul_f32 {vr(OA+j)}, {vr(OA+j)}, {vr(f1)}")
            a(f"v_fmac_f32 {vr(OA+j)}, {vr(X+j)}, {vr(f2)}")
        for j in range(2):
            a(f"v_cvt_pk_bf16_f32 {vr(OB+2*i+j)}, {vr(OA+4*i+2*j)}, {vr(OA+4*i+2*j+1)}")
        if i == 2: a("s_mov_b64 exec, s[14:15]")
        a(f"buffer_store_dwordx2 {vr(OB+2*i,2)}, {vr(ad[i])}, s[8:11], s34 offen")
    if PROF:
        a("s_mov_b64 exec, -1")
        prof_out(a, 0x3100000, 8, 20, [40, 42, 44, 46])
    a("s_endpgm")


Q3 = [8, 16, 24, 32]
S3 = [40, 56]
O3 = [72, 88, 104, 120]
K3B, V3B = 136, 152
LDS_M = 49152
def attn3(a):
    a(f"""
LA:
s_and_b32 s21, s3, 7
s_lshl_b32 s21, s21, 2
s_lshr_b32 s22, s3, 3
s_and_b32 s23, s22, 3
s_add_u32 s21, s21, s23              ; head
s_lshr_b32 s22, s3, 5                ; qblock
s_mul_i32 s25, s21, {64*1280}
s_lshl_b32 s26, s22, 3
s_lshl_b32 s27, s16, 2
s_add_u32 s26, s26, s27
s_mul_i32 s27, s26, 1280
s_add_u32 s27, s27, s25
s_mul_i32 s28, s20, {16*1280}
s_add_u32 s28, s28, s25
s_add_u32 s29, s28, {VF}
s_add_u32 s28, s28, {KF}
v_lshlrev_b32 v3, 4, v1
v_and_b32 v4, 31, v1
v_lshrrev_b32 v5, 5, v1
v_lshlrev_b32 v6, 3, v4
v_lshl_add_u32 v6, v5, 2, v6
v_add_u32 v6, 1024, v6
v_mul_u32_u24 v7, 320, v5
v_lshl_add_u32 v7, v4, 4, v7
s_mov_b32 s30, 0
s_mov_b32 s12, 0x000FFFFF
s_mov_b32 s13, 0x000FFFFF
s_mov_b32 s14, 0xFFFFFFFF
s_mov_b32 s15, 0
s_add_u32 s36, s27, 2560
s_mov_b32 s37, 0xbc000000
s_waitcnt lgkmcnt(0)
""")
    srd(a, 8, 4, 5, WS_BYTES)
    def loadK(kb, soff, imm=0):
        a(f"buffer_load_dwordx4 {vr(K3B+8*kb,4)}, v3, s[8:11], {soff} offen offset:{imm}")
        a(f"buffer_load_dword {vr(K3B+8*kb+4)}, v6, s[8:11], {soff} offen offset:{imm}")
    def loadV(vb, soff, imm=0):
        a("s_mov_b64 exec, s[12:13]")
        a(f"buffer_load_dwordx4 {vr(V3B+8*vb,4)}, v7, s[8:11], {soff} offen offset:{imm}")
        a(f"buffer_load_dwordx4 {vr(V3B+8*vb+4,4)}, v7, s[8:11], {soff} offen offset:{imm+640}")
        a("s_mov_b64 exec, -1")
    def qk(S, q, kb):
        a(f"{MFMA} {vr(S,16)}, {vr(K3B+8*kb,4)}, {vr(Q3[q],4)}, 0")
        a(f"{MFMA} {vr(S,16)}, {vr(K3B+8*kb+4,4)}, {vr(Q3[q]+4,4)}, {vr(S,16)}")
    def rowmax(S, M, init):
        if init:
            a(f"v_max3_f32 {vr(M)}, {vr(S)}, {vr(S+1)}, {vr(S+2)}")
            a(f"v_max_f32 {vr(M)}, {vr(M)}, {vr(S+3)}")
            st = 4
        else: st = 0
        for j in range(st, 16, 2):
            a(f"v_max3_f32 {vr(M)}, {vr(M)}, {vr(S+j)}, {vr(S+j+1)}")
    for q in range(4):
        so = "s27" if q < 2 else "s36"
        a(f"buffer_load_dwordx4 {vr(Q3[q],4)}, v3, s[8:11], {so} offen offset:{1280*(q&1)}")
        a(f"buffer_load_dword {vr(Q3[q]+4)}, v6, s[8:11], {so} offen offset:{1280*(q&1)}")
    MX = [S3[0] + 0, S3[0] + 1, S3[0] + 2, S3[0] + 3]
    T = S3[0] + 4
    a("s_branch LA_pro")
    a("LA_restart:")
    for q in range(4):
        for j in (5, 6): a(f"v_mov_b32 {vr(Q3[q]+j)}, 0")
        a(f"v_mov_b32 {vr(MX[q])}, 0xff800000")
    a("s_mov_b32 s31, s28\ns_mov_b32 s32, 16\nLA_maxloop:")
    loadK(0, "s31")
    a("s_waitcnt vmcnt(0)")
    for q in range(4): qk(O3[q], q, 0)
    a("s_nop 15\ns_nop 3")
    for q in range(4): rowmax(O3[q], MX[q], False)
    a(f"""
s_add_u32 s31, s31, 1280
s_sub_u32 s32, s32, 1
s_cmp_lg_u32 s32, 0
s_cbranch_scc1 LA_maxloop
LA_pro:
""")
    loadK(0, "s28", 0)
    a(f"""
v_mov_b32 {vr(T)}, 0x3f803f80
v_cmp_eq_u32 vcc, 20, v4
v_cndmask_b32 {vr(T+2)}, 0, {vr(T)}, s[14:15]
s_nop 0
v_cndmask_b32 {vr(T+1)}, 0, {vr(T)}, vcc
""")
    for j in range(8): a(f"v_mov_b32 {vr(V3B+j)}, {vr(T+1)}")
    loadV(0, "s29", 0)
    loadK(1, "s28", 1280)
    for j in range(8): a(f"v_mov_b32 {vr(V3B+8+j)}, {vr(T+1)}")
    for i in range(2):
        a(f"v_mov_b32 {vr(K3B+8*i+5)}, {vr(T+2)}\nv_mov_b32 {vr(K3B+8*i+6)}, {vr(T+2)}\nv_mov_b32 {vr(K3B+8*i+7)}, 0")
    for j in range(8): a(f"v_mov_b32 {vr(S3[1]+j)}, 0")
    a(f"""
v_lshlrev_b32 v0, 2, v1
s_lshl_b32 s34, s20, 10
s_add_u32 s34, s34, {LDS_M}
v_add_u32 v0, s34, v0
s_cmp_lg_u32 s30, 0
s_cbranch_scc1 LA_setm0
""")
    for q in range(4):
        for j in (5, 6, 7): a(f"v_mov_b32 {vr(Q3[q]+j)}, 0")
    a("s_waitcnt vmcnt(4)")
    for q in range(4): qk(O3[q], q, 0)
    a("s_nop 5")
    for q in range(4): rowmax(O3[q], MX[q], True)
    for q in range(4):
        M = MX[q]; QT = Q3[q] + 4
        a(f"""
v_fma_f32 {vr(M)}, abs({vr(M)}), s37, {vr(M)}
v_and_b32 {vr(M)}, 0xffff0000, {vr(M)}
ds_write_b32 v0, {vr(M)} offset:{256*q}
v_xor_b32 {vr(T+q)}, 0x80000000, {vr(M)}
v_cndmask_b32 {vr(QT+1)}, 0, {vr(T+q)}, s[14:15]
""")
    a("s_branch LA_go")
    a("LA_setm0:\ns_waitcnt vmcnt(4)")
    for q in range(4):
        M = MX[q]; QT = Q3[q] + 4
        t, u, w = T, T + 1, T + 2
        a(f"""
v_mov_b32 {vr(t)}, {vr(M)}
v_mov_b32 {vr(u)}, {vr(M)}
s_nop 1
v_permlane32_swap_b32 {vr(t)}, {vr(u)}
s_nop 1
v_max_f32 {vr(M)}, {vr(t)}, {vr(u)}
v_sub_f32 {vr(t)}, 0, {vr(M)}
ds_write_b32 v0, {vr(M)} offset:{256*q}
v_and_b32 {vr(u)}, 0xffff0000, {vr(t)}
v_sub_f32 {vr(t)}, {vr(t)}, {vr(u)}
v_and_b32 {vr(w)}, 0xffff0000, {vr(t)}
v_sub_f32 {vr(t)}, {vr(t)}, {vr(w)}
v_lshrrev_b32 {vr(u)}, 16, {vr(u)}
v_or_b32 {vr(u)}, {vr(u)}, {vr(w)}
v_lshrrev_b32 {vr(t)}, 16, {vr(t)}
v_cndmask_b32 {vr(QT+1)}, 0, {vr(u)}, s[14:15]
v_cndmask_b32 {vr(QT+2)}, 0, {vr(t)}, s[14:15]
""")
    a("LA_go:\ns_waitcnt lgkmcnt(0)")
    qk(S3[0], 0, 0)
    for q in range(4):
        a(f"{MFMA} {vr(O3[q],16)}, {vr(S3[1],4)}, {vr(S3[1],4)}, 0")
    a("s_nop 4")
    a(f"""
s_add_u32 s31, s28, {2*1280}
s_add_u32 s33, s29, {1*1280}
s_mov_b32 s32, 8
""")
    if PROF: a("s_memrealtime s[42:43]")
    a(".p2align 6\nLA_loop:")
    def phase(Sx, Sy, Op, vb, qn, kb, pre=None, aft2=None, aft4=None):
        e = lambda j: a(f"v_exp_f32 {vr(Sx+j)}, {vr(Sx+j)}")
        c = lambda j: a(f"v_cvt_pk_bf16_f32 {vr(Sx+j)}, {vr(Sx+2*j)}, {vr(Sx+2*j+1)}")
        if pre: pre()
        M1 = f"{MFMA} {vr(Op,16)}, {vr(V3B+8*vb,4)}, {vr(Sy,4)}, {vr(Op,16)}"
        M2 = f"{MFMA} {vr(Op,16)}, {vr(V3B+8*vb+4,4)}, {vr(Sy+4,4)}, {vr(Op,16)}"
        M3 = f"{MFMA} {vr(Sy,16)}, {vr(K3B+8*kb,4)}, {vr(Q3[qn],4)}, 0"
        M4 = f"{MFMA} {vr(Sy,16)}, {vr(K3B+8*kb+4,4)}, {vr(Q3[qn]+4,4)}, {vr(Sy,16)}"
        if 'al1' in VAR:
            a(M1); e(0); e(1); e(2); e(3)
            a(M2)
            if aft2: aft2()
            c(0); e(4); e(5); c(1)
            a(M3); e(6); e(7); c(2); e(8); e(9)
            a(M4)
            if aft4: aft4()
            c(3); c(4); e(10); e(11); e(12); e(13); c(5); e(14); e(15); c(6); c(7)
        elif 'al2' in VAR:
            a(M1); e(0); e(1)
            a(M2)
            if aft2: aft2()
            e(2); e(3); c(0); e(4); e(5)
            a(M3); c(1); e(6); e(7); c(2)
            a(M4)
            if aft4: aft4()
            e(8); e(9); c(3); e(10); e(11); c(4); e(12); e(13); c(5); e(14); e(15); c(6); c(7)
        else:
            a(M1); e(0); e(1); e(2)
            a(M2)
            if aft2: aft2()
            e(3); c(0); e(4); e(5)
            a(M3); c(1); e(6); e(7); e(8)
            a(M4)
            if aft4: aft4()
            c(2); c(3); e(9); e(10); e(11); c(4); e(12); e(13); c(5); e(14); e(15); c(6); c(7)
    w4 = lambda: a("s_waitcnt vmcnt(4)" + ("\ns_nop 0" if ('al1' in VAR or 'al2' in VAR) else ""))
    for u in range(2):
        def lv(u=u):
            loadV((u + 1) % 2, "s33"); a("s_add_u32 s33, s33, 1280")
        def lk(u=u):
            loadK(u, "s31"); a("s_add_u32 s31, s31, 1280")
        phase(S3[0], S3[1], O3[3], (u + 1) % 2, 1, u, aft2=lv)
        phase(S3[1], S3[0], O3[0], u, 2, u, pre=w4)
        phase(S3[0], S3[1], O3[1], u, 3, u, aft4=lk)
        phase(S3[1], S3[0], O3[2], u, 0, (u + 1) % 2, pre=w4)
    a(f"""
s_sub_u32 s32, s32, 1
s_cmp_lg_u32 s32, 0
s_cbranch_scc1 LA_loop
{MFMA} {vr(O3[3],16)}, {vr(V3B+8,4)}, {vr(S3[1],4)}, {vr(O3[3],16)}
{MFMA} {vr(O3[3],16)}, {vr(V3B+12,4)}, {vr(S3[1]+4,4)}, {vr(O3[3],16)}
""")
    if PROF: a("s_memrealtime s[44:45]")
    t, t1, t2, t3 = S3[1] + 8, S3[1] + 9, S3[1] + 10, S3[1] + 11
    a(f"""
s_mul_i32 s34, s20, 3072
v_add_u32 {vr(t)}, s34, v3
v_mov_b32 {vr(t1)}, 0x71800000
""")
    for q in range(4):
        for j in range(3): a(f"ds_write_b128 {vr(t)}, {vr(O3[q]+4*j,4)} offset:{q*12288 + j*1024}")
        acc_ = (t2, t3)
        for j in range(0, 12):
            r = acc_[j & 1]
            if q == 0 and j < 2: a(f"v_and_b32 {vr(r)}, 0x7fffffff, {vr(O3[q]+j)}")
            else: a(f"v_add_f32 {vr(r)}, {vr(r)}, abs({vr(O3[q]+j)})")
    a(f"""
v_add_f32 {vr(t2)}, {vr(t2)}, {vr(t3)}
v_cmp_nlt_f32 vcc, {vr(t2)}, {vr(t1)}
s_cmp_lg_u32 s30, 0
s_cbranch_scc1 LA_comb
s_nop 2
s_cmp_eq_u64 vcc, 0
s_cbranch_scc1 LA_comb
s_mov_b32 s30, 1
s_waitcnt vmcnt(0) lgkmcnt(0)
s_branch LA_restart
LA_comb:
""")
    a(f"""
s_mul_i32 s34, s20, 12288
v_add_u32 {vr(t)}, s34, v3
v_lshlrev_b32 {vr(t1)}, 2, v4
s_lshl_b32 s34, s20, 8
s_add_u32 s34, s34, {LDS_M}
v_add_u32 {vr(t1)}, s34, {vr(t1)}
s_add_u32 s26, s26, s20
s_waitcnt lgkmcnt(0)
s_barrier
""")
    Mr = [Q3[0] + w for w in range(4)]
    for w in range(4): a(f"ds_read_b32 v{Mr[w]}, {vr(t1)} offset:{1024*w}")
    for w in range(4):
        for j in range(3): a(f"ds_read_b128 {vr(O3[w]+4*j,4)}, {vr(t)} offset:{w*3072 + j*1024}")
    g_, kbv, g8, tb = Q3[1], Q3[1] + 1, Q3[1] + 2, Q3[1] + 3
    ad = [Q3[1] + 4, Q3[1] + 5, Q3[1] + 6]
    a(f"""
s_lshl_b32 s34, s26, 1
s_mul_i32 s34, s34, {68*1024}
s_add_u32 s34, s34, {AF}
v_bfe_u32 {vr(tb)}, v1, 4, 1
v_mul_u32_u24 {vr(tb)}, {68*1024}, {vr(tb)}
v_and_b32 {vr(g8)}, 15, v1
v_lshl_add_u32 {vr(tb)}, {vr(g8)}, 4, {vr(tb)}
s_mul_i32 s35, s21, 5
v_add_u32 {vr(g_)}, s35, v5
""")
    for i in range(3):
        a(f"""
v_lshrrev_b32 {vr(kbv)}, 3, {vr(g_)}
v_lshl_add_u32 {vr(ad[i])}, {vr(kbv)}, 10, {vr(tb)}
v_bfe_u32 {vr(g8)}, {vr(g_)}, 2, 1
v_lshl_add_u32 {vr(ad[i])}, {vr(g8)}, 9, {vr(ad[i])}
v_and_b32 {vr(g8)}, 1, {vr(g_)}
v_lshl_add_u32 {vr(ad[i])}, {vr(g8)}, 8, {vr(ad[i])}
v_bfe_u32 {vr(g8)}, {vr(g_)}, 1, 1
v_lshl_add_u32 {vr(ad[i])}, {vr(g8)}, 3, {vr(ad[i])}
""")
        if i < 2: a(f"v_add_u32 {vr(g_)}, 2, {vr(g_)}")
    m, l, l2 = Q3[2], Q3[2] + 1, Q3[2] + 2
    a(f"""
s_waitcnt lgkmcnt(12)
v_max3_f32 {vr(m)}, v{Mr[0]}, v{Mr[1]}, v{Mr[2]}
v_max_f32 {vr(m)}, {vr(m)}, v{Mr[3]}
""")
    for w in range(4): a(f"v_sub_f32 v{Mr[w]}, v{Mr[w]}, {vr(m)}")
    for w in range(4): a(f"v_exp_f32 v{Mr[w]}, v{Mr[w]}")
    a(f"s_waitcnt lgkmcnt(0)\nv_mul_f32 {vr(l)}, {vr(O3[0]+8)}, v{Mr[0]}")
    for w in range(1, 4): a(f"v_fmac_f32 {vr(l)}, {vr(O3[w]+8)}, v{Mr[w]}")
    a(f"""
v_mov_b32 {vr(l2)}, {vr(l)}
s_nop 1
v_permlane32_swap_b32 {vr(l)}, {vr(l2)}
s_nop 1
v_rcp_f32 {vr(l2)}, {vr(l2)}
s_nop 0
""")
    for w in range(4): a(f"v_mul_f32 v{Mr[w]}, v{Mr[w]}, {vr(l2)}")
    PKo = Q3[3]
    for i in range(3):
        for j in range(4 * i, 4 * i + 4):
            a(f"v_mul_f32 {vr(O3[0]+j)}, {vr(O3[0]+j)}, v{Mr[0]}")
            for w in range(1, 4): a(f"v_fmac_f32 {vr(O3[0]+j)}, {vr(O3[w]+j)}, v{Mr[w]}")
        for j in range(2):
            a(f"v_cvt_pk_bf16_f32 {vr(PKo+2*i+j)}, {vr(O3[0]+4*i+2*j)}, {vr(O3[0]+4*i+2*j+1)}")
        if i == 2: a("s_mov_b64 exec, s[14:15]")
        a(f"buffer_store_dwordx2 {vr(PKo+2*i,2)}, {vr(ad[i])}, s[8:11], s34 offen" + (" sc1" if FUSE else ""))
    if FUSE:
        a(f"""
s_mov_b64 exec, -1
s_waitcnt vmcnt(0)
s_barrier
s_cmp_lg_u32 s20, 0
s_cbranch_scc1 LA_fin
s_lshl_b32 s55, s22, 1
s_add_u32 s55, s55, s16
s_lshl_b32 s55, s55, 8
s_add_u32 s55, s55, {CNTW}
v_mov_b32 v10, 0
v_mov_b32 v11, 1
s_mov_b64 exec, 1
buffer_atomic_add v11, v10, s[8:11], s55 offen sc1
LA_fin:
""")
    if PROF:
        a("s_mov_b64 exec, -1")
        prof_out(a, 0x3100000, 8, 20, [40, 42, 44, 46])
    a("s_endpgm")

def splitk(a, L, nkb, kb_base, D, mode, ST, ACCV, prio=None, rounds=((0, 1, 2), (3, 4)), RESR=None, pre=None):
    a(f"""
{L}:
s_and_b32 s27, s3, 7
s_lshr_b32 s28, s3, 3
s_lshr_b32 s29, s27, 1
s_lshl_b32 s29, s29, 3
s_lshr_b32 s30, s28, 2
s_add_u32 s29, s29, s30               ; mb
s_and_b32 s30, s27, 1
s_lshl_b32 s30, s30, 2
s_and_b32 s31, s28, 3
s_add_u32 s30, s30, s31               ; nb
v_lshlrev_b32 v3, 4, v1
v_add_u32 v4, {1*69632}, v3
v_add_u32 v5, {2*69632}, v3
v_add_u32 v6, {3*69632}, v3
v_add_u32 v7, 4096, v3
s_mul_i32 s32, s20, {nkb}
s_add_u32 s32, s32, {kb_base}
s_mul_i32 s33, s29, {4*69632}
s_lshl_b32 s34, s32, 10
s_add_u32 s33, s33, s34
s_add_u32 s33, s33, {AF}
s_mul_i32 s34, s32, 40960
s_mul_i32 s35, s30, 5120
s_add_u32 s34, s34, s35
s_add_u32 s34, s34, {BF}
""")
    FUSED = mode == "fused"
    N1 = nkb
    if FUSED:
        nkb = N1 + 5
        a(f"""
s_mul_i32 s52, s20, 5
s_mul_i32 s53, s29, {4*69632}
s_lshl_b32 s54, s52, 10
s_add_u32 s53, s53, s54
s_add_u32 s53, s53, {AF}
s_mul_i32 s54, s52, 40960
s_add_u32 s54, s54, s35
s_add_u32 s54, s54, {BF}
""")
    def loadsB(kb):
        b = ST + 36 * (kb % D)
        if FUSED and kb == N1: a("s_mov_b32 s34, s54")
        for j in range(4):
            a(f"buffer_load_dwordx4 {vr(b+16+4*j,4)}, v3, s[8:11], s34 offen offset:{j*1024}")
        a(f"buffer_load_dwordx4 {vr(b+32,4)}, v7, s[8:11], s34 offen")
        a("s_add_u32 s34, s34, 40960")
    def loadsA(kb):
        b = ST + 36 * (kb % D)
        if FUSED and kb == N1: a("s_mov_b32 s33, s53")
        sc = " sc1" if (FUSED and kb >= N1) else ""
        for i in range(4):
            a(f"buffer_load_dwordx4 {vr(b+4*i,4)}, v{3+i}, s[8:11], s33 offen{sc}")
        a("s_add_u32 s33, s33, 1024")
    def loads(kb):
        loadsB(kb)
        if not (FUSED and kb in (N1, N1 + 1)): loadsA(kb)
    if pre: pre()
    for kb in range(min(D, nkb)): loads(kb)
    a(f"""
s_lshl_b32 s36, s29, 6
s_lshl_b32 s37, s20, 4
s_add_u32 s36, s36, s37
v_and_b32 v8, 15, v1
v_add_u32 v8, s36, v8
v_mul_u32_u24 v8, 1280, v8
v_lshrrev_b32 v9, 4, v1
v_lshl_add_u32 v8, v9, 3, v8
s_mul_i32 s36, s30, 160
s_lshl_b32 s38, s29, 3
s_add_u32 s38, s38, s30
s_mul_i32 s38, s38, 20480
s_mul_i32 s39, s20, 5120
s_add_u32 s38, s38, s39
s_add_u32 s38, s38, {YY}
""")
    def resloads(RES):
        if mode == "final":
            for j in range(4): a(f"buffer_load_dwordx4 {vr(RES+4*j,4)}, v3, s[8:11], s38 offen offset:{j*1024}")
            a(f"buffer_load_dwordx4 {vr(RES+16,4)}, v7, s[8:11], s38 offen")
        else:
            for j in range(5): a(f"buffer_load_dwordx2 {vr(RES+2*j,2)}, v8, s[12:15], s36 offen offset:{32*j}")
    if RESR is not None:
        assert D >= nkb
        resloads(RESR)
    for kb in range(nkb):
        b = ST + 36 * (kb % D)
        rem = min(D - 1, nkb - 1 - kb)
        if FUSED and kb == N1 - 1: a("s_waitcnt vmcnt(5)")
        elif FUSED and kb == N1:
            a(f"""
s_cmp_lg_u32 s20, 0
s_cbranch_scc1 {L}_pw
s_lshr_b32 s55, s29, 1
s_lshl_b32 s55, s55, 8
s_add_u32 s55, s55, {CNTW}
v_mov_b32 v10, 0
s_mov_b64 exec, 1
{L}_pl:
buffer_load_dword v11, v10, s[8:11], s55 offen sc1
s_waitcnt vmcnt(0)
v_readfirstlane_b32 s56, v11
s_nop 3
s_cmp_ge_u32 s56, 32
s_cbranch_scc1 {L}_pd
s_sleep {SLEEP}
s_branch {L}_pl
{L}_pd:
s_mov_b64 exec, -1
{L}_pw:
s_barrier
""")
            if PROF: a("s_memrealtime s[42:43]")
            loadsA(N1); loadsA(N1 + 1)
            a("s_waitcnt vmcnt(4)")
        else: a(f"s_waitcnt vmcnt({9*rem + (5 if RESR is not None else 0)})")
        if prio and not FUSED: a(f"s_setprio {prio[1]}")
        for i in range(4):
            for j in range(5):
                t = 5 * i + j
                c = "0" if kb == 0 else ACCV(t)
                if not (mode == "down" and 'nomf' in VAR and kb > 0): a(f"{MF16} {ACCV(t)}, {vr(b+16+4*j,4)}, {vr(b+4*i,4)}, {c}")
        if prio and kb + D < nkb and not FUSED: a(f"s_setprio {prio[0]}")
        if kb + D < nkb and not (mode == "down" and 'nold' in VAR): loads(kb + D)
    if PROF: a("s_memrealtime s[44:45]")
    RES = ST if RESR is None else RESR
    if RESR is None: resloads(RES)
    else: a("s_nop 4")
    OWN = ST + 20
    R = ST + 40
    a("s_nop 3")
    a(f"""
s_mul_i32 s37, s20, {3*1024*len(rounds[0])}
v_add_u32 v9, s37, v3
""")
    SL = 1024 * len(rounds[0]); NJ = len(rounds[0])
    for rnd, js in enumerate(rounds):
        for w in range(4):
            if w < 3:
                a(f"s_cmp_eq_u32 s20, {w}\ns_cbranch_scc0 {L}_r{rnd}n{w}")
            for i in range(4):
                if i == w: continue
                slot = w if w < i else w - 1
                for jj, j in enumerate(js):
                    a(f"ds_write_b128 v3, {ACCV(5*i+j)} offset:{(i*3+slot)*SL + jj*1024}")
            for j in js:
                src = ACCV(5 * w + j)
                base = int(src[2:src.index(":")])
                for r in range(4):
                    if src[0] == "a": a(f"v_accvgpr_read_b32 v{OWN+4*j+r}, a{base+r}")
                    else: a(f"v_mov_b32 v{OWN+4*j+r}, v{base+r}")
            if w < 3:
                a(f"s_branch {L}_r{rnd}d\n{L}_r{rnd}n{w}:")
        a(f"{L}_r{rnd}d:\ns_waitcnt lgkmcnt(0)\ns_barrier")
        for s in range(3):
            for jj, j in enumerate(js):
                a(f"ds_read_b128 {vr(R+4*jj+4*NJ*(s%2),4)}, v9 offset:{s*SL+jj*1024}")
            if s >= 1:
                a(f"s_waitcnt lgkmcnt({len(js)})")
                for jj, j in enumerate(js):
                    for r in range(4): a(f"v_add_f32 v{OWN+4*j+r}, v{OWN+4*j+r}, v{R+4*jj+4*NJ*((s-1)%2)+r}")
        a("s_waitcnt lgkmcnt(0)")
        for jj, j in enumerate(js):
            for r in range(4): a(f"v_add_f32 v{OWN+4*j+r}, v{OWN+4*j+r}, v{R+4*jj+r}")
        if rnd + 1 < len(rounds): a("s_barrier")
    a("s_waitcnt vmcnt(0)")
    if mode == "final":
        for q in range(20): a(f"v_add_f32 v{OWN+q}, v{OWN+q}, v{RES+q}")
    else:
        for j in range(5):
            for hh in range(2):
                a(f"v_lshlrev_b32 v{R}, 16, v{RES+2*j+hh}")
                a(f"v_and_b32 v{R+1}, 0xffff0000, v{RES+2*j+hh}")
                a(f"v_add_f32 v{OWN+4*j+2*hh}, v{OWN+4*j+2*hh}, v{R}")
                a(f"v_add_f32 v{OWN+4*j+2*hh+1}, v{OWN+4*j+2*hh+1}, v{R+1}")
    if mode == "down":
        for j in range(4): a(f"buffer_store_dwordx4 {vr(OWN+4*j,4)}, v3, s[8:11], s38 offen offset:{j*1024} sc1")
        a(f"buffer_store_dwordx4 {vr(OWN+16,4)}, v7, s[8:11], s38 offen sc1")
    else:
        for j in range(5):
            a(f"v_cvt_pk_bf16_f32 v{R+2*j}, v{OWN+4*j}, v{OWN+4*j+1}")
            a(f"v_cvt_pk_bf16_f32 v{R+2*j+1}, v{OWN+4*j+2}, v{OWN+4*j+3}")
            a(f"buffer_store_dwordx2 {vr(R+2*j,2)}, v8, s[16:19], s36 offen offset:{32*j}")

def k2_kernel(a, name, ffn=True, prio=(0, 2), aprio=1):
    kernel_header(a, name)
    a(f"""
s_cmp_ge_u32 s2, 768
s_cbranch_scc1 LK2_end
""")
    if PROF: a("s_memrealtime s[40:41]")
    a(f"""
s_load_dwordx2 s[4:5], s[0:1], 72
s_load_dwordx2 s[6:7], s[0:1], 0
{"s_load_dwordx2 s[58:59], s[0:1], 56" if FUSE else ""}
v_and_b32 v1, 63, v0
v_lshrrev_b32 v2, 6, v0
s_and_b32 s3, s2, 255
v_readfirstlane_b32 s20, v2
s_lshr_b32 s16, s2, 8                 ; type
s_cmp_eq_u32 s16, 0
s_cbranch_scc1 LK2_ffn
s_sub_u32 s16, s16, 1
s_setprio {aprio}
""")
    if 'attn2' in VAR:
        a("s_waitcnt lgkmcnt(0)")
        srd(a, 8, 4, 5, WS_BYTES)
        attn(a)
    else:
        attn3(a)
    a("LK2_ffn:")
    if ffn:
        a("s_waitcnt lgkmcnt(0)")
        srd(a, 8, 4, 5, WS_BYTES)
        srd(a, 12, 6, 7, 2048 * 640 * 2)
        if PROF: a("s_memrealtime s[42:43]")
        if FUSE:
            srd(a, 16, 58, 59, 2048 * 640 * 2)
        splitk(a, "LD", 12, 20, 2, "fused" if FUSE else "down", 12, lambda t: f"v[{88+4*t}:{91+4*t}]", prio=prio)
        if not FUSE and 'nopf3' not in VAR:
            a(f"""
s_getpc_b64 s[56:57]
LPC3_ref:
s_add_u32 s48, s56, k3_kernel-LPC3_ref
s_addc_u32 s49, s57, 0
s_mov_b32 s50, LCODE_END-k3_kernel
s_mov_b32 s51, 0x00020000
s_lshl_b32 s58, s20, 10
buffer_load_dwordx4 v[12:15], v3, s[48:51], s58 offen
""")
        if PROF: prof_out(a, 0x3100000, 8, 20, [40, 42, 44, 46])
    a("LK2_end:\ns_endpgm")

K3_LDS = 61440
def k3_kernel(a, name, mode="final"):
    kernel_header(a, name)
    a(f"""
s_cmp_ge_u32 s2, 256
s_cbranch_scc1 LK3_end
""")
    if PROF: a("s_memrealtime s[40:41]\ns_memrealtime s[42:43]")
    a(f"""
s_load_dwordx2 s[4:5], s[0:1], 72
s_load_dwordx2 s[6:7], s[0:1], 0
s_load_dwordx2 s[22:23], s[0:1], 56
v_and_b32 v1, 63, v0
v_lshrrev_b32 v2, 6, v0
s_mov_b32 s3, s2
v_readfirstlane_b32 s20, v2
""")
    def pre():
        a("s_waitcnt lgkmcnt(0)")
        srd(a, 8, 4, 5, WS_BYTES)
        srd(a, 12, 6, 7, 2048 * 640 * 2)
        srd(a, 16, 22, 23, 2048 * 640 * 2)
    if mode == "final": splitk(a, "LF", 5, 0, 5, "final", 12, lambda t: f"a[{4*t}:{4*t+3}]", rounds=((0, 1, 2, 3, 4),), RESR=192, pre=pre)
    else: splitk(a, "LF", 17, 0, 6, "full", 12, lambda t: f"a[{4*t}:{4*t+3}]", pre=pre)
    if PROF: prof_out(a, 0x3200000, 8, 20, [40, 42, 44, 46])
    if PROF and DBGOUT:
        a(f"""
s_mov_b64 exec, -1
s_or_b32 s50, s2, s20
s_cmp_lg_u32 s50, 0
s_cbranch_scc1 LK3_end
s_load_dwordx2 s[52:53], s[0:1], 64
s_waitcnt lgkmcnt(0)
s_mov_b32 s54, 256
s_mov_b32 s55, 0x00020000
v_lshlrev_b32 v20, 2, v1
s_mov_b32 s56, {0x3000000 + 200*8*32}
buffer_load_dword v21, v20, s[8:11], s56 offen
s_mov_b32 s56, {0x3000000 - 20}
buffer_load_dword v22, v20, s[8:11], s56 offen
s_mov_b32 s56, {0x3100000 + 600*4*16 - 32}
buffer_load_dword v23, v20, s[8:11], s56 offen
s_waitcnt vmcnt(0)
v_cmp_gt_u32 vcc, 6, v1
s_nop 1
v_cndmask_b32 v22, v22, v21, vcc
v_cmp_gt_u32 vcc, 8, v1
s_nop 1
v_cndmask_b32 v23, v23, v22, vcc
v_mov_b32 v24, s40
v_cmp_eq_u32 vcc, 12, v1
s_nop 1
v_cndmask_b32 v23, v23, v24, vcc
v_mov_b32 v24, s44
v_cmp_eq_u32 vcc, 13, v1
s_nop 1
v_cndmask_b32 v23, v23, v24, vcc
v_mov_b32 v24, s46
v_cmp_eq_u32 vcc, 14, v1
s_nop 1
v_cndmask_b32 v23, v23, v24, vcc
s_nop 1
v_readfirstlane_b32 s57, v23
s_nop 3
v_subrev_u32 v23, s57, v23
s_mov_b64 exec, 0xffff
buffer_store_dword v23, v20, s[52:55], 0 offen
""")
    a("LK3_end:\ns_endpgm")
K3_ARCH = 12 + 36 * 6
```

```python
from asmlib import *
MFMA = "v_mfma_f32_32x32x16_bf16"
MF16 = "v_mfma_f32_16x16x32_bf16"
A_STAGE = 32768
B_RING, B_SLOT = 98304, 12576
CS_OFF = 161184
K1_LDS = 161952
ACC = 64
CSA = 160
FR = 168
FX = 216
K1_VGPR = 256
CP = 228
CNT_OFF = 160000
QSCALE = (20 ** -0.5) * 1.4426950408889634
PROF = False
VAR = ""
def stamp(a, k):
    if PROF:
        a(f"s_memrealtime s[{82+2*k}:{83+2*k}]")
        if k in (1, 2): a(f"s_memtime s[{92+2*k}:{93+2*k}]")
def stamp_out(a, n):
    if PROF:
        a("s_waitcnt vmcnt(0) lgkmcnt(0)")
        a(f"s_memrealtime s[{82+2*n}:{83+2*n}]")
        a("s_waitcnt lgkmcnt(0)")
        for k in range(8):
            a(f"v_mov_b32 v{8+k}, s{82+2*min(k, n)}" if k < 6 else f"v_mov_b32 v{8+k}, s{94+2*(k-6)}")
        a(f"""
s_lshl_b32 s34, s2, 3
s_add_u32 s34, s34, s24
s_lshl_b32 s34, s34, 5
s_add_u32 s34, s34, 0x3000000
v_mov_b32 v16, 0
s_mov_b64 exec, 1
buffer_store_dwordx4 v[8:11], v16, s[16:19], s34 offen
buffer_store_dwordx4 v[12:15], v16, s[16:19], s34 offen offset:16
""")

def gemm(a0, kind):
    def a(t):
        if 'qsc1' in VAR and kind != "GU":
            t = "\n".join((l + " sc1" if ("buffer_store" in l and "v16, s[" not in l) else l) for l in t.split("\n"))
        a0(t)
    L = f"LG{kind}"
    GU = kind == "GU"
    RS = 192 if GU else 320
    GS = 8 * RS + 32
    UP = 4 * GS + 32
    CPR = 12 if GU else 20
    CW = 96 if GU else 80
    ldw = 3072 if GU else 3840
    EVEN = (not GU) and ('noeven' not in VAR)
    VMB = 9 if EVEN else 8
    NA = 2 if GU else 1
    NBF = 3 if GU else 5
    FA = [[FR + 24 * b + 4 * i for i in range(NA)] for b in range(2)]
    FB = [[FR + 24 * b + 4 * NA + 4 * j for j in range(NBF)] for b in range(2)]
    acc = lambda i, j: ACC + 16 * (NBF * i + j)
    a(f"{L}:")
    if ('noqkv' in VAR and not GU) or ('nogu' in VAR and GU):
        a("s_endpgm")
        return
    if GU:
        a(f"""
s_mul_i32 s58, s28, 192
s_and_b32 s57, s24, 3
s_mul_i32 s59, s57, {GS}
s_mul_i32 s60, s81, {UP}
s_add_u32 s59, s59, s60
s_mul_i32 s60, s57, {CW}
s_lshl_b32 s56, s80, 13
""")
    else:
        a(f"""
s_mul_i32 s58, s28, 320
s_lshr_b32 s59, s24, 1
s_mul_i32 s59, s59, {GS}
s_and_b32 s57, s24, 1
s_mul_i32 s57, s57, 1280
s_add_u32 s59, s59, s57
s_mul_i32 s60, s24, {CW}
s_lshl_b32 s56, s24, 12               ; 32*w*128
""")
    magic, sh = (43691, 19) if CPR == 12 else (52429, 20)
    a(f"""
s_add_u32 s59, s59, {B_RING}
s_mov_b32 s62, {ldw}
v_add_u32 v6, s56, v6
v_add_u32 v7, s56, v7
v_add_u32 v8, s56, v8
v_add_u32 v9, s56, v9
""")
    for (vd, add) in ((14, 0), (15, 64)):
        a(f"""
v_add_u32 v24, s60, v1
v_add_u32 v24, {add}, v24
v_mul_u32_u24 v25, {magic}, v24
v_lshrrev_b32 v25, {sh}, v25
v_mul_u32_u24 v26, {CPR}, v25
v_sub_u32 v26, v24, v26
v_mul_lo_u32 v25, v25, s62
v_lshl_add_u32 v25, v26, 4, v25
v_add_u32 v{vd}, s58, v25
""")
        if add: a(f"v_subrev_u32 v{vd}, 1024, v{vd}")
    a(f"""
s_mov_b32 s64, {hex((1 << (CW - 64)) - 1)}
s_mov_b32 s65, 0
s_mov_b32 s30, 0
s_mov_b32 s31, 0
s_mov_b32 s32, 0
s_mov_b32 s33, 0
s_mov_b32 s66, 0
s_mov_b32 s67, 0
""")
    def dmaA(q):
        a(f"""
s_add_u32 m0, s63, s32
s_nop 0
buffer_load_dwordx4 v{10+q}, s[8:11], s30 offen offset:{1024*q} lds
""")
        if q == 3:
            a(f"""
s_add_u32 s32, s32, {A_STAGE}
s_cmp_eq_u32 s32, {3*A_STAGE}
s_cselect_b32 s32, 0, s32
s_add_u32 s30, s30, 128
""")
    def dmaB(q):
        if q == 0:
            a(f"""
s_add_u32 m0, s59, s33
s_nop 0
buffer_load_dwordx4 v14, s[12:15], s31 offen lds
""")
        else:
            a(f"""
s_add_u32 m0, s59, s33
s_mov_b64 exec, s[64:65]
buffer_load_dwordx4 v15, s[12:15], s31 offen offset:1024 lds
s_mov_b64 exec, -1
s_add_u32 s33, s33, {B_SLOT}
s_cmp_eq_u32 s33, {5*B_SLOT}
s_cselect_b32 s33, 0, s33
s_add_u32 s31, s31, {32*ldw}
""")
    JO = 32 if GU else 64
    def reads(nb, ja, ks):
        r = [f"ds_read_b128 {vr(FA[nb][i],4)}, v{6+ja} offset:{4096*i}" for i in range(NA)]
        for j in range(NBF):
            for rr in range(2):
                r.append(f"ds_read_b64_tr_b16 {vr(FB[nb][j]+2*rr,2)}, v16 offset:{2*ks*GS + 4*rr*RS + j*JO}")
        return r
    def xsetup():
        a(f"""
s_add_u32 s69, s67, {B_SLOT}
s_cmp_eq_u32 s69, {5*B_SLOT}
s_cselect_b32 s69, 0, s69
s_cmp_eq_u32 s72, 0
s_cselect_b32 s71, s67, s69
v_add_u32 v19, s67, v17
v_add_u32 v2, s69, v17
v_add_u32 v3, s71, v18
""")
    def xreads():
        r = []
        for e, v in enumerate((19, 2, 3)):
            for rr in range(2):
                r.append(f"ds_read_b64_tr_b16 {vr(FX+4*e+2*rr,2)}, v{v} offset:{4*rr*RS}")
        return r
    def advA_pre():
        a(f"""
s_add_u32 s69, s66, {A_STAGE}
s_cmp_eq_u32 s69, {3*A_STAGE}
s_cselect_b32 s69, 0, s69
s_sub_u32 s68, s69, s66
s_mov_b32 s66, s69
""")
    def advB():
        a(f"""
s_add_u32 s69, s67, {B_SLOT}
s_cmp_eq_u32 s69, {5*B_SLOT}
s_cselect_b32 s69, 0, s69
s_sub_u32 s70, s69, s67
s_mov_b32 s67, s69
v_add_u32 v16, s70, v16
""")
    def mfma(b, i, j):
        d = vr(acc(i, j), 16)
        if kind == "V": return f"{MFMA} {d}, {vr(FA[b][i],4)}, {vr(FB[b][j],4)}, {d}"
        return f"{MFMA} {d}, {vr(FB[b][j],4)}, {vr(FA[b][i],4)}, {d}"
    a("s_waitcnt lgkmcnt(0)")
    if 'stx' in VAR: stamp(a, 3)
    srd(a, 8, 36, 37, 2048 * 640 * 2)
    if GU:
        a(f"""
s_cmp_ge_u32 s24, 4
s_cselect_b32 s12, s46, s44
s_cselect_b32 s13, s47, s45
s_mov_b32 s14, {640*1536*2}
s_mov_b32 s15, 0x00020000
""")
    else:
        srd(a, 12, 38, 39, 640 * 1920 * 2)
    for _ in range(2):
        if 'pp' in VAR: a(f"s_setprio {3 if _ == 0 else 0}")
        if EVEN:
            for q in range(4): dmaB(q & 1); dmaA(q)
        else:
            dmaB(0); dmaB(1)
            for q in range(4): dmaA(q)
            dmaB(0); dmaB(1)
    NPF = 0
    if 'ipf' in VAR:
        a(f"""
s_sub_u32 s69, s2, 32
s_lshl_b32 s69, s69, 3
s_add_u32 s69, s69, s24
s_lshl_b32 s69, s69, 10
s_add_u32 s70, s69, {1792*1024}
v_lshlrev_b32 v24, 4, v1
s_mov_b32 s19, 0x00020000
""")
        for (lo, size, n) in ((36, 2048*640*2, 2), (38, 640*1920*2, 2), (44, 640*1536*2, 2), (46, 640*1536*2, 2), (48, 640*1536*2, 2), (40, 640*640*2, 1)):
            if 'ipfw' in VAR and lo in (36,): continue
            a(f"s_mov_b32 s16, s{lo}\ns_mov_b32 s17, s{lo+1}\ns_mov_b32 s18, {size}")
            for i in range(n):
                a(f"buffer_load_dwordx4 v[248:251], v24, s[16:19], s{69+i} offen")
                NPF += 1
    if 'stx' in VAR: stamp(a, 4)
    srd(a, 16, 54, 55, WS_BYTES)
    srd(a, 20, 52, 53, 256)
    NH = UP if GU else 32
    a(f"""
v_bfe_u32 v26, v1, 2, 2
v_mul_u32_u24 v26, {RS}, v26
v_and_b32 v27, 3, v1
v_lshl_add_u32 v26, v27, 3, v26       ; (i>>2)*RS + 8*(i&3)
v_lshrrev_b32 v24, 5, v1
v_mul_u32_u24 v24, {GS}, v24
v_bfe_u32 v27, v1, 4, 1
v_mul_u32_u24 v27, {NH}, v27
v_add3_u32 v16, v24, v26, v27
""")
    if GU: a(f"s_mul_i32 s61, s81, 96\ns_add_u32 s61, s61, {B_RING}")
    else: a(f"s_mov_b32 s61, {B_RING}")
    a("v_add_u32 v16, s61, v16")
    for j in range(ACC, ACC + 16 * NA * NBF): a(f"v_mov_b32 v{j}, 0")
    a(f"s_waitcnt vmcnt({8+NPF}) lgkmcnt(0)\ns_barrier")
    stamp(a, 1)
    for r in reads(0, 0, 0): a(r)
    advA_pre()
    a("v_add_u32 v6, s68, v6")
    def step(jj, dma=True, bar=True, vm=None, nxt=True, extra=None, xm_early=False, vm3=6):
        if vm is None: vm = VMB
        b = jj & 1; nb = b ^ 1
        if jj % 2 == 0 and bar: a(f"s_waitcnt vmcnt({vm})\ns_barrier")
        if extra: extra()
        if EVEN and jj == 3 and nxt: a(f"s_waitcnt vmcnt({vm3}) lgkmcnt(0)")
        else: a("s_waitcnt lgkmcnt(0)")
        rd = []
        if nxt:
            if jj % 2 == 1: advB()
            rd = reads(nb, (jj + 1) % 4, (jj + 1) % 2)
        dm = []
        if dma:
            dm = {0: [lambda: dmaB(0), lambda: dmaB(1), lambda: dmaA(0)], 1: [lambda: dmaA(1), lambda: dmaA(2), lambda: dmaA(3)],
                  2: [lambda: dmaB(0)], 3: [lambda: dmaB(1)]}[jj]
            if EVEN: dm = [lambda: dmaB(jj & 1), lambda: dmaA(jj)]
        ms = [mfma(b, i, j) for j in range(NBF) for i in range(NA)]
        xm = [f"{MF16} {vr(CSA,4)}, {vr(FX,4)}, v[20:23], {vr(CSA,4)}",
              f"{MF16} {vr(CSA+4,4)}, {vr(FX+8,4)}, v[20:23], {vr(CSA+4,4)}",
              f"{MF16} {vr(CSA,4)}, {vr(FX+4,4)}, v[20:23], {vr(CSA,4)}"]
        n = len(ms)
        nr = max(1, n - 2)
        pr = pd = 0
        for k, m in enumerate(ms):
            a(m)
            tr = min(len(rd), -(-len(rd) * (k + 1) // nr))
            while pr < tr:
                a(rd[pr]); pr += 1
                if pr == NA and nxt:
                    ja = (jj + 1) % 4
                    if ja == 0: advA_pre()
                    a(f"v_add_u32 v{6+ja}, s68, v{6+ja}")
            td = min(len(dm), (len(dm) * (k + 2)) // n)
            while pd < td: dm[pd](); pd += 1
    def poll_issue():
        a("buffer_load_dword v24, v5, s[20:23], 0 offen sc1")
    def poll_check(final=False):
        sfx = "F" if final else ""
        if final:
            a(f"""
s_cmp_lg_u32 s78, 0
s_cbranch_scc1 {L}_have
{L}_poll:
buffer_load_dword v24, v5, s[20:23], 0 offen sc1
s_waitcnt vmcnt(0)
v_cmp_eq_u32 vcc, 0, v24
s_nop 4
s_cmp_eq_u64 vcc, 0
s_cbranch_scc1 {L}_pollok
s_sleep 1
s_branch {L}_poll
{L}_pollok:
""")
        else:
            a(f"""
s_waitcnt vmcnt(0)
v_cmp_eq_u32 vcc, 0, v24
s_mov_b32 s78, 0
s_nop 3
s_cmp_eq_u64 vcc, 0
s_cbranch_scc0 {L}_notyet
s_mov_b32 s78, 1
""")
        if 'stx' not in VAR: stamp(a, 3)
        if GU: a("s_lshl_b32 s76, s27, 8\ns_lshl_b32 s77, s80, 6\ns_add_u32 s76, s76, s77")
        else: a("s_mov_b32 s76, s29")
        a(f"""
v_and_b32 v25, 31, v1
v_add_u32 v26, s76, v25
v_lshlrev_b32 v26, 2, v26
s_mov_b32 s69, {MBO}
s_mov_b32 s70, {RIO}
""")
        for i in range(NA):
            a(f"buffer_load_dword v{28+i}, v26, s[16:19], s69 offen offset:{128*i} sc1")
        if kind == "V":
            a(f"""
v_lshrrev_b32 v27, 5, v1
v_lshlrev_b32 v27, 2, v27
v_add_u32 v27, s76, v27
v_lshlrev_b32 v27, 2, v27
""")
            for i in range(4):
                a(f"buffer_load_dwordx4 {vr(40+4*i,4)}, v27, s[16:19], s70 offen offset:{32*i} sc1")
        else:
            for i in range(NA):
                a(f"buffer_load_dword v{30+i}, v26, s[16:19], s70 offen offset:{128*i} sc1")
        if GU:
            a(f"""
v_and_b32 v27, 15, v1
v_bfe_u32 v32, v1, 4, 1
v_mul_u32_u24 v32, 1536, v32
v_add_u32 v27, v27, v32
v_lshlrev_b32 v27, 2, v27
s_mul_i32 s69, s28, {96*4}
s_mul_i32 s70, s81, {48*4}
s_add_u32 s69, s69, s70
s_add_u32 s69, s69, {CSO + 1920*4}
""")
            for kq in range(4):
                for j in range(3): a(f"buffer_load_dword v{CP+5*kq+j}, v27, s[16:19], s69 offen offset:{64*j} sc1")
                if kq < 3: a(f"s_add_u32 s69, s69, {4992*4}")
        else:
            a(f"""
v_lshlrev_b32 v32, 2, v25
s_mul_i32 s69, s28, {160*4}
s_add_u32 s69, s69, {CSO}
""")
            for kq in range(4):
                for j in range(5): a(f"buffer_load_dword v{CP+5*kq+j}, v32, s[16:19], s69 offen offset:{128*j} sc1")
                if kq < 3: a(f"s_add_u32 s69, s69, {4992*4}")
        a(f"{L}_have:" if final else f"{L}_notyet:")
    def cs_publish():
        a(f"""
v_and_b32 v27, 15, v1
v_cmp_eq_u32 vcc, 0, v27
v_and_b32 v27, 48, v1
s_lshl_b32 s70, s24, 6
s_add_u32 s70, s70, {CS_OFF}
v_add_u32 v32, s70, v27
s_lshl_b32 s70, s73, 6
s_add_u32 s70, s70, {CS_OFF + 512}
v_add_u32 v33, s70, v27
s_and_saveexec_b64 s[74:75], vcc
ds_write_b128 v32, {vr(CSA,4)}
""")
        if not GU: a(f"s_cmp_ge_u32 s24, 4\ns_cbranch_scc1 {L}_nox")
        for r in range(4): a(f"ds_add_f32 v33, v{CSA+4+r} offset:{4*r}")
        if not GU: a(f"{L}_nox:")
        a("s_mov_b64 exec, -1\ns_waitcnt lgkmcnt(0)\ns_barrier")
        if GU:
            a(f"""
v_and_b32 v27, 15, v1
v_bfe_u32 v32, v1, 4, 1
v_mul_u32_u24 v32, 96, v32
v_add_u32 v27, v27, v32
s_mul_i32 s70, s81, 48
v_add_u32 v27, s70, v27
v_lshlrev_b32 v27, 2, v27
v_add_u32 v27, {CS_OFF}, v27
""")
            for j in range(3): a(f"ds_read_b32 v{34+j}, v27 offset:{64*j}")
        else:
            a(f"v_lshlrev_b32 v27, 2, v25\nv_add_u32 v27, {CS_OFF}, v27")
            for j in range(5): a(f"ds_read_b32 v{34+j}, v27 offset:{128*j}")
    if 'roll' not in VAR:
        a("s_mov_b32 s34, 8")
        a(f"s_branch {L}_in")
        a(".p2align 6")
        a(f"{L}_loop:")
        a(f"s_waitcnt vmcnt({VMB})\ns_barrier")
        a(f"{L}_in:")
        step(0, bar=False); step(1); step(2); step(3)
        a(f"""
s_sub_u32 s34, s34, 1
s_cmp_lg_u32 s34, 0
s_cbranch_scc1 {L}_loop
""")
        stamp(a, 2)
        step(0, dma=False); step(1, dma=False); step(2, dma=False, vm=5 if EVEN else 2); step(3, dma=False, vm3=0)
        step(0, dma=False, vm=0, extra=poll_issue, xm_early=True); step(1, dma=False, extra=poll_check, xm_early=True)
        step(2, dma=False, bar=False); step(3, dma=False, nxt=False, xm_early=True)
    else:
        def e0():
            a(f"s_cmp_lg_u32 s34, 1\ns_cbranch_scc1 {L}_np0")
            poll_issue()
            a(f"{L}_np0:")
        def e1():
            a(f"s_cmp_lg_u32 s34, 1\ns_cbranch_scc1 {L}_notyet")
            poll_check()
        a("s_mov_b32 s34, 10")
        a(f"s_branch {L}_in")
        a(".p2align 6")
        a(f"{L}_loop:")
        a(f"s_waitcnt vmcnt({VMB})\ns_barrier")
        a(f"{L}_in:")
        step(0, bar=False, extra=e0); step(1, extra=e1); step(2); step(3)
        a(f"""
s_sub_u32 s34, s34, 1
s_cmp_le_u32 s34, 2
s_cselect_b32 s30, 0x7fff0000, s30
s_cmp_lg_u32 s34, 0
s_cbranch_scc1 {L}_loop
s_waitcnt lgkmcnt(0)
""")
        stamp(a, 2)
    if 'stx' not in VAR: stamp(a, 4)
    poll_check(final=True)
    XC = FR
    WC = FR + 8
    a(f"""
s_waitcnt vmcnt(0)
s_mov_b32 s64, -1
s_mov_b32 s65, 0
""")
    for j in range(NBF):
        a(f"v_add_f32 v{34+j}, v{CP+j}, v{CP+5+j}\nv_add_f32 v{CP+10+j}, v{CP+10+j}, v{CP+15+j}\nv_add_f32 v{34+j}, v{34+j}, v{CP+10+j}")
    for i in range(NA):
        a(f"""
v_xor_b32 v24, 0x80000000, v{28+i}
v_lshrrev_b32 v25, 16, v24
v_or_b32 v26, v25, v24
v_cndmask_b32 v{XC+4*i}, 0, v26, s[64:65]
v_cndmask_b32 v{XC+4*i+1}, 0, v25, s[64:65]
v_mov_b32 v{XC+4*i+2}, 0
v_mov_b32 v{XC+4*i+3}, 0
""")
    WCr = [FX, FX + 4, FX + 8, WC, WC + 4]
    for j in range(NBF):
        w = WCr[j]; c = 34 + j
        a(f"""
v_and_b32 v24, 0xffff0000, v{c}
v_sub_f32 v25, v{c}, v24
v_and_b32 v26, 0xffff0000, v25
v_sub_f32 v25, v25, v26
v_lshrrev_b32 v24, 16, v24
v_or_b32 v{w}, v24, v26
v_lshrrev_b32 v{w+1}, 16, v25
v_mov_b32 v{w+2}, 0
v_mov_b32 v{w+3}, 0
""")
        if j == NBF - 1: a("s_nop 1")
        if j >= 1:
            for i in range(NA):
                d = vr(acc(i, j - 1), 16)
                if kind == "V": a(f"{MFMA} {d}, {vr(XC+4*i,4)}, {vr(WCr[j-1],4)}, {d}")
                else: a(f"{MFMA} {d}, {vr(WCr[j-1],4)}, {vr(XC+4*i,4)}, {d}")
    for i in range(NA):
        d = vr(acc(i, NBF - 1), 16)
        if kind == "V": a(f"{MFMA} {d}, {vr(XC+4*i,4)}, {vr(WCr[NBF-1],4)}, {d}")
        else: a(f"{MFMA} {d}, {vr(WCr[NBF-1],4)}, {vr(XC+4*i,4)}, {d}")
    a("s_lshr_b32 s69, s76, 5")
    PK = FR + 16 if False else 24
    if kind == "QK":
        a(f"""
s_cmp_lt_u32 s28, 4
s_cselect_b32 s70, {hex(f32bits(QSCALE))}, 1.0
v_mul_f32 v4, s70, v30
s_cselect_b32 s71, {QF}, {KF}
s_and_b32 s72, s28, 3
s_mul_i32 s72, s72, {8*81920}
s_add_u32 s71, s71, s72
s_mul_i32 s72, s69, 1280
s_add_u32 s71, s71, s72
v_lshlrev_b32 v2, 4, v1
v_and_b32 v3, 31, v1
v_lshlrev_b32 v3, 3, v3
v_lshrrev_b32 v5, 5, v1
s_mov_b32 s72, 81920
v_mul_lo_u32 v5, v5, s72
v_add3_u32 v3, v3, v5, 0
v_add_u32 v3, 1024, v3
""")
        for P in range(4):
            for i in range(20):
                r = ACC + 20 * P + i
                a(f"v_mul_f32 v{r}, v{r}, v4")
            for i in range(10):
                r = ACC + 20 * P + 2 * i
                a(f"v_cvt_pk_bf16_f32 v{PK+10*P+i}, v{r}, v{r+1}")
            a(f"buffer_store_dwordx4 {vr(PK+10*P,4)}, v2, s[16:19], s71 offen")
            a(f"buffer_store_dwordx2 {vr(PK+10*P+4,2)}, v3, s[16:19], s71 offen")
            a(f"s_add_u32 s71, s71, 81920")
            a(f"buffer_store_dwordx4 {vr(PK+10*P+6,4)}, v2, s[16:19], s71 offen")
            a(f"s_add_u32 s71, s71, 81920")
    elif kind == "V":
        PK = FR
        a(f"""
s_sub_u32 s72, s28, 8
s_mul_i32 s72, s72, {8*81920}
s_mul_i32 s71, s69, 1280
s_add_u32 s71, s71, s72
s_add_u32 s71, s71, {VF}
s_mov_b32 s72, 81920
v_and_b32 v2, 31, v1
v_lshrrev_b32 v3, 5, v1
v_mul_u32_u24 v3, 320, v3
""")
        for j in range(5):
            a(f"""
v_add_u32 v24, {32*j}, v2
v_mul_u32_u24 v25, 52429, v24
v_lshrrev_b32 v25, 20, v25
v_mul_u32_u24 v26, 20, v25
v_sub_u32 v26, v24, v26
v_mul_lo_u32 v25, v25, s72
v_lshl_add_u32 v25, v26, 4, v25
v_add_u32 v{28+j}, v25, v3
""")
        for j in range(5):
            for i in range(16):
                r = ACC + 16 * j + i
                a(f"v_mul_f32 v{r}, v{r}, v{40+i}")
            for i in range(8):
                r = ACC + 16 * j + 2 * i
                a(f"v_cvt_pk_bf16_f32 v{PK+8*j+i}, v{r}, v{r+1}")
            a(f"buffer_store_dwordx4 {vr(PK+8*j,4)}, v{28+j}, s[16:19], s71 offen")
            a(f"buffer_store_dwordx4 {vr(PK+8*j+4,4)}, v{28+j}, s[16:19], s71 offen offset:640")
    else:
        PK = 32
        a(f"""
v_mul_f32 v4, v30, v30
v_mul_f32 v5, v31, v31
s_lshl_b32 s71, s69, 1                  ; rowtile16
s_mul_i32 s71, s71, {68*1024}
s_mul_i32 s72, s28, {3*1024}
s_add_u32 s71, s71, s72
s_mul_i32 s72, s81, {3*512}
s_add_u32 s71, s71, s72
s_add_u32 s71, s71, {AF + 20*1024}
s_add_u32 s72, s71, {2*68*1024}
v_bfe_u32 v2, v1, 4, 1
v_mul_u32_u24 v2, {68*1024}, v2
v_and_b32 v3, 15, v1
v_lshl_add_u32 v2, v3, 4, v2
v_lshrrev_b32 v3, 5, v1
v_lshl_add_u32 v2, v3, 8, v2
s_nop 3
""")
        for j in range(3):
            for i in range(2):
                for r in range(8):
                    g = acc(i, j) + r; u = g + 8
                    a(f"v_max_f32 v{g}, 0, v{g}")
                    a(f"v_mul_f32 v{u}, v{u}, v{4+i}")
                    a(f"v_mul_f32 v{g}, v{g}, v{u}")
                for r in range(4):
                    a(f"v_cvt_pk_bf16_f32 v{PK+8*j+4*i+r}, v{acc(i,j)+2*r}, v{acc(i,j)+2*r+1}")
                a(f"buffer_store_dwordx4 {vr(PK+8*j+4*i,4)}, v2, s[16:19], s{71+i} offen offset:{j*512}")
    stamp_out(a, 5)
    a("s_endpgm")

def prep(a):
    X = 64; CX = 48
    TLBW = f"""
v_lshlrev_b32 v5, 19, v1
buffer_load_dword v204, v5, s[16:19], 0 offen
s_mov_b32 s12, s50
s_mov_b32 s13, s51
s_mov_b32 s14, {2048*640*2}
s_mov_b32 s15, 0x00020000
v_lshlrev_b32 v5, 16, v1
buffer_load_dword v205, v5, s[12:15], 0 offen
"""
    a("LP:\ns_waitcnt lgkmcnt(0)")
    srd(a, 8, 36, 37, 2048 * 640 * 2)
    srd(a, 16, 54, 55, WS_BYTES)
    srd(a, 20, 52, 53, 256)
    a(f"""
v_mov_b32 v2, {CNT_OFF}
v_mov_b32 v3, 0
ds_write_b32 v2, v3
s_lshl_b32 s27, s25, 2
s_add_u32 s27, s27, s26               ; p
s_waitcnt lgkmcnt(0)
s_barrier
s_cmp_ge_u32 s24, 5
s_cbranch_scc1 LP_st
s_mul_i32 s30, s27, 5
s_add_u32 s30, s30, s24               ; u
s_cmp_ge_u32 s30, 156
s_cbranch_scc1 LP_flag
s_lshr_b32 s31, s30, 2                ; b
s_and_b32 s30, s30, 3                 ; kq
s_cmp_lt_u32 s31, 27
s_cselect_b32 s12, s44, s46
s_cselect_b32 s13, s45, s47
s_cselect_b32 s56, 15, 27
s_mov_b32 s14, {640*1536*2}
s_mov_b32 s60, 3072
s_cmp_lt_u32 s31, 15
s_cselect_b32 s12, s38, s12
s_cselect_b32 s13, s39, s13
s_cselect_b32 s56, 0, s56
s_cselect_b32 s14, {640*1920*2}, s14
s_cselect_b32 s60, 3840, s60
s_mov_b32 s15, 0x00020000
s_sub_u32 s56, s31, s56
s_lshl_b32 s57, s56, 8
s_mul_i32 s61, s30, 160
v_lshrrev_b32 v6, 4, v1
v_add_u32 v6, s61, v6
v_mul_lo_u32 v6, v6, s60
v_and_b32 v7, 15, v1
v_lshl_add_u32 v6, v7, 4, v6
s_lshl_b32 s62, s60, 2
""")
    LOOPED = 'loop' in VAR
    NBUF, PER = (4, 5) if LOOPED else (8, 5)
    a("s_mov_b32 s58, 0x00003f80\ns_mov_b32 s59, 0x3f800000\ns_mov_b32 s61, 0")
    for i in range(8): a(f"v_mov_b32 v{16+i}, 0")
    for t in range(NBUF * PER):
        a(f"buffer_load_dwordx4 {vr(CX+4*t,4)}, v6, s[12:15], s57 offen")
        a("s_add_u32 s57, s57, s62")
    a("LP_csl:")
    for bf in range(NBUF):
        a(f"s_waitcnt vmcnt({(NBUF-1)*PER if LOOPED else (NBUF-1-bf)*PER})")
        for t in range(PER):
            for i in range(4):
                r = CX + 4 * (bf * PER + t) + i
                a(f"v_dot2c_f32_bf16 v{16+2*i}, s58, v{r}\nv_dot2c_f32_bf16 v{17+2*i}, s59, v{r}")
        for t in range(PER if LOOPED else 0):
            a(f"buffer_load_dwordx4 {vr(CX+4*(bf*PER+t),4)}, v6, s[12:15], s57 offen")
            a("s_add_u32 s57, s57, s62")
    if LOOPED: a(f"""
s_mov_b32 s57, 0x7ffffff0
s_mov_b32 s62, 0
s_add_u32 s61, s61, 1
s_cmp_lt_u32 s61, 2
s_cbranch_scc1 LP_csl
""")
    a("s_nop 2")
    for i in range(8): a(f"ds_swizzle_b32 v{24+i}, v{16+i} offset:0x401F")
    a("s_waitcnt lgkmcnt(0)")
    for i in range(8): a(f"v_add_f32 v{16+i}, v{16+i}, v{24+i}\nv_mov_b32 v{24+i}, v{16+i}")
    a("s_nop 1")
    for i in range(8): a(f"v_permlane32_swap_b32 v{16+i}, v{24+i}")
    a("s_nop 1")
    for i in range(8): a(f"v_add_f32 v{16+i}, v{16+i}, v{24+i}")
    a(f"""
s_mul_i32 s58, s30, {4992*4}
s_lshl_b32 s59, s31, 9
s_add_u32 s58, s58, s59
s_add_u32 s58, s58, {CSO}
v_lshlrev_b32 v7, 5, v7
s_mov_b64 exec, 0xffff
buffer_store_dwordx4 v[16:19], v7, s[16:19], s58 offen sc1
buffer_store_dwordx4 v[20:23], v7, s[16:19], s58 offen offset:16 sc1
s_mov_b64 exec, -1
s_branch LP_flag
LP_st:
s_cmp_eq_u32 s24, 7
s_cbranch_scc0 LP_st2
s_getpc_b64 s[56:57]
LPC_ref:
s_sub_u32 s12, s56, LPC_ref-k1_kernel
s_subb_u32 s13, s57, 0
s_mov_b32 s14, LCODE_END-k1_kernel
s_mov_b32 s15, 0x00020000
s_mul_i32 s58, s26, 12288
v_lshlrev_b32 v5, 4, v1
buffer_load_dwordx4 v[200:203], v5, s[12:15], s58 offen offset:0
buffer_load_dwordx4 v[200:203], v5, s[12:15], s58 offen offset:1024
buffer_load_dwordx4 v[200:203], v5, s[12:15], s58 offen offset:2048
buffer_load_dwordx4 v[200:203], v5, s[12:15], s58 offen offset:3072
s_add_u32 s58, s58, 4096
buffer_load_dwordx4 v[200:203], v5, s[12:15], s58 offen offset:0
buffer_load_dwordx4 v[200:203], v5, s[12:15], s58 offen offset:1024
buffer_load_dwordx4 v[200:203], v5, s[12:15], s58 offen offset:2048
buffer_load_dwordx4 v[200:203], v5, s[12:15], s58 offen offset:3072
s_add_u32 s58, s58, 4096
buffer_load_dwordx4 v[200:203], v5, s[12:15], s58 offen offset:0
buffer_load_dwordx4 v[200:203], v5, s[12:15], s58 offen offset:1024
buffer_load_dwordx4 v[200:203], v5, s[12:15], s58 offen offset:2048
buffer_load_dwordx4 v[200:203], v5, s[12:15], s58 offen offset:3072
{TLBW if 'tlb' in VAR else ''}
s_branch LP_tr
LP_st2:
s_lshl_b32 s28, s27, 6
s_sub_u32 s29, s24, 5
s_lshl_b32 s29, s29, 5
s_add_u32 s28, s28, s29
v_lshrrev_b32 v2, 3, v1
v_add_u32 v2, s28, v2
v_mul_u32_u24 v3, 1280, v2
v_and_b32 v4, 7, v1
v_lshl_add_u32 v3, v4, 4, v3
s_mov_b32 s57, 0
""")
    for ps in range(4):
        for t in range(10):
            a(f"buffer_load_dwordx4 {vr(CX+40*ps+4*t,4)}, v3, s[8:11], s57 offen offset:{128*t}")
        a(f"s_add_u32 s57, s57, {8*1280}")
    a(f"""
s_mov_b32 s58, 0x3f803f80
v_lshlrev_b32 v2, 2, v2
v_cmp_eq_u32 vcc, 0, v4
s_mov_b32 s32, {MBO}
s_mov_b32 s33, {RIO}
s_mov_b64 s[34:35], vcc
""")
    for i in range(8): a(f"v_mov_b32 v{16+i}, 0")
    for ps in range(4):
        for t in range(10):
            if t % 5 == 0: a(f"s_waitcnt vmcnt({35-10*ps-t})")
            for i in range(4):
                r = CX + 40 * ps + 4 * t + i
                a(f"v_dot2c_f32_bf16 v{16+2*ps}, s58, v{r}\nv_dot2c_f32_bf16 v{17+2*ps}, v{r}, v{r}")
    a("s_nop 2")
    for m in (0x041F, 0x081F, 0x101F):
        for i in range(8): a(f"ds_swizzle_b32 v{24+i}, v{16+i} offset:{m}")
        a("s_waitcnt lgkmcnt(0)")
        for i in range(8): a(f"v_add_f32 v{16+i}, v{16+i}, v{24+i}")
    for ps in range(4):
        rinv_calc(a, 16 + 2 * ps, 17 + 2 * ps, 24 + ps, 28 + ps, 32)
    a("s_mov_b64 exec, s[34:35]")
    for ps in range(4):
        a(f"buffer_store_dword v{24+ps}, v2, s[16:19], s32 offen offset:{32*ps} sc1")
        a(f"buffer_store_dword v{28+ps}, v2, s[16:19], s33 offen offset:{32*ps} sc1")
    a("s_mov_b64 exec, -1\nLP_flag:")
    stamp(a, 1)
    a(f"""
s_waitcnt vmcnt(0)
v_mov_b32 v12, 1
v_mov_b32 v13, {CNT_OFF}
s_mov_b64 exec, 1
ds_add_rtn_u32 v14, v13, v12
s_waitcnt lgkmcnt(0)
v_readfirstlane_b32 s56, v14
v_mov_b32 v13, s27
v_lshlrev_b32 v13, 2, v13
s_cmp_lg_u32 s56, 6
s_cbranch_scc1 LP_done
buffer_store_dword v12, v13, s[20:23], 0 offen sc1
LP_done:
s_mov_b64 exec, -1
""")
    stamp(a, 2)
    stamp_out(a, 5)
    a("s_endpgm")
    DEP = 10
    ZC = f"""s_cmp_lg_u32 s27, 0
s_cbranch_scc1 LP_nz
v_lshlrev_b32 v13, 8, v1
v_mov_b32 v14, 0
s_mov_b32 s56, {CNTW}
s_mov_b64 exec, 0xffff
buffer_store_dword v14, v13, s[16:19], s56 offen sc1
s_mov_b64 exec, -1
LP_nz:
"""
    TRSTART = 5 if 'tr5' in VAR else (7 if 'tr7' in VAR else 6)
    a(f"""
LP_tr:
v_lshrrev_b32 v6, 3, v1
v_mul_u32_u24 v6, 1280, v6
v_and_b32 v7, 7, v1
v_lshl_add_u32 v6, v7, 4, v6
v_add_u32 v7, {8*1280-1024}, v6
v_add_u32 v8, {16*1280-2048}, v6
v_add_u32 v9, {24*1280-3072}, v6
v_lshrrev_b32 v10, 5, v1
v_lshlrev_b32 v10, 4, v10
v_bfe_u32 v11, v1, 4, 1
v_lshl_add_u32 v10, v11, 2, v10
v_bfe_u32 v11, v1, 2, 2
v_add_u32 v10, v10, v11
v_lshlrev_b32 v10, 7, v10
v_and_b32 v11, 3, v1
v_lshl_add_u32 v10, v11, 3, v10
v_lshlrev_b32 v11, 4, v1
{ZC if 'fuse' in VAR else ''}
v_mov_b32 v13, {CNT_OFF}
LP_wt:
s_sleep 8
ds_read_b32 v14, v13
s_waitcnt lgkmcnt(0)
v_readfirstlane_b32 s56, v14
s_nop 3
s_cmp_lt_u32 s56, {TRSTART}
s_cbranch_scc1 LP_wt
s_add_u32 s56, s27, {200 if 'wo2' in VAR else 0}
s_mov_b32 s57, 0
s_mov_b32 s62, s56
s_mov_b32 s63, {-DEP}                 ; iteration
LP_trl:
s_min_u32 s60, s56, 679
s_mul_i32 s58, s60, 52429
s_lshr_b32 s58, s58, 19
s_mul_i32 s59, s58, 10
s_sub_u32 s59, s60, s59
s_cmp_lt_u32 s58, 20
s_cselect_b32 s12, s40, s48
s_cselect_b32 s13, s41, s49
s_mov_b32 s14, {1536*640*2}
s_cselect_b32 s14, {640*640*2}, s14
s_mov_b32 s15, 0x00020000
s_cselect_b32 s60, 0, 20
s_sub_u32 s60, s58, s60
s_mul_i32 s60, s60, {32*1280}
s_lshl_b32 s61, s59, 7
s_add_u32 s60, s60, s61
s_mov_b32 m0, s57
s_add_u32 s57, s57, 4096
buffer_load_dwordx4 v6, s[12:15], s60 offen lds
buffer_load_dwordx4 v7, s[12:15], s60 offen offset:1024 lds
buffer_load_dwordx4 v8, s[12:15], s60 offen offset:2048 lds
buffer_load_dwordx4 v9, s[12:15], s60 offen offset:3072 lds
s_add_u32 s56, s56, 32
s_add_i32 s63, s63, 1
s_cmp_le_i32 s63, 0
s_cbranch_scc1 LP_trl
s_waitcnt vmcnt({4*DEP})
""")
    for jt in range(4):
        for r in range(2):
            a(f"ds_read_b64_tr_b16 {vr(X+4*jt+2*r,2)}, v10 offset:{jt*32 + r*8*128}")
    a(f"""
v_add_u32 v10, 4096, v10
s_mul_i32 s58, s62, 52429
s_lshr_b32 s58, s58, 19
s_mul_i32 s59, s58, 10
s_sub_u32 s59, s62, s59
s_mul_i32 s60, s58, {40*1024}
s_lshl_b32 s61, s59, 12
s_add_u32 s60, s60, s61
s_add_u32 s60, s60, {BF}
s_waitcnt lgkmcnt(0)
""")
    for jt in range(4):
        a(f"buffer_store_dwordx4 {vr(X+4*jt,4)}, v11, s[16:19], s60 offen offset:{jt*1024} sc1")
    a(f"""
s_add_u32 s62, s62, 32
s_cmp_lt_u32 s62, 680
s_cbranch_scc1 LP_trl
""")
    if 'nopf2' not in VAR:
        a(f"""
s_getpc_b64 s[56:57]
LPC2_ref:
s_add_u32 s12, s56, k2_kernel-LPC2_ref
s_addc_u32 s13, s57, 0
s_mov_b32 s14, LCODE_END-k2_kernel
s_mov_b32 s15, 0x00020000
s_lshl_b32 s58, s26, 12
buffer_load_dwordx4 v[200:203], v11, s[12:15], s58 offen
buffer_load_dwordx4 v[200:203], v11, s[12:15], s58 offen offset:1024
buffer_load_dwordx4 v[200:203], v11, s[12:15], s58 offen offset:2048
buffer_load_dwordx4 v[200:203], v11, s[12:15], s58 offen offset:3072
""")
    stamp(a, 1); stamp(a, 2)
    stamp_out(a, 5)
    a("s_endpgm")

def k1_kernel(a, name):
    kernel_header(a, name)
    a(f"""
s_cmp_ge_u32 s2, 256
s_cbranch_scc1 LK1_end
""")
    stamp(a, 0)
    a(f"""
s_load_dwordx16 s[36:51], s[0:1], 0
s_load_dwordx4 s[52:55], s[0:1], 64
v_and_b32 v1, 63, v0
v_lshrrev_b32 v2, 6, v0
s_and_b32 s25, s2, 7
v_readfirstlane_b32 s24, v2
s_lshr_b32 s26, s2, 3
s_and_b32 s80, s24, 3
s_lshr_b32 s81, s24, 2
""")
    a(f"""
s_cmp_lt_u32 s26, 4
s_cbranch_scc1 LP
s_sub_u32 s26, s26, 4
s_and_b32 s27, s25, 1
s_lshl_b32 s27, s27, 2
s_and_b32 s28, s26, 3
s_add_u32 s27, s27, s28               ; mblock
s_lshl_b32 s29, s27, 8
s_lshl_b32 s28, s24, 5
s_add_u32 s29, s29, s28
s_lshl_b32 s63, s24, 12
v_and_b32 v5, 31, v1
v_lshlrev_b32 v5, 2, v5
v_lshrrev_b32 v24, 3, v1
v_add_u32 v24, s29, v24
v_mul_u32_u24 v24, 1280, v24
v_lshrrev_b32 v25, 4, v1
v_and_b32 v26, 7, v1
v_xor_b32 v27, v26, v25
v_lshl_add_u32 v10, v27, 4, v24
v_xor_b32 v27, 4, v27
v_lshl_add_u32 v11, v27, 4, v24
v_add_u32 v12, {16*1280-2048}, v10
v_add_u32 v13, {24*1280-3072}, v11
v_add_u32 v11, {8*1280-1024}, v11
v_and_b32 v24, 31, v1
v_lshrrev_b32 v25, 5, v1
v_bfe_u32 v26, v24, 1, 3
v_xor_b32 v26, v26, v25
v_lshlrev_b32 v24, 7, v24
""")
    for j in range(4):
        a(f"v_xor_b32 v27, {2*j}, v26\nv_lshl_add_u32 v{6+j}, v27, 4, v24")
    a(f"""
s_lshr_b32 s26, s26, 2
s_lshr_b32 s56, s25, 1
s_cmp_lt_u32 s26, 3
s_cbranch_scc0 LK1_gu
s_mul_i32 s28, s56, 3
s_add_u32 s28, s28, s26
s_cmp_lt_u32 s28, 8
s_cbranch_scc1 LGQK
s_branch LGV
LK1_gu:
s_lshl_b32 s28, s56, 2
s_add_u32 s28, s28, s26
s_sub_u32 s28, s28, 3
s_branch LGGU
LK1_end:
s_endpgm
""")
    gemm(a, "QK"); gemm(a, "V"); gemm(a, "GU")
    prep(a)

if __name__ == "__main__":
    import sys
    PROF = len(sys.argv) > 1
    VAR = sys.argv[1] if PROF else ""
    a = Asm()
    hdr = f"; @launch kernel=k1_kernel grid=(256,1,1) block=(512,1,1) lds={K1_LDS}\n"
    a('.amdgcn_target "amdgcn-amd-amdhsa--gfx950"\n.text')
    k1_kernel(a, "k1_kernel")
    a("LCODE_END:")
    txt = hdr + a.text() + '.section .rodata,"a"\n' + kernel_desc("k1_kernel", K1_VGPR, 100)
    open("k1_only.s", "w").write(txt)
```

```python
from asmlib import *
MFMA = "v_mfma_f32_32x32x16_bf16"
MF16 = "v_mfma_f32_16x16x32_bf16"
QA, QAT, QB, QBT = 8, 12, 16, 20
SA, SB = 24, 40
PA, PB = 56, 64
OA, OB = 72, 88
KB, VB, NB = 104, 136, 4
MA, MB = 0, 2
K2_VGPR = 168
K2_LDS = 53248
PROF = False
VAR = ''
FUSE = False
SLEEP = 16
DBGOUT = False
KPERM = "v2"

def prof_out(a, base, srd, wave_s, regs):
    a("s_waitcnt vmcnt(0) lgkmcnt(0)")
    a(f"s_memrealtime s[{regs[-1]}:{regs[-1]+1}]")
    a("s_waitcnt lgkmcnt(0)")
    for k in range(4):
        a(f"v_mov_b32 v{8+k}, s{regs[min(k, len(regs)-1)]}")
    a(f"""
s_lshl_b32 s34, s2, 2
s_add_u32 s34, s34, s{wave_s}
s_lshl_b32 s34, s34, 4
s_add_u32 s34, s34, {base}
v_mov_b32 v16, 0
s_mov_b64 exec, 1
buffer_store_dwordx4 v[8:11], v16, s[{srd}:{srd+3}], s34 offen
""")

def attn(a):
    T = PA
    a(f"""
LA:
s_and_b32 s21, s3, 7
s_lshl_b32 s21, s21, 2
s_lshr_b32 s22, s3, 3
s_and_b32 s23, s22, 3
s_add_u32 s21, s21, s23              ; head
s_lshr_b32 s22, s3, 5                ; qblock
s_and_b32 s23, s20, 1
s_lshl_b32 s24, s16, 1
s_add_u32 s23, s23, s24              ; qsub
s_lshr_b32 s24, s20, 1               ; khalf
s_mul_i32 s25, s21, {64*1280}
s_lshl_b32 s26, s22, 3
s_lshl_b32 s27, s23, 1
s_add_u32 s26, s26, s27              ; qtile a
s_mul_i32 s27, s26, 1280
s_add_u32 s27, s27, s25
s_mul_i32 s28, s24, {32*1280}
s_add_u32 s28, s28, s25
s_add_u32 s29, s28, {VF}
s_add_u32 s28, s28, {KF}
v_lshlrev_b32 v3, 4, v1
v_and_b32 v4, 31, v1
v_lshrrev_b32 v5, 5, v1
v_lshlrev_b32 v6, 3, v4
v_lshl_add_u32 v6, v5, 2, v6
v_add_u32 v6, 1024, v6
v_mul_u32_u24 v7, 320, v5
v_lshl_add_u32 v7, v4, 4, v7
buffer_load_dwordx4 {vr(QA,4)}, v3, s[8:11], s27 offen
buffer_load_dword {vr(QAT)}, v6, s[8:11], s27 offen
buffer_load_dwordx4 {vr(QB,4)}, v3, s[8:11], s27 offen offset:1280
buffer_load_dword {vr(QBT)}, v6, s[8:11], s27 offen offset:1280
s_mov_b32 s30, 0
s_mov_b32 s12, 0x000FFFFF
s_mov_b32 s13, 0x000FFFFF
s_mov_b32 s14, 0xFFFFFFFF
s_mov_b32 s15, 0
""")
    def rowmax(S, M, init):
        if init:
            a(f"v_max3_f32 {vr(M)}, {vr(S)}, {vr(S+1)}, {vr(S+2)}")
            a(f"v_max_f32 {vr(M)}, {vr(M)}, {vr(S+3)}")
            st = 4
        else: st = 0
        for j in range(st, 16, 2):
            a(f"v_max3_f32 {vr(M)}, {vr(M)}, {vr(S+j)}, {vr(S+j+1)}")
    def qk(S, Qm, Qt, kb):
        a(f"{MFMA} {vr(S,16)}, {vr(KB+8*kb,4)}, {vr(Qm,4)}, 0")
        a(f"{MFMA} {vr(S,16)}, {vr(KB+8*kb+4,4)}, {vr(Qt,4)}, {vr(S,16)}")
    def loadK(kb, soff, imm=0):
        a(f"buffer_load_dwordx4 {vr(KB+8*kb,4)}, v3, s[8:11], {soff} offen offset:{imm}")
        a(f"buffer_load_dword {vr(KB+8*kb+4)}, v6, s[8:11], {soff} offen offset:{imm}")
    def loadV(vb, soff, imm=0):
        a("s_mov_b64 exec, s[12:13]")
        a(f"buffer_load_dwordx4 {vr(VB+8*vb,4)}, v7, s[8:11], {soff} offen offset:{imm}")
        a(f"buffer_load_dwordx4 {vr(VB+8*vb+4,4)}, v7, s[8:11], {soff} offen offset:{imm+640}")
        a("s_mov_b64 exec, -1")
    a("s_branch LA_pro")
    a("LA_restart:")
    for q in (QAT, QBT):
        for j in (1, 2): a(f"v_mov_b32 {vr(q+j)}, 0")
    a(f"""
v_mov_b32 {vr(MA)}, 0xff800000
v_mov_b32 {vr(MB)}, 0xff800000
s_mov_b32 s31, s28
s_mov_b32 s32, 32
LA_maxloop:
""")
    loadK(0, "s31")
    a("s_waitcnt vmcnt(0)")
    qk(SA, QA, QAT, 0); qk(SB, QB, QBT, 0)
    a("s_nop 15\ns_nop 3")
    rowmax(SA, MA, False); rowmax(SB, MB, False)
    a(f"""
s_add_u32 s31, s31, 1280
s_sub_u32 s32, s32, 1
s_cmp_lg_u32 s32, 0
s_cbranch_scc1 LA_maxloop
LA_pro:
""")
    loadK(0, "s28", 0)
    loadK(1, "s28", 1280)
    a(f"""
v_mov_b32 {vr(T)}, 0x3f803f80
v_cmp_eq_u32 vcc, 20, v4
v_cndmask_b32 {vr(T+2)}, 0, {vr(T)}, s[14:15]
s_nop 0
v_cndmask_b32 {vr(T+1)}, 0, {vr(T)}, vcc
""")
    for j in range(8): a(f"v_mov_b32 {vr(VB+j)}, {vr(T+1)}")
    loadV(0, "s29", 0)
    loadK(2, "s28", 2560)
    for j in range(8): a(f"v_mov_b32 {vr(VB+8+j)}, {vr(T+1)}")
    loadV(1, "s29", 1280)
    a(f"s_add_u32 s31, s28, {3*1280}")
    loadK(3, "s31", 0)
    for j in range(8): a(f"v_mov_b32 {vr(VB+16+j)}, {vr(T+1)}")
    loadV(2, "s29", 2560)
    for j in range(8): a(f"v_mov_b32 {vr(VB+24+j)}, {vr(T+1)}")
    for i in range(NB):
        a(f"v_mov_b32 {vr(KB+8*i+5)}, {vr(T+2)}")
        a(f"v_mov_b32 {vr(KB+8*i+6)}, {vr(T+2)}")
        a(f"v_mov_b32 {vr(KB+8*i+7)}, 0")
    for j in range(16):
        a(f"v_mov_b32 {vr(OA+j)}, 0")
        a(f"v_mov_b32 {vr(OB+j)}, 0")
    for j in range(8): a(f"v_mov_b32 {vr(PB+j)}, 0")
    a(f"""
s_cmp_lg_u32 s30, 0
s_cbranch_scc1 LA_setm0
""")
    for q in (QAT, QBT):
        for j in (1, 2, 3): a(f"v_mov_b32 {vr(q+j)}, 0")
    a("s_waitcnt vmcnt(12)")
    qk(SA, QA, QAT, 0); qk(SB, QB, QBT, 0)
    a("s_nop 11")
    rowmax(SA, MA, True); rowmax(SB, MB, True)
    a("LA_setm0:\ns_waitcnt vmcnt(12)")
    for (M, QT) in ((MA, QAT), (MB, QBT)):
        t, u, w = T, T+1, T+2
        a(f"""
v_mov_b32 {vr(t)}, {vr(M)}
v_mov_b32 {vr(u)}, {vr(M)}
s_nop 1
v_permlane32_swap_b32 {vr(t)}, {vr(u)}
s_nop 1
v_max_f32 {vr(M)}, {vr(t)}, {vr(u)}
v_sub_f32 {vr(t)}, 0, {vr(M)}
v_and_b32 {vr(u)}, 0xffff0000, {vr(t)}
v_sub_f32 {vr(t)}, {vr(t)}, {vr(u)}
v_and_b32 {vr(w)}, 0xffff0000, {vr(t)}
v_sub_f32 {vr(t)}, {vr(t)}, {vr(w)}
v_lshrrev_b32 {vr(u)}, 16, {vr(u)}
v_or_b32 {vr(u)}, {vr(u)}, {vr(w)}
v_lshrrev_b32 {vr(t)}, 16, {vr(t)}
v_cndmask_b32 {vr(QT+1)}, 0, {vr(u)}, s[14:15]
v_cndmask_b32 {vr(QT+2)}, 0, {vr(t)}, s[14:15]
""")
        if M == MA:
            a("s_nop 1")
            qk(SA, QA, QAT, 0)
    a(f"""
s_add_u32 s31, s28, {4*1280}
s_add_u32 s33, s29, {3*1280}
s_mov_b32 s32, 8
""")
    if PROF: a("s_memrealtime s[42:43]")
    a(".p2align 6\nLA_loop:")
    def phase(Sx, Px, Sy, Py, Oy, Qy, Qyt, kb, vb, mid=None, post=None, pre=None):
        e = lambda j: a(f"v_exp_f32 {vr(Sx+j)}, {vr(Sx+j)}")
        c = lambda j: a(f"v_cvt_pk_bf16_f32 {vr(Px+j)}, {vr(Sx+2*j)}, {vr(Sx+2*j+1)}")
        if pre: pre()
        a(f"{MFMA} {vr(Sy,16)}, {vr(KB+8*kb,4)}, {vr(Qy,4)}, 0")
        e(0); e(1); e(2); e(3)
        a(f"{MFMA} {vr(Sy,16)}, {vr(KB+8*kb+4,4)}, {vr(Qyt,4)}, {vr(Sy,16)}")
        if mid: mid()
        c(0); c(1); e(4); e(5); e(6); e(7)
        a(f"{MFMA} {vr(Oy,16)}, {vr(VB+8*vb,4)}, {vr(Py,4)}, {vr(Oy,16)}")
        c(2); c(3); e(8); e(9); e(10); e(11)
        a(f"{MFMA} {vr(Oy,16)}, {vr(VB+8*vb+4,4)}, {vr(Py+4,4)}, {vr(Oy,16)}")
        if post: post()
        c(4); c(5); e(12); e(13); e(14); e(15); c(6); c(7)
    for u in range(NB):
        def mid(u=u):
            loadK(u, "s31"); a("s_add_u32 s31, s31, 1280")
        def post(u=u):
            loadV((u+3) % NB, "s33"); a("s_add_u32 s33, s33, 1280")
        phase(SA, PA, SB, PB, OB, QB, QBT, u, (u+3) % NB, mid, post)
        phase(SB, PB, SA, PA, OA, QA, QAT, (u+1) % NB, u, pre=lambda: a("s_waitcnt vmcnt(12)"))
    a(f"""
s_sub_u32 s32, s32, 1
s_cmp_lg_u32 s32, 0
s_cbranch_scc1 LA_loop
{MFMA} {vr(OB,16)}, {vr(VB+8*3,4)}, {vr(PB,4)}, {vr(OB,16)}
{MFMA} {vr(OB,16)}, {vr(VB+8*3+4,4)}, {vr(PB+4,4)}, {vr(OB,16)}
""")
    if PROF: a("s_memrealtime s[44:45]")
    t, t1 = PA, PA + 1
    a(f"""
v_lshlrev_b32 {vr(PA+2)}, 4, v1
s_lshl_b32 s34, s20, 12
v_add_u32 {vr(PA+3)}, s34, {vr(PA+2)}
s_xor_b32 s35, s20, 2
s_lshl_b32 s35, s35, 12
v_add_u32 {vr(PA+4)}, s35, {vr(PA+2)}
v_mov_b32 {vr(t1)}, 0x71800000
v_add_f32 {vr(t)}, abs({vr(OA)}), abs({vr(OA+1)})
""")
    for j in range(2, 12): a(f"v_add_f32 {vr(t)}, {vr(t)}, abs({vr(OA+j)})")
    for j in range(12): a(f"v_add_f32 {vr(t)}, {vr(t)}, abs({vr(OB+j)})")
    a(f"""
v_cmp_nlt_f32 vcc, {vr(t)}, {vr(t1)}
s_cmp_lg_u32 s30, 0
s_cbranch_scc1 LA_comb
s_nop 2
s_cmp_eq_u64 vcc, 0
s_cbranch_scc1 LA_comb
s_mov_b32 s30, 1
s_waitcnt vmcnt(0)
s_branch LA_restart
LA_comb:
s_cmp_eq_u32 s24, 0
s_cbranch_scc1 LA_c0
""")
    w_, r_ = PA + 3, PA + 4
    for j in range(3): a(f"ds_write_b128 {vr(w_)}, {vr(OA+4*j,4)} offset:{j*1024}")
    a(f"ds_write_b32 {vr(w_)}, {vr(MA)} offset:3072")
    for j in range(12): a(f"v_mov_b32 {vr(OA+j)}, {vr(OB+j)}")
    a(f"v_mov_b32 {vr(MA)}, {vr(MB)}")
    a("s_add_u32 s26, s26, 1\ns_branch LA_c1\nLA_c0:")
    for j in range(3): a(f"ds_write_b128 {vr(w_)}, {vr(OB+4*j,4)} offset:{j*1024}")
    a(f"ds_write_b32 {vr(w_)}, {vr(MB)} offset:3072")
    a("LA_c1:\ns_waitcnt lgkmcnt(0)\ns_barrier")
    X = SB
    for j in range(3): a(f"ds_read_b128 {vr(X+4*j,4)}, {vr(r_)} offset:{j*1024}")
    a(f"ds_read_b32 {vr(MB)}, {vr(r_)} offset:3072")
    g_, kbv, g8 = PB, PB + 1, PB + 2
    ad = [PB + 3, PB + 4, PB + 5]
    a(f"""
s_lshl_b32 s34, s26, 1
s_mul_i32 s34, s34, {68*1024}
s_add_u32 s34, s34, {AF}
v_bfe_u32 {vr(t)}, v1, 4, 1
v_mul_u32_u24 {vr(t)}, {68*1024}, {vr(t)}
v_and_b32 {vr(t1)}, 15, v1
v_lshl_add_u32 {vr(t)}, {vr(t1)}, 4, {vr(t)}
s_mul_i32 s35, s21, 5
v_add_u32 {vr(g_)}, s35, v5
""")
    for i in range(3):
        a(f"""
v_lshrrev_b32 {vr(kbv)}, 3, {vr(g_)}
v_lshl_add_u32 {vr(ad[i])}, {vr(kbv)}, 10, {vr(t)}
""")
        if KPERM == "v2":
            a(f"""
v_and_b32 {vr(g8)}, 3, {vr(g_)}
v_lshl_add_u32 {vr(ad[i])}, {vr(g8)}, 8, {vr(ad[i])}
v_bfe_u32 {vr(g8)}, {vr(g_)}, 2, 1
v_lshl_add_u32 {vr(ad[i])}, {vr(g8)}, 3, {vr(ad[i])}
""")
        else:
            a(f"""
v_bfe_u32 {vr(g8)}, {vr(g_)}, 2, 1
v_lshl_add_u32 {vr(ad[i])}, {vr(g8)}, 9, {vr(ad[i])}
v_and_b32 {vr(g8)}, 1, {vr(g_)}
v_lshl_add_u32 {vr(ad[i])}, {vr(g8)}, 8, {vr(ad[i])}
v_bfe_u32 {vr(g8)}, {vr(g_)}, 1, 1
v_lshl_add_u32 {vr(ad[i])}, {vr(g8)}, 3, {vr(ad[i])}
""")
        if i < 2: a(f"v_add_u32 {vr(g_)}, 2, {vr(g_)}")
    m, f1, f2, l, l2 = PA + 2, PA + 3, PA + 5, PA + 6, PA + 7
    a(f"""
s_waitcnt lgkmcnt(0)
v_max_f32 {vr(m)}, {vr(MA)}, {vr(MB)}
v_sub_f32 {vr(f1)}, {vr(MA)}, {vr(m)}
v_sub_f32 {vr(f2)}, {vr(MB)}, {vr(m)}
v_exp_f32 {vr(f1)}, {vr(f1)}
v_exp_f32 {vr(f2)}, {vr(f2)}
s_nop 0
v_mul_f32 {vr(l)}, {vr(OA+8)}, {vr(f1)}
v_fmac_f32 {vr(l)}, {vr(X+8)}, {vr(f2)}
v_mov_b32 {vr(l2)}, {vr(l)}
s_nop 1
v_permlane32_swap_b32 {vr(l)}, {vr(l2)}
s_nop 1
v_rcp_f32 {vr(l2)}, {vr(l2)}
s_nop 0
v_mul_f32 {vr(f1)}, {vr(f1)}, {vr(l2)}
v_mul_f32 {vr(f2)}, {vr(f2)}, {vr(l2)}
""")
    for i in range(3):
        for j in range(4 * i, 4 * i + 4):
            a(f"v_mul_f32 {vr(OA+j)}, {vr(OA+j)}, {vr(f1)}")
            a(f"v_fmac_f32 {vr(OA+j)}, {vr(X+j)}, {vr(f2)}")
        for j in range(2):
            a(f"v_cvt_pk_bf16_f32 {vr(OB+2*i+j)}, {vr(OA+4*i+2*j)}, {vr(OA+4*i+2*j+1)}")
        if i == 2: a("s_mov_b64 exec, s[14:15]")
        a(f"buffer_store_dwordx2 {vr(OB+2*i,2)}, {vr(ad[i])}, s[8:11], s34 offen")
    if PROF:
        a("s_mov_b64 exec, -1")
        prof_out(a, 0x3100000, 8, 20, [40, 42, 44, 46])
    a("s_endpgm")


Q3 = [8, 16, 24, 32]
S3 = [40, 56]
O3 = [72, 88, 104, 120]
K3B, V3B = 136, 152
LDS_M = 49152
def attn3(a):
    a(f"""
LA:
s_and_b32 s21, s3, 7
s_lshl_b32 s21, s21, 2
s_lshr_b32 s22, s3, 3
s_and_b32 s23, s22, 3
s_add_u32 s21, s21, s23              ; head
s_lshr_b32 s22, s3, 5                ; qblock
s_mul_i32 s25, s21, {64*1280}
s_lshl_b32 s26, s22, 3
s_lshl_b32 s27, s16, 2
s_add_u32 s26, s26, s27
s_mul_i32 s27, s26, 1280
s_add_u32 s27, s27, s25
s_mul_i32 s28, s20, {16*1280}
s_add_u32 s28, s28, s25
s_add_u32 s29, s28, {VF}
s_add_u32 s28, s28, {KF}
v_lshlrev_b32 v3, 4, v1
v_and_b32 v4, 31, v1
v_lshrrev_b32 v5, 5, v1
v_lshlrev_b32 v6, 3, v4
v_lshl_add_u32 v6, v5, 2, v6
v_add_u32 v6, 1024, v6
v_mul_u32_u24 v7, 320, v5
v_lshl_add_u32 v7, v4, 4, v7
s_mov_b32 s30, 0
s_mov_b32 s12, 0x000FFFFF
s_mov_b32 s13, 0x000FFFFF
s_mov_b32 s14, 0xFFFFFFFF
s_mov_b32 s15, 0
s_add_u32 s36, s27, 2560
s_mov_b32 s37, 0xbc000000
s_waitcnt lgkmcnt(0)
""")
    srd(a, 8, 4, 5, WS_BYTES)
    def loadK(kb, soff, imm=0):
        a(f"buffer_load_dwordx4 {vr(K3B+8*kb,4)}, v3, s[8:11], {soff} offen offset:{imm}")
        a(f"buffer_load_dword {vr(K3B+8*kb+4)}, v6, s[8:11], {soff} offen offset:{imm}")
    def loadV(vb, soff, imm=0):
        a("s_mov_b64 exec, s[12:13]")
        a(f"buffer_load_dwordx4 {vr(V3B+8*vb,4)}, v7, s[8:11], {soff} offen offset:{imm}")
        a(f"buffer_load_dwordx4 {vr(V3B+8*vb+4,4)}, v7, s[8:11], {soff} offen offset:{imm+640}")
        a("s_mov_b64 exec, -1")
    def qk(S, q, kb):
        a(f"{MFMA} {vr(S,16)}, {vr(K3B+8*kb,4)}, {vr(Q3[q],4)}, 0")
        a(f"{MFMA} {vr(S,16)}, {vr(K3B+8*kb+4,4)}, {vr(Q3[q]+4,4)}, {vr(S,16)}")
    def rowmax(S, M, init):
        if init:
            a(f"v_max3_f32 {vr(M)}, {vr(S)}, {vr(S+1)}, {vr(S+2)}")
            a(f"v_max_f32 {vr(M)}, {vr(M)}, {vr(S+3)}")
            st = 4
        else: st = 0
        for j in range(st, 16, 2):
            a(f"v_max3_f32 {vr(M)}, {vr(M)}, {vr(S+j)}, {vr(S+j+1)}")
    for q in range(4):
        so = "s27" if q < 2 else "s36"
        a(f"buffer_load_dwordx4 {vr(Q3[q],4)}, v3, s[8:11], {so} offen offset:{1280*(q&1)}")
        a(f"buffer_load_dword {vr(Q3[q]+4)}, v6, s[8:11], {so} offen offset:{1280*(q&1)}")
    MX = [S3[0] + 0, S3[0] + 1, S3[0] + 2, S3[0] + 3]
    T = S3[0] + 4
    a("s_branch LA_pro")
    a("LA_restart:")
    for q in range(4):
        for j in (5, 6): a(f"v_mov_b32 {vr(Q3[q]+j)}, 0")
        a(f"v_mov_b32 {vr(MX[q])}, 0xff800000")
    a("s_mov_b32 s31, s28\ns_mov_b32 s32, 16\nLA_maxloop:")
    loadK(0, "s31")
    a("s_waitcnt vmcnt(0)")
    for q in range(4): qk(O3[q], q, 0)
    a("s_nop 15\ns_nop 3")
    for q in range(4): rowmax(O3[q], MX[q], False)
    a(f"""
s_add_u32 s31, s31, 1280
s_sub_u32 s32, s32, 1
s_cmp_lg_u32 s32, 0
s_cbranch_scc1 LA_maxloop
LA_pro:
""")
    loadK(0, "s28", 0)
    a(f"""
v_mov_b32 {vr(T)}, 0x3f803f80
v_cmp_eq_u32 vcc, 20, v4
v_cndmask_b32 {vr(T+2)}, 0, {vr(T)}, s[14:15]
s_nop 0
v_cndmask_b32 {vr(T+1)}, 0, {vr(T)}, vcc
""")
    for j in range(8): a(f"v_mov_b32 {vr(V3B+j)}, {vr(T+1)}")
    loadV(0, "s29", 0)
    loadK(1, "s28", 1280)
    for j in range(8): a(f"v_mov_b32 {vr(V3B+8+j)}, {vr(T+1)}")
    for i in range(2):
        a(f"v_mov_b32 {vr(K3B+8*i+5)}, {vr(T+2)}\nv_mov_b32 {vr(K3B+8*i+6)}, {vr(T+2)}\nv_mov_b32 {vr(K3B+8*i+7)}, 0")
    for j in range(8): a(f"v_mov_b32 {vr(S3[1]+j)}, 0")
    a(f"""
v_lshlrev_b32 v0, 2, v1
s_lshl_b32 s34, s20, 10
s_add_u32 s34, s34, {LDS_M}
v_add_u32 v0, s34, v0
s_cmp_lg_u32 s30, 0
s_cbranch_scc1 LA_setm0
""")
    for q in range(4):
        for j in (5, 6, 7): a(f"v_mov_b32 {vr(Q3[q]+j)}, 0")
    a("s_waitcnt vmcnt(4)")
    for q in range(4): qk(O3[q], q, 0)
    a("s_nop 5")
    for q in range(4): rowmax(O3[q], MX[q], True)
    for q in range(4):
        M = MX[q]; QT = Q3[q] + 4
        a(f"""
v_fma_f32 {vr(M)}, abs({vr(M)}), s37, {vr(M)}
v_and_b32 {vr(M)}, 0xffff0000, {vr(M)}
ds_write_b32 v0, {vr(M)} offset:{256*q}
v_xor_b32 {vr(T+q)}, 0x80000000, {vr(M)}
v_cndmask_b32 {vr(QT+1)}, 0, {vr(T+q)}, s[14:15]
""")
    a("s_branch LA_go")
    a("LA_setm0:\ns_waitcnt vmcnt(4)")
    for q in range(4):
        M = MX[q]; QT = Q3[q] + 4
        t, u, w = T, T + 1, T + 2
        a(f"""
v_mov_b32 {vr(t)}, {vr(M)}
v_mov_b32 {vr(u)}, {vr(M)}
s_nop 1
v_permlane32_swap_b32 {vr(t)}, {vr(u)}
s_nop 1
v_max_f32 {vr(M)}, {vr(t)}, {vr(u)}
v_sub_f32 {vr(t)}, 0, {vr(M)}
ds_write_b32 v0, {vr(M)} offset:{256*q}
v_and_b32 {vr(u)}, 0xffff0000, {vr(t)}
v_sub_f32 {vr(t)}, {vr(t)}, {vr(u)}
v_and_b32 {vr(w)}, 0xffff0000, {vr(t)}
v_sub_f32 {vr(t)}, {vr(t)}, {vr(w)}
v_lshrrev_b32 {vr(u)}, 16, {vr(u)}
v_or_b32 {vr(u)}, {vr(u)}, {vr(w)}
v_lshrrev_b32 {vr(t)}, 16, {vr(t)}
v_cndmask_b32 {vr(QT+1)}, 0, {vr(u)}, s[14:15]
v_cndmask_b32 {vr(QT+2)}, 0, {vr(t)}, s[14:15]
""")
    a("LA_go:\ns_waitcnt lgkmcnt(0)")
    qk(S3[0], 0, 0)
    for q in range(4):
        a(f"{MFMA} {vr(O3[q],16)}, {vr(S3[1],4)}, {vr(S3[1],4)}, 0")
    a("s_nop 4")
    a(f"""
s_add_u32 s31, s28, {2*1280}
s_add_u32 s33, s29, {1*1280}
s_mov_b32 s32, 8
""")
    if PROF: a("s_memrealtime s[42:43]")
    a(".p2align 6\nLA_loop:")
    def phase(Sx, Sy, Op, vb, qn, kb, pre=None, aft2=None, aft4=None):
        e = lambda j: a(f"v_exp_f32 {vr(Sx+j)}, {vr(Sx+j)}")
        c = lambda j: a(f"v_cvt_pk_bf16_f32 {vr(Sx+j)}, {vr(Sx+2*j)}, {vr(Sx+2*j+1)}")
        if pre: pre()
        M1 = f"{MFMA} {vr(Op,16)}, {vr(V3B+8*vb,4)}, {vr(Sy,4)}, {vr(Op,16)}"
        M2 = f"{MFMA} {vr(Op,16)}, {vr(V3B+8*vb+4,4)}, {vr(Sy+4,4)}, {vr(Op,16)}"
        M3 = f"{MFMA} {vr(Sy,16)}, {vr(K3B+8*kb,4)}, {vr(Q3[qn],4)}, 0"
        M4 = f"{MFMA} {vr(Sy,16)}, {vr(K3B+8*kb+4,4)}, {vr(Q3[qn]+4,4)}, {vr(Sy,16)}"
        if 'al1' in VAR:
            a(M1); e(0); e(1); e(2); e(3)
            a(M2)
            if aft2: aft2()
            c(0); e(4); e(5); c(1)
            a(M3); e(6); e(7); c(2); e(8); e(9)
            a(M4)
            if aft4: aft4()
            c(3); c(4); e(10); e(11); e(12); e(13); c(5); e(14); e(15); c(6); c(7)
        elif 'al2' in VAR:
            a(M1); e(0); e(1)
            a(M2)
            if aft2: aft2()
            e(2); e(3); c(0); e(4); e(5)
            a(M3); c(1); e(6); e(7); c(2)
            a(M4)
            if aft4: aft4()
            e(8); e(9); c(3); e(10); e(11); c(4); e(12); e(13); c(5); e(14); e(15); c(6); c(7)
        else:
            a(M1); e(0); e(1); e(2)
            a(M2)
            if aft2: aft2()
            e(3); c(0); e(4); e(5)
            a(M3); c(1); e(6); e(7); e(8)
            a(M4)
            if aft4: aft4()
            c(2); c(3); e(9); e(10); e(11); c(4); e(12); e(13); c(5); e(14); e(15); c(6); c(7)
    w4 = lambda: a("s_waitcnt vmcnt(4)" + ("\ns_nop 0" if ('al1' in VAR or 'al2' in VAR) else ""))
    for u in range(2):
        def lv(u=u):
            loadV((u + 1) % 2, "s33"); a("s_add_u32 s33, s33, 1280")
        def lk(u=u):
            loadK(u, "s31"); a("s_add_u32 s31, s31, 1280")
        phase(S3[0], S3[1], O3[3], (u + 1) % 2, 1, u, aft2=lv)
        phase(S3[1], S3[0], O3[0], u, 2, u, pre=w4)
        phase(S3[0], S3[1], O3[1], u, 3, u, aft4=lk)
        phase(S3[1], S3[0], O3[2], u, 0, (u + 1) % 2, pre=w4)
    a(f"""
s_sub_u32 s32, s32, 1
s_cmp_lg_u32 s32, 0
s_cbranch_scc1 LA_loop
{MFMA} {vr(O3[3],16)}, {vr(V3B+8,4)}, {vr(S3[1],4)}, {vr(O3[3],16)}
{MFMA} {vr(O3[3],16)}, {vr(V3B+12,4)}, {vr(S3[1]+4,4)}, {vr(O3[3],16)}
""")
    if PROF: a("s_memrealtime s[44:45]")
    t, t1, t2, t3 = S3[1] + 8, S3[1] + 9, S3[1] + 10, S3[1] + 11
    a(f"""
s_mul_i32 s34, s20, 3072
v_add_u32 {vr(t)}, s34, v3
v_mov_b32 {vr(t1)}, 0x71800000
""")
    for q in range(4):
        for j in range(3): a(f"ds_write_b128 {vr(t)}, {vr(O3[q]+4*j,4)} offset:{q*12288 + j*1024}")
        acc_ = (t2, t3)
        for j in range(0, 12):
            r = acc_[j & 1]
            if q == 0 and j < 2: a(f"v_and_b32 {vr(r)}, 0x7fffffff, {vr(O3[q]+j)}")
            else: a(f"v_add_f32 {vr(r)}, {vr(r)}, abs({vr(O3[q]+j)})")
    a(f"""
v_add_f32 {vr(t2)}, {vr(t2)}, {vr(t3)}
v_cmp_nlt_f32 vcc, {vr(t2)}, {vr(t1)}
s_cmp_lg_u32 s30, 0
s_cbranch_scc1 LA_comb
s_nop 2
s_cmp_eq_u64 vcc, 0
s_cbranch_scc1 LA_comb
s_mov_b32 s30, 1
s_waitcnt vmcnt(0) lgkmcnt(0)
s_branch LA_restart
LA_comb:
""")
    a(f"""
s_mul_i32 s34, s20, 12288
v_add_u32 {vr(t)}, s34, v3
v_lshlrev_b32 {vr(t1)}, 2, v4
s_lshl_b32 s34, s20, 8
s_add_u32 s34, s34, {LDS_M}
v_add_u32 {vr(t1)}, s34, {vr(t1)}
s_add_u32 s26, s26, s20
s_waitcnt lgkmcnt(0)
s_barrier
""")
    Mr = [Q3[0] + w for w in range(4)]
    for w in range(4): a(f"ds_read_b32 v{Mr[w]}, {vr(t1)} offset:{1024*w}")
    for w in range(4):
        for j in range(3): a(f"ds_read_b128 {vr(O3[w]+4*j,4)}, {vr(t)} offset:{w*3072 + j*1024}")
    g_, kbv, g8, tb = Q3[1], Q3[1] + 1, Q3[1] + 2, Q3[1] + 3
    ad = [Q3[1] + 4, Q3[1] + 5, Q3[1] + 6]
    a(f"""
s_lshl_b32 s34, s26, 1
s_mul_i32 s34, s34, {68*1024}
s_add_u32 s34, s34, {AF}
v_bfe_u32 {vr(tb)}, v1, 4, 1
v_mul_u32_u24 {vr(tb)}, {68*1024}, {vr(tb)}
v_and_b32 {vr(g8)}, 15, v1
v_lshl_add_u32 {vr(tb)}, {vr(g8)}, 4, {vr(tb)}
s_mul_i32 s35, s21, 5
v_add_u32 {vr(g_)}, s35, v5
""")
    for i in range(3):
        a(f"""
v_lshrrev_b32 {vr(kbv)}, 3, {vr(g_)}
v_lshl_add_u32 {vr(ad[i])}, {vr(kbv)}, 10, {vr(tb)}
v_bfe_u32 {vr(g8)}, {vr(g_)}, 2, 1
v_lshl_add_u32 {vr(ad[i])}, {vr(g8)}, 9, {vr(ad[i])}
v_and_b32 {vr(g8)}, 1, {vr(g_)}
v_lshl_add_u32 {vr(ad[i])}, {vr(g8)}, 8, {vr(ad[i])}
v_bfe_u32 {vr(g8)}, {vr(g_)}, 1, 1
v_lshl_add_u32 {vr(ad[i])}, {vr(g8)}, 3, {vr(ad[i])}
""")
        if i < 2: a(f"v_add_u32 {vr(g_)}, 2, {vr(g_)}")
    m, l, l2 = Q3[2], Q3[2] + 1, Q3[2] + 2
    a(f"""
s_waitcnt lgkmcnt(12)
v_max3_f32 {vr(m)}, v{Mr[0]}, v{Mr[1]}, v{Mr[2]}
v_max_f32 {vr(m)}, {vr(m)}, v{Mr[3]}
""")
    for w in range(4): a(f"v_sub_f32 v{Mr[w]}, v{Mr[w]}, {vr(m)}")
    for w in range(4): a(f"v_exp_f32 v{Mr[w]}, v{Mr[w]}")
    a(f"s_waitcnt lgkmcnt(0)\nv_mul_f32 {vr(l)}, {vr(O3[0]+8)}, v{Mr[0]}")
    for w in range(1, 4): a(f"v_fmac_f32 {vr(l)}, {vr(O3[w]+8)}, v{Mr[w]}")
    a(f"""
v_mov_b32 {vr(l2)}, {vr(l)}
s_nop 1
v_permlane32_swap_b32 {vr(l)}, {vr(l2)}
s_nop 1
v_rcp_f32 {vr(l2)}, {vr(l2)}
s_nop 0
""")
    for w in range(4): a(f"v_mul_f32 v{Mr[w]}, v{Mr[w]}, {vr(l2)}")
    PKo = Q3[3]
    for i in range(3):
        for j in range(4 * i, 4 * i + 4):
            a(f"v_mul_f32 {vr(O3[0]+j)}, {vr(O3[0]+j)}, v{Mr[0]}")
            for w in range(1, 4): a(f"v_fmac_f32 {vr(O3[0]+j)}, {vr(O3[w]+j)}, v{Mr[w]}")
        for j in range(2):
            a(f"v_cvt_pk_bf16_f32 {vr(PKo+2*i+j)}, {vr(O3[0]+4*i+2*j)}, {vr(O3[0]+4*i+2*j+1)}")
        if i == 2: a("s_mov_b64 exec, s[14:15]")
        a(f"buffer_store_dwordx2 {vr(PKo+2*i,2)}, {vr(ad[i])}, s[8:11], s34 offen" + (" sc1" if FUSE else ""))
    if FUSE:
        a(f"""
s_mov_b64 exec, -1
s_waitcnt vmcnt(0)
s_barrier
s_cmp_lg_u32 s20, 0
s_cbranch_scc1 LA_fin
s_lshl_b32 s55, s22, 1
s_add_u32 s55, s55, s16
s_lshl_b32 s55, s55, 8
s_add_u32 s55, s55, {CNTW}
v_mov_b32 v10, 0
v_mov_b32 v11, 1
s_mov_b64 exec, 1
buffer_atomic_add v11, v10, s[8:11], s55 offen sc1
LA_fin:
""")
    if PROF:
        a("s_mov_b64 exec, -1")
        prof_out(a, 0x3100000, 8, 20, [40, 42, 44, 46])
    a("s_endpgm")

def splitk(a, L, nkb, kb_base, D, mode, ST, ACCV, prio=None, rounds=((0, 1, 2), (3, 4)), RESR=None, pre=None, mid=None):
    a(f"""
{L}:
s_and_b32 s27, s3, 7
s_lshr_b32 s28, s3, 3
s_lshr_b32 s29, s27, 1
s_lshl_b32 s29, s29, 3
s_lshr_b32 s30, s28, 2
s_add_u32 s29, s29, s30               ; mb
s_and_b32 s30, s27, 1
s_lshl_b32 s30, s30, 2
s_and_b32 s31, s28, 3
s_add_u32 s30, s30, s31               ; nb
v_lshlrev_b32 v3, 4, v1
v_add_u32 v4, {1*69632}, v3
v_add_u32 v5, {2*69632}, v3
v_add_u32 v6, {3*69632}, v3
v_add_u32 v7, 4096, v3
s_mul_i32 s32, s20, {nkb}
s_add_u32 s32, s32, {kb_base}
s_mul_i32 s33, s29, {4*69632}
s_lshl_b32 s34, s32, 10
s_add_u32 s33, s33, s34
s_add_u32 s33, s33, {AF}
s_mul_i32 s34, s32, 40960
s_mul_i32 s35, s30, 5120
s_add_u32 s34, s34, s35
s_add_u32 s34, s34, {BF}
""")
    FUSED = mode == "fused"
    N1 = nkb
    if FUSED:
        nkb = N1 + 5
        a(f"""
s_mul_i32 s52, s20, 5
s_mul_i32 s53, s29, {4*69632}
s_lshl_b32 s54, s52, 10
s_add_u32 s53, s53, s54
s_add_u32 s53, s53, {AF}
s_mul_i32 s54, s52, 40960
s_add_u32 s54, s54, s35
s_add_u32 s54, s54, {BF}
""")
    def loadsB(kb):
        b = ST + 36 * (kb % D)
        if FUSED and kb == N1: a("s_mov_b32 s34, s54")
        for j in range(4):
            a(f"buffer_load_dwordx4 {vr(b+16+4*j,4)}, v3, s[8:11], s34 offen offset:{j*1024}")
        a(f"buffer_load_dwordx4 {vr(b+32,4)}, v7, s[8:11], s34 offen")
        a("s_add_u32 s34, s34, 40960")
    def loadsA(kb):
        b = ST + 36 * (kb % D)
        if FUSED and kb == N1: a("s_mov_b32 s33, s53")
        sc = " sc1" if (FUSED and kb >= N1) else ""
        for i in range(4):
            a(f"buffer_load_dwordx4 {vr(b+4*i,4)}, v{3+i}, s[8:11], s33 offen{sc}")
        a("s_add_u32 s33, s33, 1024")
    def loads(kb):
        loadsB(kb)
        if not (FUSED and kb in (N1, N1 + 1)): loadsA(kb)
    if pre: pre()
    for kb in range(min(D, nkb)): loads(kb)
    a(f"""
s_lshl_b32 s36, s29, 6
s_lshl_b32 s37, s20, 4
s_add_u32 s36, s36, s37
v_and_b32 v8, 15, v1
v_add_u32 v8, s36, v8
v_mul_u32_u24 v8, 1280, v8
v_lshrrev_b32 v9, 4, v1
v_lshl_add_u32 v8, v9, 3, v8
s_mul_i32 s36, s30, 160
s_lshl_b32 s38, s29, 3
s_add_u32 s38, s38, s30
s_mul_i32 s38, s38, 20480
s_mul_i32 s39, s20, 5120
s_add_u32 s38, s38, s39
s_add_u32 s38, s38, {YY}
""")
    def resloads(RES):
        if mode == "final":
            for j in range(4): a(f"buffer_load_dwordx4 {vr(RES+4*j,4)}, v3, s[8:11], s38 offen offset:{j*1024}")
            a(f"buffer_load_dwordx4 {vr(RES+16,4)}, v7, s[8:11], s38 offen")
        else:
            for j in range(5): a(f"buffer_load_dwordx2 {vr(RES+2*j,2)}, v8, s[12:15], s36 offen offset:{32*j}")
    if RESR is not None:
        assert D >= nkb
        resloads(RESR)
    if mid: mid()
    for kb in range(nkb):
        b = ST + 36 * (kb % D)
        rem = min(D - 1, nkb - 1 - kb)
        if FUSED and kb == N1 - 1: a("s_waitcnt vmcnt(5)")
        elif FUSED and kb == N1:
            a(f"""
s_cmp_lg_u32 s20, 0
s_cbranch_scc1 {L}_pw
s_lshr_b32 s55, s29, 1
s_lshl_b32 s55, s55, 8
s_add_u32 s55, s55, {CNTW}
v_mov_b32 v10, 0
s_mov_b64 exec, 1
{L}_pl:
buffer_load_dword v11, v10, s[8:11], s55 offen sc1
s_waitcnt vmcnt(0)
v_readfirstlane_b32 s56, v11
s_nop 3
s_cmp_ge_u32 s56, 32
s_cbranch_scc1 {L}_pd
s_sleep {SLEEP}
s_branch {L}_pl
{L}_pd:
s_mov_b64 exec, -1
{L}_pw:
s_barrier
""")
            if PROF: a("s_memrealtime s[42:43]")
            loadsA(N1); loadsA(N1 + 1)
            a("s_waitcnt vmcnt(4)")
        else: a(f"s_waitcnt vmcnt({9*rem + (5 if RESR is not None else 0)})")
        if prio and not FUSED: a(f"s_setprio {prio[1]}")
        for i in range(4):
            for j in range(5):
                t = 5 * i + j
                c = "0" if kb == 0 else ACCV(t)
                if not (mode == "down" and 'nomf' in VAR and kb > 0): a(f"{MF16} {ACCV(t)}, {vr(b+16+4*j,4)}, {vr(b+4*i,4)}, {c}")
        if prio and kb + D < nkb and not FUSED: a(f"s_setprio {prio[0]}")
        if kb + D < nkb and not (mode == "down" and 'nold' in VAR): loads(kb + D)
    if PROF: a("s_memrealtime s[44:45]")
    RES = ST if RESR is None else RESR
    if RESR is None: resloads(RES)
    else: a("s_nop 4")
    OWN = ST + 20
    R = ST + 40
    a("s_nop 3")
    a(f"""
s_mul_i32 s37, s20, {3*1024*len(rounds[0])}
v_add_u32 v9, s37, v3
""")
    SL = 1024 * len(rounds[0]); NJ = len(rounds[0])
    for rnd, js in enumerate(rounds):
        for w in range(4):
            if w < 3:
                a(f"s_cmp_eq_u32 s20, {w}\ns_cbranch_scc0 {L}_r{rnd}n{w}")
            for i in range(4):
                if i == w: continue
                slot = w if w < i else w - 1
                for jj, j in enumerate(js):
                    a(f"ds_write_b128 v3, {ACCV(5*i+j)} offset:{(i*3+slot)*SL + jj*1024}")
            for j in js:
                src = ACCV(5 * w + j)
                base = int(src[2:src.index(":")])
                for r in range(4):
                    if src[0] == "a": a(f"v_accvgpr_read_b32 v{OWN+4*j+r}, a{base+r}")
                    else: a(f"v_mov_b32 v{OWN+4*j+r}, v{base+r}")
            if w < 3:
                a(f"s_branch {L}_r{rnd}d\n{L}_r{rnd}n{w}:")
        a(f"{L}_r{rnd}d:\ns_waitcnt lgkmcnt(0)\ns_barrier")
        for s in range(3):
            for jj, j in enumerate(js):
                a(f"ds_read_b128 {vr(R+4*jj+4*NJ*(s%2),4)}, v9 offset:{s*SL+jj*1024}")
            if s >= 1:
                a(f"s_waitcnt lgkmcnt({len(js)})")
                for jj, j in enumerate(js):
                    for r in range(4): a(f"v_add_f32 v{OWN+4*j+r}, v{OWN+4*j+r}, v{R+4*jj+4*NJ*((s-1)%2)+r}")
        a("s_waitcnt lgkmcnt(0)")
        for jj, j in enumerate(js):
            for r in range(4): a(f"v_add_f32 v{OWN+4*j+r}, v{OWN+4*j+r}, v{R+4*jj+r}")
        if rnd + 1 < len(rounds): a("s_barrier")
    a("s_waitcnt vmcnt(0)")
    if mode == "final":
        for q in range(20): a(f"v_add_f32 v{OWN+q}, v{OWN+q}, v{RES+q}")
    else:
        for j in range(5):
            for hh in range(2):
                a(f"v_lshlrev_b32 v{R}, 16, v{RES+2*j+hh}")
                a(f"v_and_b32 v{R+1}, 0xffff0000, v{RES+2*j+hh}")
                a(f"v_add_f32 v{OWN+4*j+2*hh}, v{OWN+4*j+2*hh}, v{R}")
                a(f"v_add_f32 v{OWN+4*j+2*hh+1}, v{OWN+4*j+2*hh+1}, v{R+1}")
    if mode == "down":
        for j in range(4): a(f"buffer_store_dwordx4 {vr(OWN+4*j,4)}, v3, s[8:11], s38 offen offset:{j*1024} sc1")
        a(f"buffer_store_dwordx4 {vr(OWN+16,4)}, v7, s[8:11], s38 offen sc1")
    else:
        for j in range(5):
            a(f"v_cvt_pk_bf16_f32 v{R+2*j}, v{OWN+4*j}, v{OWN+4*j+1}")
            a(f"v_cvt_pk_bf16_f32 v{R+2*j+1}, v{OWN+4*j+2}, v{OWN+4*j+3}")
            a(f"buffer_store_dwordx2 {vr(R+2*j,2)}, v8, s[16:19], s36 offen offset:{32*j}")

def k2_kernel(a, name, ffn=True, prio=(0, 2), aprio=1):
    kernel_header(a, name)
    a(f"""
s_cmp_ge_u32 s2, 768
s_cbranch_scc1 LK2_end
""")
    if PROF: a("s_memrealtime s[40:41]")
    a(f"""
s_load_dwordx2 s[4:5], s[0:1], 72
v_and_b32 v1, 63, v0
v_lshrrev_b32 v2, 6, v0
s_and_b32 s3, s2, 255
v_readfirstlane_b32 s20, v2
s_lshr_b32 s16, s2, 8                 ; type
s_cmp_eq_u32 s16, 0
s_cbranch_scc1 LK2_ffn
s_sub_u32 s16, s16, 1
s_setprio {aprio}
""")
    if 'attn2' in VAR:
        a("s_waitcnt lgkmcnt(0)")
        srd(a, 8, 4, 5, WS_BYTES)
        attn(a)
    else:
        attn3(a)
    a("LK2_ffn:")
    if ffn:
        a("s_load_dwordx2 s[6:7], s[0:1], 0")
        if FUSE: a("s_load_dwordx2 s[58:59], s[0:1], 56")
        if 'wo2' in VAR: a("s_load_dwordx2 s[60:61], s[0:1], 16")
        a("s_waitcnt lgkmcnt(0)")
        srd(a, 8, 4, 5, WS_BYTES)
        srd(a, 12, 6, 7, 2048 * 640 * 2)
        if PROF: a("s_memrealtime s[42:43]")
        if FUSE:
            srd(a, 16, 58, 59, 2048 * 640 * 2)
        splitk(a, "LD", 12, 20, 2, "fused" if FUSE else "down", 12, lambda t: f"v[{88+4*t}:{91+4*t}]", prio=prio)
        if 'wo2' in VAR:
            a(f"""
s_cmp_lg_u32 s20, 0
s_cbranch_scc1 LW_end
s_cmp_ge_u32 s3, 200
s_cbranch_scc1 LW_end
s_mov_b32 s48, s60
s_mov_b32 s49, s61
s_mov_b32 s50, {640*640*2}
s_mov_b32 s51, 0x00020000
v_lshrrev_b32 v12, 3, v1
v_mul_u32_u24 v12, 1280, v12
v_and_b32 v13, 7, v1
v_lshl_add_u32 v12, v13, 4, v12
v_add_u32 v13, {8*1280-1024}, v12
v_add_u32 v14, {16*1280-2048}, v12
v_add_u32 v15, {24*1280-3072}, v12
s_mul_i32 s52, s3, 52429
s_lshr_b32 s52, s52, 19
s_mul_i32 s53, s52, 10
s_sub_u32 s53, s3, s53
s_mul_i32 s54, s52, {32*1280}
s_lshl_b32 s55, s53, 7
s_add_u32 s54, s54, s55
s_mov_b32 m0, 40960
s_nop 0
buffer_load_dwordx4 v12, s[48:51], s54 offen lds
buffer_load_dwordx4 v13, s[48:51], s54 offen offset:1024 lds
buffer_load_dwordx4 v14, s[48:51], s54 offen offset:2048 lds
buffer_load_dwordx4 v15, s[48:51], s54 offen offset:3072 lds
v_lshrrev_b32 v10, 5, v1
v_lshlrev_b32 v10, 4, v10
v_bfe_u32 v11, v1, 4, 1
v_lshl_add_u32 v10, v11, 2, v10
v_bfe_u32 v11, v1, 2, 2
v_add_u32 v10, v10, v11
v_lshlrev_b32 v10, 7, v10
v_and_b32 v11, 3, v1
v_lshl_add_u32 v10, v11, 3, v10
s_mul_i32 s54, s52, {40*1024}
s_lshl_b32 s55, s53, 12
s_add_u32 s54, s54, s55
s_add_u32 s54, s54, {BF}
s_waitcnt vmcnt(0)
""")
            for jt in range(4):
                for r in range(2):
                    a(f"ds_read_b64_tr_b16 {vr(88+4*jt+2*r,2)}, v10 offset:{40960 + jt*32 + r*8*128}")
            a("s_waitcnt lgkmcnt(0)")
            for jt in range(4):
                a(f"buffer_store_dwordx4 {vr(88+4*jt,4)}, v3, s[8:11], s54 offen offset:{jt*1024} sc1")
            a("LW_end:")
        if not FUSE and 'nopf3' not in VAR:
            a(f"""
s_getpc_b64 s[56:57]
LPC3_ref:
s_add_u32 s48, s56, k3_kernel-LPC3_ref
s_addc_u32 s49, s57, 0
s_mov_b32 s50, LCODE_END-k3_kernel
s_mov_b32 s51, 0x00020000
s_lshl_b32 s58, s20, 10
buffer_load_dwordx4 v[12:15], v3, s[48:51], s58 offen
""")
        if PROF: prof_out(a, 0x3100000, 8, 20, [40, 42, 44, 46])
    a("LK2_end:\ns_endpgm")

K3_LDS = 61440
def k3_kernel(a, name, mode="final"):
    kernel_header(a, name)
    a(f"""
s_cmp_ge_u32 s2, 256
s_cbranch_scc1 LK3_end
""")
    if PROF: a("s_memrealtime s[40:41]\ns_memrealtime s[42:43]")
    a(f"""
s_load_dwordx2 s[4:5], s[0:1], 72
{"" if mode == "final" else "s_load_dwordx2 s[6:7], s[0:1], 0"}
{"" if mode == "final" else "s_load_dwordx2 s[22:23], s[0:1], 56"}
v_and_b32 v1, 63, v0
v_lshrrev_b32 v2, 6, v0
s_mov_b32 s3, s2
v_readfirstlane_b32 s20, v2
""")
    def pre():
        a("s_waitcnt lgkmcnt(0)")
        srd(a, 8, 4, 5, WS_BYTES)
        if mode == "final":
            a("s_load_dwordx2 s[22:23], s[0:1], 56")
        else:
            srd(a, 12, 6, 7, 2048 * 640 * 2)
            srd(a, 16, 22, 23, 2048 * 640 * 2)
    def mid():
        if mode == "final":
            a("s_waitcnt lgkmcnt(0)")
            srd(a, 16, 22, 23, 2048 * 640 * 2)
    if mode == "final": splitk(a, "LF", 5, 0, 5, "final", 12, lambda t: f"a[{4*t}:{4*t+3}]", rounds=((0, 1, 2, 3, 4),), RESR=192, pre=pre, mid=mid)
    else: splitk(a, "LF", 17, 0, 6, "full", 12, lambda t: f"a[{4*t}:{4*t+3}]", pre=pre)
    if PROF: prof_out(a, 0x3200000, 8, 20, [40, 42, 44, 46])
    if PROF and DBGOUT:
        a(f"""
s_mov_b64 exec, -1
s_or_b32 s50, s2, s20
s_cmp_lg_u32 s50, 0
s_cbranch_scc1 LK3_end
s_load_dwordx2 s[52:53], s[0:1], 64
s_waitcnt lgkmcnt(0)
s_mov_b32 s54, 256
s_mov_b32 s55, 0x00020000
v_lshlrev_b32 v20, 2, v1
s_mov_b32 s56, {0x3000000 + 200*8*32}
buffer_load_dword v21, v20, s[8:11], s56 offen
s_mov_b32 s56, {0x3000000 - 20}
buffer_load_dword v22, v20, s[8:11], s56 offen
s_mov_b32 s56, {0x3100000 + 600*4*16 - 32}
buffer_load_dword v23, v20, s[8:11], s56 offen
s_waitcnt vmcnt(0)
v_cmp_gt_u32 vcc, 6, v1
s_nop 1
v_cndmask_b32 v22, v22, v21, vcc
v_cmp_gt_u32 vcc, 8, v1
s_nop 1
v_cndmask_b32 v23, v23, v22, vcc
v_mov_b32 v24, s40
v_cmp_eq_u32 vcc, 12, v1
s_nop 1
v_cndmask_b32 v23, v23, v24, vcc
v_mov_b32 v24, s44
v_cmp_eq_u32 vcc, 13, v1
s_nop 1
v_cndmask_b32 v23, v23, v24, vcc
v_mov_b32 v24, s46
v_cmp_eq_u32 vcc, 14, v1
s_nop 1
v_cndmask_b32 v23, v23, v24, vcc
s_nop 1
v_readfirstlane_b32 s57, v23
s_nop 3
v_subrev_u32 v23, s57, v23
s_mov_b64 exec, 0xffff
buffer_store_dword v23, v20, s[52:55], 0 offen
""")
    a("LK3_end:\ns_endpgm")
K3_ARCH = 12 + 36 * 6
```

```python
from asmlib import *
MFMA = "v_mfma_f32_32x32x16_bf16"
MF16 = "v_mfma_f32_16x16x32_bf16"
QA, QAT, QB, QBT = 8, 12, 16, 20
SA, SB = 24, 40
PA, PB = 56, 64
OA, OB = 72, 88
KB, VB, NB = 104, 136, 4
MA, MB = 0, 2
K2_VGPR = 168
K2_LDS = 53248
PROF = False
VAR = ''
FUSE = False
SLEEP = 16
DBGOUT = False
KPERM = "v2"

def prof_out(a, base, srd, wave_s, regs):
    a("s_waitcnt vmcnt(0) lgkmcnt(0)")
    a(f"s_memrealtime s[{regs[-1]}:{regs[-1]+1}]")
    a("s_waitcnt lgkmcnt(0)")
    for k in range(4):
        a(f"v_mov_b32 v{8+k}, s{regs[min(k, len(regs)-1)]}")
    a(f"""
s_lshl_b32 s34, s2, 2
s_add_u32 s34, s34, s{wave_s}
s_lshl_b32 s34, s34, 4
s_add_u32 s34, s34, {base}
v_mov_b32 v16, 0
s_mov_b64 exec, 1
buffer_store_dwordx4 v[8:11], v16, s[{srd}:{srd+3}], s34 offen
""")

def attn(a):
    T = PA
    a(f"""
LA:
s_and_b32 s21, s3, 7
s_lshl_b32 s21, s21, 2
s_lshr_b32 s22, s3, 3
s_and_b32 s23, s22, 3
s_add_u32 s21, s21, s23              ; head
s_lshr_b32 s22, s3, 5                ; qblock
s_and_b32 s23, s20, 1
s_lshl_b32 s24, s16, 1
s_add_u32 s23, s23, s24              ; qsub
s_lshr_b32 s24, s20, 1               ; khalf
s_mul_i32 s25, s21, {64*1280}
s_lshl_b32 s26, s22, 3
s_lshl_b32 s27, s23, 1
s_add_u32 s26, s26, s27              ; qtile a
s_mul_i32 s27, s26, 1280
s_add_u32 s27, s27, s25
s_mul_i32 s28, s24, {32*1280}
s_add_u32 s28, s28, s25
s_add_u32 s29, s28, {VF}
s_add_u32 s28, s28, {KF}
v_lshlrev_b32 v3, 4, v1
v_and_b32 v4, 31, v1
v_lshrrev_b32 v5, 5, v1
v_lshlrev_b32 v6, 3, v4
v_lshl_add_u32 v6, v5, 2, v6
v_add_u32 v6, 1024, v6
v_mul_u32_u24 v7, 320, v5
v_lshl_add_u32 v7, v4, 4, v7
buffer_load_dwordx4 {vr(QA,4)}, v3, s[8:11], s27 offen
buffer_load_dword {vr(QAT)}, v6, s[8:11], s27 offen
buffer_load_dwordx4 {vr(QB,4)}, v3, s[8:11], s27 offen offset:1280
buffer_load_dword {vr(QBT)}, v6, s[8:11], s27 offen offset:1280
s_mov_b32 s30, 0
s_mov_b32 s12, 0x000FFFFF
s_mov_b32 s13, 0x000FFFFF
s_mov_b32 s14, 0xFFFFFFFF
s_mov_b32 s15, 0
""")
    def rowmax(S, M, init):
        if init:
            a(f"v_max3_f32 {vr(M)}, {vr(S)}, {vr(S+1)}, {vr(S+2)}")
            a(f"v_max_f32 {vr(M)}, {vr(M)}, {vr(S+3)}")
            st = 4
        else: st = 0
        for j in range(st, 16, 2):
            a(f"v_max3_f32 {vr(M)}, {vr(M)}, {vr(S+j)}, {vr(S+j+1)}")
    def qk(S, Qm, Qt, kb):
        a(f"{MFMA} {vr(S,16)}, {vr(KB+8*kb,4)}, {vr(Qm,4)}, 0")
        a(f"{MFMA} {vr(S,16)}, {vr(KB+8*kb+4,4)}, {vr(Qt,4)}, {vr(S,16)}")
    def loadK(kb, soff, imm=0):
        a(f"buffer_load_dwordx4 {vr(KB+8*kb,4)}, v3, s[8:11], {soff} offen offset:{imm}")
        a(f"buffer_load_dword {vr(KB+8*kb+4)}, v6, s[8:11], {soff} offen offset:{imm}")
    def loadV(vb, soff, imm=0):
        a("s_mov_b64 exec, s[12:13]")
        a(f"buffer_load_dwordx4 {vr(VB+8*vb,4)}, v7, s[8:11], {soff} offen offset:{imm}")
        a(f"buffer_load_dwordx4 {vr(VB+8*vb+4,4)}, v7, s[8:11], {soff} offen offset:{imm+640}")
        a("s_mov_b64 exec, -1")
    a("s_branch LA_pro")
    a("LA_restart:")
    for q in (QAT, QBT):
        for j in (1, 2): a(f"v_mov_b32 {vr(q+j)}, 0")
    a(f"""
v_mov_b32 {vr(MA)}, 0xff800000
v_mov_b32 {vr(MB)}, 0xff800000
s_mov_b32 s31, s28
s_mov_b32 s32, 32
LA_maxloop:
""")
    loadK(0, "s31")
    a("s_waitcnt vmcnt(0)")
    qk(SA, QA, QAT, 0); qk(SB, QB, QBT, 0)
    a("s_nop 15\ns_nop 3")
    rowmax(SA, MA, False); rowmax(SB, MB, False)
    a(f"""
s_add_u32 s31, s31, 1280
s_sub_u32 s32, s32, 1
s_cmp_lg_u32 s32, 0
s_cbranch_scc1 LA_maxloop
LA_pro:
""")
    loadK(0, "s28", 0)
    loadK(1, "s28", 1280)
    a(f"""
v_mov_b32 {vr(T)}, 0x3f803f80
v_cmp_eq_u32 vcc, 20, v4
v_cndmask_b32 {vr(T+2)}, 0, {vr(T)}, s[14:15]
s_nop 0
v_cndmask_b32 {vr(T+1)}, 0, {vr(T)}, vcc
""")
    for j in range(8): a(f"v_mov_b32 {vr(VB+j)}, {vr(T+1)}")
    loadV(0, "s29", 0)
    loadK(2, "s28", 2560)
    for j in range(8): a(f"v_mov_b32 {vr(VB+8+j)}, {vr(T+1)}")
    loadV(1, "s29", 1280)
    a(f"s_add_u32 s31, s28, {3*1280}")
    loadK(3, "s31", 0)
    for j in range(8): a(f"v_mov_b32 {vr(VB+16+j)}, {vr(T+1)}")
    loadV(2, "s29", 2560)
    for j in range(8): a(f"v_mov_b32 {vr(VB+24+j)}, {vr(T+1)}")
    for i in range(NB):
        a(f"v_mov_b32 {vr(KB+8*i+5)}, {vr(T+2)}")
        a(f"v_mov_b32 {vr(KB+8*i+6)}, {vr(T+2)}")
        a(f"v_mov_b32 {vr(KB+8*i+7)}, 0")
    for j in range(16):
        a(f"v_mov_b32 {vr(OA+j)}, 0")
        a(f"v_mov_b32 {vr(OB+j)}, 0")
    for j in range(8): a(f"v_mov_b32 {vr(PB+j)}, 0")
    a(f"""
s_cmp_lg_u32 s30, 0
s_cbranch_scc1 LA_setm0
""")
    for q in (QAT, QBT):
        for j in (1, 2, 3): a(f"v_mov_b32 {vr(q+j)}, 0")
    a("s_waitcnt vmcnt(12)")
    qk(SA, QA, QAT, 0); qk(SB, QB, QBT, 0)
    a("s_nop 11")
    rowmax(SA, MA, True); rowmax(SB, MB, True)
    a("LA_setm0:\ns_waitcnt vmcnt(12)")
    for (M, QT) in ((MA, QAT), (MB, QBT)):
        t, u, w = T, T+1, T+2
        a(f"""
v_mov_b32 {vr(t)}, {vr(M)}
v_mov_b32 {vr(u)}, {vr(M)}
s_nop 1
v_permlane32_swap_b32 {vr(t)}, {vr(u)}
s_nop 1
v_max_f32 {vr(M)}, {vr(t)}, {vr(u)}
v_sub_f32 {vr(t)}, 0, {vr(M)}
v_and_b32 {vr(u)}, 0xffff0000, {vr(t)}
v_sub_f32 {vr(t)}, {vr(t)}, {vr(u)}
v_and_b32 {vr(w)}, 0xffff0000, {vr(t)}
v_sub_f32 {vr(t)}, {vr(t)}, {vr(w)}
v_lshrrev_b32 {vr(u)}, 16, {vr(u)}
v_or_b32 {vr(u)}, {vr(u)}, {vr(w)}
v_lshrrev_b32 {vr(t)}, 16, {vr(t)}
v_cndmask_b32 {vr(QT+1)}, 0, {vr(u)}, s[14:15]
v_cndmask_b32 {vr(QT+2)}, 0, {vr(t)}, s[14:15]
""")
        if M == MA:
            a("s_nop 1")
            qk(SA, QA, QAT, 0)
    a(f"""
s_add_u32 s31, s28, {4*1280}
s_add_u32 s33, s29, {3*1280}
s_mov_b32 s32, 8
""")
    if PROF: a("s_memrealtime s[42:43]")
    a(".p2align 6\nLA_loop:")
    def phase(Sx, Px, Sy, Py, Oy, Qy, Qyt, kb, vb, mid=None, post=None, pre=None):
        e = lambda j: a(f"v_exp_f32 {vr(Sx+j)}, {vr(Sx+j)}")
        c = lambda j: a(f"v_cvt_pk_bf16_f32 {vr(Px+j)}, {vr(Sx+2*j)}, {vr(Sx+2*j+1)}")
        if pre: pre()
        a(f"{MFMA} {vr(Sy,16)}, {vr(KB+8*kb,4)}, {vr(Qy,4)}, 0")
        e(0); e(1); e(2); e(3)
        a(f"{MFMA} {vr(Sy,16)}, {vr(KB+8*kb+4,4)}, {vr(Qyt,4)}, {vr(Sy,16)}")
        if mid: mid()
        c(0); c(1); e(4); e(5); e(6); e(7)
        a(f"{MFMA} {vr(Oy,16)}, {vr(VB+8*vb,4)}, {vr(Py,4)}, {vr(Oy,16)}")
        c(2); c(3); e(8); e(9); e(10); e(11)
        a(f"{MFMA} {vr(Oy,16)}, {vr(VB+8*vb+4,4)}, {vr(Py+4,4)}, {vr(Oy,16)}")
        if post: post()
        c(4); c(5); e(12); e(13); e(14); e(15); c(6); c(7)
    for u in range(NB):
        def mid(u=u):
            loadK(u, "s31"); a("s_add_u32 s31, s31, 1280")
        def post(u=u):
            loadV((u+3) % NB, "s33"); a("s_add_u32 s33, s33, 1280")
        phase(SA, PA, SB, PB, OB, QB, QBT, u, (u+3) % NB, mid, post)
        phase(SB, PB, SA, PA, OA, QA, QAT, (u+1) % NB, u, pre=lambda: a("s_waitcnt vmcnt(12)"))
    a(f"""
s_sub_u32 s32, s32, 1
s_cmp_lg_u32 s32, 0
s_cbranch_scc1 LA_loop
{MFMA} {vr(OB,16)}, {vr(VB+8*3,4)}, {vr(PB,4)}, {vr(OB,16)}
{MFMA} {vr(OB,16)}, {vr(VB+8*3+4,4)}, {vr(PB+4,4)}, {vr(OB,16)}
""")
    if PROF: a("s_memrealtime s[44:45]")
    t, t1 = PA, PA + 1
    a(f"""
v_lshlrev_b32 {vr(PA+2)}, 4, v1
s_lshl_b32 s34, s20, 12
v_add_u32 {vr(PA+3)}, s34, {vr(PA+2)}
s_xor_b32 s35, s20, 2
s_lshl_b32 s35, s35, 12
v_add_u32 {vr(PA+4)}, s35, {vr(PA+2)}
v_mov_b32 {vr(t1)}, 0x71800000
v_add_f32 {vr(t)}, abs({vr(OA)}), abs({vr(OA+1)})
""")
    for j in range(2, 12): a(f"v_add_f32 {vr(t)}, {vr(t)}, abs({vr(OA+j)})")
    for j in range(12): a(f"v_add_f32 {vr(t)}, {vr(t)}, abs({vr(OB+j)})")
    a(f"""
v_cmp_nlt_f32 vcc, {vr(t)}, {vr(t1)}
s_cmp_lg_u32 s30, 0
s_cbranch_scc1 LA_comb
s_nop 2
s_cmp_eq_u64 vcc, 0
s_cbranch_scc1 LA_comb
s_mov_b32 s30, 1
s_waitcnt vmcnt(0)
s_branch LA_restart
LA_comb:
s_cmp_eq_u32 s24, 0
s_cbranch_scc1 LA_c0
""")
    w_, r_ = PA + 3, PA + 4
    for j in range(3): a(f"ds_write_b128 {vr(w_)}, {vr(OA+4*j,4)} offset:{j*1024}")
    a(f"ds_write_b32 {vr(w_)}, {vr(MA)} offset:3072")
    for j in range(12): a(f"v_mov_b32 {vr(OA+j)}, {vr(OB+j)}")
    a(f"v_mov_b32 {vr(MA)}, {vr(MB)}")
    a("s_add_u32 s26, s26, 1\ns_branch LA_c1\nLA_c0:")
    for j in range(3): a(f"ds_write_b128 {vr(w_)}, {vr(OB+4*j,4)} offset:{j*1024}")
    a(f"ds_write_b32 {vr(w_)}, {vr(MB)} offset:3072")
    a("LA_c1:\ns_waitcnt lgkmcnt(0)\ns_barrier")
    X = SB
    for j in range(3): a(f"ds_read_b128 {vr(X+4*j,4)}, {vr(r_)} offset:{j*1024}")
    a(f"ds_read_b32 {vr(MB)}, {vr(r_)} offset:3072")
    g_, kbv, g8 = PB, PB + 1, PB + 2
    ad = [PB + 3, PB + 4, PB + 5]
    a(f"""
s_lshl_b32 s34, s26, 1
s_mul_i32 s34, s34, {68*1024}
s_add_u32 s34, s34, {AF}
v_bfe_u32 {vr(t)}, v1, 4, 1
v_mul_u32_u24 {vr(t)}, {68*1024}, {vr(t)}
v_and_b32 {vr(t1)}, 15, v1
v_lshl_add_u32 {vr(t)}, {vr(t1)}, 4, {vr(t)}
s_mul_i32 s35, s21, 5
v_add_u32 {vr(g_)}, s35, v5
""")
    for i in range(3):
        a(f"""
v_lshrrev_b32 {vr(kbv)}, 3, {vr(g_)}
v_lshl_add_u32 {vr(ad[i])}, {vr(kbv)}, 10, {vr(t)}
""")
        if KPERM == "v2":
            a(f"""
v_and_b32 {vr(g8)}, 3, {vr(g_)}
v_lshl_add_u32 {vr(ad[i])}, {vr(g8)}, 8, {vr(ad[i])}
v_bfe_u32 {vr(g8)}, {vr(g_)}, 2, 1
v_lshl_add_u32 {vr(ad[i])}, {vr(g8)}, 3, {vr(ad[i])}
""")
        else:
            a(f"""
v_bfe_u32 {vr(g8)}, {vr(g_)}, 2, 1
v_lshl_add_u32 {vr(ad[i])}, {vr(g8)}, 9, {vr(ad[i])}
v_and_b32 {vr(g8)}, 1, {vr(g_)}
v_lshl_add_u32 {vr(ad[i])}, {vr(g8)}, 8, {vr(ad[i])}
v_bfe_u32 {vr(g8)}, {vr(g_)}, 1, 1
v_lshl_add_u32 {vr(ad[i])}, {vr(g8)}, 3, {vr(ad[i])}
""")
        if i < 2: a(f"v_add_u32 {vr(g_)}, 2, {vr(g_)}")
    m, f1, f2, l, l2 = PA + 2, PA + 3, PA + 5, PA + 6, PA + 7
    a(f"""
s_waitcnt lgkmcnt(0)
v_max_f32 {vr(m)}, {vr(MA)}, {vr(MB)}
v_sub_f32 {vr(f1)}, {vr(MA)}, {vr(m)}
v_sub_f32 {vr(f2)}, {vr(MB)}, {vr(m)}
v_exp_f32 {vr(f1)}, {vr(f1)}
v_exp_f32 {vr(f2)}, {vr(f2)}
s_nop 0
v_mul_f32 {vr(l)}, {vr(OA+8)}, {vr(f1)}
v_fmac_f32 {vr(l)}, {vr(X+8)}, {vr(f2)}
v_mov_b32 {vr(l2)}, {vr(l)}
s_nop 1
v_permlane32_swap_b32 {vr(l)}, {vr(l2)}
s_nop 1
v_rcp_f32 {vr(l2)}, {vr(l2)}
s_nop 0
v_mul_f32 {vr(f1)}, {vr(f1)}, {vr(l2)}
v_mul_f32 {vr(f2)}, {vr(f2)}, {vr(l2)}
""")
    for i in range(3):
        for j in range(4 * i, 4 * i + 4):
            a(f"v_mul_f32 {vr(OA+j)}, {vr(OA+j)}, {vr(f1)}")
            a(f"v_fmac_f32 {vr(OA+j)}, {vr(X+j)}, {vr(f2)}")
        for j in range(2):
            a(f"v_cvt_pk_bf16_f32 {vr(OB+2*i+j)}, {vr(OA+4*i+2*j)}, {vr(OA+4*i+2*j+1)}")
        if i == 2: a("s_mov_b64 exec, s[14:15]")
        a(f"buffer_store_dwordx2 {vr(OB+2*i,2)}, {vr(ad[i])}, s[8:11], s34 offen")
    if PROF:
        a("s_mov_b64 exec, -1")
        prof_out(a, 0x3100000, 8, 20, [40, 42, 44, 46])
    a("s_endpgm")


Q3 = [8, 16, 24, 32]
S3 = [40, 56]
O3 = [72, 88, 104, 120]
K3B, V3B = 136, 152
LDS_M = 49152
def attn3(a):
    a(f"""
LA:
s_and_b32 s21, s3, 7
s_lshl_b32 s21, s21, 2
s_lshr_b32 s22, s3, 3
s_and_b32 s23, s22, 3
s_add_u32 s21, s21, s23              ; head
s_lshr_b32 s22, s3, 5                ; qblock
s_mul_i32 s25, s21, {64*1280}
s_lshl_b32 s26, s22, 3
s_lshl_b32 s27, s16, 2
s_add_u32 s26, s26, s27
s_mul_i32 s27, s26, 1280
s_add_u32 s27, s27, s25
s_mul_i32 s28, s20, {16*1280}
s_add_u32 s28, s28, s25
s_add_u32 s29, s28, {VF}
s_add_u32 s28, s28, {KF}
v_lshlrev_b32 v3, 4, v1
v_and_b32 v4, 31, v1
v_lshrrev_b32 v5, 5, v1
v_lshlrev_b32 v6, 3, v4
v_lshl_add_u32 v6, v5, 2, v6
v_add_u32 v6, 1024, v6
v_mul_u32_u24 v7, 320, v5
v_lshl_add_u32 v7, v4, 4, v7
s_mov_b32 s30, 0
s_mov_b32 s12, 0x000FFFFF
s_mov_b32 s13, 0x000FFFFF
s_mov_b32 s14, 0xFFFFFFFF
s_mov_b32 s15, 0
s_add_u32 s36, s27, 2560
s_mov_b32 s37, 0xbc000000
s_waitcnt lgkmcnt(0)
""")
    srd(a, 8, 4, 5, WS_BYTES)
    def loadK(kb, soff, imm=0):
        a(f"buffer_load_dwordx4 {vr(K3B+8*kb,4)}, v3, s[8:11], {soff} offen offset:{imm}")
        a(f"buffer_load_dword {vr(K3B+8*kb+4)}, v6, s[8:11], {soff} offen offset:{imm}")
    def loadV(vb, soff, imm=0):
        a("s_mov_b64 exec, s[12:13]")
        a(f"buffer_load_dwordx4 {vr(V3B+8*vb,4)}, v7, s[8:11], {soff} offen offset:{imm}")
        a(f"buffer_load_dwordx4 {vr(V3B+8*vb+4,4)}, v7, s[8:11], {soff} offen offset:{imm+640}")
        a("s_mov_b64 exec, -1")
    def qk(S, q, kb):
        a(f"{MFMA} {vr(S,16)}, {vr(K3B+8*kb,4)}, {vr(Q3[q],4)}, 0")
        a(f"{MFMA} {vr(S,16)}, {vr(K3B+8*kb+4,4)}, {vr(Q3[q]+4,4)}, {vr(S,16)}")
    def rowmax(S, M, init):
        if init:
            a(f"v_max3_f32 {vr(M)}, {vr(S)}, {vr(S+1)}, {vr(S+2)}")
            a(f"v_max_f32 {vr(M)}, {vr(M)}, {vr(S+3)}")
            st = 4
        else: st = 0
        for j in range(st, 16, 2):
            a(f"v_max3_f32 {vr(M)}, {vr(M)}, {vr(S+j)}, {vr(S+j+1)}")
    for q in range(4):
        so = "s27" if q < 2 else "s36"
        a(f"buffer_load_dwordx4 {vr(Q3[q],4)}, v3, s[8:11], {so} offen offset:{1280*(q&1)}")
        a(f"buffer_load_dword {vr(Q3[q]+4)}, v6, s[8:11], {so} offen offset:{1280*(q&1)}")
    MX = [S3[0] + 0, S3[0] + 1, S3[0] + 2, S3[0] + 3]
    T = S3[0] + 4
    a("s_branch LA_pro")
    a("LA_restart:")
    for q in range(4):
        for j in (5, 6): a(f"v_mov_b32 {vr(Q3[q]+j)}, 0")
        a(f"v_mov_b32 {vr(MX[q])}, 0xff800000")
    a("s_mov_b32 s31, s28\ns_mov_b32 s32, 16\nLA_maxloop:")
    loadK(0, "s31")
    a("s_waitcnt vmcnt(0)")
    for q in range(4): qk(O3[q], q, 0)
    a("s_nop 15\ns_nop 3")
    for q in range(4): rowmax(O3[q], MX[q], False)
    a(f"""
s_add_u32 s31, s31, 1280
s_sub_u32 s32, s32, 1
s_cmp_lg_u32 s32, 0
s_cbranch_scc1 LA_maxloop
LA_pro:
""")
    loadK(0, "s28", 0)
    a(f"""
v_mov_b32 {vr(T)}, 0x3f803f80
v_cmp_eq_u32 vcc, 20, v4
v_cndmask_b32 {vr(T+2)}, 0, {vr(T)}, s[14:15]
s_nop 0
v_cndmask_b32 {vr(T+1)}, 0, {vr(T)}, vcc
""")
    for j in range(8): a(f"v_mov_b32 {vr(V3B+j)}, {vr(T+1)}")
    loadV(0, "s29", 0)
    loadK(1, "s28", 1280)
    for j in range(8): a(f"v_mov_b32 {vr(V3B+8+j)}, {vr(T+1)}")
    for i in range(2):
        a(f"v_mov_b32 {vr(K3B+8*i+5)}, {vr(T+2)}\nv_mov_b32 {vr(K3B+8*i+6)}, {vr(T+2)}\nv_mov_b32 {vr(K3B+8*i+7)}, 0")
    for j in range(8): a(f"v_mov_b32 {vr(S3[1]+j)}, 0")
    a(f"""
v_lshlrev_b32 v0, 2, v1
s_lshl_b32 s34, s20, 10
s_add_u32 s34, s34, {LDS_M}
v_add_u32 v0, s34, v0
s_cmp_lg_u32 s30, 0
s_cbranch_scc1 LA_setm0
""")
    for q in range(4):
        for j in (5, 6, 7): a(f"v_mov_b32 {vr(Q3[q]+j)}, 0")
    a("s_waitcnt vmcnt(4)")
    for q in range(4): qk(O3[q], q, 0)
    a("s_nop 5")
    for q in range(4): rowmax(O3[q], MX[q], True)
    for q in range(4):
        M = MX[q]; QT = Q3[q] + 4
        a(f"""
v_fma_f32 {vr(M)}, abs({vr(M)}), s37, {vr(M)}
v_and_b32 {vr(M)}, 0xffff0000, {vr(M)}
ds_write_b32 v0, {vr(M)} offset:{256*q}
v_xor_b32 {vr(T+q)}, 0x80000000, {vr(M)}
v_cndmask_b32 {vr(QT+1)}, 0, {vr(T+q)}, s[14:15]
""")
    a("s_branch LA_go")
    a("LA_setm0:\ns_waitcnt vmcnt(4)")
    for q in range(4):
        M = MX[q]; QT = Q3[q] + 4
        t, u, w = T, T + 1, T + 2
        a(f"""
v_mov_b32 {vr(t)}, {vr(M)}
v_mov_b32 {vr(u)}, {vr(M)}
s_nop 1
v_permlane32_swap_b32 {vr(t)}, {vr(u)}
s_nop 1
v_max_f32 {vr(M)}, {vr(t)}, {vr(u)}
v_sub_f32 {vr(t)}, 0, {vr(M)}
ds_write_b32 v0, {vr(M)} offset:{256*q}
v_and_b32 {vr(u)}, 0xffff0000, {vr(t)}
v_sub_f32 {vr(t)}, {vr(t)}, {vr(u)}
v_and_b32 {vr(w)}, 0xffff0000, {vr(t)}
v_sub_f32 {vr(t)}, {vr(t)}, {vr(w)}
v_lshrrev_b32 {vr(u)}, 16, {vr(u)}
v_or_b32 {vr(u)}, {vr(u)}, {vr(w)}
v_lshrrev_b32 {vr(t)}, 16, {vr(t)}
v_cndmask_b32 {vr(QT+1)}, 0, {vr(u)}, s[14:15]
v_cndmask_b32 {vr(QT+2)}, 0, {vr(t)}, s[14:15]
""")
    a("LA_go:\ns_waitcnt lgkmcnt(0)")
    qk(S3[0], 0, 0)
    for q in range(4):
        a(f"{MFMA} {vr(O3[q],16)}, {vr(S3[1],4)}, {vr(S3[1],4)}, 0")
    a("s_nop 4")
    a(f"""
s_add_u32 s31, s28, {2*1280}
s_add_u32 s33, s29, {1*1280}
s_mov_b32 s32, 8
""")
    if PROF: a("s_memrealtime s[42:43]")
    a(".p2align 6\nLA_loop:")
    def phase(Sx, Sy, Op, vb, qn, kb, pre=None, aft2=None, aft4=None):
        e = lambda j: a(f"v_exp_f32 {vr(Sx+j)}, {vr(Sx+j)}")
        c = lambda j: a(f"v_cvt_pk_bf16_f32 {vr(Sx+j)}, {vr(Sx+2*j)}, {vr(Sx+2*j+1)}")
        if pre: pre()
        M1 = f"{MFMA} {vr(Op,16)}, {vr(V3B+8*vb,4)}, {vr(Sy,4)}, {vr(Op,16)}"
        M2 = f"{MFMA} {vr(Op,16)}, {vr(V3B+8*vb+4,4)}, {vr(Sy+4,4)}, {vr(Op,16)}"
        M3 = f"{MFMA} {vr(Sy,16)}, {vr(K3B+8*kb,4)}, {vr(Q3[qn],4)}, 0"
        M4 = f"{MFMA} {vr(Sy,16)}, {vr(K3B+8*kb+4,4)}, {vr(Q3[qn]+4,4)}, {vr(Sy,16)}"
        if 'al1' in VAR:
            a(M1); e(0); e(1); e(2); e(3)
            a(M2)
            if aft2: aft2()
            c(0); e(4); e(5); c(1)
            a(M3); e(6); e(7); c(2); e(8); e(9)
            a(M4)
            if aft4: aft4()
            c(3); c(4); e(10); e(11); e(12); e(13); c(5); e(14); e(15); c(6); c(7)
        elif 'al2' in VAR:
            a(M1); e(0); e(1)
            a(M2)
            if aft2: aft2()
            e(2); e(3); c(0); e(4); e(5)
            a(M3); c(1); e(6); e(7); c(2)
            a(M4)
            if aft4: aft4()
            e(8); e(9); c(3); e(10); e(11); c(4); e(12); e(13); c(5); e(14); e(15); c(6); c(7)
        else:
            a(M1); e(0); e(1); e(2)
            a(M2)
            if aft2: aft2()
            e(3); c(0); e(4); e(5)
            a(M3); c(1); e(6); e(7); e(8)
            a(M4)
            if aft4: aft4()
            c(2); c(3); e(9); e(10); e(11); c(4); e(12); e(13); c(5); e(14); e(15); c(6); c(7)
    w4 = lambda: a("s_waitcnt vmcnt(4)" + ("\ns_nop 0" if ('al1' in VAR or 'al2' in VAR) else ""))
    for u in range(2):
        def lv(u=u):
            loadV((u + 1) % 2, "s33"); a("s_add_u32 s33, s33, 1280")
        def lk(u=u):
            loadK(u, "s31"); a("s_add_u32 s31, s31, 1280")
        phase(S3[0], S3[1], O3[3], (u + 1) % 2, 1, u, aft2=lv)
        phase(S3[1], S3[0], O3[0], u, 2, u, pre=w4)
        phase(S3[0], S3[1], O3[1], u, 3, u, aft4=lk)
        phase(S3[1], S3[0], O3[2], u, 0, (u + 1) % 2, pre=w4)
    a(f"""
s_sub_u32 s32, s32, 1
s_cmp_lg_u32 s32, 0
s_cbranch_scc1 LA_loop
{MFMA} {vr(O3[3],16)}, {vr(V3B+8,4)}, {vr(S3[1],4)}, {vr(O3[3],16)}
{MFMA} {vr(O3[3],16)}, {vr(V3B+12,4)}, {vr(S3[1]+4,4)}, {vr(O3[3],16)}
""")
    if PROF: a("s_memrealtime s[44:45]")
    t, t1, t2, t3 = S3[1] + 8, S3[1] + 9, S3[1] + 10, S3[1] + 11
    a(f"""
s_mul_i32 s34, s20, 3072
v_add_u32 {vr(t)}, s34, v3
v_mov_b32 {vr(t1)}, 0x71800000
""")
    for q in range(4):
        for j in range(3): a(f"ds_write_b128 {vr(t)}, {vr(O3[q]+4*j,4)} offset:{q*12288 + j*1024}")
        acc_ = (t2, t3)
        for j in range(0, 12):
            r = acc_[j & 1]
            if q == 0 and j < 2: a(f"v_and_b32 {vr(r)}, 0x7fffffff, {vr(O3[q]+j)}")
            else: a(f"v_add_f32 {vr(r)}, {vr(r)}, abs({vr(O3[q]+j)})")
    a(f"""
v_add_f32 {vr(t2)}, {vr(t2)}, {vr(t3)}
v_cmp_nlt_f32 vcc, {vr(t2)}, {vr(t1)}
s_cmp_lg_u32 s30, 0
s_cbranch_scc1 LA_comb
s_nop 2
s_cmp_eq_u64 vcc, 0
s_cbranch_scc1 LA_comb
s_mov_b32 s30, 1
s_waitcnt vmcnt(0) lgkmcnt(0)
s_branch LA_restart
LA_comb:
""")
    a(f"""
s_mul_i32 s34, s20, 12288
v_add_u32 {vr(t)}, s34, v3
v_lshlrev_b32 {vr(t1)}, 2, v4
s_lshl_b32 s34, s20, 8
s_add_u32 s34, s34, {LDS_M}
v_add_u32 {vr(t1)}, s34, {vr(t1)}
s_add_u32 s26, s26, s20
s_waitcnt lgkmcnt(0)
s_barrier
""")
    Mr = [Q3[0] + w for w in range(4)]
    for w in range(4): a(f"ds_read_b32 v{Mr[w]}, {vr(t1)} offset:{1024*w}")
    for w in range(4):
        for j in range(3): a(f"ds_read_b128 {vr(O3[w]+4*j,4)}, {vr(t)} offset:{w*3072 + j*1024}")
    g_, kbv, g8, tb = Q3[1], Q3[1] + 1, Q3[1] + 2, Q3[1] + 3
    ad = [Q3[1] + 4, Q3[1] + 5, Q3[1] + 6]
    a(f"""
s_lshl_b32 s34, s26, 1
s_mul_i32 s34, s34, {68*1024}
s_add_u32 s34, s34, {AF}
v_bfe_u32 {vr(tb)}, v1, 4, 1
v_mul_u32_u24 {vr(tb)}, {68*1024}, {vr(tb)}
v_and_b32 {vr(g8)}, 15, v1
v_lshl_add_u32 {vr(tb)}, {vr(g8)}, 4, {vr(tb)}
s_mul_i32 s35, s21, 5
v_add_u32 {vr(g_)}, s35, v5
""")
    for i in range(3):
        a(f"""
v_lshrrev_b32 {vr(kbv)}, 3, {vr(g_)}
v_lshl_add_u32 {vr(ad[i])}, {vr(kbv)}, 10, {vr(tb)}
v_bfe_u32 {vr(g8)}, {vr(g_)}, 2, 1
v_lshl_add_u32 {vr(ad[i])}, {vr(g8)}, 9, {vr(ad[i])}
v_and_b32 {vr(g8)}, 1, {vr(g_)}
v_lshl_add_u32 {vr(ad[i])}, {vr(g8)}, 8, {vr(ad[i])}
v_bfe_u32 {vr(g8)}, {vr(g_)}, 1, 1
v_lshl_add_u32 {vr(ad[i])}, {vr(g8)}, 3, {vr(ad[i])}
""")
        if i < 2: a(f"v_add_u32 {vr(g_)}, 2, {vr(g_)}")
    m, l, l2 = Q3[2], Q3[2] + 1, Q3[2] + 2
    a(f"""
s_waitcnt lgkmcnt(12)
v_max3_f32 {vr(m)}, v{Mr[0]}, v{Mr[1]}, v{Mr[2]}
v_max_f32 {vr(m)}, {vr(m)}, v{Mr[3]}
""")
    for w in range(4): a(f"v_sub_f32 v{Mr[w]}, v{Mr[w]}, {vr(m)}")
    for w in range(4): a(f"v_exp_f32 v{Mr[w]}, v{Mr[w]}")
    a(f"s_waitcnt lgkmcnt(0)\nv_mul_f32 {vr(l)}, {vr(O3[0]+8)}, v{Mr[0]}")
    for w in range(1, 4): a(f"v_fmac_f32 {vr(l)}, {vr(O3[w]+8)}, v{Mr[w]}")
    a(f"""
v_mov_b32 {vr(l2)}, {vr(l)}
s_nop 1
v_permlane32_swap_b32 {vr(l)}, {vr(l2)}
s_nop 1
v_rcp_f32 {vr(l2)}, {vr(l2)}
s_nop 0
""")
    for w in range(4): a(f"v_mul_f32 v{Mr[w]}, v{Mr[w]}, {vr(l2)}")
    PKo = Q3[3]
    for i in range(3):
        for j in range(4 * i, 4 * i + 4):
            a(f"v_mul_f32 {vr(O3[0]+j)}, {vr(O3[0]+j)}, v{Mr[0]}")
            for w in range(1, 4): a(f"v_fmac_f32 {vr(O3[0]+j)}, {vr(O3[w]+j)}, v{Mr[w]}")
        for j in range(2):
            a(f"v_cvt_pk_bf16_f32 {vr(PKo+2*i+j)}, {vr(O3[0]+4*i+2*j)}, {vr(O3[0]+4*i+2*j+1)}")
        if 'fakew' in VAR:
            if i == 1:
                a(f"s_mul_i32 s35, s21, 512\ns_add_u32 s35, s35, s34\nv_lshl_add_u32 {vr(ad[0])}, v5, 8, {vr(tb)}")
                a(f"buffer_store_dwordx4 {vr(PKo,4)}, {vr(ad[0])}, s[8:11], s35 offen sc1")
            if i == 2:
                a(f"s_mul_i32 s35, s21, 128\ns_add_u32 s35, s35, s34\ns_add_u32 s35, s35, 16384\ns_mov_b64 exec, s[14:15]")
                a(f"buffer_store_dwordx4 {vr(PKo+4,4)}, {vr(tb)}, s[8:11], s35 offen sc1")
            continue
        if i == 2: a("s_mov_b64 exec, s[14:15]")
        a(f"buffer_store_dwordx2 {vr(PKo+2*i,2)}, {vr(ad[i])}, s[8:11], s34 offen" + (" sc1" if FUSE else ""))
    if FUSE:
        a(f"""
s_mov_b64 exec, -1
s_waitcnt vmcnt(0)
s_barrier
s_cmp_lg_u32 s20, 0
s_cbranch_scc1 LA_fin
s_lshl_b32 s55, s22, 1
s_add_u32 s55, s55, s16
s_lshl_b32 s55, s55, 8
s_add_u32 s55, s55, {CNTW}
v_mov_b32 v10, 0
v_mov_b32 v11, 1
s_mov_b64 exec, 1
buffer_atomic_add v11, v10, s[8:11], s55 offen sc1
LA_fin:
""")
    if PROF:
        a("s_mov_b64 exec, -1")
        prof_out(a, 0x3100000, 8, 20, [40, 42, 44, 46])
    a("s_endpgm")

def splitk(a, L, nkb, kb_base, D, mode, ST, ACCV, prio=None, rounds=((0, 1, 2), (3, 4)), RESR=None, pre=None, mid=None):
    a(f"""
{L}:
s_and_b32 s27, s3, 7
s_lshr_b32 s28, s3, 3
s_lshr_b32 s29, s27, 1
s_lshl_b32 s29, s29, 3
s_lshr_b32 s30, s28, 2
s_add_u32 s29, s29, s30               ; mb
s_and_b32 s30, s27, 1
s_lshl_b32 s30, s30, 2
s_and_b32 s31, s28, 3
s_add_u32 s30, s30, s31               ; nb
v_lshlrev_b32 v3, 4, v1
v_add_u32 v4, {1*69632}, v3
v_add_u32 v5, {2*69632}, v3
v_add_u32 v6, {3*69632}, v3
v_add_u32 v7, 4096, v3
s_mul_i32 s32, s20, {nkb}
s_add_u32 s32, s32, {kb_base}
s_mul_i32 s33, s29, {4*69632}
s_lshl_b32 s34, s32, 10
s_add_u32 s33, s33, s34
s_add_u32 s33, s33, {AF}
s_mul_i32 s34, s32, 40960
s_mul_i32 s35, s30, 5120
s_add_u32 s34, s34, s35
s_add_u32 s34, s34, {BF}
""")
    FUSED = mode == "fused"
    N1 = nkb
    if FUSED:
        nkb = N1 + 5
        a(f"""
s_mul_i32 s52, s20, 5
s_mul_i32 s53, s29, {4*69632}
s_lshl_b32 s54, s52, 10
s_add_u32 s53, s53, s54
s_add_u32 s53, s53, {AF}
s_mul_i32 s54, s52, 40960
s_add_u32 s54, s54, s35
s_add_u32 s54, s54, {BF}
""")
    def loadsB(kb):
        b = ST + 36 * (kb % D)
        if FUSED and kb == N1: a("s_mov_b32 s34, s54")
        for j in range(4):
            a(f"buffer_load_dwordx4 {vr(b+16+4*j,4)}, v3, s[8:11], s34 offen offset:{j*1024}")
        a(f"buffer_load_dwordx4 {vr(b+32,4)}, v7, s[8:11], s34 offen")
        a("s_add_u32 s34, s34, 40960")
    def loadsA(kb):
        b = ST + 36 * (kb % D)
        if FUSED and kb == N1: a("s_mov_b32 s33, s53")
        sc = " sc1" if (FUSED and kb >= N1) else ""
        for i in range(4):
            a(f"buffer_load_dwordx4 {vr(b+4*i,4)}, v{3+i}, s[8:11], s33 offen{sc}")
        a("s_add_u32 s33, s33, 1024")
    def loads(kb):
        loadsB(kb)
        if not (FUSED and kb in (N1, N1 + 1)): loadsA(kb)
    if pre: pre()
    for kb in range(min(D, nkb)): loads(kb)
    a(f"""
s_lshl_b32 s36, s29, 6
s_lshl_b32 s37, s20, 4
s_add_u32 s36, s36, s37
v_and_b32 v8, 15, v1
v_add_u32 v8, s36, v8
v_mul_u32_u24 v8, 1280, v8
v_lshrrev_b32 v9, 4, v1
v_lshl_add_u32 v8, v9, 3, v8
s_mul_i32 s36, s30, 160
s_lshl_b32 s38, s29, 3
s_add_u32 s38, s38, s30
s_mul_i32 s38, s38, 20480
s_mul_i32 s39, s20, 5120
s_add_u32 s38, s38, s39
s_add_u32 s38, s38, {YY}
""")
    def resloads(RES):
        if mode == "final":
            for j in range(4): a(f"buffer_load_dwordx4 {vr(RES+4*j,4)}, v3, s[8:11], s38 offen offset:{j*1024}")
            a(f"buffer_load_dwordx4 {vr(RES+16,4)}, v7, s[8:11], s38 offen")
        else:
            for j in range(5): a(f"buffer_load_dwordx2 {vr(RES+2*j,2)}, v8, s[12:15], s36 offen offset:{32*j}")
    if RESR is not None:
        assert D >= nkb
        resloads(RESR)
    if mid: mid()
    for kb in range(nkb):
        b = ST + 36 * (kb % D)
        rem = min(D - 1, nkb - 1 - kb)
        if FUSED and kb == N1 - 1: a("s_waitcnt vmcnt(5)")
        elif FUSED and kb == N1:
            a(f"""
s_cmp_lg_u32 s20, 0
s_cbranch_scc1 {L}_pw
s_lshr_b32 s55, s29, 2
s_lshl_b32 s55, s55, 9
s_add_u32 s55, s55, {CNTW + 256}
v_mov_b32 v10, 0
s_mov_b32 s57, 0
s_mov_b64 exec, 1
{L}_pl:
buffer_load_dword v11, v10, s[8:11], s55 offen sc1
s_waitcnt vmcnt(0)
v_readfirstlane_b32 s56, v11
s_nop 3
s_cmp_ge_u32 s56, 32
s_cbranch_scc1 {L}_pn
s_sleep {SLEEP}
s_branch {L}_pl
{L}_pn:
s_sub_u32 s55, s55, 256
s_add_u32 s57, s57, 1
s_bitcmp1_b32 s29, 1
s_cbranch_scc1 {L}_pd
s_cmp_lt_u32 s57, 2
s_cbranch_scc1 {L}_pl
{L}_pd:
s_mov_b64 exec, -1
{L}_pw:
s_barrier
""")
            if PROF: a("s_memrealtime s[42:43]")
            loadsA(N1); loadsA(N1 + 1)
            a("s_waitcnt vmcnt(4)")
        else: a(f"s_waitcnt vmcnt({9*rem + (5 if RESR is not None else 0)})")
        if prio and not FUSED: a(f"s_setprio {prio[1]}")
        for i in range(4):
            for j in range(5):
                t = 5 * i + j
                c = "0" if kb == 0 else ACCV(t)
                if not (mode == "down" and 'nomf' in VAR and kb > 0): a(f"{MF16} {ACCV(t)}, {vr(b+16+4*j,4)}, {vr(b+4*i,4)}, {c}")
        if prio and kb + D < nkb and not FUSED: a(f"s_setprio {prio[0]}")
        if kb + D < nkb and not (mode == "down" and 'nold' in VAR): loads(kb + D)
    if PROF: a("s_memrealtime s[44:45]")
    RES = ST if RESR is None else RESR
    if RESR is None: resloads(RES)
    else: a("s_nop 4")
    OWN = ST + 20
    R = ST + 40
    a("s_nop 3")
    a(f"""
s_mul_i32 s37, s20, {3*1024*len(rounds[0])}
v_add_u32 v9, s37, v3
""")
    SL = 1024 * len(rounds[0]); NJ = len(rounds[0])
    for rnd, js in enumerate(rounds):
        for w in range(4):
            if w < 3:
                a(f"s_cmp_eq_u32 s20, {w}\ns_cbranch_scc0 {L}_r{rnd}n{w}")
            for i in range(4):
                if i == w: continue
                slot = w if w < i else w - 1
                for jj, j in enumerate(js):
                    a(f"ds_write_b128 v3, {ACCV(5*i+j)} offset:{(i*3+slot)*SL + jj*1024}")
            for j in js:
                src = ACCV(5 * w + j)
                base = int(src[2:src.index(":")])
                for r in range(4):
                    if src[0] == "a": a(f"v_accvgpr_read_b32 v{OWN+4*j+r}, a{base+r}")
                    else: a(f"v_mov_b32 v{OWN+4*j+r}, v{base+r}")
            if w < 3:
                a(f"s_branch {L}_r{rnd}d\n{L}_r{rnd}n{w}:")
        a(f"{L}_r{rnd}d:\ns_waitcnt lgkmcnt(0)\ns_barrier")
        for s in range(3):
            for jj, j in enumerate(js):
                a(f"ds_read_b128 {vr(R+4*jj+4*NJ*(s%2),4)}, v9 offset:{s*SL+jj*1024}")
            if s >= 1:
                a(f"s_waitcnt lgkmcnt({len(js)})")
                for jj, j in enumerate(js):
                    for r in range(4): a(f"v_add_f32 v{OWN+4*j+r}, v{OWN+4*j+r}, v{R+4*jj+4*NJ*((s-1)%2)+r}")
        a("s_waitcnt lgkmcnt(0)")
        for jj, j in enumerate(js):
            for r in range(4): a(f"v_add_f32 v{OWN+4*j+r}, v{OWN+4*j+r}, v{R+4*jj+r}")
        if rnd + 1 < len(rounds): a("s_barrier")
    a("s_waitcnt vmcnt(0)")
    if mode == "final":
        for q in range(20): a(f"v_add_f32 v{OWN+q}, v{OWN+q}, v{RES+q}")
    else:
        for j in range(5):
            for hh in range(2):
                a(f"v_lshlrev_b32 v{R}, 16, v{RES+2*j+hh}")
                a(f"v_and_b32 v{R+1}, 0xffff0000, v{RES+2*j+hh}")
                a(f"v_add_f32 v{OWN+4*j+2*hh}, v{OWN+4*j+2*hh}, v{R}")
                a(f"v_add_f32 v{OWN+4*j+2*hh+1}, v{OWN+4*j+2*hh+1}, v{R+1}")
    if mode == "down":
        for j in range(4): a(f"buffer_store_dwordx4 {vr(OWN+4*j,4)}, v3, s[8:11], s38 offen offset:{j*1024} sc1")
        a(f"buffer_store_dwordx4 {vr(OWN+16,4)}, v7, s[8:11], s38 offen sc1")
    else:
        for j in range(5):
            a(f"v_cvt_pk_bf16_f32 v{R+2*j}, v{OWN+4*j}, v{OWN+4*j+1}")
            a(f"v_cvt_pk_bf16_f32 v{R+2*j+1}, v{OWN+4*j+2}, v{OWN+4*j+3}")
            a(f"buffer_store_dwordx2 {vr(R+2*j,2)}, v8, s[16:19], s36 offen offset:{32*j}")

def k2_kernel(a, name, ffn=True, prio=(0, 2), aprio=1):
    kernel_header(a, name)
    a(f"""
s_cmp_ge_u32 s2, 768
s_cbranch_scc1 LK2_end
""")
    if PROF: a("s_memrealtime s[40:41]")
    a(f"""
s_load_dwordx2 s[4:5], s[0:1], 72
v_and_b32 v1, 63, v0
v_lshrrev_b32 v2, 6, v0
s_and_b32 s3, s2, 255
v_readfirstlane_b32 s20, v2
s_lshr_b32 s16, s2, 8                 ; type
s_cmp_eq_u32 s16, 0
s_cbranch_scc1 LK2_ffn
s_sub_u32 s16, s16, 1
s_setprio {aprio}
""")
    if 'attn2' in VAR:
        a("s_waitcnt lgkmcnt(0)")
        srd(a, 8, 4, 5, WS_BYTES)
        attn(a)
    else:
        attn3(a)
    a("LK2_ffn:")
    if ffn:
        a("s_load_dwordx2 s[6:7], s[0:1], 0")
        if FUSE: a("s_load_dwordx2 s[58:59], s[0:1], 56")
        if 'wo2' in VAR: a("s_load_dwordx2 s[60:61], s[0:1], 16")
        a("s_waitcnt lgkmcnt(0)")
        srd(a, 8, 4, 5, WS_BYTES)
        srd(a, 12, 6, 7, 2048 * 640 * 2)
        if PROF: a("s_memrealtime s[42:43]")
        if FUSE:
            srd(a, 16, 58, 59, 2048 * 640 * 2)
        splitk(a, "LD", 12, 20, 2, "fused" if FUSE else "down", 12, lambda t: f"v[{88+4*t}:{91+4*t}]", prio=prio)
        if 'wo2' in VAR:
            a(f"""
s_cmp_lg_u32 s20, 0
s_cbranch_scc1 LW_end
s_cmp_ge_u32 s3, 200
s_cbranch_scc1 LW_end
s_mov_b32 s48, s60
s_mov_b32 s49, s61
s_mov_b32 s50, {640*640*2}
s_mov_b32 s51, 0x00020000
v_lshrrev_b32 v12, 3, v1
v_mul_u32_u24 v12, 1280, v12
v_and_b32 v13, 7, v1
v_lshl_add_u32 v12, v13, 4, v12
v_add_u32 v13, {8*1280-1024}, v12
v_add_u32 v14, {16*1280-2048}, v12
v_add_u32 v15, {24*1280-3072}, v12
s_mul_i32 s52, s3, 52429
s_lshr_b32 s52, s52, 19
s_mul_i32 s53, s52, 10
s_sub_u32 s53, s3, s53
s_mul_i32 s54, s52, {32*1280}
s_lshl_b32 s55, s53, 7
s_add_u32 s54, s54, s55
s_mov_b32 m0, 40960
s_nop 0
buffer_load_dwordx4 v12, s[48:51], s54 offen lds
buffer_load_dwordx4 v13, s[48:51], s54 offen offset:1024 lds
buffer_load_dwordx4 v14, s[48:51], s54 offen offset:2048 lds
buffer_load_dwordx4 v15, s[48:51], s54 offen offset:3072 lds
v_lshrrev_b32 v10, 5, v1
v_lshlrev_b32 v10, 4, v10
v_bfe_u32 v11, v1, 4, 1
v_lshl_add_u32 v10, v11, 2, v10
v_bfe_u32 v11, v1, 2, 2
v_add_u32 v10, v10, v11
v_lshlrev_b32 v10, 7, v10
v_and_b32 v11, 3, v1
v_lshl_add_u32 v10, v11, 3, v10
s_mul_i32 s54, s52, {40*1024}
s_lshl_b32 s55, s53, 12
s_add_u32 s54, s54, s55
s_add_u32 s54, s54, {BF}
s_waitcnt vmcnt(0)
""")
            for jt in range(4):
                for r in range(2):
                    a(f"ds_read_b64_tr_b16 {vr(88+4*jt+2*r,2)}, v10 offset:{40960 + jt*32 + r*8*128}")
            a("s_waitcnt lgkmcnt(0)")
            for jt in range(4):
                a(f"buffer_store_dwordx4 {vr(88+4*jt,4)}, v3, s[8:11], s54 offen offset:{jt*1024} sc1")
            a("LW_end:")
        if not FUSE and 'nopf3' not in VAR:
            a(f"""
s_getpc_b64 s[56:57]
LPC3_ref:
s_add_u32 s48, s56, k3_kernel-LPC3_ref
s_addc_u32 s49, s57, 0
s_mov_b32 s50, LCODE_END-k3_kernel
s_mov_b32 s51, 0x00020000
s_lshl_b32 s58, s20, 10
buffer_load_dwordx4 v[12:15], v3, s[48:51], s58 offen
""")
        if PROF: prof_out(a, 0x3100000, 8, 20, [40, 42, 44, 46])
    a("LK2_end:\ns_endpgm")

K3_LDS = 61440
def k3_kernel(a, name, mode="final"):
    kernel_header(a, name)
    a(f"""
s_cmp_ge_u32 s2, 256
s_cbranch_scc1 LK3_end
""")
    if PROF: a("s_memrealtime s[40:41]\ns_memrealtime s[42:43]")
    a(f"""
s_load_dwordx2 s[4:5], s[0:1], 72
{"" if mode == "final" else "s_load_dwordx2 s[6:7], s[0:1], 0"}
{"" if mode == "final" else "s_load_dwordx2 s[22:23], s[0:1], 56"}
v_and_b32 v1, 63, v0
v_lshrrev_b32 v2, 6, v0
s_mov_b32 s3, s2
v_readfirstlane_b32 s20, v2
""")
    def pre():
        a("s_waitcnt lgkmcnt(0)")
        srd(a, 8, 4, 5, WS_BYTES)
        if mode == "final":
            a("s_load_dwordx2 s[22:23], s[0:1], 56")
        else:
            srd(a, 12, 6, 7, 2048 * 640 * 2)
            srd(a, 16, 22, 23, 2048 * 640 * 2)
    def mid():
        if mode == "final":
            a("s_waitcnt lgkmcnt(0)")
            srd(a, 16, 22, 23, 2048 * 640 * 2)
    if mode == "final": splitk(a, "LF", 5, 0, 5, "final", 12, lambda t: f"a[{4*t}:{4*t+3}]", rounds=((0, 1, 2, 3, 4),), RESR=192, pre=pre, mid=mid)
    else: splitk(a, "LF", 17, 0, 6, "full", 12, lambda t: f"a[{4*t}:{4*t+3}]", pre=pre)
    if PROF: prof_out(a, 0x3200000, 8, 20, [40, 42, 44, 46])
    if PROF and DBGOUT:
        a(f"""
s_mov_b64 exec, -1
s_or_b32 s50, s2, s20
s_cmp_lg_u32 s50, 0
s_cbranch_scc1 LK3_end
s_load_dwordx2 s[52:53], s[0:1], 64
s_waitcnt lgkmcnt(0)
s_mov_b32 s54, 256
s_mov_b32 s55, 0x00020000
v_lshlrev_b32 v20, 2, v1
s_mov_b32 s56, {0x3000000 + 200*8*32}
buffer_load_dword v21, v20, s[8:11], s56 offen
s_mov_b32 s56, {0x3000000 - 20}
buffer_load_dword v22, v20, s[8:11], s56 offen
s_mov_b32 s56, {0x3100000 + 600*4*16 - 32}
buffer_load_dword v23, v20, s[8:11], s56 offen
s_waitcnt vmcnt(0)
v_cmp_gt_u32 vcc, 6, v1
s_nop 1
v_cndmask_b32 v22, v22, v21, vcc
v_cmp_gt_u32 vcc, 8, v1
s_nop 1
v_cndmask_b32 v23, v23, v22, vcc
v_mov_b32 v24, s40
v_cmp_eq_u32 vcc, 12, v1
s_nop 1
v_cndmask_b32 v23, v23, v24, vcc
v_mov_b32 v24, s44
v_cmp_eq_u32 vcc, 13, v1
s_nop 1
v_cndmask_b32 v23, v23, v24, vcc
v_mov_b32 v24, s46
v_cmp_eq_u32 vcc, 14, v1
s_nop 1
v_cndmask_b32 v23, v23, v24, vcc
s_nop 1
v_readfirstlane_b32 s57, v23
s_nop 3
v_subrev_u32 v23, s57, v23
s_mov_b64 exec, 0xffff
buffer_store_dword v23, v20, s[52:55], 0 offen
""")
    a("LK3_end:\ns_endpgm")
K3_ARCH = 12 + 36 * 6
```
